```python
import torch

def _softmax(x, axis=-1):
    return torch.softmax(x, dim=axis)
def _gelu(x):
    return torch.nn.functional.gelu(x, approximate="tanh")
def _silu(x):
    return torch.nn.functional.silu(x)
def _sigmoid(x):
    return torch.sigmoid(x)
def _layernorm(x, axis=-1, eps=1e-5):
    m = x.mean(dim=axis, keepdim=True)
    v = x.var(dim=axis, keepdim=True, unbiased=False)
    return (x - m) / torch.sqrt(v + eps)
def _scatter_add(tgt, idx, src, axis=0):
    return tgt.clone().index_add_(axis, idx, src)
def _segment_sum(src, seg, n):
    out = torch.zeros((n,) + src.shape[1:], dtype=src.dtype)
    return out.index_add_(0, seg, src)
def _pad(x, pw):
    flat = tuple(v for pair in reversed(pw) for v in pair)
    return torch.nn.functional.pad(x, flat)

kernel_name = 'recurrent_scan__sliding_block_cached__dense_activation_squared_relu__prompt'

def setup_inputs():

    _w = (lambda a: (lambda t: t.to(torch.bfloat16) if t.is_floating_point() else t)(torch.as_tensor(a)))
    def _A_setup():
        B, Sq, D = 1, 2048, 512
        Hq, Hkv, Sk, Dh = 32, 8, 2048, 128
        assert Hq % Hkv == 0, (Hq, Hkv)
        return {
            "x": _w((lambda *s: torch.randn(*s, dtype=torch.bfloat16) * 0.05)(B, Sq, D)),
            "k_cache": _w((lambda *s: torch.randn(*s, dtype=torch.bfloat16) * 0.8)(B, Hkv, Sk, Dh)),
            "v_cache": _w((lambda *s: torch.randn(*s, dtype=torch.bfloat16) * 0.2)(B, Hkv, Sk, Dh)),
            "wq": _w((lambda *s: torch.randn(*s, dtype=torch.bfloat16) * 0.8)(D, Hq * Dh) * (D ** -0.5)),
            "wo": _w((lambda *s: torch.randn(*s, dtype=torch.bfloat16) * 0.2)(Hq * Dh, D) * ((Hq * Dh) ** -0.5)),
        }
    _A_in = _A_setup()

    def _B_setup():
        B, S, D, F = 1, 2048, 512, 1792
        return {
            "x": _w((lambda *s: torch.randn(*s, dtype=torch.bfloat16) * 0.05)(B, S, D)),
            "w1": _w((lambda *s: torch.randn(*s, dtype=torch.bfloat16) * 0.1)(D, F)),
            "b1": _w((lambda *s: torch.randn(*s, dtype=torch.bfloat16) * 0.4)(F)),
            "w2": _w((lambda *s: torch.randn(*s, dtype=torch.bfloat16) * 0.1)(F, D)),
            "b2": _w((lambda *s: torch.randn(*s, dtype=torch.bfloat16) * 6.4)(D)),
        }
    _B_in = _B_setup()

    return {
        "A_x": _A_in["x"],
        "A_k_cache": _A_in["k_cache"],
        "A_v_cache": _A_in["v_cache"],
        "A_wq": _A_in["wq"],
        "A_wo": _A_in["wo"],
        "B_x": _B_in["x"],
        "B_w1": _B_in["w1"],
        "B_b1": _B_in["b1"],
        "B_w2": _B_in["w2"],
        "B_b2": _B_in["b2"],
    }

def reference(A_x, A_k_cache, A_v_cache, A_wq, A_wo, B_x, B_w1, B_b1, B_w2, B_b2):
    def _A_ref(x, k_cache, v_cache, wq, wo):
        B, Sq, D = x.shape
        Hq, Dh = 32, 128
        Hkv, Sk = k_cache.shape[1], k_cache.shape[2]
        W = min(4096, max(256, Sk // 4))
        rep = Hq // Hkv
        q = (lambda x, *d: x.permute(*d))((x @ wq).reshape(B, Sq, Hq, Dh), 0, 2, 1, 3)
        k = (lambda x, n, axis: torch.repeat_interleave(x, n, dim=axis))(k_cache[:, :, Sk - W:, :], rep, axis=1)
        v = (lambda x, n, axis: torch.repeat_interleave(x, n, dim=axis))(v_cache[:, :, Sk - W:, :], rep, axis=1)
        scores = torch.einsum("bhqd,bhkd->bhqk", q, k) * (Dh ** -0.5)
        p = _softmax(scores, axis=-1)
        o = torch.einsum("bhqk,bhkd->bhqd", p, v)
        return (lambda x, *d: x.permute(*d))(o, 0, 2, 1, 3).reshape(B, Sq, Hq * Dh) @ wo

    def _B_ref(x, w1, b1, w2, b2):
        h = torch.einsum("bsd,df->bsf", x, w1) + b1
        zero = torch.zeros_like(h)
        r = torch.where(h > zero, h, zero)
        h = r * r
        out = torch.einsum("bsf,fd->bsd", h, w2) + b2
        return out

    x = A_x
    xn = _layernorm(x, axis=-1)
    s = _A_ref(xn, A_k_cache, A_v_cache, A_wq, A_wo)
    g = _silu(_B_ref(xn, B_w1, B_b1, B_w2, B_b2))
    return x + s * g
```

```python
import sys, math
NAME = "recurrent_scan__sliding_block_cached__dense_activation_squared_relu__prompt"
OPT = dict(stamps=0, prefetch=1, stsc="sc1", dump=0)
for a in sys.argv[1:]:
    k, v = a.split("="); OPT[k] = int(v) if v.lstrip("-").isdigit() else v

L = []
def E(*xs):
    for x in xs:
        if isinstance(x, (list, tuple)): E(*x)
        else: L.append("    " + x if not x.endswith(":") and not x.startswith(".") else x)
def vr(b, n=1): return f"v{b}" if n == 1 else f"v[{b}:{b+n-1}]"
def ar(b, n=1): return f"a{b}" if n == 1 else f"a[{b}:{b+n-1}]"
def R(kind, b, n=1): return vr(b, n) if kind == "v" else ar(b, n)
def sr(b, n=1): return f"s{b}" if n == 1 else f"s[{b}:{b+n-1}]"
def f32(x):
    import struct
    return "0x%08x" % struct.unpack("<I", struct.pack("<f", x))[0]

X_BASE, H_BASE, R_BASE = 0, 65536, 98304
sX, sK, sV, sWQ, sWO, sW1, sW2, sB1, sP, sKC = 4, 8, 12, 16, 20, 24, 28, 32, 36, 56
sW, sG, sRB, sRING, sOFF, sCNT, sT0, sT1, sKOFF, sVOFF, sVL, sC0, sT2, sT3 = 40, 41, 42, 43, 44, 45, 46, 47, 48, 49, 50, 51, 52, 53
sFLAG = 54
sST = 72
vLANE = 1
vTR, vTF, vB, vBC, vDQ, vDO, vD1, vKR, vTV, vDK, vDV, vST = 2, 6, 8, 12, 16, 20, 24, 28, 36, 40, 42, 43
vT = 44
vL = 60
ACC = 128
ACCH = 64
QF = 128
S0, S1 = 192, (208, 224)
P0, P1 = (64, 72), 80
NEGM = (96, 112)
aO, aKF, aVF, aFA, aFB, aACCF = 0, 128, 160, 192, 224, 128

nstamp = [0]
def stamp():
    if not OPT["stamps"]: return
    i = nstamp[0]; nstamp[0] += 1
    E("s_memtime s[70:71]", "s_waitcnt lgkmcnt(0)", f"s_mov_b32 s{sST+i}, s70")

COST = {"v_exp_f32": 2.0}
def cost(ins):
    return COST.get(ins.split()[0], 1.0)
def interleave(mf, fill, lead=0, cap=None):
    n = len(mf); tot = sum(cost(f) for f in fill); k = 0; acc = 0.0
    use = max(1, n - lead)
    for m in range(n):
        E(mf[m])
        tgt = tot * (m + 1) / use if m < use - 1 else tot + 1
        while k < len(fill) and acc + cost(fill[k]) * 0.5 <= tgt:
            E(fill[k]); acc += cost(fill[k]); k += 1
    assert k == len(fill)

def mfma(dk, d, ak, a, bk, b, c=None, ck=None):
    cs = R(dk, d, 16) if c is None else (str(c) if ck is None else R(ck, c, 16))
    return f"v_mfma_f32_32x32x16_bf16 {R(dk,d,16)}, {R(ak,a,4)}, {R(bk,b,4)}, {cs}"

def dma_stage(slot, srd, vd, step):
    o = [f"s_add_u32 m0, s{sRING}, {slot*4096}"]
    o += ["s_nop 0"]
    for p in range(4):
        o.append(f"buffer_load_dwordx4 v{vd+p}, {sr(srd,4)}, s{sOFF} offen offset:{p*1024} lds")
    o.append(f"s_add_u32 s{sOFF}, s{sOFF}, {step}")
    return o
def dma_k(kslot):
    return [f"s_add_u32 m0, s{sRING}, {kslot*2048}", "s_nop 0",
            f"buffer_load_dwordx4 v{vDK}, {sr(sKC,4)}, s{sKOFF} offen lds",
            f"buffer_load_dwordx4 v{vDK+1}, {sr(sKC,4)}, s{sKOFF} offen offset:1024 lds",
            f"s_add_u32 s{sKOFF}, s{sKOFF}, 8192"]
def dma_v(vslot):
    return [f"s_add_u32 m0, s{sVL}, {vslot*8192}", "s_nop 0",
            f"buffer_load_dwordx4 v{vDV}, {sr(sV,4)}, s{sVOFF} offen lds",
            f"buffer_load_dwordx4 v{vDV}, {sr(sV,4)}, s{sVOFF} offen offset:1024 lds",
            f"s_add_u32 s{sVOFF}, s{sVOFF}, 8192"]

class Gemm:
    def __init__(s, acck, acc, fk, fa, fb, slot0):
        s.acck, s.acc, s.fk, s.fa, s.fb, s.slot0 = acck, acc, fk, fa, fb, slot0
    def reads(s, i, brel):
        st = i & 1; slot = (i + s.slot0) & 3; o = []
        for rg in range(2):
            o.append(f"ds_read_b128 {R(s.fk, s.fb+8*st+4*rg, 4)}, v{vBC+(brel&3)} offset:{brel*2048+rg*1024}")
        for T in range(4):
            for t in range(2):
                o.append(f"ds_read_b64_tr_b16 {R(s.fk, s.fa+16*st+4*T+2*t, 2)}, v{vTR+T} offset:{slot*4096+t*1024}")
        return o
    def mf(s, i, zero=False):
        st = i & 1; o = []
        for T in range(4):
            for rg in range(2):
                o.append(mfma(s.acck, s.acc+64*rg+16*T, s.fk, s.fa+16*st+4*T, s.fk, s.fb+8*st+4*rg, 0 if zero else None))
        return o
class Gemm1:
    def __init__(s, acc, fa, fb, slot0): s.acc, s.fa, s.fb, s.slot0 = acc, fa, fb, slot0
    def reads(s, i, brel):
        st = i & 1; slot = (i + s.slot0) & 3; o = []
        for ks in range(2):
            kk = 2*brel + ks
            for rg in range(2):
                o.append(f"ds_read_b128 {ar(s.fb+16*st+8*ks+4*rg, 4)}, v{vBC+(kk&3)} offset:{kk*2048+rg*1024}")
            for T in range(2):
                for t in range(2):
                    o.append(f"ds_read_b64_tr_b16 {ar(s.fa+16*st+8*ks+4*T+2*t, 2)}, v{vTF+T} offset:{slot*4096+ks*2048+t*512}")
        return o
    def mf(s, i, zero=False):
        st = i & 1; o = []
        for ks in range(2):
            for T in range(2):
                for rg in range(2):
                    o.append(mfma("v", s.acc+32*T+16*rg, "a", s.fa+16*st+8*ks+4*T, "a", s.fb+16*st+8*ks+4*rg))
        return o

def kstep(G, i, brel_next, dma, vm, zero=False, extra=(), last=False):
    E("s_waitcnt lgkmcnt(0)")
    fill = []
    if not last:
        fill.append(f"s_waitcnt vmcnt({vm})")
        fill += G.reads(i + 1, brel_next)
    fill += list(dma) + list(extra)
    interleave(G.mf(i, zero), fill, lead=1)

def set_bc(base_expr_imm=None, sreg=None):
    for j in range(4):
        if sreg is not None: E(f"v_add_u32 v{vBC+j}, s{sreg}, v{vB+j}")
        else: E(f"v_add_u32 v{vBC+j}, {base_expr_imm}, v{vB+j}")
def adv_bc(n): return [f"v_add_u32 v{vBC+j}, {n}, v{vBC+j}" for j in range(4)]

def srd(d, ptr, off, size):
    E(f"s_add_u32 s{d}, s{ptr}, s{off}", f"s_addc_u32 s{d+1}, s{ptr+1}, 0")
    if size[0] == "rest": E(f"s_sub_u32 s{d+2}, {size[1]}, s{off}")
    else: E(f"s_mov_b32 s{d+2}, {size[1]}")
    E(f"s_mov_b32 s{d+3}, 0x00020000")

def main_kernel():
    K = "fused_main_kernel"
    E(".p2align 8", f".globl {K}", f".type {K},@function", f"{K}:")
    E("s_cmp_ge_u32 s2, 256", "s_cbranch_scc1 L_main_end")
    E("s_load_dwordx8 s[60:67], s[0:1], 0", "s_load_dwordx2 s[68:69], s[0:1], 32", "s_load_dwordx4 s[88:91], s[0:1], 48",
      "s_load_dwordx2 s[92:93], s[0:1], 64", "s_load_dwordx2 s[94:95], s[0:1], 96")
    E(f"v_lshrrev_b32 v{vT}, 6, v0", f"v_and_b32 v{vLANE}, 63, v0")
    E(f"s_and_b32 s{sG}, s2, 7", f"s_lshr_b32 s{sRB}, s2, 3")
    E(f"v_readfirstlane_b32 s{sW}, v{vT}")
    E(f"v_lshrrev_b32 v{vT}, 3, v0", f"v_and_b32 v{vT+1}, 7, v{vT}", f"v_lshrrev_b32 v{vT}, 6, v0",
      f"v_lshl_add_u32 v{vT+1}, v{vT}, 4, v{vT+1}",
      f"v_and_b32 v{vT+2}, 7, v0", f"v_lshlrev_b32 v{vT+3}, 4, v{vT+2}",
      f"v_lshl_add_u32 v{vT+3}, v{vT+1}, 10, v{vT+3}", f"v_add_u32 v{vT+4}, 8192, v{vT+3}")
    E("s_waitcnt lgkmcnt(0)")
    E(f"s_lshl_b32 s{sT0}, s{sRB}, 16"); srd(sX, 60, sT0, ("imm", 65536))
    RAW = 64
    for p in range(2):
        for i in range(8):
            E(f"buffer_load_dwordx4 {vr(RAW+32*p+4*i,4)}, v{vT+3+p}, {sr(sX,4)}, 0 offen offset:{i*128}")
    stamp()
    E(f"s_lshl_b32 s{sT0}, s{sG}, 10"); srd(sWQ, 66, sT0, ("rest", 4194304))
    E(f"s_lshl_b32 s{sT0}, s{sG}, 19"); srd(sWO, 68, sT0, ("rest", 4194304))
    E(f"s_add_u32 s{sT0}, s{sT0}, {1536*256}"); srd(sK, 62, sT0, ("imm", 131072)); srd(sV, 64, sT0, ("imm", 131072))
    E(f"s_mul_i32 s{sT0}, s{sG}, {224*1024}"); srd(sW2, 92, sT0, ("rest", 1835008))
    E(f"s_lshr_b32 s{sT0}, s{sG}, 1", f"s_mul_i32 s{sT0}, s{sT0}, 896", f"s_and_b32 s{sT1}, s{sG}, 1", f"s_mul_i32 s{sT1}, s{sT1}, 384",
      f"s_add_u32 s{sT0}, s{sT0}, s{sT1}")
    srd(sW1, 88, sT0, ("rest", 1835008)); srd(sB1, 90, sT0, ("rest", 3584))
    E(f"s_lshl_b32 s{sT0}, s2, 17"); srd(sP, 94, sT0, ("imm", 131072))
    for j in range(3): E(f"s_mov_b32 s{sKC+j}, s{sK+j}")
    E(f"s_mov_b32 s{sKC+3}, 0x00020000")
    E(f"s_lshl_b32 s{sRING}, s{sW}, 14", f"s_add_u32 s{sRING}, s{sRING}, {R_BASE}", f"s_lshl_b32 s{sVL}, s{sW}, 11")
    l = vLANE; t0, t1, t2, t3, t4 = vT+5, vT+6, vT+7, vT+8, vT+9
    E(f"v_lshrrev_b32 v{t0}, 4, v{l}", f"v_bfe_u32 v{t1}, v{l}, 2, 2", f"v_xor_b32 v{t1}, v{t1}, v{t0}", f"v_lshlrev_b32 v{t1}, 6, v{t1}",
      f"v_and_b32 v{t2}, 3, v{l}", f"v_lshl_add_u32 v{t1}, v{t2}, 4, v{t1}")
    E(f"s_lshl_b32 s{sT0}, s{sW}, 8", f"v_add_u32 v{t2}, s{sT0}, v{t1}")
    E(f"v_lshl_add_u32 v{vDQ}, v{t0}, 13, v{t2}", f"v_lshl_add_u32 v{vDO}, v{t0}, 10, v{t2}")
    for p in range(1, 4):
        E(f"v_add_u32 v{vDQ+p}, {p*(4*8192-1024)}, v{vDQ}", f"v_add_u32 v{vDO+p}, {p*(4*1024-1024)}, v{vDO}")
    E(f"s_mov_b32 s{sOFF}, 0")
    def prefetch():
        if not OPT["prefetch"]: return 0
        n = 0
        pf = 250
        E(f"v_lshrrev_b32 v{t3}, 4, v0", f"v_and_b32 v{t4}, 15, v0", f"v_lshlrev_b32 v{t4}, 6, v{t4}", f"v_lshl_add_u32 v{t4}, v{t3}, 13, v{t4}",
          f"s_lshl_b32 s{sT0}, s{sRB}, 17")
        E(f"buffer_load_dword a{pf}, v{t4}, {sr(sWQ,4)}, s{sT0} offen"); n += 1
        E(f"s_mov_b32 s{sT1}, 3584", f"v_mul_lo_u32 v{t3}, v{t3}, s{sT1}", f"v_and_b32 v{t4}, 15, v0", f"v_lshl_add_u32 v{t4}, v{t4}, 5, v{t3}",
          f"s_mul_i32 s{sT0}, s{sRB}, {16*3584}")
        E(f"buffer_load_dword a{pf+1}, v{t4}, {sr(sW1,4)}, s{sT0} offen"); n += 1
        E(f"v_lshlrev_b32 v{t4}, 4, v0", f"s_lshl_b32 s{sT0}, s{sRB}, 12")
        E(f"buffer_load_dword a{pf+2}, v{t4}, {sr(sK,4)}, s{sT0} offen", f"buffer_load_dword a{pf+3}, v{t4}, {sr(sV,4)}, s{sT0} offen"); n += 2
        E(f"v_lshlrev_b32 v{t4}, 5, v0", f"s_mul_i32 s{sT0}, s{sRB}, 7168")
        E(f"buffer_load_dword a{pf+4}, v{t4}, {sr(sW2,4)}, s{sT0} offen"); n += 1
        E(f"v_lshlrev_b32 v{t4}, 6, v0", f"s_lshl_b32 s{sT0}, s{sRB}, 14")
        E(f"buffer_load_dword a{pf+5}, v{t4}, {sr(sWO,4)}, s{sT0} offen"); n += 1
        return n
    npf = prefetch()
    for s_ in range(4): E(dma_stage(s_, sWQ, vDQ, 16*8192))
    E(f"v_lshl_add_u32 v{vDV}, v{t0}, 8, v{t1}", f"v_add_u32 v{vDV}, s{sVL}, v{vDV}")
    for p in range(2):
        E(f"s_lshl_b32 s{sT0}, s{sW}, 3", f"s_add_u32 s{sT0}, s{sT0}, {4*p}", f"v_add_u32 v{t2}, s{sT0}, v{t0}",
          f"v_xor_b32 v{t3}, v{t2}, v{l}", f"v_and_b32 v{t3}, 15, v{t3}", f"v_lshlrev_b32 v{t3}, 4, v{t3}",
          f"v_lshl_add_u32 v{vDK+p}, v{t2}, 8, v{t3}")
        if p: E(f"v_subrev_u32 v{vDK+p}, 1024, v{vDK+p}")
    E(f"v_lshrrev_b32 v{t0}, 3, v{l}", f"v_bfe_u32 v{t1}, v{l}, 2, 1", f"v_bfe_u32 v{t2}, v{l}, 4, 1", f"v_xor_b32 v{t1}, v{t1}, v{t2}",
      f"v_lshlrev_b32 v{t1}, 6, v{t1}", f"v_and_b32 v{t2}, 3, v{l}", f"v_lshl_add_u32 v{t1}, v{t2}, 4, v{t1}",
      f"s_mov_b32 s{sT1}, 3584", f"v_mul_lo_u32 v{t0}, v{t0}, s{sT1}", f"s_lshl_b32 s{sT0}, s{sW}, 7",
      f"v_add3_u32 v{vD1}, v{t0}, v{t1}, s{sT0}")
    for p in range(1, 4): E(f"v_add_u32 v{vD1+p}, {p*(8*3584-1024)}, v{vD1}")
    E(f"v_bfe_u32 v{t0}, v{l}, 2, 2", f"v_lshrrev_b32 v{t1}, 5, v{l}", f"v_lshl_add_u32 v{t1}, v{t1}, 3, v{t0}",
      f"v_and_b32 v{t2}, 1, v{l}", f"v_lshlrev_b32 v{t2}, 4, v{t2}", f"v_bfe_u32 v{t3}, v{l}, 1, 1", f"v_lshl_add_u32 v{t2}, v{t3}, 3, v{t2}",
      f"v_bfe_u32 v{t3}, v{l}, 4, 1", f"v_lshl_add_u32 v{t2}, v{t3}, 5, v{t2}")
    E(f"v_lshl_add_u32 v{t3}, v{t1}, 8, v{t2}")
    for T in range(4):
        E(f"v_xor_b32 v{t4}, {T}, v{t0}", f"v_lshl_add_u32 v{vTV+T}, v{t4}, 6, v{t3}", f"v_add_u32 v{vTR+T}, s{sRING}, v{vTV+T}")
    E(f"v_lshl_add_u32 v{t3}, v{t1}, 7, v{t2}", f"v_add_u32 v{t3}, s{sRING}, v{t3}", f"v_lshrrev_b32 v{t0}, 1, v{t0}")
    for T in range(2):
        E(f"v_xor_b32 v{t4}, {T}, v{t0}", f"v_lshl_add_u32 v{vTF+T}, v{t4}, 6, v{t3}")
    E(f"v_lshrrev_b32 v{t1}, 5, v{l}")
    for j in range(4):
        E(f"v_or_b32 v{t2}, {2*j}, v{t1}", f"v_xor_b32 v{t2}, v{t2}, v{l}", f"v_lshlrev_b32 v{vB+j}, 4, v{t2}")
    E(f"v_and_b32 v{t0}, 19, v{l}", f"v_bfe_u32 v{t2}, v{l}, 2, 1", f"v_lshl_add_u32 v{t0}, v{t2}, 3, v{t0}",
      f"v_bfe_u32 v{t2}, v{l}, 3, 1", f"v_lshl_add_u32 v{t0}, v{t2}, 2, v{t0}",
      f"v_lshrrev_b32 v{t2}, 3, v{t0}", f"v_lshlrev_b32 v{t2}, 14, v{t2}", f"v_and_b32 v{t3}, 7, v{t0}", f"v_lshl_add_u32 v{t2}, v{t3}, 8, v{t2}",
      f"v_add_u32 v{t2}, {R_BASE}, v{t2}", f"v_and_b32 v{t0}, 15, v{t0}", f"v_xor_b32 v{t0}, v{t0}, v{t1}")
    for s_ in range(8):
        E(f"v_xor_b32 v{t3}, {2*s_}, v{t0}", f"v_lshl_add_u32 v{vKR+s_}, v{t3}, 4, v{t2}")
    E(f"s_lshl_b32 s{sT0}, s{sW}, 14", f"v_lshlrev_b32 v{vST}, 4, v{l}", f"v_add_u32 v{vST}, s{sT0}, v{vST}")
    for r in range(128): E(f"v_accvgpr_write_b32 a{aO+r}, 0")
    wa = vT + 10
    for p in range(2):
        E(f"v_add_u32 v{t0}, {8*p}, v{vT+1}", f"v_lshrrev_b32 v{t1}, 5, v{t0}", f"v_and_b32 v{t0}, 31, v{t0}", f"v_xor_b32 v{t0}, v{t0}, v{vT+2}",
          f"v_lshlrev_b32 v{t0}, 4, v{t0}", f"v_lshl_add_u32 v{t0}, v{t1}, 10, v{t0}", f"v_and_b32 v{t1}, 1, v{l}", f"v_lshl_add_u32 v{t0}, v{t1}, 9, v{t0}",
          f"v_lshrrev_b32 v{t1}, 1, v{vT+2}", f"v_lshl_add_u32 v{wa+p}, v{t1}, 11, v{t0}")
    U = 128
    def dpp_sum(v, tmp):
        E("s_nop 1", f"v_add_f32_dpp v{v}, v{v}, v{v} quad_perm:[1,0,3,2] row_mask:0xf bank_mask:0xf",
          "s_nop 1", f"v_add_f32_dpp v{v}, v{v}, v{v} quad_perm:[2,3,0,1] row_mask:0xf bank_mask:0xf",
          "s_nop 1", f"v_add_f32_dpp v{v}, v{v}, v{v} row_half_mirror row_mask:0xf bank_mask:0xf")
    E(f"s_mov_b32 s{sC0}, 0xffff0000")
    for p in range(2):
        E(f"s_waitcnt vmcnt({16 + npf + (8 if p == 0 else 0)})")
        if p == 0: stamp()
        Ub = U + 64*p; a0 = vT + 12; a1 = vT + 14
        for j in range(32):
            E(f"v_lshlrev_b32 v{Ub+2*j}, 16, v{RAW+32*p+j}", f"v_and_b32 v{Ub+2*j+1}, s{sC0}, v{RAW+32*p+j}")
        E(f"v_pk_add_f32 {vr(a0,2)}, {vr(Ub,2)}, {vr(Ub+2,2)}", f"v_pk_add_f32 {vr(a1,2)}, {vr(Ub+4,2)}, {vr(Ub+6,2)}")
        for j in range(4, 32):
            a = a0 if j % 2 == 0 else a1
            E(f"v_pk_add_f32 {vr(a,2)}, {vr(a,2)}, {vr(Ub+2*j,2)}")
        E(f"v_pk_add_f32 {vr(a0,2)}, {vr(a0,2)}, {vr(a1,2)}", f"v_add_f32 v{a0}, v{a0}, v{a0+1}")
        dpp_sum(a0, t0)
        mean = t1 if t1 % 2 == 0 else t2
        mean = vT + 6
        E(f"v_mul_f32 v{mean}, {f32(1/512)}, v{a0}")
        for j in range(32):
            E(f"v_pk_add_f32 {vr(Ub+2*j,2)}, {vr(Ub+2*j,2)}, {vr(mean,2)} op_sel_hi:[1,0] neg_lo:[0,1] neg_hi:[0,1]")
        E(f"v_pk_mul_f32 {vr(a0,2)}, {vr(Ub,2)}, {vr(Ub,2)}", f"v_pk_mul_f32 {vr(a1,2)}, {vr(Ub+2,2)}, {vr(Ub+2,2)}")
        for j in range(2, 32):
            a = a0 if j % 2 == 0 else a1
            E(f"v_pk_fma_f32 {vr(a,2)}, {vr(Ub+2*j,2)}, {vr(Ub+2*j,2)}, {vr(a,2)}")
        E(f"v_pk_add_f32 {vr(a0,2)}, {vr(a0,2)}, {vr(a1,2)}", f"v_add_f32 v{a0}, v{a0}, v{a0+1}")
        dpp_sum(a0, t0)
        rinv = vT + 8; dl = a1
        E(f"v_mul_f32 v{a0}, {f32(1/512)}, v{a0}",
          f"v_cvt_pk_bf16_f32 v{a0}, v{a0}, v{mean}",
          f"v_and_b32 v{dl}, s{sC0}, v{a0}", f"v_lshlrev_b32 v{a0}, 16, v{a0}",
          f"v_sub_f32 v{dl}, v{mean}, v{dl}",
          f"v_add_f32 v{a0}, {f32(1e-5)}, v{a0}", f"v_cvt_pk_bf16_f32 v{a0}, v{a0}, v{a0}", f"v_lshlrev_b32 v{a0}, 16, v{a0}",
          f"v_sqrt_f32 v{a0}, v{a0}", "s_nop 0", f"v_cvt_pk_bf16_f32 v{a0}, v{a0}, v{a0}", f"v_lshlrev_b32 v{a0}, 16, v{a0}",
          f"v_rcp_f32 v{rinv}, v{a0}", "s_nop 0", f"v_mul_f32 v{dl}, v{dl}, v{rinv}")
        for j in range(32):
            E(f"v_pk_fma_f32 {vr(Ub+2*j,2)}, {vr(Ub+2*j,2)}, {vr(rinv,2)}, {vr(dl,2)} op_sel_hi:[1,0,0]")
        for i in range(8):
            for j in range(4):
                E(f"v_cvt_pk_bf16_f32 v{RAW+32*p+4*i+j}, v{Ub+8*i+2*j}, v{Ub+8*i+2*j+1}")
            E(f"ds_write_b128 v{wa+p}, {vr(RAW+32*p+4*i,4)} offset:{i*8192}")
    E(f"v_lshrrev_b32 v{t0}, 5, v{l}", f"v_lshlrev_b32 v{t0}, 4, v{t0}", f"s_lshl_b32 s{sT0}, s{sW}, 7")
    E("s_waitcnt lgkmcnt(0)", "s_barrier")
    stamp()
    G = Gemm("v", ACC, "a", aFA, aFB, 0)
    set_bc(X_BASE)
    BIAS = 64+48
    E("s_waitcnt vmcnt(12)")
    E(G.reads(0, 0))
    def body(G, i0, dmas, vms, zero=False, extra=(), last=False):
        for j in range(4):
            kstep(G, i0 + j, j + 1, dmas[j], vms[j], zero=(zero and j == 0), extra=(extra if j == 3 else ()), last=(last and j == 3))
    own = lambda G, srd_, vd, step: [dma_stage((j + G.slot0) & 3, srd_, vd, step) for j in range(4)]
    body(G, 0, own(G, sWQ, vDQ, 16*8192), [8]*4, zero=True, extra=adv_bc(8192) + [f"s_mov_b32 s{sCNT}, 6"])
    E("L_q_loop:")
    body(G, 0, own(G, sWQ, vDQ, 16*8192), [8]*4, extra=adv_bc(8192) + [f"s_sub_u32 s{sCNT}, s{sCNT}, 1", f"s_cmp_lg_u32 s{sCNT}, 0"])
    E("s_cbranch_scc1 L_q_loop")
    E(f"s_mov_b32 s{sOFF}, 0")
    body(G, 0, own(G, sW1, vD1, 32*3584), [8]*4, last=True)
    stamp()
    for q in range(4):
        E(f"buffer_load_dwordx4 {vr(BIAS+4*q,4)}, v{t0}, {sr(sB1,4)}, s{sT0} offen offset:{q*32}")
    E(f"s_mov_b32 s{sT2}, {f32(128**-0.5 * math.log2(math.e))}", f"s_mov_b32 s{sT3}, s{sT2}", "s_nop 7", "s_nop 1")
    for j in range(64):
        E(f"v_pk_mul_f32 {vr(ACC+2*j,2)}, {vr(ACC+2*j,2)}, {sr(sT2,2)}")
    for j in range(64):
        E(f"v_cvt_pk_bf16_f32 v{QF+j}, v{ACC+2*j}, v{ACC+2*j+1}")
    G1 = Gemm1(ACCH, aFA, aFB, 0)
    set_bc(X_BASE)
    E("s_waitcnt vmcnt(0)")
    E(G1.reads(0, 0))
    for q in range(16): E(f"v_mov_b32 v{S0+q}, v{BIAS+q}")
    for T in range(2):
        for r in range(16):
            src = S0 + 8*T + r//2
            op = f"v_lshlrev_b32 v%d, 16, v{src}" if r % 2 == 0 else f"v_and_b32 v%d, s{sC0}, v{src}"
            E(op % (ACCH+32*T+r), op % (ACCH+32*T+16+r))
    E(f"s_mov_b32 s{sCNT}, 3")
    E("L_f1_loop:")
    body(G1, 0, own(G1, sW1, vD1, 32*3584), [8]*4, extra=adv_bc(16384) + [f"s_sub_u32 s{sCNT}, s{sCNT}, 1", f"s_cmp_lg_u32 s{sCNT}, 0"])
    E("s_cbranch_scc1 L_f1_loop")
    E(f"s_mov_b32 s{sOFF}, 0", f"s_mov_b32 s{sKOFF}, 0", f"s_mov_b32 s{sVOFF}, 0")
    body(G1, 0, [dma_k(0) + dma_k(1), dma_k(2) + dma_k(3), dma_stage(2, sW2, vDO, 16384), dma_stage(3, sW2, vDO, 16384)], [8]*4, last=True)
    stamp()
    E("s_waitcnt vmcnt(12)", "s_barrier")
    E(dma_v(0), dma_v(1))
    def kreads(kslot): return [f"ds_read_b128 {ar(aKF+4*s_,4)}, v{vKR+s_} offset:{kslot*2048}" for s_ in range(8)]
    def vreads(vslot): return [f"ds_read_b64_tr_b16 {ar(aVF+16*u+4*T+2*t,2)}, v{vTV+T} offset:{vslot*8192+u*4096+t*1024}"
                               for u in range(2) for T in range(4) for t in range(2)]
    E(kreads(0))
    E(f"s_lshl_b32 s{sT0}, s{sW}, 13", f"s_add_u32 s{sT0}, s{sT0}, {H_BASE}")
    set_bc(sreg=sT0)
    for r in range(64): E(f"v_max_f32 v{ACCH+r}, 0, v{ACCH+r}")
    for j in range(32): E(f"v_pk_mul_f32 {vr(ACCH+2*j,2)}, {vr(ACCH+2*j,2)}, {vr(ACCH+2*j,2)}")
    for T in range(2):
        for rg in range(2):
            for u in range(2):
                b = ACCH + 32*T + 16*rg + 8*u
                for j in range(4): E(f"v_cvt_pk_bf16_f32 v{b+j}, v{b+2*j}, v{b+2*j+1}")
                E(f"ds_write_b128 v{vBC+2*T+u}, {vr(b,4)} offset:{(2*T+u)*2048+rg*1024}")
    def qk(rg, dst, cinit):
        o = []
        for s_ in range(8):
            if s_ == 0: o.append(mfma("v", dst, "a", aKF, "v", QF+32*rg, *cinit))
            else: o.append(mfma("v", dst, "a", aKF+4*s_, "v", QF+32*rg+4*s_))
        return o
    def pv(rg, p):
        return [mfma("a", aO+64*rg+16*T, "a", aVF+16*u+4*T, "v", p+4*u) for u in range(2) for T in range(4)]
    def softmax(rg, s, p):
        o = []
        for j in range(8):
            o += [f"v_exp_f32 v{s+2*j}, v{s+2*j}", f"v_exp_f32 v{s+2*j+1}, v{s+2*j+1}"]
            if j > 0:
                k = j - 1
                o += [f"v_add_f32 v{vL+2*rg}, v{vL+2*rg}, v{s+2*k}", f"v_add_f32 v{vL+2*rg+1}, v{vL+2*rg+1}, v{s+2*k+1}",
                      f"v_cvt_pk_bf16_f32 v{p+k}, v{s+2*k}, v{s+2*k+1}"]
        k = 7
        o += ["s_nop 0", f"v_add_f32 v{vL+2*rg}, v{vL+2*rg}, v{s+2*k}", f"v_add_f32 v{vL+2*rg+1}, v{vL+2*rg+1}, v{s+2*k+1}",
              f"v_cvt_pk_bf16_f32 v{p+k}, v{s+2*k}, v{s+2*k+1}"]
        return o
    def merge(a, b):
        o = []; i = j = 0
        while i < len(a) or j < len(b):
            if j >= len(b) or (i < len(a) and i * len(b) <= j * len(a)): o.append(a[i]); i += 1
            else: o.append(b[j]); j += 1
        return o
    E("s_waitcnt lgkmcnt(0)")
    E(qk(0, S0, (0,)), qk(1, S1[0], (0,)))
    E(kreads(1))
    for j in range(4): E(f"v_mov_b32 v{vL+j}, 0")
    E("s_nop 7")
    for rg, s in ((0, S0), (1, S1[0])):
        m = vT + rg
        E(f"v_max3_f32 v{m}, v{s}, v{s+1}, v{s+2}")
        for j in range(3, 15, 2): E(f"v_max3_f32 v{m}, v{m}, v{s+j}, v{s+j+1}")
        E(f"v_max_f32 v{m}, v{m}, v{s+15}", f"v_mov_b32 v{vT+2}, v{m}", "s_nop 1", f"v_permlane32_swap_b32 v{m}, v{vT+2}", "s_nop 0",
          f"v_max_f32 v{m}, v{m}, v{vT+2}")
        for r in range(16): E(f"v_sub_f32 v{NEGM[rg]+r}, 0, v{m}")
        for r in range(16): E(f"v_sub_f32 v{s+r}, v{s+r}, v{m}")
    E(softmax(0, S0, P0[0]))
    E(f"s_mov_b32 s{sCNT}, 0")
    E("s_waitcnt vmcnt(2) lgkmcnt(0)")
    stamp()
    E("L_att_loop:")
    for i in range(4):
        E("s_barrier")
        mf = qk(0, S0, (NEGM[0], "v")) + qk(1, S1[(i+1)&1], (NEGM[1], "v"))
        interleave(mf, merge(softmax(1, S1[i&1], P1), vreads(i & 3)), lead=1)
        E("s_waitcnt lgkmcnt(0)")
        mf = pv(0, P0[i&1]) + pv(1, P1)
        other = kreads((i+2) & 3) + dma_v((i+2) & 3) + dma_k(i & 3)
        if i == 2: other += [f"s_cmp_eq_u32 s{sCNT}, 3"]
        if i == 3: other += [f"s_add_u32 s{sCNT}, s{sCNT}, 1", f"s_cmp_lg_u32 s{sCNT}, 3"]
        interleave(mf, merge(softmax(0, S0, P0[(i+1)&1]), other), lead=1)
        E("s_waitcnt vmcnt(4) lgkmcnt(0)")
        if i == 2: E("s_cbranch_scc1 L_att_last")
    E("s_cbranch_scc1 L_att_loop")
    for j in range(3): E(f"s_mov_b32 s{sKC+j}, s{sW2+j}")
    E(f"v_mov_b32 v{vDK}, v{vDO}", f"v_mov_b32 v{vDK+1}, v{vDO+1}", f"s_mov_b32 s{sKOFF}, 32768")
    E("s_branch L_att_loop")
    E("L_att_last:")
    i = 15
    E("s_barrier")
    E(vreads(i & 3), dma_k(i & 3))
    E("s_waitcnt lgkmcnt(0)")
    interleave(pv(0, P0[i&1]), softmax(1, S1[i&1], P1))
    E("s_nop 1")
    E(pv(1, P1))
    stamp()
    for rg in range(2):
        E(f"v_add_f32 v{vL+2*rg}, v{vL+2*rg}, v{vL+2*rg+1}")
        E(f"v_mov_b32 v{vL+2*rg+1}, v{vL+2*rg}", "s_nop 1", f"v_permlane32_swap_b32 v{vL+2*rg}, v{vL+2*rg+1}", "s_nop 0",
          f"v_add_f32 v{vL+2*rg}, v{vL+2*rg}, v{vL+2*rg+1}", f"v_rcp_f32 v{vL+2*rg}, v{vL+2*rg}")
    E("s_waitcnt vmcnt(0)", "s_barrier")
    E(f"s_lshl_b32 s{sT0}, s{sW}, 14")
    set_bc(sreg=sT0)
    TMP = 128
    for rg in range(2):
        for T in range(4):
            b = TMP + 16*((4*rg+T) & 3)
            for r in range(16): E(f"v_accvgpr_read_b32 v{b+r}, a{aO+64*rg+16*T+r}")
            for j in range(8): E(f"v_pk_mul_f32 {vr(b+2*j,2)}, {vr(b+2*j,2)}, {vr(vL+2*rg,2)} op_sel_hi:[1,0]")
            for u in range(2):
                for j in range(4): E(f"v_cvt_pk_bf16_f32 v{b+8*u+j}, v{b+8*u+2*j}, v{b+8*u+2*j+1}")
                ks = 2*T + u
                E(f"ds_write_b128 v{vBC+(ks&3)}, {vr(b+8*u,4)} offset:{ks*2048+rg*1024}")
    stamp()
    G2 = Gemm("a", aACCF, "v", 64, 96, 2)
    E(f"s_and_b32 s{sT0}, s{sG}, 1", f"s_lshl_b32 s{sT1}, s{sT0}, 12", f"s_add_u32 s{sT1}, s{sT1}, {H_BASE}", f"s_lshl_b32 s{sT0}, s{sT0}, 6")
    for j in range(4):
        E(f"v_xor_b32 v{vBC+j}, s{sT0}, v{vB+j}", f"v_add_u32 v{vBC+j}, s{sT1}, v{vBC+j}")
    E(f"s_mov_b32 s{sOFF}, 65536")
    E(G2.reads(0, 0))
    for i in range(14):
        if i == 10: E(f"s_mov_b32 s{sOFF}, 0")
        d = dma_stage((i + 2) & 3, sW2, vDO, 16384) if i < 10 else dma_stage((i + 2) & 3, sWO, vDO, 16384)
        vm = [0, 4, 8][min(i, 2)]
        kstep(G2, i, i + 1, d, vm, zero=(i == 0), last=(i == 13))
    stamp()
    E("s_waitcnt lgkmcnt(0)", "s_barrier")
    def store_partial(kind, acc, typ, tmp):
        n = 0
        for T in range(4):
            for rg in range(2):
                b = tmp + 16*(n & 1) if kind == "a" else acc+64*rg+16*T
                n += 1
                if kind == "a":
                    for r in range(16): E(f"v_accvgpr_read_b32 v{b+r}, a{acc+64*rg+16*T+r}")
                for u in range(2):
                    for j in range(4): E(f"v_cvt_pk_bf16_f32 v{b+8*u+j}, v{b+8*u+2*j}, v{b+8*u+2*j+1}")
                    E(f"s_mov_b32 s{sT0}, {typ*65536 + T*4096}")
                    E(f"buffer_store_dwordx4 {vr(b+8*u,4)}, v{vST}, {sr(sP,4)}, s{sT0} offen offset:{u*2048+rg*1024} {OPT['stsc']}")
    E("s_nop 7")
    store_partial("a", aACCF, 1, 128)
    stamp()
    G3 = Gemm("v", ACC, "v", 64, 96, 0)
    set_bc(X_BASE)
    E("s_waitcnt vmcnt(28)")
    E(G3.reads(0, 0))
    body(G3, 0, own(G3, sWO, vDO, 16384), [24, 24, 24, 8], zero=True, extra=adv_bc(8192) + [f"s_mov_b32 s{sCNT}, 6"])
    E("L_o_loop:")
    body(G3, 0, own(G3, sWO, vDO, 16384), [8]*4, extra=adv_bc(8192) + [f"s_sub_u32 s{sCNT}, s{sCNT}, 1", f"s_cmp_lg_u32 s{sCNT}, 0"])
    E("s_cbranch_scc1 L_o_loop")
    body(G3, 0, [[], [], [], []], [8, 4, 0, 0], last=True)
    stamp()
    E("s_nop 7", "s_nop 3")
    store_partial("v", ACC, 0, None)
    if OPT["stamps"]:
        E("s_waitcnt vmcnt(0)")
        stamp()
        E(f"s_lshl_b32 s{sT0}, s2, 2", f"s_add_u32 s{sT0}, s{sT0}, s{sW}", f"s_lshl_b32 s{sT0}, s{sT0}, 6", f"s_add_u32 s{sT0}, s{sT0}, {64<<20}")
        srd(sX, 94, sT0, ("imm", 64))
        E(f"v_mov_b32 v{vT}, 0")
        for i in range(nstamp[0]):
            E(f"v_mov_b32 v{vT+1}, s{sST+i}", f"buffer_store_dword v{vT+1}, v{vT}, {sr(sX,4)}, 0 offen offset:{4*i}")
    E("L_main_end:", "s_endpgm")
    return K

def reduce_kernel():
    K = "fused_reduce_kernel"
    E(".p2align 8", f".globl {K}", f".type {K},@function", f"{K}:")
    E("s_cmp_ge_u32 s2, 256", "s_cbranch_scc1 L_red_end")
    E("s_load_dwordx2 s[60:61], s[0:1], 0", "s_load_dwordx4 s[64:67], s[0:1], 72", "s_load_dwordx2 s[68:69], s[0:1], 96")
    E("s_lshr_b32 s40, s2, 3", "s_and_b32 s41, s2, 7")
    E("v_lshrrev_b32 v1, 3, v0", "v_and_b32 v2, 7, v0")
    E("v_lshrrev_b32 v3, 1, v2", "v_lshlrev_b32 v3, 11, v3", "v_and_b32 v4, 1, v2", "v_lshl_add_u32 v4, v4, 5, v1", "v_lshl_add_u32 v3, v4, 4, v3")
    E("v_lshlrev_b32 v5, 4, v2", "v_lshl_add_u32 v4, v1, 10, v5")
    E("s_waitcnt lgkmcnt(0)")
    E("s_lshl_b32 s46, s40, 20", "s_lshl_b32 s47, s41, 13", "s_add_u32 s46, s46, s47"); srd(4, 68, 46, ("imm", 1 << 20))
    E("s_lshl_b32 s46, s40, 16", "s_lshl_b32 s47, s41, 7", "s_add_u32 s46, s46, s47"); srd(8, 60, 46, ("rest", 2097152)); srd(12, 66, 46, ("rest", 2097152))
    srd(16, 64, 47, ("rest", 1024))
    PB = 16
    E(f"buffer_load_dwordx4 v[8:11], v5, s[16:19], 0 offen")
    for rg in range(2):
        for typ in (1, 0):
            for g in range(8):
                E(f"s_mov_b32 s46, {g*131072 + typ*65536}")
                E(f"buffer_load_dwordx4 {vr(PB+68*rg+32*(1-typ)+4*g,4)}, v3, s[4:7], s46 offen offset:{rg*1024}")
        E(f"s_mov_b32 s46, {rg*32768}")
        E(f"buffer_load_dwordx4 {vr(PB+68*rg+64,4)}, v4, s[8:11], s46 offen")
    E("s_mov_b32 s50, 0xffff0000")
    A = 160; T = 176; B2 = 192
    E("s_waitcnt vmcnt(34)")
    for j in range(4): E(f"v_lshlrev_b32 v{B2+2*j}, 16, v{8+j}", f"v_and_b32 v{B2+2*j+1}, s50, v{8+j}")
    for rg in range(2):
        base = PB + 68*rg
        for typ in (1, 0):
            acc = A + 8*(1-typ)
            for g in range(8):
                left = 34 - (17*rg + 8*(1-typ) + g + 1)
                E(f"s_waitcnt vmcnt({left})")
                src = base + 32*(1-typ) + 4*g
                dst = acc if g == 0 else T
                for j in range(4): E(f"v_lshlrev_b32 v{dst+2*j}, 16, v{src+j}", f"v_and_b32 v{dst+2*j+1}, s50, v{src+j}")
                if g:
                    for j in range(4): E(f"v_pk_add_f32 {vr(acc+2*j,2)}, {vr(acc+2*j,2)}, {vr(T+2*j,2)}")
        E(f"s_waitcnt vmcnt({34 - 17*(rg+1)})")
        for j in range(4): E(f"v_pk_add_f32 {vr(A+2*j,2)}, {vr(A+2*j,2)}, {vr(B2+2*j,2)}")
        for j in range(8): E(f"v_mul_f32 v{T+j}, {f32(-math.log2(math.e))}, v{A+j}")
        for j in range(8): E(f"v_exp_f32 v{T+j}, v{T+j}")
        E("s_nop 0")
        for j in range(8): E(f"v_add_f32 v{T+j}, 1.0, v{T+j}")
        for j in range(8): E(f"v_rcp_f32 v{T+j}, v{T+j}")
        E("s_nop 0")
        for j in range(8): E(f"v_mul_f32 v{A+j}, v{A+j}, v{T+j}")
        xs = base + 64
        for j in range(4): E(f"v_lshlrev_b32 v{T+2*j}, 16, v{xs+j}", f"v_and_b32 v{T+2*j+1}, s50, v{xs+j}")
        for j in range(8): E(f"v_fma_f32 v{T+j}, v{A+8+j}, v{A+j}, v{T+j}")
        O = 200 + 4*rg
        for j in range(4): E(f"v_cvt_pk_bf16_f32 v{O+j}, v{T+2*j}, v{T+2*j+1}")
        E(f"s_mov_b32 s46, {rg*32768}")
        E(f"buffer_store_dwordx4 {vr(O,4)}, v4, s[12:15], s46 offen")
    E("L_red_end:", "s_endpgm")
    return K

hdr = open("cdna_kernels/" + NAME + ".s.ref").read().split("; Override launch")[0]
out = [hdr.rstrip()]
out.append("; @launch kernel=fused_main_kernel grid=(256,1,1) block=(256,1,1) lds=163840")
out.append("; @launch kernel=fused_reduce_kernel grid=(256,1,1) block=(256,1,1) lds=0")
out.append('.amdgcn_target "amdgcn-amd-amdhsa--gfx950"')
out.append(".text")
k1 = main_kernel(); k2 = reduce_kernel()
out += L
out.append('.section .rodata,"a"')
for k, nv, ao in ((k1, 512, 256), (k2, 208, 208)):
    out.append(f""".p2align 6
.amdhsa_kernel {k}
  .amdhsa_next_free_vgpr {nv}
  .amdhsa_next_free_sgpr 102
  .amdhsa_accum_offset {ao}
  .amdhsa_group_segment_fixed_size 0
  .amdhsa_kernarg_size 104
  .amdhsa_user_sgpr_count 2
  .amdhsa_user_sgpr_kernarg_segment_ptr 1
  .amdhsa_system_sgpr_workgroup_id_x 1
.end_amdhsa_kernel""")
print("\n".join(out))
```

```python
import sys, math, struct
from collections import deque
NAME = "recurrent_scan__sliding_block_cached__dense_activation_squared_relu__prompt"
OPT = dict(stamps=0, stsc="sc1", codepf=1, budget=24, thr=40, fspan=26, memc=12, dmapos="even", dmac=8, skip="", xtest=0, hg=1, spd=3, rot=8, spp=1, wqpf=0)
for a in sys.argv[1:]:
    k, v = a.split("="); OPT[k] = int(v) if v.lstrip("-").isdigit() else v

def vr(b, n=1): return f"v{b}" if n == 1 else f"v[{b}:{b+n-1}]"
def ar(b, n=1): return f"a{b}" if n == 1 else f"a[{b}:{b+n-1}]"
def R(kind, b, n=1): return vr(b, n) if kind == "v" else ar(b, n)
def sr(b, n=1): return f"s{b}" if n == 1 else f"s[{b}:{b+n-1}]"
def f32(x): return "0x%08x" % struct.unpack("<I", struct.pack("<f", x))[0]

class W:
    def __init__(s, cnt, tag): s.cnt, s.tag = cnt, tag
class T:
    def __init__(s, text, tag): s.text, s.tag = text, tag
L = []; VM = []; LG = []
def E(*xs):
    for x in xs:
        if isinstance(x, (list, tuple)): E(*x); continue
        if isinstance(x, W):
            q = VM if x.cnt == "vm" else LG
            idx = [i for i, t in enumerate(q) if t == x.tag]
            if not idx: continue
            n = len(q) - 1 - idx[-1]
            n = min(n, 63 if x.cnt == "vm" else 15)
            del q[:len(q) - n]
            L.append(f"    s_waitcnt {'vmcnt' if x.cnt == 'vm' else 'lgkmcnt'}({n})"); continue
        tag = None
        if isinstance(x, T): x, tag = x.text, x.tag
        op = x.split()[0]
        if op.startswith("buffer_") or op.startswith("global_"): VM.append(tag)
        if op.startswith("ds_"): LG.append(tag)
        if op == "s_waitcnt":
            for w in x.split()[1:]:
                n = int(w[w.index("(")+1:-1]); q = VM if w.startswith("vm") else LG
                if len(q) > n: del q[:len(q) - n]
        L.append("    " + x if not x.endswith(":") and not x.startswith(".") else x)
def opof(x):
    if isinstance(x, (list, tuple)): return opof(x[0])
    if isinstance(x, W): return "s_waitcnt"
    return (x.text if isinstance(x, T) else x).split()[0]
def ismem(x):
    if isinstance(x, (list, tuple)): return any(ismem(y) for y in x)
    return opof(x).split("_")[0] in ("ds", "buffer", "global")
def isvalu(x): return opof(x).startswith("v_")
def cost(x):
    if isinstance(x, (list, tuple)): return sum(cost(y) for y in x)
    if isinstance(x, W): return 4
    t = x.text if isinstance(x, T) else x
    op = t.split()[0]
    assert not op.startswith("v_pk_"), t
    if op in ("v_exp_f32", "v_rcp_f32", "v_sqrt_f32"): return 8
    if op.startswith("buffer_store"): return 24
    if op.startswith("buffer_") or op.startswith("global_"): return OPT["dmac"]
    if op == "s_nop": return 4 * (int(t.split()[1]) + 1)
    if op == "ds_write_b128": return 20
    return 4
BG = deque()
def gaps(mf, plan, budget=None):
    budget = OPT["budget"] if budget is None else budget
    for g, m in enumerate(mf):
        E(m)
        items = plan[g] if g < len(plan) else []
        endi = [x[1:] for x in items if isinstance(x, tuple) and x[0] == "end"]
        items = [x for x in items if not (isinstance(x, tuple) and x[0] == "end")]
        c = sum(cost(x) for x in items) + sum(cost(x) for x in endi)
        E([x for x in items if not isvalu(x)])
        while True:
            while BG and ismem(BG[0]) and len(PM) < 3: PM.append(BG.popleft())
            if PM and (c + cost(PM[0]) <= budget or c <= OPT["memc"]):
                x = PM.popleft(); E(x); c += cost(x)
            else: break
        E([x for x in items if isvalu(x)])
        while BG:
            if ismem(BG[0]):
                if len(PM) < 3: PM.append(BG.popleft()); continue
                break
            if opof(BG[0]) in ("s_waitcnt", "s_barrier") and PM: break
            if c + cost(BG[0]) > budget: break
            x = BG.popleft(); E(x); c += cost(x)
        E(endi)
PM = deque()
def flush():
    print("flush", len(PM), len(BG), "at line", len(L), file=sys.stderr)
    while PM: E(PM.popleft())
    while BG: E(BG.popleft())
def spread(items, n, per):
    return [items[g*per:(g+1)*per] for g in range(n)]

CS = 128**-0.5 * math.log2(math.e)
X_BASE, H_BASE, R_BASE = 0, 65536, 98304
KR_BASE = 32768
sX, sK, sV, sWQ, sWO, sW1, sW2, sB1, sP = 4, 8, 12, 16, 20, 24, 28, 32, 36
sW, sG, sRB, sRING, sOFF, sCNT, sT0, sT1, sKOFF, sVOFF, sVL, sC0, sT2, sT3, sFLAG, sT4 = range(40, 56)
sST = 72
sROT = 56
sJJ = 57
vLANE, vTR, vB, vBC, vDO, vKR, vTV, vDK, vDV, vST, vM, vL = 1, 2, 6, 10, 14, 18, 26, 30, 32, 33, 34, 36
vDQ, vD1, vTF = 40, 44, 48
vT = 50
P0A = 56
ACC, ACCH, QF = 128, 64, 128
S0, S1 = 192, (208, 96)
P0, P1 = (P0A, 112), 120
NEGM = (224, 240)
aO, aKF, aVF, aACCF = 0, 128, 160, 128

nstamp = [0]
def stamp(lvl=1):
    if not OPT["stamps"]: return
    if OPT["stamps"] == 1 and lvl != 1: return
    if OPT["stamps"] == 2 and nstamp[0] >= 12: return
    i = nstamp[0]; nstamp[0] += 1
    E("s_memtime s[70:71]", "s_waitcnt lgkmcnt(0)", f"s_mov_b32 s{sST+i}, s70")

def mfma(dk, d, ak, a, bk, b, c=None, ck=None):
    cs = R(dk, d, 16) if c is None else (str(c) if ck is None else R(ck, c, 16))
    return f"v_mfma_f32_32x32x16_bf16 {R(dk,d,16)}, {R(ak,a,4)}, {R(bk,b,4)}, {cs}"
def dma_stage(slot, srd, vd, off, tag):
    o = [f"s_add_u32 m0, s{sRING}, {slot*4096}", f"s_mov_b32 s{sOFF}, {off}"]
    if OPT["rot"] and srd == sWQ:
        o[1] = [f"s_add_u32 s{sOFF}, s{sROT}, {off}", f"s_and_b32 s{sOFF}, s{sOFF}, {512*8192-1}"]
    if OPT["rot"] and srd == sW1:
        o[1] = [f"s_add_u32 s{sOFF}, s{sROT}, {off//3584*8192}", f"s_bfe_u32 s{sOFF}, s{sOFF}, {(9<<16)|13}", f"s_mul_i32 s{sOFF}, s{sOFF}, 3584"]
    o += [T(f"buffer_load_dwordx4 v{vd+p}, {sr(srd,4)}, s{sOFF} offen offset:{p*1024} lds", tag) for p in range(4)]
    return o
def dma_k(lds, tag=None):
    return [f"s_add_u32 m0, s{sVL}, {lds}", f"s_add_u32 s{sKOFF}, s{sKOFF}, 8192",
            T(f"buffer_load_dwordx4 v{vDK}, {sr(sK,4)}, s{sKOFF} offen lds", tag),
            T(f"buffer_load_dwordx4 v{vDK+1}, {sr(sK,4)}, s{sKOFF} offen offset:1024 lds", tag)]
def dma_v(lds, tag=None):
    return [f"s_add_u32 m0, s{sVL}, {lds}", f"s_add_u32 s{sVOFF}, s{sVOFF}, 8192",
            T(f"buffer_load_dwordx4 v{vDV}, {sr(sV,4)}, s{sVOFF} offen lds", tag),
            T(f"buffer_load_dwordx4 v{vDV}, {sr(sV,4)}, s{sVOFF} offen offset:1024 lds", tag)]

class Gemm:
    def __init__(s, name, acck, acc, fk, fa, fb, slot0, vb):
        s.name, s.acck, s.acc, s.fk, s.fa, s.fb, s.slot0, s.vb = name, acck, acc, fk, fa, fb, slot0, vb
    def regs(s, i): return s.fk, s.fa + 16*(i & 1), s.fb + 8*(i & 1)
    def reads(s, i):
        fk, fa, fb = s.regs(i); slot = (i + s.slot0) & 3; tag = (s.name, i); o = [W("vm", (s.name, i))]
        for rg in range(2):
            o.append(T(f"ds_read_b128 {R(fk, fb+4*rg, 4)}, v{s.vb+(i&3)} offset:{i*2048+rg*1024}", tag))
        for Tt in range(4):
            for t in range(2):
                o.append(T(f"ds_read_b64_tr_b16 {R(fk, fa+4*Tt+2*t, 2)}, v{vTR+Tt} offset:{slot*4096+t*1024}", tag))
        return o
    def one(s, i, Tt, rg):
        fk, fa, fb = s.regs(i)
        return mfma(s.acck, s.acc+64*rg+16*Tt, fk, fa+4*Tt, fk, fb+4*rg, 0 if i == 0 else None)
    def mf(s, i): return [s.one(i, Tt, rg) for Tt in range(4) for rg in range(2)]
class Gemm1:
    def __init__(s, name, acc, fa, fb, slot0, vb): s.name, s.acc, s.fa, s.fb, s.slot0, s.vb = name, acc, fa, fb, slot0, vb
    def reads(s, i):
        st = i & 1; slot = (i + s.slot0) & 3; tag = (s.name, i); o = [W("vm", (s.name, i))]
        for ks in range(2):
            kk = 2*i + ks
            for rg in range(2):
                o.append(T(f"ds_read_b128 {ar(s.fb+16*st+8*ks+4*rg, 4)}, v{s.vb+(kk&3)} offset:{kk*2048+rg*1024}", tag))
            for Tt in range(2):
                for t in range(2):
                    o.append(T(f"ds_read_b64_tr_b16 {ar(s.fa+16*st+8*ks+4*Tt+2*t, 2)}, v{vTF+Tt} offset:{slot*4096+ks*2048+t*512}", tag))
        return o
    def mf(s, i):
        st = i & 1
        return [mfma("v", s.acc+32*Tt+16*rg, "a", s.fa+16*st+8*ks+4*Tt, "a", s.fb+16*st+8*ks+4*rg)
                for ks in range(2) for Tt in range(2) for rg in range(2)]
def kstep(G, i, nxt_reads, dma, pre=(), post=()):
    E(W("lg", (G.name, i)))
    plan = [[] for _ in range(8)]
    plan[0] += list(pre)
    n = len(nxt_reads); per = (n + 3) // 4
    for g in range(4): plan[g] += nxt_reads[g*per:(g+1)*per]
    if dma:
        dp = OPT["dmapos"]
        if dp == "spread":
            plan[3] += dma[:2]
            for g in range(4): plan[4+g] += dma[2+g:3+g]
        elif dp == "pair":
            plan[3] += dma[:2]; plan[4] += dma[2:4]; plan[5] += dma[4:6]
        elif dp == "pair2":
            plan[3] += dma[:2]; plan[4] += dma[2:4]; plan[6] += dma[4:6]
        elif dp == "quad":
            plan[3] += dma[:2]; plan[4] += dma[2:6]
        elif dp == "even":
            plan = [[] for _ in range(8)]; plan[0] += list(pre) + dma[:2]
            q = list(nxt_reads); cnt = [2, 2, 3, 1, 3, 2, 3, 0]
            for g in range(8):
                plan[g] += q[:cnt[g]]; q = q[cnt[g]:]
                if g % 2 == 1: plan[g] += dma[2+g//2:3+g//2]
            assert not q
    plan[7] += list(post)
    gaps(G.mf(i), plan)

def srd(d, ptr, off, size):
    E(f"s_add_u32 s{d}, s{ptr}, s{off}", f"s_addc_u32 s{d+1}, s{ptr+1}, 0")
    if size[0] == "rest": E(f"s_sub_u32 s{d+2}, {size[1]}, s{off}")
    else: E(f"s_mov_b32 s{d+2}, {size[1]}")
    E(f"s_mov_b32 s{d+3}, 0x00020000")

def main_kernel():
    K = "fused_main_kernel"
    E(".p2align 8", f".globl {K}", f".type {K},@function", f"{K}:")
    E("s_cmp_ge_u32 s2, 256", "s_cbranch_scc1 L_main_end")
    E(f"s_mov_b32 s{sFLAG}, 0", f"v_mov_b32 v{vM}, 0", f"v_mov_b32 v{vM+1}, 0")
    E("L_restart:")
    if OPT["stamps"]:
        E("s_memrealtime s[96:97]"); stamp()
    E("s_load_dwordx8 s[60:67], s[0:1], 0", "s_load_dwordx2 s[68:69], s[0:1], 32", "s_load_dwordx4 s[88:91], s[0:1], 48",
      "s_load_dwordx2 s[92:93], s[0:1], 64", "s_load_dwordx2 s[94:95], s[0:1], 96")
    pf = 248
    if OPT["codepf"]:
        E("s_getpc_b64 s[100:101]", "L_pc:", f"s_sub_u32 s100, s100, L_pc-{K}", "s_subb_u32 s101, s101, 0")
        E(f"s_bfe_u32 s{sT0}, s2, 0x20003", f"s_lshl_b32 s{sT0}, s{sT0}, 14", f"v_lshlrev_b32 v{vT}, 6, v0", f"v_add_u32 v{vT}, s{sT0}, v{vT}",
          f"v_min_u32 v{vT}, L_code_end-{K}-4, v{vT}")
        E(f"global_load_dword a{pf}, v{vT}, s[100:101]")
    l = vLANE
    pt = 240
    row, c7, xo, t0, t1, t2, t3, t4, wa = pt, pt+1, pt+2, pt+4, pt+5, pt+6, pt+7, pt+8, pt+9
    pw = pt + 11
    E(f"v_lshrrev_b32 v{t0}, 6, v0", f"v_and_b32 v{l}, 63, v0")
    HG = OPT["hg"]; lh = HG.bit_length() - 1
    E(f"s_and_b32 s{sG}, s2, {8//HG-1}", f"s_lshl_b32 s{sG}, s{sG}, {lh}", f"s_bfe_u32 s{sT0}, s2, {(lh<<16)|3}", f"s_or_b32 s{sG}, s{sG}, s{sT0}",
      f"s_lshr_b32 s{sJJ}, s2, {3+lh}", f"s_bfe_u32 s{sRB}, s2, {(lh<<16)|(3-lh)}", f"s_lshl_b32 s{sRB}, s{sRB}, {5-lh}", f"s_or_b32 s{sRB}, s{sRB}, s{sJJ}")
    E(f"v_readfirstlane_b32 s{sW}, v{t0}")
    E(f"v_bfe_u32 v{row}, v0, 3, 3", f"v_lshl_add_u32 v{row}, v{t0}, 4, v{row}",
      f"v_and_b32 v{c7}, 7, v0", f"v_lshlrev_b32 v{xo}, 4, v{c7}", f"v_lshl_add_u32 v{xo}, v{row}, 10, v{xo}", f"v_add_u32 v{xo+1}, 8192, v{xo}")
    E(f"v_lshrrev_b32 v{t0}, 4, v{l}", f"v_bfe_u32 v{t1}, v{l}, 2, 2", f"v_xor_b32 v{t1}, v{t1}, v{t0}", f"v_lshlrev_b32 v{t1}, 6, v{t1}",
      f"v_and_b32 v{t2}, 3, v{l}", f"v_lshl_add_u32 v{t1}, v{t2}, 4, v{t1}")
    E(f"s_lshl_b32 s{sT0}, s{sW}, 8", f"v_add_u32 v{t2}, s{sT0}, v{t1}")
    E(f"v_lshl_add_u32 v{vDQ}, v{t0}, 13, v{t2}", f"v_lshl_add_u32 v{vDO}, v{t0}, 10, v{t2}")
    for p in range(1, 4):
        E(f"v_add_u32 v{vDQ+p}, {p*(4*8192-1024)}, v{vDQ}", f"v_add_u32 v{vDO+p}, {p*(4*1024-1024)}, v{vDO}")
    E(f"s_lshl_b32 s{sRING}, s{sW}, 14", f"s_add_u32 s{sRING}, s{sRING}, {R_BASE}", f"s_lshl_b32 s{sVL}, s{sW}, 11")
    E(f"v_lshrrev_b32 v{t3}, 4, v0", f"v_and_b32 v{t4}, 15, v0", f"v_lshlrev_b32 v{pw}, 6, v{t4}", f"v_lshl_add_u32 v{pw}, v{t3}, 13, v{pw}")
    E(f"s_mov_b32 s{sT1}, 3584", f"v_mul_lo_u32 v{t3}, v{t3}, s{sT1}", f"v_lshl_add_u32 v{pw+1}, v{t4}, 5, v{t3}", f"v_lshlrev_b32 v{pw+2}, 4, v0",
      f"s_mul_i32 s{sT3}, s{sRB}, {16*3584}", f"s_lshl_b32 s{sT4}, s{sRB}, 12")
    E(f"s_lshl_b32 s{sT0}, s{sRB}, 16", f"s_lshl_b32 s{sT1}, s{sG}, 10", f"s_lshl_b32 s{sT2}, s{sRB}, 17")
    if OPT["rot"]:
        E(f"s_and_b32 s{sROT}, s{sJJ}, {OPT['rot']-1}", f"s_mul_i32 s{sROT}, s{sROT}, {8//OPT['rot']}", f"s_lshl_b32 s80, s{sROT}, 7")
        for i in range(1, 8): E(f"s_add_u32 s{80+i}, s80, {128*i}", f"s_and_b32 s{80+i}, s{80+i}, 1023")
        E(f"s_lshl_b32 s{sROT}, s{sROT}, 19")
    E("s_waitcnt lgkmcnt(0)")
    srd(sX, 60, sT0, ("imm", 65536))
    RAW = 64
    for p in range(2):
        for i in range(8):
            if OPT["rot"]: E(T(f"buffer_load_dwordx4 {vr(RAW+32*p+4*i,4)}, v{xo+p}, {sr(sX,4)}, s{80+i} offen", ("x", p, i)))
            else: E(T(f"buffer_load_dwordx4 {vr(RAW+32*p+4*i,4)}, v{xo+p}, {sr(sX,4)}, 0 offen offset:{i*128}", ("x", p, i)))
    stamp()
    if OPT["xtest"]:
        E("s_waitcnt vmcnt(15)"); stamp()
        E("s_waitcnt vmcnt(0)"); stamp()
    srd(sWQ, 66, sT1, ("rest", 4194304))
    SP = deque()
    if OPT["wqpf"] == 1: E(f"buffer_load_dword a{pf+1}, v{pw}, {sr(sWQ,4)}, s{sT2} offen")
    if OPT["wqpf"] == 2: SP.append(f"buffer_load_dword a{pf+1}, v{pw}, {sr(sWQ,4)}, s{sT2} offen")
    for s_ in range(4):
        d = dma_stage(s_, sWQ, vDQ, s_*16*8192, ("q", s_)); SP.append(d[:3]); SP.extend(d[3:])
    SP.append(f"buffer_load_dword a{pf+2}, v{pw+1}, {sr(sW1,4)}, s{sT3} offen")
    SP.append(f"buffer_load_dword a{pf+3}, v{pw+2}, {sr(sK,4)}, s{sT4} offen")
    SP.append(f"buffer_load_dword a{pf+4}, v{pw+2}, {sr(sV,4)}, s{sT4} offen")
    def sp(n=1):
        for _ in range(n):
            if SP: E(SP.popleft())
    E(f"s_lshl_b32 s{sT0}, s{sG}, 19"); srd(sWO, 68, sT0, ("rest", 4194304))
    E(f"s_add_u32 s{sT0}, s{sT0}, {1536*256}"); srd(sK, 62, sT0, ("imm", 131072)); srd(sV, 64, sT0, ("imm", 131072))
    E(f"s_mul_i32 s{sT0}, s{sG}, {224*1024}"); srd(sW2, 92, sT0, ("rest", 1835008))
    E(f"s_lshr_b32 s{sT0}, s{sG}, 1", f"s_mul_i32 s{sT0}, s{sT0}, 896", f"s_and_b32 s{sT1}, s{sG}, 1", f"s_mul_i32 s{sT1}, s{sT1}, 384",
      f"s_add_u32 s{sT0}, s{sT0}, s{sT1}")
    srd(sW1, 88, sT0, ("rest", 1835008)); srd(sB1, 90, sT0, ("rest", 3584))
    E(f"s_lshl_b32 s{sT0}, s{sRB}, 3", f"s_or_b32 s{sT0}, s{sT0}, s{sG}", f"s_lshl_b32 s{sT0}, s{sT0}, 17"); srd(sP, 94, sT0, ("imm", 131072))
    E(f"v_lshl_add_u32 v{vDV}, v{t0}, 8, v{t1}", f"v_add_u32 v{vDV}, s{sVL}, v{vDV}")
    for p in range(2):
        E(f"s_lshl_b32 s{sT0}, s{sW}, 3", f"s_add_u32 s{sT0}, s{sT0}, {4*p}", f"v_add_u32 v{t2}, s{sT0}, v{t0}",
          f"v_xor_b32 v{t3}, v{t2}, v{l}", f"v_and_b32 v{t3}, 15, v{t3}", f"v_lshlrev_b32 v{t3}, 4, v{t3}",
          f"v_lshl_add_u32 v{vDK+p}, v{t2}, 8, v{t3}")
        if p: E(f"v_subrev_u32 v{vDK+p}, 1024, v{vDK+p}")
    E(f"v_lshrrev_b32 v{t0}, 3, v{l}", f"v_bfe_u32 v{t1}, v{l}, 2, 1", f"v_bfe_u32 v{t2}, v{l}, 4, 1", f"v_xor_b32 v{t1}, v{t1}, v{t2}",
      f"v_lshlrev_b32 v{t1}, 6, v{t1}", f"v_and_b32 v{t2}, 3, v{l}", f"v_lshl_add_u32 v{t1}, v{t2}, 4, v{t1}",
      f"s_mov_b32 s{sT1}, 3584", f"v_mul_lo_u32 v{t0}, v{t0}, s{sT1}", f"s_lshl_b32 s{sT0}, s{sW}, 7",
      f"v_add3_u32 v{vD1}, v{t0}, v{t1}, s{sT0}")
    for p in range(1, 4): E(f"v_add_u32 v{vD1+p}, {p*(8*3584-1024)}, v{vD1}")
    E(f"v_bfe_u32 v{t0}, v{l}, 2, 2", f"v_lshrrev_b32 v{t1}, 5, v{l}", f"v_lshl_add_u32 v{t1}, v{t1}, 3, v{t0}",
      f"v_and_b32 v{t2}, 1, v{l}", f"v_lshlrev_b32 v{t2}, 4, v{t2}", f"v_bfe_u32 v{t3}, v{l}, 1, 1", f"v_lshl_add_u32 v{t2}, v{t3}, 3, v{t2}",
      f"v_bfe_u32 v{t3}, v{l}, 4, 1", f"v_lshl_add_u32 v{t2}, v{t3}, 5, v{t2}")
    E(f"v_lshl_add_u32 v{t3}, v{t1}, 8, v{t2}")
    for Tt in range(4):
        E(f"v_xor_b32 v{t4}, {Tt}, v{t0}", f"v_lshl_add_u32 v{vTV+Tt}, v{t4}, 6, v{t3}", f"v_add_u32 v{vTR+Tt}, s{sRING}, v{vTV+Tt}")
    E(f"v_lshl_add_u32 v{t3}, v{t1}, 7, v{t2}", f"v_add_u32 v{t3}, s{sRING}, v{t3}", f"v_lshrrev_b32 v{t0}, 1, v{t0}")
    for Tt in range(2):
        E(f"v_xor_b32 v{t4}, {Tt}, v{t0}", f"v_lshl_add_u32 v{vTF+Tt}, v{t4}, 6, v{t3}")
    E(f"v_lshrrev_b32 v{t1}, 5, v{l}")
    for j in range(4):
        E(f"v_or_b32 v{t2}, {2*j}, v{t1}", f"v_xor_b32 v{t2}, v{t2}, v{l}", f"v_lshlrev_b32 v{vB+j}, 4, v{t2}")
    E(f"v_and_b32 v{t0}, 19, v{l}", f"v_bfe_u32 v{t2}, v{l}, 2, 1", f"v_lshl_add_u32 v{t0}, v{t2}, 3, v{t0}",
      f"v_bfe_u32 v{t2}, v{l}, 3, 1", f"v_lshl_add_u32 v{t0}, v{t2}, 2, v{t0}",
      f"v_lshlrev_b32 v{t2}, 8, v{t0}", f"v_add_u32 v{t2}, {KR_BASE}, v{t2}", f"v_and_b32 v{t0}, 15, v{t0}", f"v_xor_b32 v{t0}, v{t0}, v{t1}")
    for s_ in range(8):
        E(f"v_xor_b32 v{t3}, {2*s_}, v{t0}", f"v_lshl_add_u32 v{vKR+s_}, v{t3}, 4, v{t2}")
    E(f"s_lshl_b32 s{sT0}, s{sW}, 14", f"v_lshlrev_b32 v{vST}, 4, v{l}", f"v_add_u32 v{vST}, s{sT0}, v{vST}")
    for p in range(2):
        E(f"v_add_u32 v{t0}, {8*p}, v{row}", f"v_lshrrev_b32 v{t1}, 5, v{t0}", f"v_and_b32 v{t0}, 31, v{t0}", f"v_xor_b32 v{t0}, v{t0}, v{c7}",
          f"v_lshlrev_b32 v{t0}, 4, v{t0}", f"v_lshl_add_u32 v{t0}, v{t1}, 10, v{t0}", f"v_and_b32 v{t1}, 1, v{l}", f"v_lshl_add_u32 v{t0}, v{t1}, 9, v{t0}",
          f"v_lshrrev_b32 v{t1}, 1, v{c7}", f"v_lshl_add_u32 v{wa+p}, v{t1}, 11, v{t0}")
    E(f"s_mov_b32 s{sC0}, 0xffff0000", f"s_mov_b32 s{sKOFF}, -8192", f"s_mov_b32 s{sVOFF}, -8192")
    def dpp_sum(v):
        E("s_nop 1", f"v_add_f32_dpp v{v}, v{v}, v{v} quad_perm:[1,0,3,2] row_mask:0xf bank_mask:0xf",
          "s_nop 1", f"v_add_f32_dpp v{v}, v{v}, v{v} quad_perm:[2,3,0,1] row_mask:0xf bank_mask:0xf",
          "s_nop 1", f"v_add_f32_dpp v{v}, v{v}, v{v} row_half_mirror row_mask:0xf bank_mask:0xf")
    a0, a1, mean, rinv = 50, 52, 54, 56
    BIAS = 0
    for p in range(2):
        Ub = 128
        for i in range(8):
            E(W("vm", ("x", p, i)))
            if p == 0 and i == 0: stamp()
            for j in range(4*i, 4*i+4):
                E(f"v_lshlrev_b32 v{Ub+2*j}, 16, v{RAW+32*p+j}", f"v_and_b32 v{Ub+2*j+1}, s{sC0}, v{RAW+32*p+j}")
            if i == 0:
                E(f"v_pk_add_f32 {vr(a0,2)}, {vr(Ub,2)}, {vr(Ub+2,2)}", f"v_pk_add_f32 {vr(a1,2)}, {vr(Ub+4,2)}, {vr(Ub+6,2)}")
            else:
                for j in range(4*i, 4*i+4):
                    a = a0 if j % 2 == 0 else a1
                    E(f"v_pk_add_f32 {vr(a,2)}, {vr(a,2)}, {vr(Ub+2*j,2)}")
        E(f"v_pk_add_f32 {vr(a0,2)}, {vr(a0,2)}, {vr(a1,2)}", f"v_add_f32 v{a0}, v{a0}, v{a0+1}")
        dpp_sum(a0)
        stamp(2)
        E(f"v_mul_f32 v{mean}, {f32(1/512)}, v{a0}")
        for j in range(32):
            E(f"v_pk_add_f32 {vr(Ub+2*j,2)}, {vr(Ub+2*j,2)}, {vr(mean,2)} op_sel_hi:[1,0] neg_lo:[0,1] neg_hi:[0,1]")
            if j % OPT["spd"] == 0 and p >= OPT["spp"]: sp()
        E(f"v_pk_mul_f32 {vr(a0,2)}, {vr(Ub,2)}, {vr(Ub,2)}", f"v_pk_mul_f32 {vr(a1,2)}, {vr(Ub+2,2)}, {vr(Ub+2,2)}")
        for j in range(2, 32):
            a = a0 if j % 2 == 0 else a1
            E(f"v_pk_fma_f32 {vr(a,2)}, {vr(Ub+2*j,2)}, {vr(Ub+2*j,2)}, {vr(a,2)}")
            if j % OPT["spd"] == 0 and p >= OPT["spp"]: sp()
        E(f"v_pk_add_f32 {vr(a0,2)}, {vr(a0,2)}, {vr(a1,2)}", f"v_add_f32 v{a0}, v{a0}, v{a0+1}")
        dpp_sum(a0)
        dl = a1
        stamp(2)
        E(f"v_mul_f32 v{a0}, {f32(1/512)}, v{a0}",
          f"v_cvt_pk_bf16_f32 v{a0}, v{a0}, v{mean}",
          f"v_and_b32 v{dl}, s{sC0}, v{a0}", f"v_lshlrev_b32 v{a0}, 16, v{a0}",
          f"v_sub_f32 v{dl}, v{mean}, v{dl}",
          f"v_add_f32 v{a0}, {f32(1e-5)}, v{a0}", f"v_cvt_pk_bf16_f32 v{a0}, v{a0}, v{a0}", f"v_lshlrev_b32 v{a0}, 16, v{a0}",
          f"v_sqrt_f32 v{a0}, v{a0}", "s_nop 0", f"v_cvt_pk_bf16_f32 v{a0}, v{a0}, v{a0}", f"v_lshlrev_b32 v{a0}, 16, v{a0}",
          f"v_rcp_f32 v{rinv}, v{a0}", "s_nop 0", f"v_mul_f32 v{rinv}, {f32(CS)}, v{rinv}", f"v_mul_f32 v{dl}, v{dl}, v{rinv}")
        for i in range(8):
            for j in range(4*i, 4*i+4):
                E(f"v_pk_fma_f32 {vr(Ub+2*j,2)}, {vr(Ub+2*j,2)}, {vr(rinv,2)}, {vr(dl,2)} op_sel_hi:[1,0,0]")
            for j in range(4):
                E(f"v_cvt_pk_bf16_f32 v{RAW+32*p+4*i+j}, v{Ub+8*i+2*j}, v{Ub+8*i+2*j+1}")
            E(f"ds_write_b128 v{wa+p}, {vr(RAW+32*p+4*i,4)} offset:{i*8192}")
    stamp(2)
    sp(99)
    stamp(2)
    E("s_waitcnt lgkmcnt(0)", "s_barrier")
    stamp()
    GQ = Gemm("q", "v", ACC, "a", 0, 32, 0, vB)
    G1 = Gemm1("f1", ACCH, 64, 96, 0, vB)
    E(GQ.reads(0))
    BR = 112
    for i in range(32):
        nxt = GQ.reads(i + 1) if i < 31 else G1.reads(0)
        d = dma_stage(i & 3, sWQ, vDQ, (i+4)*16*8192, ("q", i+4)) if i < 28 else dma_stage(i & 3, sW1, vD1, (i-28)*32*3584, ("f1", i-28))
        if i == 6:
            BG.extend([f"v_lshrrev_b32 v{vT}, 5, v{l}", f"v_lshlrev_b32 v{vT}, 4, v{vT}", f"s_lshl_b32 s{sT0}, s{sW}, 7"])
            BG.extend([T(f"buffer_load_dwordx4 {vr(BR+4*q,4)}, v{vT}, {sr(sB1,4)}, s{sT0} offen offset:{q*32}", "bias") for q in range(4)])
        if i == 12:
            BG.append(W("vm", "bias"))
            for Tt in range(2):
                for r in range(16):
                    src = BR + 8*Tt + r//2
                    op = f"v_lshlrev_b32 v%d, 16, v{src}" if r % 2 == 0 else f"v_and_b32 v%d, s{sC0}, v{src}"
                    BG.append(op % (ACCH+32*Tt+r))
                    BG.append(f"v_mul_f32 v{ACCH+32*Tt+r}, {f32(CS)}, v{ACCH+32*Tt+r}")
            for Tt in range(2):
                for r in range(0, 16, 2): BG.append(f"v_mov_b64 {vr(ACCH+32*Tt+16+r,2)}, {vr(ACCH+32*Tt+r,2)}")
        post = []
        if i in (18, 20, 22): post = dma_k(H_BASE + ((i-18)//2)*8192, "kv0")
        if i == 24: post = dma_v(H_BASE + 3*8192, "kv0")
        kstep(GQ, i, nxt, d, post=post)
        if i in (0, 7): stamp(2)
    flush()
    stamp()
    def kreads(off, tag="k"): return [T(f"ds_read_b128 {ar(aKF+4*s_,4)}, v{vKR+s_} offset:{off}", tag) for s_ in range(8)]
    def vreads(off, va=vTV, tag="v"): return [T(f"ds_read_b64_tr_b16 {ar(aVF+16*u+4*Tt+2*t,2)}, v{va+Tt} offset:{off+u*4096+t*1024}", tag)
                                      for u in range(2) for Tt in range(4) for t in range(2)]
    def qk(rg, dst, cinit):
        return [mfma("v", dst, "a", aKF+4*s_, "v", QF+32*rg+4*s_, *(cinit if s_ == 0 else ())) for s_ in range(8)]
    def pv(rg, p, zero=False):
        return [mfma("a", aO+64*rg+16*Tt, "a", aVF+16*u+4*Tt, "v", p+4*u, 0 if (zero and u == 0) else None) for u in range(2) for Tt in range(4)]
    def sm_plan(rg, s, p):
        pl = [[] for _ in range(16)]
        for j in range(16):
            pl[max(0, j-1)].append(f"v_exp_f32 v{s+j}, v{s+j}")
        for j in range(16):
            pl[max(1, j)].append(f"v_add_f32 v{vL+2*rg+(j&1)}, v{vL+2*rg+(j&1)}, v{s+j}")
        for k in range(8):
            pl[2*k+1].append(f"v_cvt_pk_bf16_f32 v{p+k}, v{s+2*k}, v{s+2*k+1}")
        return pl
    G2 = Gemm("f2", "a", aACCF, "v", 64, 96, 0, vBC)
    KH = H_BASE - KR_BASE
    for i in range(16):
        nxt = G1.reads(i + 1) if i < 15 else []
        d = dma_stage(i & 3, sW1, vD1, (i+4)*32*3584, ("f1", i+4)) if i < 12 else dma_stage(i & 3, sW2, vDO, (i-12)*16384, ("f2", i-12))
        pre = []; post = []
        if i == 1:
            for j in range(64):
                BG.append(f"v_cvt_pk_bf16_f32 v{QF+j}, v{ACC+2*j}, v{ACC+2*j+1}")
        if i == 3: post = [W("vm", "kv0"), "s_barrier"]
        if i == 4: BG.extend(kreads(KH, "k0"))
        kstep(G1, i, nxt, d, pre=pre, post=post)
        if i == 5:
            flush()
            E(W("lg", "k0"), "s_nop 1")
            for j in range(4): BG.append(f"v_mov_b32 v{vL+j}, 0")
            for Tt in range(4): BG.append(f"v_add_u32 v{vDQ+Tt}, {H_BASE}, v{vTV+Tt}")
            gaps(qk(0, S0, (0,)) + qk(1, S1[0], (0,)), [])
            BG.extend(kreads(KH + 8192, "k"))
            for rg, s in ((0, S0), (1, S1[0])):
                m = vT + rg
                BG.append(f"v_max3_f32 v{m}, v{s}, v{s+1}, v{s+2}")
                for j in range(3, 15, 2): BG.append(f"v_max3_f32 v{m}, v{m}, v{s+j}, v{s+j+1}")
                BG.extend([f"v_max_f32 v{m}, v{m}, v{s+15}", f"v_mov_b32 v{vT+2}, v{m}", "s_nop 1", f"v_permlane32_swap_b32 v{m}, v{vT+2}",
                           [f"s_cmp_lg_u32 s{sFLAG}, 0", "s_cselect_b64 vcc, -1, 0"], f"v_max_f32 v{m}, v{m}, v{vT+2}",
                           f"v_cndmask_b32 v{m}, v{m}, v{vM+rg}, vcc"])
                BG.extend([f"v_sub_f32 v{NEGM[rg]}, 0, v{m}", f"v_sub_f32 v{NEGM[rg]+1}, 0, v{m}"])
                for r in range(2, 16, 2): BG.append(f"v_mov_b64 {vr(NEGM[rg]+r,2)}, {vr(NEGM[rg],2)}")
                for r in range(16): BG.append(f"v_sub_f32 v{s+r}, v{s+r}, v{m}")
            for g in sm_plan(0, S0, P0[0]): BG.extend(g)
    flush()
    stamp()
    E(f"s_lshl_b32 s{sT0}, s{sW}, 13", f"s_add_u32 s{sT0}, s{sT0}, {H_BASE}")
    for j in range(4): E(f"v_add_u32 v{vBC+j}, s{sT0}, v{vB+j}")
    E("s_waitcnt lgkmcnt(0)", "s_barrier")
    E(dma_v(X_BASE + 8192, "v1"), dma_k(KR_BASE + 3*8192, "v1"))
    for j in range(32):
        b = ACCH + 2*j
        E(f"v_max_f32 v{b}, 0, v{b}", f"v_max_f32 v{b+1}, 0, v{b+1}")
        if j > 0:
            E(f"v_pk_mul_f32 {vr(b-2,2)}, {vr(b-2,2)}, {vr(b-2,2)}")
        if j > 1:
            E(f"v_cvt_pk_bf16_f32 v{ACCH+j-2}, v{b-4}, v{b-3}")
    b = ACCH + 62
    E(f"v_pk_mul_f32 {vr(b,2)}, {vr(b,2)}, {vr(b,2)}", f"v_cvt_pk_bf16_f32 v{ACCH+30}, v{b-2}, v{b-1}", f"v_cvt_pk_bf16_f32 v{ACCH+31}, v{b}, v{b+1}")
    hw = [f"ds_write_b128 v{vBC+2*Tt+u}, {vr(ACCH+16*Tt+8*rg+4*u,4)} offset:{(2*Tt+u)*2048+rg*1024}" for Tt in range(2) for rg in range(2) for u in range(2)]
    stamp()
    def att_iter(i, first=False, extra2=(), tail=()):
        if not first: E("s_barrier")
        pl = sm_plan(1, S1[i&1], P1)
        vrd = vreads(3*8192, vDQ) if first else vreads((i & 3)*8192)
        k = 0
        for g in range(16):
            n = (1 if g == 0 else (1 if g % 2 == 1 else 2))
            pl[g] += vrd[k:k+n]; k += n
        gaps(qk(0, S0, (NEGM[0], "v")) + qk(1, S1[(i+1)&1], (NEGM[1], "v")), pl)
        E("s_waitcnt lgkmcnt(0)")
        pl = sm_plan(0, S0, P0[(i+1)&1])
        krd = kreads(KH + 2*8192) if first else kreads(((i+2) & 3)*8192)
        for g in range(8): pl[g].append(krd[g])
        dv = dma_v(X_BASE + ((i+2) & 3)*8192); dk = dma_k(KR_BASE + (i & 3)*8192)
        pl[6] += dv[:1]; pl[8] += dv[1:3]; pl[9] += dv[3:]; pl[10] += dk[:2]; pl[12] += dk[2:3]; pl[14] += dk[3:]
        pl[13] += list(extra2)
        pl[15] += [tuple(["end", "s_waitcnt vmcnt(4) lgkmcnt(0)"] + list(tail))]
        gaps(pv(0, P0[i&1], zero=first) + pv(1, P1, zero=first), pl)
    att_iter(0, first=True)
    BG.extend(hw)
    BG.extend([f"v_lshlrev_b32 v{vT}, 5, v0", f"s_mul_i32 s{sT0}, s{sRB}, 7168", f"v_lshlrev_b32 v{vT+1}, 6, v0", f"s_lshl_b32 s{sT1}, s{sRB}, 14"])
    att_iter(1)
    flush()
    E(f"buffer_load_dword a{pf+5}, v{vT}, {sr(sW2,4)}, s{sT0} offen", f"buffer_load_dword a{pf+6}, v{vT+1}, {sr(sWO,4)}, s{sT1} offen")
    att_iter(2)
    att_iter(3, extra2=[f"s_mov_b32 s{sCNT}, 0"])
    E("L_att_loop:")
    for i in range(4, 8):
        att_iter(i, extra2=([f"s_cmp_eq_u32 s{sCNT}, 2"] if i == 6 else [f"s_add_u32 s{sCNT}, s{sCNT}, 1"] if i == 7 else []),
                 tail=(["s_cbranch_scc1 L_att_last"] if i == 6 else ["s_branch L_att_loop"] if i == 7 else []))
    E("L_att_last:")
    del VM[:]; del LG[:]; VM.extend([None]*4)
    i = 15
    E("s_barrier")
    E(vreads((i & 3)*8192))
    E(f"s_and_b32 s{sT0}, s{sG}, 1", f"s_lshl_b32 s{sT1}, s{sT0}, 12", f"s_add_u32 s{sT1}, s{sT1}, {H_BASE}", f"s_lshl_b32 s{sT0}, s{sT0}, 6")
    for j in range(4): E(f"v_xor_b32 v{vBC+j}, s{sT0}, v{vB+j}", f"v_add_u32 v{vBC+j}, s{sT1}, v{vBC+j}")
    def lfin(rg):
        a, b = vL+2*rg, vL+2*rg+1
        return [f"v_add_f32 v{a}, v{a}, v{b}", f"v_mov_b32 v{b}, v{a}", "s_nop 1", f"v_permlane32_swap_b32 v{a}, v{b}", "s_nop 0",
                f"v_add_f32 v{b}, v{a}, v{b}", f"v_rcp_f32 v{a}, v{b}"]
    E(lfin(0))
    pl16 = sm_plan(1, S1[i&1], P1)
    E(pl16[0], pl16[1])
    E("s_waitcnt vmcnt(0) lgkmcnt(0)")
    pl = [pl16[2+2*g] + pl16[3+2*g] if g < 7 else [] for g in range(8)]
    pl[0] = ["s_barrier"] + pl[0]
    pl[7] = ["s_nop 0"]
    gaps(pv(0, P0[i&1]), pl)
    OWA = vDQ
    BG.append(f"s_lshl_b32 s{sT0}, s{sW}, 14")
    for j in range(4): BG.append(f"v_add_u32 v{OWA+j}, s{sT0}, v{vB+j}")
    BG.extend(lfin(1))
    BG.extend([f"v_add_f32 v{vT+1}, v{vL+1}, v{vL+3}", f"s_mov_b32 s{sT1}, {f32(2.0**OPT['thr'])}",
               f"v_cmp_nge_f32 vcc, s{sT1}, v{vT+1}", "s_nop 1", ["s_cmp_lg_u64 vcc, 0", f"s_cselect_b32 s{sT1}, 1, 0"], f"v_mov_b32 v{vT}, s{sT1}"])
    def oepi(rg):
        o = []
        for Tt in range(4):
            b = 192 + 16*((4*rg+Tt) & 3)
            for u in range(2):
                for r in range(8*u, 8*u+8): o.append(f"v_accvgpr_read_b32 v{b+r}, a{aO+64*rg+16*Tt+r}")
                for r in range(8*u, 8*u+8): o.append(f"v_mul_f32 v{b+r}, v{vL+2*rg}, v{b+r}")
                for j in range(4): o.append(f"v_cvt_pk_bf16_f32 v{b+8*u+j}, v{b+8*u+2*j}, v{b+8*u+2*j+1}")
                ks = 2*Tt + u
                o.append(T(f"ds_write_b128 v{OWA+(ks&3)}, {vr(b+8*u,4)} offset:{ks*2048+rg*1024}", "ow"))
        if "oepi" in OPT["skip"]: o = []
        if "odsw" in OPT["skip"]: o = [x for x in o if not ismem(x)]
        if "ovalu" in OPT["skip"]: o = [x for x in o if ismem(x)]
        return o
    BG.extend(oepi(0))
    gaps(pv(1, P1), spread(G2.reads(0), 8, 2))
    BG.extend(oepi(1))
    stamp()
    G3 = Gemm("o", "v", ACC, "v", 64, 96, 2, vB)
    FLAGA = H_BASE
    for i in range(14):
        d = dma_stage(i & 3, sW2, vDO, (i+4)*16384, ("f2", i+4)) if i < 10 else dma_stage(i & 3, sWO, vDO, (i-10)*16384, ("o", i-10))
        if i < 13:
            kstep(G2, i, G2.reads(i + 1), d)
        else:
            flush()
            E(f"s_and_b32 s{sT0}, s{sG}, 1", f"s_xor_b32 s{sT0}, s{sT0}, 1", f"s_mul_i32 s{sT0}, s{sT0}, {14*2048}", f"s_add_u32 s{sT0}, s{sT0}, {H_BASE}",
              f"v_mov_b32 v{vT+1}, s{sT0}", f"s_lshl_b32 s{sT1}, s{sW}, 2", f"v_add_u32 v{vT+2}, s{sT1}, v{vT+1}",
              T(f"ds_write_b32 v{vT+2}, v{vT}", "ow"))
            kstep(G2, i, [W("lg", "ow"), "s_barrier", T(f"ds_read_b128 {vr(vT+2,4)}, v{vT+1}", "fl")] + G3.reads(0), d)
    stamp()
    E(W("lg", "fl"))
    E(f"v_or3_b32 v{vT}, v{vT+2}, v{vT+3}, v{vT+4}", f"v_or_b32 v{vT}, v{vT}, v{vT+5}", "s_nop 0", f"v_readfirstlane_b32 s{sT0}, v{vT}",
      "s_nop 0", f"s_andn2_b32 s{sT0}, s{sT0}, s{sFLAG}", "s_cbranch_scc1 L_slow")
    def epi_tile(kind, acc, typ, Tt, rg, tmp):
        o = []; b = tmp if kind == "a" else acc+64*rg+16*Tt
        for u in range(2):
            if kind == "a":
                for r in range(8*u, 8*u+8): o.append(f"v_accvgpr_read_b32 v{b+r}, a{acc+64*rg+16*Tt+r}")
            for j in range(4): o.append(f"v_cvt_pk_bf16_f32 v{b+8*u+j}, v{b+8*u+2*j}, v{b+8*u+2*j+1}")
            o.append([f"s_mov_b32 s{sT4}, {typ*65536 + Tt*4096}",
                      f"buffer_store_dwordx4 {vr(b+8*u,4)}, v{vST}, {sr(sP,4)}, s{sT4} offen offset:{u*2048+rg*1024} {OPT['stsc']}"])
        return o
    class GT(Gemm):
        def regs(s, i): return ("a", 24*(i-28), 24*(i-28)+16) if i >= 28 else Gemm.regs(s, i)
        def reads(s, i):
            o = Gemm.reads(s, i)
            if i >= 30:
                fk, fa, fb = s.regs(i)
                o = o[:3] + [T(f"ds_read_b64_tr_b16 {R(fk, fa+4*Tt+2*t, 2)}, v{P0A+Tt} offset:{(i-30)*4096+t*1024}", (s.name, i)) for Tt in range(4) for t in range(2)]
            return o
    G3 = GT("o", "v", ACC, "v", 64, 96, 2, vB)
    for i in range(28):
        for n in range(16):
            if i == 1 + (n * OPT["fspan"]) // 16:
                e = epi_tile("a", aACCF, 1, n // 4, (n // 2) & 1, (112, 40)[(n // 2) & 1])
                BG.extend(e[:13] if n % 2 == 0 else e[13:])
        d = dma_stage((i + 2) & 3, sWO, vDO, (i+4)*16384, ("o", i+4)) if i < 26 else []
        post = []
        if i == 12: post = ["s_barrier", f"s_lshl_b32 s{sT0}, s{sW}, 13", f"s_add_u32 s{sT0}, s{sT0}, {H_BASE}"]
        if i == 13: post = [f"v_add_u32 v{P0A+Tt}, s{sT0}, v{vTV+Tt}" for Tt in range(4)]
        if i in (16, 20):
            st = 30 + (i - 16) // 4
            post = dma_stage(0, sWO, vDO, st*16384, ("o", st)); post[0] = f"s_add_u32 m0, s{sT0}, {(st-30)*4096}"
        kstep(G3, i, G3.reads(i + 1), d, post=post)
    flush()
    E(W("lg", ("o", 28)))
    rd = G3.reads(29) + G3.reads(30) + G3.reads(31)
    gaps(G3.mf(28), spread(rd, 8, 5))
    stamp()
    E(W("lg", ("o", 31)))
    tiles = [(Tt, rg) for Tt in range(4) for rg in range(2)]
    for n, (Tt, rg) in enumerate(tiles):
        if n >= 2: BG.extend(epi_tile("v", ACC, 0, *tiles[n-2], None))
        gaps([G3.one(i, Tt, rg) for i in (29, 30, 31)], [])
    flush()
    E("s_nop 3")
    E(epi_tile("v", ACC, 0, *tiles[6], None))
    E(epi_tile("v", ACC, 0, *tiles[7], None))
    if OPT["stamps"]:
        stamp()
        E("s_waitcnt vmcnt(0)")
        stamp()
        E(f"s_lshl_b32 s{sT0}, s2, 2", f"s_add_u32 s{sT0}, s{sT0}, s{sW}", f"s_lshl_b32 s{sT0}, s{sT0}, 6", f"s_add_u32 s{sT0}, s{sT0}, {64<<20}")
        srd(sX, 94, sT0, ("imm", 64))
        E(f"v_mov_b32 v{vT}, 0", "s_memrealtime s[98:99]", "s_waitcnt lgkmcnt(0)", f"s_mov_b32 s{sST+14}, s96", f"s_mov_b32 s{sST+15}, s98")
        for i in list(range(nstamp[0])) + [14, 15]:
            E(f"v_mov_b32 v{vT+1}, s{sST+i}", f"buffer_store_dword v{vT+1}, v{vT}, {sr(sX,4)}, 0 offen offset:{4*i}")
    E("L_main_end:", "s_endpgm")
    E("L_slow:")
    E("s_waitcnt vmcnt(0) lgkmcnt(0)", "s_barrier")
    E(f"s_mov_b32 s{sKOFF}, -8192", f"s_mov_b32 s{sCNT}, 16", f"v_mov_b32 v{vM}, 0xff800000", f"v_mov_b32 v{vM+1}, 0xff800000")
    E("L_slow_loop:")
    E(dma_k(KR_BASE))
    E("s_waitcnt vmcnt(0)", "s_barrier")
    E(kreads(0))
    E("s_waitcnt lgkmcnt(0)", "s_barrier")
    E(qk(0, S0, (0,)), qk(1, S1[0], (0,)))
    E("s_nop 7", "s_nop 7")
    for rg, s in ((0, S0), (1, S1[0])):
        for j in range(0, 16, 2): E(f"v_max3_f32 v{vM+rg}, v{vM+rg}, v{s+j}, v{s+j+1}")
    E(f"s_sub_u32 s{sCNT}, s{sCNT}, 1", f"s_cmp_lg_u32 s{sCNT}, 0", "s_cbranch_scc1 L_slow_loop")
    for rg in range(2):
        E(f"v_mov_b32 v{vT}, v{vM+rg}", "s_nop 1", f"v_permlane32_swap_b32 v{vM+rg}, v{vT}", "s_nop 0", f"v_max_f32 v{vM+rg}, v{vM+rg}, v{vT}")
    E(f"s_mov_b32 s{sFLAG}, 1", "s_branch L_restart")
    return K

def reduce_kernel():
    K = "fused_reduce_kernel"
    del VM[:]; del LG[:]
    E(".p2align 8", f".globl {K}", f".type {K},@function", f"{K}:")
    E("s_cmp_ge_u32 s2, 256", "s_cbranch_scc1 L_red_end")
    E("s_load_dwordx2 s[60:61], s[0:1], 0", "s_load_dwordx4 s[64:67], s[0:1], 72", "s_load_dwordx2 s[68:69], s[0:1], 96")
    E("s_lshr_b32 s40, s2, 3", "s_and_b32 s41, s2, 7")
    E("v_lshlrev_b32 v3, 4, v0")
    E("v_lshrrev_b32 v1, 7, v0", "v_bfe_u32 v2, v0, 5, 1", "v_lshlrev_b32 v5, 5, v1", "v_lshl_add_u32 v5, v2, 4, v5",
      "v_bfe_u32 v1, v0, 6, 1", "v_and_b32 v2, 31, v0", "v_lshl_add_u32 v1, v1, 5, v2", "v_lshl_add_u32 v4, v1, 10, v5")
    E("s_waitcnt lgkmcnt(0)")
    E("s_lshl_b32 s46, s40, 20", "s_lshl_b32 s47, s41, 13", "s_add_u32 s46, s46, s47"); srd(4, 68, 46, ("imm", 1 << 20))
    PB = 16
    for ps in range(2):
        for typ in (1, 0):
            for g in range(8):
                E(f"s_mov_b32 s46, {g*131072 + typ*65536 + ps*4096}")
                E(T(f"buffer_load_dwordx4 {vr(PB+68*ps+32*(1-typ)+4*g,4)}, v3, s[4:7], s46 offen", (ps, typ, g)))
        if ps == 0:
            E("s_lshl_b32 s46, s40, 16", "s_lshl_b32 s47, s41, 7", "s_add_u32 s46, s46, s47"); srd(8, 60, 46, ("rest", 2097152)); srd(12, 66, 46, ("rest", 2097152))
            srd(16, 64, 47, ("rest", 1024))
        E(f"buffer_load_dwordx4 {vr(8+4*ps,4)}, v5, s[16:19], 0 offen offset:{ps*64}")
        E(T(f"buffer_load_dwordx4 {vr(PB+68*ps+64,4)}, v4, s[8:11], 0 offen offset:{ps*64}", (ps, "x")))
    E("s_mov_b32 s50, 0xffff0000", f"s_mov_b32 s51, {f32(1/CS**2)}")
    A = 160; Tm = 176; B2 = 192
    for ps in range(2):
        base = PB + 68*ps
        for typ in (1, 0):
            acc = A + 8*(1-typ)
            for g in range(8):
                E(W("vm", (ps, typ, g)))
                src = base + 32*(1-typ) + 4*g
                dst = acc if g == 0 else Tm
                for j in range(4): E(f"v_lshlrev_b32 v{dst+2*j}, 16, v{src+j}", f"v_and_b32 v{dst+2*j+1}, s50, v{src+j}")
                if g:
                    for j in range(4): E(f"v_pk_add_f32 {vr(acc+2*j,2)}, {vr(acc+2*j,2)}, {vr(Tm+2*j,2)}")
        E(W("vm", (ps, "x")))
        for j in range(4): E(f"v_lshlrev_b32 v{B2+2*j}, 16, v{8+4*ps+j}", f"v_and_b32 v{B2+2*j+1}, s50, v{8+4*ps+j}")
        for j in range(8): E(f"v_fma_f32 v{A+j}, v{A+j}, s51, v{B2+j}")
        for j in range(8): E(f"v_mul_f32 v{Tm+j}, {f32(-math.log2(math.e))}, v{A+j}")
        for j in range(8): E(f"v_exp_f32 v{Tm+j}, v{Tm+j}")
        E("s_nop 0")
        for j in range(8): E(f"v_add_f32 v{Tm+j}, 1.0, v{Tm+j}")
        for j in range(8): E(f"v_rcp_f32 v{Tm+j}, v{Tm+j}")
        E("s_nop 0")
        for j in range(8): E(f"v_mul_f32 v{A+j}, v{A+j}, v{Tm+j}")
        xs = base + 64
        for j in range(4): E(f"v_lshlrev_b32 v{Tm+2*j}, 16, v{xs+j}", f"v_and_b32 v{Tm+2*j+1}, s50, v{xs+j}")
        for j in range(8): E(f"v_fma_f32 v{Tm+j}, v{A+8+j}, v{A+j}, v{Tm+j}")
        O = 200 + 4*ps
        for j in range(4): E(f"v_cvt_pk_bf16_f32 v{O+j}, v{Tm+2*j}, v{Tm+2*j+1}")
        E(f"buffer_store_dwordx4 {vr(O,4)}, v4, s[12:15], 0 offen offset:{ps*64}")
    E("L_red_end:", "s_endpgm", "L_code_end:")
    return K

hdr = open("cdna_kernels/" + NAME + ".s.ref").read().split("; Override launch")[0]
out = [hdr.rstrip()]
out.append("; @launch kernel=fused_main_kernel grid=(256,1,1) block=(256,1,1) lds=163840")
out.append("; @launch kernel=fused_reduce_kernel grid=(256,1,1) block=(256,1,1) lds=0")
out.append('.amdgcn_target "amdgcn-amd-amdhsa--gfx950"')
out.append(".text")
k1 = main_kernel(); k2 = reduce_kernel()
out += L
out.append('.section .rodata,"a"')
for k, nv, ao in ((k1, 512, 256), (k2, 208, 208)):
    out.append(f""".p2align 6
.amdhsa_kernel {k}
  .amdhsa_next_free_vgpr {nv}
  .amdhsa_next_free_sgpr 102
  .amdhsa_accum_offset {ao}
  .amdhsa_group_segment_fixed_size 0
  .amdhsa_kernarg_size 104
  .amdhsa_user_sgpr_count 2
  .amdhsa_user_sgpr_kernarg_segment_ptr 1
  .amdhsa_system_sgpr_workgroup_id_x 1
.end_amdhsa_kernel""")
print("\n".join(out))
```

```python
import sys, math, struct
from collections import deque
NAME = "recurrent_scan__sliding_block_cached__dense_activation_squared_relu__prompt"
OPT = dict(stamps=0, codepf=1, budget=24, thr=40, memc=12, dmac=8, hg=2, spd=3, rot=4, spp=1, wqpf=1, outsc="", skip="", spin=200000, pfpos=1)
for a in sys.argv[1:]:
    k, v = a.split("="); OPT[k] = int(v) if v.lstrip("-").isdigit() else v

def vr(b, n=1): return f"v{b}" if n == 1 else f"v[{b}:{b+n-1}]"
def ar(b, n=1): return f"a{b}" if n == 1 else f"a[{b}:{b+n-1}]"
def R(kind, b, n=1): return vr(b, n) if kind == "v" else ar(b, n)
def sr(b, n=1): return f"s{b}" if n == 1 else f"s[{b}:{b+n-1}]"
def f32(x): return "0x%08x" % struct.unpack("<I", struct.pack("<f", x))[0]

class W:
    def __init__(s, cnt, tag): s.cnt, s.tag = cnt, tag
class T:
    def __init__(s, text, tag): s.text, s.tag = text, tag
L = []; VM = []; LG = []
def E(*xs):
    for x in xs:
        if isinstance(x, (list, tuple)): E(*x); continue
        if isinstance(x, W):
            q = VM if x.cnt == "vm" else LG
            idx = [i for i, t in enumerate(q) if t == x.tag]
            if not idx: continue
            n = len(q) - 1 - idx[-1]
            n = min(n, 63 if x.cnt == "vm" else 15)
            del q[:len(q) - n]
            L.append(f"    s_waitcnt {'vmcnt' if x.cnt == 'vm' else 'lgkmcnt'}({n})"); continue
        tag = None
        if isinstance(x, T): x, tag = x.text, x.tag
        op = x.split()[0]
        if op.startswith("buffer_") or op.startswith("global_"): VM.append(tag)
        if op.startswith("ds_"): LG.append(tag)
        if op == "s_waitcnt":
            for w in x.split()[1:]:
                n = int(w[w.index("(")+1:-1]); q = VM if w.startswith("vm") else LG
                if len(q) > n: del q[:len(q) - n]
        L.append("    " + x if not x.endswith(":") and not x.startswith(".") else x)
def opof(x):
    if isinstance(x, (list, tuple)): return opof(x[0])
    if isinstance(x, W): return "s_waitcnt"
    return (x.text if isinstance(x, T) else x).split()[0]
def ismem(x):
    if isinstance(x, (list, tuple)): return any(ismem(y) for y in x)
    return opof(x).split("_")[0] in ("ds", "buffer", "global")
def isvalu(x): return opof(x).startswith("v_")
def cost(x):
    if isinstance(x, (list, tuple)): return sum(cost(y) for y in x)
    if isinstance(x, W): return 4
    t = x.text if isinstance(x, T) else x
    op = t.split()[0]
    assert not op.startswith("v_pk_"), t
    if op in ("v_exp_f32", "v_rcp_f32", "v_sqrt_f32"): return 8
    if op.startswith("buffer_store_dwordx4"): return 24
    if op.startswith("buffer_") or op.startswith("global_"): return OPT["dmac"]
    if op == "s_nop": return 4 * (int(t.split()[1]) + 1)
    if op == "ds_write_b128": return 20
    return 4
BG = deque()
def gaps(mf, plan, budget=None):
    budget = OPT["budget"] if budget is None else budget
    for g, m in enumerate(mf):
        E(m)
        items = plan[g] if g < len(plan) else []
        endi = [x[1:] for x in items if isinstance(x, tuple) and x[0] == "end"]
        items = [x for x in items if not (isinstance(x, tuple) and x[0] == "end")]
        c = sum(cost(x) for x in items) + sum(cost(x) for x in endi)
        E([x for x in items if not isvalu(x)])
        while True:
            while BG and ismem(BG[0]) and len(PM) < 3: PM.append(BG.popleft())
            if PM and (c + cost(PM[0]) <= budget or c <= OPT["memc"]):
                x = PM.popleft(); E(x); c += cost(x)
            else: break
        E([x for x in items if isvalu(x)])
        while BG:
            if ismem(BG[0]):
                if len(PM) < 3: PM.append(BG.popleft()); continue
                break
            if opof(BG[0]) in ("s_waitcnt", "s_barrier") and PM: break
            if c + cost(BG[0]) > budget: break
            x = BG.popleft(); E(x); c += cost(x)
        E(endi)
PM = deque()
def flush():
    print("flush", len(PM), len(BG), "at line", len(L), file=sys.stderr)
    while PM: E(PM.popleft())
    while BG: E(BG.popleft())
def spread(items, n, per):
    return [items[g*per:(g+1)*per] for g in range(n)]


CS = 128**-0.5 * math.log2(math.e)
X_BASE, H_BASE, R_BASE = 0, 65536, 98304
KR_BASE = 32768
FLAG_OFF = 32 << 20
OOB = 0x40000000
sX, sK, sV, sWQ, sWO, sW1, sW2, sB1, sP = 4, 8, 12, 16, 20, 24, 28, 32, 36
sW, sG, sRB, sRING, sOFF, sCNT, sT0, sT1, sKOFF, sVOFF, sVL, sC0, sT2, sT3, sFLAG, sT4, sROT, sJJ = range(40, 58)
sFL, sDBG, sPR, sB2, sOUT = 60, 64, 88, 92, 96
sST = 72
vLANE, vTR, vB, vBC, vDO, vKR, vTV, vDK, vDV, vST, vM, vL = 1, 2, 6, 10, 14, 18, 26, 30, 32, 33, 34, 36
vDQ, vD1, vTF = 40, 44, 48
vPUB, vPOLL, vRD = 46, 47, 48
vT = 50
P1 = 56
ACCH, ACCQ, QF, ACC = 192, 64, 64, 128
S0, S1, P0, NEGM = 128, (144, 160), (176, 184), (192, 208)
FT = (224, 240)
aO, aVF, aKF, aACCF, aFL = 0, 128, 160, 128, 192

nstamp = [0]
def stamp(lvl=1):
    if not OPT["stamps"]: return
    if OPT["stamps"] != lvl and lvl != 0: return
    i = nstamp[0]; nstamp[0] += 1
    assert i < 14
    E("s_memtime s[70:71]", "s_waitcnt lgkmcnt(0)", f"s_mov_b32 s{sST+i}, s70")

def mfma(dk, d, ak, a, bk, b, c=None, ck=None):
    cs = R(dk, d, 16) if c is None else (str(c) if ck is None else R(ck, c, 16))
    return f"v_mfma_f32_32x32x16_bf16 {R(dk,d,16)}, {R(ak,a,4)}, {R(bk,b,4)}, {cs}"
def dma_stage(slot, srd, vd, off, tag):
    o = [f"s_add_u32 m0, s{sRING}, {slot*4096}", f"s_mov_b32 s{sOFF}, {off}"]
    if OPT["rot"] and srd == sWQ:
        o[1] = [f"s_add_u32 s{sOFF}, s{sROT}, {off}", f"s_and_b32 s{sOFF}, s{sOFF}, {512*8192-1}"]
    if OPT["rot"] and srd == sW1:
        o[1] = [f"s_add_u32 s{sOFF}, s{sROT}, {off//3584*8192}", f"s_bfe_u32 s{sOFF}, s{sOFF}, {(9<<16)|13}", f"s_mul_i32 s{sOFF}, s{sOFF}, 3584"]
    o += [T(f"buffer_load_dwordx4 v{vd+p}, {sr(srd,4)}, s{sOFF} offen offset:{p*1024} lds", tag) for p in range(4)]
    return o
def dma_k(t):
    return [f"s_add_u32 m0, s{sVL}, {KR_BASE+(t&3)*8192}", f"s_mov_b32 s{sKOFF}, {t*8192}",
            T(f"buffer_load_dwordx4 v{vDK}, {sr(sK,4)}, s{sKOFF} offen lds", ("K", t)),
            T(f"buffer_load_dwordx4 v{vDK+1}, {sr(sK,4)}, s{sKOFF} offen offset:1024 lds", ("K", t))]
def dma_v(t):
    return [f"s_add_u32 m0, s{sVL}, {X_BASE+(t&3)*8192}", f"s_mov_b32 s{sKOFF}, {t*8192}",
            T(f"buffer_load_dwordx4 v{vDV}, {sr(sV,4)}, s{sKOFF} offen lds", ("V", t)),
            T(f"buffer_load_dwordx4 v{vDV}, {sr(sV,4)}, s{sKOFF} offen offset:1024 lds", ("V", t))]

class Gemm:
    def __init__(s, name, acck, accf, regs, slot0, vb):
        s.name, s.acck, s.accf, s.regs, s.slot0, s.vb = name, acck, accf, regs, slot0, vb
    def tr(s, i): return vTR, ((i + s.slot0) & 3) * 4096
    def reads(s, i):
        fk, fa, fb = s.regs(i); va, off = s.tr(i); tag = (s.name, i); o = [W("vm", (s.name, i))]
        for rg in range(2):
            o.append(T(f"ds_read_b128 {R(fk, fb+4*rg, 4)}, v{s.vb+(i&3)} offset:{i*2048+rg*1024}", tag))
        for Tt in range(4):
            for t in range(2):
                o.append(T(f"ds_read_b64_tr_b16 {R(fk, fa+4*Tt+2*t, 2)}, v{va+Tt} offset:{off+t*1024}", tag))
        return o
    def one(s, i, Tt, rg):
        fk, fa, fb = s.regs(i)
        return mfma(s.acck, s.accf(Tt, rg), fk, fa+4*Tt, fk, fb+4*rg, 0 if i == 0 else None)
    def mf(s, i): return [s.one(i, Tt, rg) for Tt in range(4) for rg in range(2)]
class Gemm1:
    def __init__(s, name, acc, fa, fb, slot0, vb): s.name, s.acc, s.fa, s.fb, s.slot0, s.vb = name, acc, fa, fb, slot0, vb
    def reads(s, i):
        st = i & 1; slot = (i + s.slot0) & 3; tag = (s.name, i); o = [W("vm", (s.name, i))]
        for ks in range(2):
            kk = 2*i + ks
            for rg in range(2):
                o.append(T(f"ds_read_b128 {ar(s.fb+16*st+8*ks+4*rg, 4)}, v{s.vb+(kk&3)} offset:{kk*2048+rg*1024}", tag))
            for Tt in range(2):
                for t in range(2):
                    o.append(T(f"ds_read_b64_tr_b16 {ar(s.fa+16*st+8*ks+4*Tt+2*t, 2)}, v{vTF+Tt} offset:{slot*4096+ks*2048+t*512}", tag))
        return o
    def mf(s, i):
        st = i & 1
        return [mfma("v", s.acc+32*Tt+16*rg, "a", s.fa+16*st+8*ks+4*Tt, "a", s.fb+16*st+8*ks+4*rg)
                for ks in range(2) for Tt in range(2) for rg in range(2)]
def kstep(G, i, nxt_reads, dma, pre=(), post=()):
    E(W("lg", (G.name, i)))
    plan = [[] for _ in range(8)]
    plan[0] += list(pre)
    q = list(nxt_reads); cnt = [2, 2, 3, 1, 3, 2, 3, 0] if dma else [3, 3, 3, 3, 3, 3, 3, 3]
    if len(q) > 16: cnt = [4, 4, 5, 4, 5, 4, 5, 4]
    if len(dma) == 6: sl = {0: dma[:2], 1: dma[2:3], 3: dma[3:4], 5: dma[4:5], 7: dma[5:6]}
    elif len(dma) == 8: sl = {0: dma[:2], 1: dma[2:3], 3: dma[3:4], 4: dma[4:6], 5: dma[6:7], 7: dma[7:8]}
    else: assert not dma; sl = {}
    for g in range(8):
        if g in (0, 4): plan[g] += sl.get(g, [])
        plan[g] += q[:cnt[g]]; q = q[cnt[g]:]
        if g not in (0, 4): plan[g] += sl.get(g, [])
    assert not q
    plan[7] += list(post)
    gaps(G.mf(i), plan)

def srd(d, ptr, off, size):
    E(f"s_add_u32 s{d}, s{ptr}, s{off}", f"s_addc_u32 s{d+1}, s{ptr+1}, 0")
    if size[0] == "rest": E(f"s_sub_u32 s{d+2}, {size[1]}, s{off}")
    else: E(f"s_mov_b32 s{d+2}, {size[1]}")
    E(f"s_mov_b32 s{d+3}, 0x00020000")

SPINS = []
def check_ready(name, vreg, load):
    SPINS.append((name, vreg, load))
    return [f"v_cmp_eq_u32 vcc, 1, v{vreg}", "s_nop 1", ["s_cmp_eq_u64 vcc, -1", f"s_cbranch_scc0 L_spin_{name}", f"L_ok_{name}:"]]

def main_kernel(K):
    E(".p2align 8", f".globl {K}", f".type {K},@function", f"{K}:")
    E("s_cmp_ge_u32 s2, 256", "s_cbranch_scc1 L_main_end")
    E(f"s_mov_b32 s{sFLAG}, 0", f"v_mov_b32 v{vM}, 0", f"v_mov_b32 v{vM+1}, 0")
    E("L_restart:")
    if OPT["stamps"]:
        E("s_memrealtime s[86:87]"); stamp(0)
    E("s_load_dwordx8 s[60:67], s[0:1], 0", "s_load_dwordx2 s[68:69], s[0:1], 32", "s_load_dwordx4 s[88:91], s[0:1], 48",
      "s_load_dwordx8 s[92:99], s[0:1], 64", "s_load_dwordx2 s[58:59], s[0:1], 96")
    pf = 248
    if OPT["codepf"]:
        E("s_getpc_b64 s[100:101]", "L_pc:", f"s_sub_u32 s100, s100, L_pc-{K}", "s_subb_u32 s101, s101, 0")
        E(f"s_bfe_u32 s{sT0}, s2, 0x20003", f"s_lshl_b32 s{sT0}, s{sT0}, 14", f"v_lshlrev_b32 v{vT}, 6, v0", f"v_add_u32 v{vT}, s{sT0}, v{vT}",
          f"v_min_u32 v{vT}, L_code_end-{K}-4, v{vT}")
        E(f"global_load_dword a{pf}, v{vT}, s[100:101]")
    l = vLANE
    pt = 128
    row, c7, xo, t0, t1, t2, t3, t4 = pt, pt+1, pt+2, pt+4, pt+5, pt+6, pt+7, pt+8
    wa, pw = 58, 60
    E(f"v_lshrrev_b32 v{t0}, 6, v0", f"v_and_b32 v{l}, 63, v0")
    HG = OPT["hg"]; lh = HG.bit_length() - 1
    E(f"s_and_b32 s{sG}, s2, {8//HG-1}", f"s_lshl_b32 s{sG}, s{sG}, {lh}", f"s_bfe_u32 s{sT0}, s2, {(lh<<16)|3}", f"s_or_b32 s{sG}, s{sG}, s{sT0}",
      f"s_lshr_b32 s{sJJ}, s2, {3+lh}", f"s_bfe_u32 s{sRB}, s2, {(lh<<16)|(3-lh)}", f"s_lshl_b32 s{sRB}, s{sRB}, {5-lh}", f"s_or_b32 s{sRB}, s{sRB}, s{sJJ}")
    E(f"v_readfirstlane_b32 s{sW}, v{t0}")
    E(f"v_bfe_u32 v{row}, v0, 3, 3", f"v_lshl_add_u32 v{row}, v{t0}, 4, v{row}",
      f"v_and_b32 v{c7}, 7, v0", f"v_lshlrev_b32 v{xo}, 4, v{c7}", f"v_lshl_add_u32 v{xo}, v{row}, 10, v{xo}", f"v_add_u32 v{xo+1}, 8192, v{xo}")
    E(f"s_or_b32 s{sT0}, s{sG}, s{sW}", f"s_or_b32 s{sT0}, s{sT0}, s{sFLAG}", f"s_cmp_eq_u32 s{sT0}, 0", f"s_cselect_b32 s{sT2}, 0, {OOB}",
      f"v_lshrrev_b32 v{t1}, 3, v{l}", f"v_lshlrev_b32 v{t1}, 8, v{t1}", f"v_lshl_add_u32 v{t1}, v{c7}, 2, v{t1}", f"v_add_u32 v{t1}, s{sT2}, v{t1}",
      f"v_mov_b32 v{t2}, 0", f"v_lshrrev_b32 v{t3}, 5, v{l}", f"v_lshlrev_b32 v{t3}, 4, v{t3}")
    E(f"s_lshl_b32 s{sT0}, s{sRB}, 16", f"s_lshl_b32 s{sT1}, s{sRB}, 12", f"s_add_u32 s{sT1}, s{sT1}, {FLAG_OFF}")
    E(f"s_lshr_b32 s{sT3}, s{sG}, 1", f"s_mul_i32 s{sT3}, s{sT3}, 896", f"s_and_b32 s{sT4}, s{sG}, 1", f"s_mul_i32 s{sT4}, s{sT4}, 384",
      f"s_add_u32 s{sT3}, s{sT3}, s{sT4}", f"s_lshl_b32 s{sT4}, s{sW}, 7")
    XS = 20
    if OPT["rot"]:
        E(f"s_and_b32 s{sROT}, s{sJJ}, {OPT['rot']-1}", f"s_mul_i32 s{sROT}, s{sROT}, {8//OPT['rot']}", f"s_lshl_b32 s{XS}, s{sROT}, 7")
        for i in range(1, 8): E(f"s_add_u32 s{XS+i}, s{XS}, {128*i}", f"s_and_b32 s{XS+i}, s{XS+i}, 1023")
        E(f"s_lshl_b32 s{sROT}, s{sROT}, 19")
    E("s_waitcnt lgkmcnt(0)")
    srd(sX, 60, sT0, ("imm", 65536))
    srd(sB1, 90, sT3, ("rest", 3584))
    srd(sP, 58, sT1, ("imm", 4096))
    E(T(f"buffer_store_dword v{t2}, v{t1}, {sr(sP,4)}, 0 offen sc1", "clr"))
    BR = 240
    for q in range(4): E(T(f"buffer_load_dwordx4 {vr(BR+4*q,4)}, v{t3}, {sr(sB1,4)}, s{sT4} offen offset:{q*32}", "bias"))
    RAW = 64
    for p in range(2):
        for i in range(8):
            if OPT["rot"]: E(T(f"buffer_load_dwordx4 {vr(RAW+32*p+4*i,4)}, v{xo+p}, {sr(sX,4)}, s{XS+i} offen", ("x", p, i)))
            else: E(T(f"buffer_load_dwordx4 {vr(RAW+32*p+4*i,4)}, v{xo+p}, {sr(sX,4)}, 0 offen offset:{i*128}", ("x", p, i)))
    stamp(2)
    srd(sW1, 88, sT3, ("rest", 1835008))
    E(f"s_lshl_b32 s{sT0}, s{sG}, 10"); srd(sWQ, 66, sT0, ("rest", 4194304))
    E(f"s_lshl_b32 s{sT0}, s{sG}, 19"); srd(sWO, 68, sT0, ("rest", 4194304))
    E(f"s_add_u32 s{sT0}, s{sT0}, {1536*256}"); srd(sK, 62, sT0, ("imm", 131072)); srd(sV, 64, sT0, ("imm", 131072))
    E(f"s_mul_i32 s{sT0}, s{sG}, {224*1024}"); srd(sW2, 92, sT0, ("rest", 1835008))
    srd(sFL, 58, sT1, ("imm", 4096))
    E(f"s_lshl_b32 s{sT0}, s{sRB}, 2"); srd(sDBG, 98, sT0, ("imm", 4))
    E(f"s_lshl_b32 s{sT0}, s{sRB}, 3", f"s_or_b32 s{sT0}, s{sT0}, s{sG}", f"s_lshl_b32 s{sT0}, s{sT0}, 17"); srd(sP, 58, sT0, ("imm", 131072))
    E(f"s_lshl_b32 s{sT0}, s{sRB}, 20", f"s_lshl_b32 s{sT1}, s{sG}, 13", f"s_add_u32 s{sT0}, s{sT0}, s{sT1}"); srd(sPR, 58, sT0, ("imm", 1 << 20))
    E(f"s_lshl_b32 s{sT0}, s{sG}, 7"); srd(sB2, 94, sT0, ("rest", 1024))
    E(f"s_lshl_b32 s{sT0}, s{sRB}, 16"); srd(sOUT, 96, sT0, ("imm", 65536))
    E(f"s_lshl_b32 s{sRING}, s{sW}, 14", f"s_add_u32 s{sRING}, s{sRING}, {R_BASE}", f"s_lshl_b32 s{sVL}, s{sW}, 11")
    E(f"v_lshrrev_b32 v{t0}, 4, v{l}", f"v_bfe_u32 v{t1}, v{l}, 2, 2", f"v_xor_b32 v{t1}, v{t1}, v{t0}", f"v_lshlrev_b32 v{t1}, 6, v{t1}",
      f"v_and_b32 v{t2}, 3, v{l}", f"v_lshl_add_u32 v{t1}, v{t2}, 4, v{t1}")
    E(f"s_lshl_b32 s{sT0}, s{sW}, 8", f"v_add_u32 v{t2}, s{sT0}, v{t1}")
    E(f"v_lshl_add_u32 v{vDQ}, v{t0}, 13, v{t2}", f"v_lshl_add_u32 v{vDO}, v{t0}, 10, v{t2}")
    for p in range(1, 4):
        E(f"v_add_u32 v{vDQ+p}, {p*(4*8192-1024)}, v{vDQ}", f"v_add_u32 v{vDO+p}, {p*(4*1024-1024)}, v{vDO}")
    E(f"v_lshl_add_u32 v{vDV}, v{t0}, 8, v{t1}", f"v_add_u32 v{vDV}, s{sVL}, v{vDV}")
    for p in range(2):
        E(f"s_lshl_b32 s{sT0}, s{sW}, 3", f"s_add_u32 s{sT0}, s{sT0}, {4*p}", f"v_add_u32 v{t2}, s{sT0}, v{t0}",
          f"v_xor_b32 v{t3}, v{t2}, v{l}", f"v_and_b32 v{t3}, 15, v{t3}", f"v_lshlrev_b32 v{t3}, 4, v{t3}",
          f"v_lshl_add_u32 v{vDK+p}, v{t2}, 8, v{t3}")
        if p: E(f"v_subrev_u32 v{vDK+p}, 1024, v{vDK+p}")
    E(f"v_lshrrev_b32 v{t0}, 3, v{l}", f"v_bfe_u32 v{t1}, v{l}, 2, 1", f"v_bfe_u32 v{t2}, v{l}, 4, 1", f"v_xor_b32 v{t1}, v{t1}, v{t2}",
      f"v_lshlrev_b32 v{t1}, 6, v{t1}", f"v_and_b32 v{t2}, 3, v{l}", f"v_lshl_add_u32 v{t1}, v{t2}, 4, v{t1}",
      f"s_mov_b32 s{sT1}, 3584", f"v_mul_lo_u32 v{t0}, v{t0}, s{sT1}", f"s_lshl_b32 s{sT0}, s{sW}, 7",
      f"v_add3_u32 v{vD1}, v{t0}, v{t1}, s{sT0}")
    for p in range(1, 4): E(f"v_add_u32 v{vD1+p}, {p*(8*3584-1024)}, v{vD1}")
    E(f"v_bfe_u32 v{t0}, v{l}, 2, 2", f"v_lshrrev_b32 v{t1}, 5, v{l}", f"v_lshl_add_u32 v{t1}, v{t1}, 3, v{t0}",
      f"v_and_b32 v{t2}, 1, v{l}", f"v_lshlrev_b32 v{t2}, 4, v{t2}", f"v_bfe_u32 v{t3}, v{l}, 1, 1", f"v_lshl_add_u32 v{t2}, v{t3}, 3, v{t2}",
      f"v_bfe_u32 v{t3}, v{l}, 4, 1", f"v_lshl_add_u32 v{t2}, v{t3}, 5, v{t2}")
    E(f"v_lshl_add_u32 v{t3}, v{t1}, 8, v{t2}")
    for Tt in range(4):
        E(f"v_xor_b32 v{t4}, {Tt}, v{t0}", f"v_lshl_add_u32 v{vTV+Tt}, v{t4}, 6, v{t3}", f"v_add_u32 v{vTR+Tt}, s{sRING}, v{vTV+Tt}")
    E(f"v_lshl_add_u32 v{t3}, v{t1}, 7, v{t2}", f"v_add_u32 v{t3}, s{sRING}, v{t3}", f"v_lshrrev_b32 v{t0}, 1, v{t0}")
    for Tt in range(2):
        E(f"v_xor_b32 v{t4}, {Tt}, v{t0}", f"v_lshl_add_u32 v{vTF+Tt}, v{t4}, 6, v{t3}")
    E(f"v_lshrrev_b32 v{t1}, 5, v{l}")
    for j in range(4):
        E(f"v_or_b32 v{t2}, {2*j}, v{t1}", f"v_xor_b32 v{t2}, v{t2}, v{l}", f"v_lshlrev_b32 v{vB+j}, 4, v{t2}")
    E(f"v_and_b32 v{t0}, 19, v{l}", f"v_bfe_u32 v{t2}, v{l}, 2, 1", f"v_lshl_add_u32 v{t0}, v{t2}, 3, v{t0}",
      f"v_bfe_u32 v{t2}, v{l}, 3, 1", f"v_lshl_add_u32 v{t0}, v{t2}, 2, v{t0}",
      f"v_lshlrev_b32 v{t2}, 8, v{t0}", f"v_add_u32 v{t2}, {KR_BASE}, v{t2}", f"v_and_b32 v{t0}, 15, v{t0}", f"v_xor_b32 v{t0}, v{t0}, v{t1}")
    for s_ in range(8):
        E(f"v_xor_b32 v{t3}, {2*s_}, v{t0}", f"v_lshl_add_u32 v{vKR+s_}, v{t3}, 4, v{t2}")
    E(f"s_lshl_b32 s{sT0}, s{sW}, 14", f"v_lshlrev_b32 v{vST}, 4, v{l}", f"v_add_u32 v{vST}, s{sT0}, v{vST}")
    for p in range(2):
        E(f"v_add_u32 v{t0}, {8*p}, v{row}", f"v_lshrrev_b32 v{t1}, 5, v{t0}", f"v_and_b32 v{t0}, 31, v{t0}", f"v_xor_b32 v{t0}, v{t0}, v{c7}",
          f"v_lshlrev_b32 v{t0}, 4, v{t0}", f"v_lshl_add_u32 v{t0}, v{t1}, 10, v{t0}", f"v_and_b32 v{t1}, 1, v{l}", f"v_lshl_add_u32 v{t0}, v{t1}, 9, v{t0}",
          f"v_lshrrev_b32 v{t1}, 1, v{c7}", f"v_lshl_add_u32 v{wa+p}, v{t1}, 11, v{t0}")
    E(f"v_lshrrev_b32 v{t3}, 4, v0", f"v_and_b32 v{t4}, 15, v0", f"v_lshlrev_b32 v{pw}, 6, v{t4}", f"v_lshl_add_u32 v{pw}, v{t3}, 13, v{pw}")
    E(f"v_mul_lo_u32 v{t3}, v{t3}, s{sT1}", f"v_lshl_add_u32 v{pw+1}, v{t4}, 5, v{t3}", f"v_lshlrev_b32 v{pw+2}, 4, v0", f"v_lshlrev_b32 v{pw+3}, 5, v0")
    E(f"s_mov_b32 s{sC0}, 0xffff0000", f"v_mov_b32 v{vL}, s{sT2}", f"v_mov_b32 v{vL+1}, 1")
    E(W("vm", "bias"))
    if OPT["wqpf"]: E(f"s_mul_i32 s{sT3}, s{sRB}, {16*3584}", f"buffer_load_dword a{pf+1}, v{pw+1}, {sr(sW1,4)}, s{sT3} offen")
    for Tt in range(2):
        for r in range(16):
            src = BR + 8*Tt + r//2
            E((f"v_lshlrev_b32 v%d, 16, v{src}" if r % 2 == 0 else f"v_and_b32 v%d, s{sC0}, v{src}") % (ACCH+32*Tt+r))
    E(f"s_mov_b32 s{sT2}, {f32(CS)}", f"s_mov_b32 s{sT3}, s{sT2}")
    for Tt in range(2):
        for r in range(0, 16, 2):
            E(f"v_pk_mul_f32 {vr(ACCH+32*Tt+16+r,2)}, {vr(ACCH+32*Tt+r,2)}, {sr(sT2,2)}", f"v_pk_mul_f32 {vr(ACCH+32*Tt+r,2)}, {vr(ACCH+32*Tt+r,2)}, {sr(sT2,2)}")
    SP = deque()
    for s_ in range(4):
        d = dma_stage(s_, sW1, vD1, s_*32*3584, ("f1", s_)); SP.append(d[:3]); SP.extend(d[3:])
    PFS = [[f"s_lshl_b32 s{sT3}, s{sRB}, 17", f"buffer_load_dword a{pf+2}, v{pw}, {sr(sWQ,4)}, s{sT3} offen"],
           [f"s_mul_i32 s{sT3}, s{sRB}, 7168", f"buffer_load_dword a{pf+3}, v{pw+3}, {sr(sW2,4)}, s{sT3} offen"],
           [f"s_lshl_b32 s{sT3}, s{sRB}, 12", f"buffer_load_dword a{pf+4}, v{pw+2}, {sr(sK,4)}, s{sT3} offen"],
           [f"buffer_load_dword a{pf+5}, v{pw+2}, {sr(sV,4)}, s{sT3} offen"]]
    if OPT["pfpos"] == 0: SP.append(PFS[0])
    if OPT["pfpos"] == 1: SP.extend(PFS)
    if OPT["pfpos"] == 2: E(PFS)
    if OPT["pfpos"] == 3: E(PFS[0]); SP.extend(PFS[1:])
    if OPT["pfpos"] == 4: SP.extendleft(reversed(PFS))
    def sp(n=1):
        for _ in range(n):
            if SP: E(SP.popleft())
    def dpp_sum(v):
        E("s_nop 1", f"v_add_f32_dpp v{v}, v{v}, v{v} quad_perm:[1,0,3,2] row_mask:0xf bank_mask:0xf",
          "s_nop 1", f"v_add_f32_dpp v{v}, v{v}, v{v} quad_perm:[2,3,0,1] row_mask:0xf bank_mask:0xf",
          "s_nop 1", f"v_add_f32_dpp v{v}, v{v}, v{v} row_half_mirror row_mask:0xf bank_mask:0xf")
    a0, a1, mean, rinv = 50, 52, 54, 56
    for p in range(2):
        Ub = 128
        for i in range(8):
            E(W("vm", ("x", p, i)))
            if p == 0 and i == 0: stamp(2)
            for j in range(4*i, 4*i+4):
                E(f"v_lshlrev_b32 v{Ub+2*j}, 16, v{RAW+32*p+j}", f"v_and_b32 v{Ub+2*j+1}, s{sC0}, v{RAW+32*p+j}")
            if i == 0:
                E(f"v_pk_add_f32 {vr(a0,2)}, {vr(Ub,2)}, {vr(Ub+2,2)}", f"v_pk_add_f32 {vr(a1,2)}, {vr(Ub+4,2)}, {vr(Ub+6,2)}")
            else:
                for j in range(4*i, 4*i+4):
                    a = a0 if j % 2 == 0 else a1
                    E(f"v_pk_add_f32 {vr(a,2)}, {vr(a,2)}, {vr(Ub+2*j,2)}")
        if p == 1:
            E(W("vm", "clr"), f"buffer_store_dword v{vL+1}, v{vL}, {sr(sDBG,4)}, 0 offen sc1")
        E(f"v_pk_add_f32 {vr(a0,2)}, {vr(a0,2)}, {vr(a1,2)}", f"v_add_f32 v{a0}, v{a0}, v{a0+1}")
        dpp_sum(a0)
        E(f"v_mul_f32 v{mean}, {f32(1/512)}, v{a0}")
        for j in range(32):
            E(f"v_pk_add_f32 {vr(Ub+2*j,2)}, {vr(Ub+2*j,2)}, {vr(mean,2)} op_sel_hi:[1,0] neg_lo:[0,1] neg_hi:[0,1]")
            if j % OPT["spd"] == 0 and p >= OPT["spp"]: sp()
        E(f"v_pk_mul_f32 {vr(a0,2)}, {vr(Ub,2)}, {vr(Ub,2)}", f"v_pk_mul_f32 {vr(a1,2)}, {vr(Ub+2,2)}, {vr(Ub+2,2)}")
        for j in range(2, 32):
            a = a0 if j % 2 == 0 else a1
            E(f"v_pk_fma_f32 {vr(a,2)}, {vr(Ub+2*j,2)}, {vr(Ub+2*j,2)}, {vr(a,2)}")
            if j % OPT["spd"] == 0 and p >= OPT["spp"]: sp()
        E(f"v_pk_add_f32 {vr(a0,2)}, {vr(a0,2)}, {vr(a1,2)}", f"v_add_f32 v{a0}, v{a0}, v{a0+1}")
        dpp_sum(a0)
        dl = a1
        E(f"v_mul_f32 v{a0}, {f32(1/512)}, v{a0}",
          f"v_cvt_pk_bf16_f32 v{a0}, v{a0}, v{mean}",
          f"v_and_b32 v{dl}, s{sC0}, v{a0}", f"v_lshlrev_b32 v{a0}, 16, v{a0}",
          f"v_sub_f32 v{dl}, v{mean}, v{dl}",
          f"v_add_f32 v{a0}, {f32(1e-5)}, v{a0}", f"v_cvt_pk_bf16_f32 v{a0}, v{a0}, v{a0}", f"v_lshlrev_b32 v{a0}, 16, v{a0}",
          f"v_sqrt_f32 v{a0}, v{a0}", "s_nop 0", f"v_cvt_pk_bf16_f32 v{a0}, v{a0}, v{a0}", f"v_lshlrev_b32 v{a0}, 16, v{a0}",
          f"v_rcp_f32 v{rinv}, v{a0}", "s_nop 0", f"v_mul_f32 v{rinv}, {f32(CS)}, v{rinv}", f"v_mul_f32 v{dl}, v{dl}, v{rinv}")
        for i in range(8):
            for j in range(4*i, 4*i+4):
                E(f"v_pk_fma_f32 {vr(Ub+2*j,2)}, {vr(Ub+2*j,2)}, {vr(rinv,2)}, {vr(dl,2)} op_sel_hi:[1,0,0]")
            for j in range(4):
                E(f"v_cvt_pk_bf16_f32 v{RAW+32*p+4*i+j}, v{Ub+8*i+2*j}, v{Ub+8*i+2*j+1}")
            E(f"ds_write_b128 v{wa+p}, {vr(RAW+32*p+4*i,4)} offset:{i*8192}")
    sp(99)
    E("s_waitcnt lgkmcnt(0)", "s_barrier")
    stamp(0)
    G1 = Gemm1("f1", ACCH, 64, 96, 0, vB)
    GQ = Gemm("q", "v", lambda Tt, rg: ACCQ+64*rg+16*Tt, lambda i: ("a", 16*(i&1), 32+8*(i&1)), 0, vB)
    G2 = Gemm("f2", "a", lambda Tt, rg: aACCF+32*Tt+16*rg, lambda i: ("a", 48+24*(i%3), 64+24*(i%3)), 0, vBC)
    E(G1.reads(0))
    for i in range(16):
        nxt = G1.reads(i + 1) if i < 15 else GQ.reads(0)
        d = dma_stage(i & 3, sW1, vD1, (i+4)*32*3584, ("f1", i+4)) if i < 12 else dma_stage(i & 3, sWQ, vDQ, (i-12)*16*8192, ("q", i-12))
        post = []
        if OPT["pfpos"] == 0 and i in (4, 8, 12): post = PFS[i // 4]
        kstep(G1, i, nxt, d, post=post)
    stamp()
    for i in range(32):
        d = dma_stage(i & 3, sWQ, vDQ, (i+4)*16*8192, ("q", i+4)) if i < 28 else dma_stage(i & 3, sW2, vDO, (i-28)*16384, ("f2", i-28))
        if i == 1:
            BG.append([f"s_lshl_b32 s{sT0}, s{sW}, 13", f"s_add_u32 s{sT0}, s{sT0}, {H_BASE}"])
            for j in range(4): BG.append(f"v_add_u32 v{vBC+j}, s{sT0}, v{vB+j}")
        if 1 <= i < 25 and i % 3 == 1:
            n = i // 3; Tt, rg, u = n >> 2, (n >> 1) & 1, n & 1
            b = ACCH + 8*n
            for r in range(8): BG.append(f"v_max_f32 v{b+r}, 0, v{b+r}")
            for r in range(8): BG.append(f"v_mul_f32 v{b+r}, v{b+r}, v{b+r}")
            for j in range(4): BG.append(f"v_cvt_pk_bf16_f32 v{b+j}, v{b+2*j}, v{b+2*j+1}")
            BG.append(T(f"ds_write_b128 v{vBC+2*Tt+u}, {vr(b,4)} offset:{(2*Tt+u)*2048+rg*1024}", "hw"))
        if i == 27:
            flush()
            BG.append([f"s_and_b32 s{sT0}, s{sG}, 1", f"s_lshl_b32 s{sT1}, s{sT0}, 12", f"s_add_u32 s{sT1}, s{sT1}, {H_BASE}", f"s_lshl_b32 s{sT0}, s{sT0}, 6"])
            for j in range(4): BG.extend([f"v_xor_b32 v{vBC+j}, s{sT0}, v{vB+j}", f"v_add_u32 v{vBC+j}, s{sT1}, v{vBC+j}"])
            BG.extend([[f"s_lshl_b32 s{sT0}, s{sW}, 8", f"s_lshl_b32 s{sT1}, s{sG}, 2", f"s_add_u32 s{sT0}, s{sT0}, s{sT1}"],
                       f"v_min_u32 v{vPUB}, 1, v{l}", f"v_lshlrev_b32 v{vPUB}, 30, v{vPUB}", f"v_add_u32 v{vPUB}, s{sT0}, v{vPUB}",
                       [f"s_lshr_b32 s{sT0}, s{sG}, 1", f"s_lshl_b32 s{sT0}, s{sT0}, 8"],
                       f"v_and_b32 v{vPOLL}, 7, v{l}", f"v_lshlrev_b32 v{vPOLL}, 2, v{vPOLL}", f"v_add_u32 v{vPOLL}, s{sT0}, v{vPOLL}",
                       f"v_lshlrev_b32 v{vRD}, 4, v0"])
        if i < 31: kstep(GQ, i, GQ.reads(i + 1), d)
        else:
            flush()
            kstep(GQ, i, [W("lg", "hw"), "s_barrier"] + G2.reads(0), d)
    stamp()
    def kreads(t, reg=aKF): return [T(f"ds_read_b128 {ar(reg+4*s_,4)}, v{vKR+s_} offset:{(t&3)*8192}", ("kf", t)) for s_ in range(8)]
    def vreads(t): return [T(f"ds_read_b64_tr_b16 {ar(aVF+16*u+4*Tt+2*t_,2)}, v{vTV+Tt} offset:{(t&3)*8192+u*4096+t_*1024}", ("vf", t))
                           for u in range(2) for Tt in range(4) for t_ in range(2)]
    def qk(rg, dst, cinit, reg=aKF):
        return [mfma("v", dst, "a", reg+4*s_, "v", QF+32*rg+4*s_, *(cinit if s_ == 0 else ())) for s_ in range(8)]
    def pv(rg, p, zero=False):
        return [mfma("a", aO+64*rg+16*Tt, "a", aVF+16*u+4*Tt, "v", p+4*u, 0 if (zero and u == 0) else None) for u in range(2) for Tt in range(4)]
    def sm_plan(rg, s, p):
        pl = [[] for _ in range(16)]
        for j in range(16): pl[max(0, j-1)].append(f"v_exp_f32 v{s+j}, v{s+j}")
        for j in range(16): pl[max(1, j)].append(f"v_add_f32 v{vL+2*rg+(j&1)}, v{vL+2*rg+(j&1)}, v{s+j}")
        for k in range(8): pl[2*k+1].append(f"v_cvt_pk_bf16_f32 v{p+k}, v{s+2*k}, v{s+2*k+1}")
        return pl
    def epi_tile(kind, src, typ, Tt, rg, tmp, tag):
        o = []; b = tmp if kind == "a" else src
        for u in range(2):
            if kind == "a":
                for r in range(8*u, 8*u+8): o.append(f"v_accvgpr_read_b32 v{b+r}, a{src+r}")
            for j in range(4): o.append(f"v_cvt_pk_bf16_f32 v{b+8*u+j}, v{b+8*u+2*j}, v{b+8*u+2*j+1}")
            o.append([f"s_mov_b32 s{sT4}, {typ*65536 + Tt*4096}",
                      T(f"buffer_store_dwordx4 {vr(b+8*u,4)}, v{vST}, {sr(sP,4)}, s{sT4} offen offset:{u*2048+rg*1024} sc1", tag)])
        return o
    tiles = [(Tt, rg) for Tt in range(4) for rg in range(2)]
    def fepi(n): return epi_tile("a", aACCF+16*n, 1, *tiles[n], FT[n & 1], "fst")
    for i in range(12):
        d = dma_stage(i & 3, sW2, vDO, (i+4)*16384, ("f2", i+4)) if i < 10 else (dma_v(0) + dma_k(2) if i == 10 else dma_v(1) + dma_k(3))
        post = []
        if i == 0: post = dma_k(0)
        if i == 1:
            post = dma_k(1)
            for j in range(64): BG.append(f"v_cvt_pk_bf16_f32 v{QF+j}, v{ACCQ+2*j}, v{ACCQ+2*j+1}")
        if i == 4: post = [W("vm", ("K", 1)), "s_barrier"]
        if i == 5: BG.extend(kreads(0, 0))
        nxt = G2.reads(i + 1) if i < 11 else G2.reads(12) + G2.reads(13)
        kstep(G2, i, nxt, d, post=post)
        if i == 5:
            flush()
            E(W("lg", ("kf", 0)), "s_nop 1")
            for j in range(4): BG.append(f"v_mov_b32 v{vL+j}, 0")
            gaps(qk(0, S0, (0,), 0) + qk(1, S1[0], (0,), 0), [])
            BG.extend(kreads(1, 0))
            for rg, s in ((0, S0), (1, S1[0])):
                m = vT + rg
                BG.append(f"v_max3_f32 v{m}, v{s}, v{s+1}, v{s+2}")
                for j in range(3, 15, 2): BG.append(f"v_max3_f32 v{m}, v{m}, v{s+j}, v{s+j+1}")
                BG.extend([f"v_max_f32 v{m}, v{m}, v{s+15}", f"v_mov_b32 v{vT+2}, v{m}", "s_nop 1", f"v_permlane32_swap_b32 v{m}, v{vT+2}",
                           [f"s_cmp_lg_u32 s{sFLAG}, 0", "s_cselect_b64 vcc, -1, 0"], f"v_max_f32 v{m}, v{m}, v{vT+2}",
                           f"v_cndmask_b32 v{m}, v{m}, v{vM+rg}, vcc"])
                BG.extend([f"v_sub_f32 v{NEGM[rg]}, 0, v{m}", f"v_sub_f32 v{NEGM[rg]+1}, 0, v{m}"])
                for r in range(2, 16, 2): BG.append(f"v_mov_b64 {vr(NEGM[rg]+r,2)}, {vr(NEGM[rg],2)}")
                for r in range(16): BG.append(f"v_sub_f32 v{s+r}, v{s+r}, v{m}")
            for g in sm_plan(0, S0, P0[0]): BG.extend(g)
    E(W("lg", ("f2", 13)))
    dv2 = dma_v(2)
    for n, (Tt, rg) in enumerate(tiles):
        if n in (3, 5): BG.extend(fepi((n - 3) // 2))
        gaps([G2.one(i, Tt, rg) for i in (12, 13)], [dv2[:3], dv2[3:]] if n == 0 else [])
    flush()
    stamp()
    E(W("vm", ("K", 2)), "s_waitcnt lgkmcnt(0)")
    class GO(Gemm):
        def tr(s, i): return (vDQ, (i-30)*4096) if i >= 30 else Gemm.tr(s, i)
    G3 = GO("o", "v", lambda Tt, rg: ACC+64*rg+16*Tt, lambda i: ("a", 24*(i-28), 24*(i-28)+16) if i >= 28 else ("a", 128+16*(i&1), 160+8*(i&1)), 0, vB)
    def dma_oh(st):
        d = dma_stage(0, sWO, vDO, st*16384, ("o", st)); d[0] = f"s_add_u32 m0, s{sT3}, {(st-30)*4096}"; return d
    def att_iter(i, x1=(), x2=()):
        E("s_barrier")
        pl = sm_plan(1, S1[i&1], P1)
        vrd = vreads(i); k = 0
        for g in range(16):
            n = (1 if g == 0 else (1 if g % 2 == 1 else 2))
            pl[g] += vrd[k:k+n]; k += n
        x1 = list(x1)
        if x1:
            pl[11] += x1[:2]
            for g, x in zip((12, 13, 14, 15), x1[2:]): pl[g].append(x)
        kreg = 0 if i == 0 else aKF
        gaps(qk(0, S0, (NEGM[0], "v"), kreg) + qk(1, S1[(i+1)&1], (NEGM[1], "v"), kreg), pl)
        if i == 0: flush()
        E(W("lg", ("vf", i)))
        pl = sm_plan(0, S0, P0[(i+1)&1])
        if i + 2 < 16:
            krd = kreads(i + 2)
            for g in range(8): pl[g].append(krd[g])
        dv = dma_v(i + 3) if i + 3 < 16 else []
        dk = dma_k(i + 5) if i + 5 < 16 else []
        pl[4] += list(x2)
        if dv: pl[6] += dv[:1]; pl[8] += dv[1:3]; pl[9] += dv[3:]
        if dk: pl[10] += dk[:2]; pl[12] += dk[2:3]; pl[14] += dk[3:]
        end = ["end", W("vm", ("V", i+1)), W("vm", ("K", i+3)), W("lg", ("kf", i+2))]
        pl[15] += [tuple(end)]
        gaps(pv(0, P0[i&1], zero=(i == 0)) + pv(1, P1, zero=(i == 0)), pl)
    ONE = vT + 3; GATE = vT + 4; POL = vT + 5
    for i in range(15):
        x1 = []
        if i == 0: BG.extend(fepi(2) + fepi(3)); x1 = dma_k(4)
        if i in (1, 2, 3, 4): BG.extend(fepi(i + 3))
        if i == 1: BG.extend([f"v_lshlrev_b32 v{vT}, 6, v0", f"v_mov_b32 v{vT+1}, 0", f"v_mov_b32 v{ONE}, 1",
                              [f"s_lshl_b32 s{sT1}, s{sRB}, 14", f"buffer_load_dword v{vT+2}, v{vT}, {sr(sWO,4)}, s{sT1} offen"]])
        gl = f"buffer_load_dword v{GATE}, v{vT+1}, {sr(sDBG,4)}, 0 offen sc1"
        if i == 3: BG.append(T(gl, "gate"))
        if i == 6: BG.extend([W("vm", "gate")] + check_ready("gate", GATE, gl))
        x2 = ["s_waitcnt vmcnt(0)", f"buffer_store_dword v{ONE}, v{vPUB}, {sr(sFL,4)}, 0 offen sc1"] if i == 7 else []
        pfl = f"buffer_load_dword v{POL}, v{vPOLL}, {sr(sFL,4)}, 0 offen sc1"
        if i == 9: BG.append(T(pfl, "fpoll"))
        if i == 11: BG.extend([W("vm", "fpoll")] + check_ready("f", POL, pfl))
        if i in (11, 12, 13, 14):
            for n in range(4*(i-11), 4*(i-10)):
                ps, g = n >> 3, n & 7
                BG.append([f"s_mov_b32 s{sT4}, {g*131072 + 65536 + ps*4096}", T(f"buffer_load_dwordx4 {ar(aFL+4*n,4)}, v{vRD}, {sr(sPR,4)}, s{sT4} offen sc1", ("fl", n))])
        if i in (5, 6, 8, 9):
            st = (5, 6, 8, 9).index(i); x1 = dma_stage(st, sWO, vDO, st*16384, ("o", st))
        if i == 9:
            BG.append([f"s_lshl_b32 s{sT3}, s{sW}, 13", f"s_add_u32 s{sT3}, s{sT3}, {H_BASE}"])
            for Tt in range(4): BG.append(f"v_add_u32 v{vDQ+Tt}, s{sT3}, v{vTV+Tt}")
        if i == 10: x1 = dma_oh(30)
        att_iter(i, x1=x1, x2=x2)
        flush()
    i = 15
    E("s_barrier")
    E(vreads(i))
    def lfin(rg):
        a, b = vL+2*rg, vL+2*rg+1
        return [f"v_add_f32 v{a}, v{a}, v{b}", f"v_mov_b32 v{b}, v{a}", "s_nop 1", f"v_permlane32_swap_b32 v{a}, v{b}", "s_nop 0",
                f"v_add_f32 v{b}, v{a}, v{b}", f"v_rcp_f32 v{a}, v{b}"]
    E(f"s_lshl_b32 s{sT0}, s{sW}, 14")
    for j in range(4): E(f"v_add_u32 v{vBC+j}, s{sT0}, v{vB+j}")
    E(lfin(0))
    pl16 = sm_plan(1, S1[i&1], P1)
    E(pl16[0], pl16[1])
    E("s_waitcnt lgkmcnt(0)")
    pl = [pl16[2+2*g] + pl16[3+2*g] if g < 7 else [] for g in range(8)]
    pl[0] = ["s_barrier"] + pl[0]
    pl[7] = ["s_nop 0"]
    gaps(pv(0, P0[i&1]), pl)
    BG.extend(lfin(1))
    FLG = H_BASE + 4096
    BG.extend([f"v_add_f32 v{vT+1}, v{vL+1}, v{vL+3}", f"s_mov_b32 s{sT1}, {f32(2.0**OPT['thr'])}",
               f"v_cmp_nge_f32 vcc, s{sT1}, v{vT+1}", "s_nop 1", ["s_cmp_lg_u64 vcc, 0", f"s_cselect_b32 s{sT1}, 1, 0"], f"v_mov_b32 v{vT}, s{sT1}",
               [f"s_lshl_b32 s{sT1}, s{sW}, 2", f"s_add_u32 s{sT1}, s{sT1}, {FLG}"], f"v_mov_b32 v{vT+2}, s{sT1}", f"v_mov_b32 v{vT+1}, {FLG}",
               f"ds_write_b32 v{vT+2}, v{vT}"])
    for r in range(24): BG.append(f"v_accvgpr_read_b32 v{192+r}, a{aO+r}")
    gaps(pv(1, P1), [])
    flush()
    stamp()
    for n in range(16):
        rg, Tt, u = n >> 3, (n >> 1) & 3, n & 1
        b = 192 + 8*(n & 7)
        if n + 3 < 16:
            b3 = 192 + 8*((n+3) & 7)
            for r in range(8): E(f"v_accvgpr_read_b32 v{b3+r}, a{aO+8*(n+3)+r}")
        for j in range(4): E(f"v_pk_mul_f32 {vr(b+2*j,2)}, {vr(b+2*j,2)}, {vr(vL+2*rg,2)} op_sel_hi:[1,0]")
        for j in range(4): E(f"v_cvt_pk_bf16_f32 v{b+j}, v{b+2*j}, v{b+2*j+1}")
        ks = 2*Tt + u
        E(f"ds_write_b128 v{vBC+(ks&3)}, {vr(b,4)} offset:{ks*2048+rg*1024}")
    r0 = G3.reads(0)
    E(r0[0], r0[3:])
    E("s_waitcnt lgkmcnt(8)", "s_barrier")
    E(T(f"ds_read_b128 {vr(P1,4)}, v{vT+1}", "fl"), r0[1:3])
    E(W("lg", "fl"))
    E(f"v_or3_b32 v{vT}, v{P1}, v{P1+1}, v{P1+2}", f"v_or_b32 v{vT}, v{vT}, v{P1+3}", "s_nop 0", f"v_readfirstlane_b32 s{sT0}, v{vT}",
      "s_nop 0", f"s_andn2_b32 s{sT0}, s{sT0}, s{sFLAG}", "s_cbranch_scc1 L_slow")
    stamp()
    GV, XR, BRW, TM, XO = 64, 80, 88, 96, vT
    for i in range(28):
        if i == 0:
            BG.extend([f"v_lshrrev_b32 v{TM}, 7, v0", f"v_bfe_u32 v{TM+1}, v0, 5, 1", f"v_lshlrev_b32 v{XO+1}, 5, v{TM}", f"v_lshl_add_u32 v{XO+1}, v{TM+1}, 4, v{XO+1}",
                       f"v_bfe_u32 v{TM}, v0, 6, 1", f"v_and_b32 v{TM+1}, 31, v0", f"v_lshl_add_u32 v{TM}, v{TM}, 5, v{TM+1}", f"v_lshl_add_u32 v{XO}, v{TM}, 10, v{XO+1}",
                       f"s_lshl_b32 s{sT2}, s{sG}, 7"])
            for ps in range(2):
                BG.append(T(f"buffer_load_dwordx4 {vr(XR+4*ps,4)}, v{XO}, {sr(sX,4)}, s{sT2} offen offset:{ps*64}", "xb"))
                BG.append(T(f"buffer_load_dwordx4 {vr(BRW+4*ps,4)}, v{XO+1}, {sr(sB2,4)}, 0 offen offset:{ps*64}", "xb"))
            BG.append(W("vm", ("fl", 15)))
            for n in range(16):
                ps, g = n >> 3, n & 7
                t = TM + 16*(n & 1); dst = GV + 8*ps
                for j in range(4): BG.append(f"v_accvgpr_read_b32 v{t+8+j}, a{aFL+4*n+j}")
                for j in range(4):
                    d0 = dst if g == 0 else t
                    BG.extend([f"v_lshlrev_b32 v{d0+2*j}, 16, v{t+8+j}", f"v_and_b32 v{d0+2*j+1}, s{sC0}, v{t+8+j}"])
                if g:
                    for j in range(8): BG.append(f"v_add_f32 v{dst+j}, v{dst+j}, v{t+j}")
            BG.extend([W("vm", "xb"), f"s_mov_b32 s{sT0}, {f32(1/CS**2)}"])
            for j in range(8): BG.extend([f"v_lshlrev_b32 v{TM+2*j}, 16, v{BRW+j}", f"v_and_b32 v{TM+2*j+1}, s{sC0}, v{BRW+j}"])
            for j in range(16): BG.append(f"v_fma_f32 v{GV+j}, v{GV+j}, s{sT0}, v{TM+j}")
            for j in range(16): BG.append(f"v_mul_f32 v{TM+j}, {f32(-math.log2(math.e))}, v{GV+j}")
            for j in range(16): BG.append(f"v_exp_f32 v{TM+j}, v{TM+j}")
            for j in range(16): BG.append(f"v_add_f32 v{TM+j}, 1.0, v{TM+j}")
            for j in range(16): BG.append(f"v_rcp_f32 v{TM+j}, v{TM+j}")
            for j in range(16): BG.append(f"v_mul_f32 v{GV+j}, v{GV+j}, v{TM+j}")
            for j in range(8): BG.extend([f"v_lshlrev_b32 v{TM+2*j}, 16, v{XR+j}", f"v_and_b32 v{TM+2*j+1}, s{sC0}, v{XR+j}"])
        d = dma_stage(i & 3, sWO, vDO, (i+4)*16384, ("o", i+4)) if i < 26 else []
        post = []
        if i == 8: post = ["s_barrier"]
        if i == 12: post = dma_oh(31)
        kstep(G3, i, G3.reads(i + 1), d, post=post)
    flush()
    E(W("lg", ("o", 28)))
    gaps(G3.mf(28), spread(G3.reads(29) + G3.reads(30) + G3.reads(31), 8, 5))
    stamp()
    E(W("lg", ("o", 31)))
    sepi = lambda n: epi_tile("v", ACC+64*tiles[n][1]+16*tiles[n][0], 0, *tiles[n], None, "sst")
    for n, (Tt, rg) in enumerate(tiles):
        if n >= 2: BG.extend(sepi(n - 2))
        gaps([G3.one(i, Tt, rg) for i in (29, 30, 31)], [])
    flush()
    E("s_nop 3")
    E(sepi(6), sepi(7))
    stamp()
    E("s_waitcnt vmcnt(0)")
    E(f"buffer_store_dword v{ONE}, v{vPUB}, {sr(sFL,4)}, 0 offen offset:1024 sc1")
    stamp()
    psl = f"buffer_load_dword v{POL}, v{vPOLL}, {sr(sFL,4)}, 0 offen offset:1024 sc1"
    E(psl, "s_waitcnt vmcnt(0)")
    E(check_ready("s", POL, psl))
    stamp()
    SL = 128
    for n in range(16):
        ps, g = n >> 3, n & 7
        E(f"s_mov_b32 s{sT4}, {g*131072 + ps*4096}", T(f"buffer_load_dwordx4 {vr(SL+4*n,4)}, v{vRD}, {sr(sPR,4)}, s{sT4} offen sc1", ("sl", n)))
    SA, ST_ = 192, 208
    for ps in range(2):
        for g in range(8):
            n = 8*ps + g
            E(W("vm", ("sl", n)))
            d0 = SA if g == 0 else ST_
            for j in range(4): E(f"v_lshlrev_b32 v{d0+2*j}, 16, v{SL+4*n+j}", f"v_and_b32 v{d0+2*j+1}, s{sC0}, v{SL+4*n+j}")
            if g:
                for j in range(4): E(f"v_pk_add_f32 {vr(SA+2*j,2)}, {vr(SA+2*j,2)}, {vr(ST_+2*j,2)}")
        for j in range(4): E(f"v_pk_fma_f32 {vr(SA+2*j,2)}, {vr(SA+2*j,2)}, {vr(GV+8*ps+2*j,2)}, {vr(TM+8*ps+2*j,2)}")
        for j in range(4): E(f"v_cvt_pk_bf16_f32 v{224+4*ps+j}, v{SA+2*j}, v{SA+2*j+1}")
        E(f"buffer_store_dwordx4 {vr(224+4*ps,4)}, v{XO}, {sr(sOUT,4)}, s{sT2} offen offset:{ps*64} {OPT['outsc']}")
    if OPT["stamps"]:
        stamp()
        E("s_waitcnt vmcnt(0)")
        stamp(0)
        E(f"s_lshl_b32 s{sT0}, s2, 2", f"s_add_u32 s{sT0}, s{sT0}, s{sW}", f"s_lshl_b32 s{sT0}, s{sT0}, 6", f"s_add_u32 s{sT0}, s{sT0}, {64<<20}")
        srd(sX, 58, sT0, ("imm", 64))
        E(f"v_mov_b32 v{vT}, 0", "s_memrealtime s[70:71]", "s_waitcnt lgkmcnt(0)", f"s_mov_b32 s87, s70")
        for i in list(range(nstamp[0])) + [14, 15]:
            E(f"v_mov_b32 v{vT+1}, s{sST+i}", f"buffer_store_dword v{vT+1}, v{vT}, {sr(sX,4)}, 0 offen offset:{4*i}")
    E("L_main_end:", "s_endpgm")
    for name, vreg, load in SPINS:
        E(f"L_spin_{name}:", f"s_mov_b32 s{sCNT}, {OPT['spin']}", f"L_spinl_{name}:", "s_sleep 1", load, "s_waitcnt vmcnt(0)",
          f"v_cmp_eq_u32 vcc, 1, v{vreg}", f"s_sub_u32 s{sCNT}, s{sCNT}, 1", f"s_cbranch_scc1 L_ok_{name}",
          "s_cmp_eq_u64 vcc, -1", f"s_cbranch_scc0 L_spinl_{name}", f"s_branch L_ok_{name}")
    E("L_slow:")
    E("s_waitcnt vmcnt(0) lgkmcnt(0)", "s_barrier")
    E(f"s_mov_b32 s{sKOFF}, 0", f"s_mov_b32 s{sCNT}, 16", f"v_mov_b32 v{vM}, 0xff800000", f"v_mov_b32 v{vM+1}, 0xff800000")
    E("L_slow_loop:")
    dk = dma_k(0); E(dk[0], "s_nop 0", dk[2:])
    E("s_waitcnt vmcnt(0)", "s_barrier")
    E(kreads(0))
    E("s_waitcnt lgkmcnt(0)", "s_barrier")
    E(qk(0, S0, (0,)), qk(1, S1[0], (0,)))
    E("s_nop 7", "s_nop 7", f"s_add_u32 s{sKOFF}, s{sKOFF}, 8192")
    for rg, s in ((0, S0), (1, S1[0])):
        for j in range(0, 16, 2): E(f"v_max3_f32 v{vM+rg}, v{vM+rg}, v{s+j}, v{s+j+1}")
    E(f"s_sub_u32 s{sCNT}, s{sCNT}, 1", f"s_cmp_lg_u32 s{sCNT}, 0", "s_cbranch_scc1 L_slow_loop")
    for rg in range(2):
        E(f"v_mov_b32 v{vT}, v{vM+rg}", "s_nop 1", f"v_permlane32_swap_b32 v{vM+rg}, v{vT}", "s_nop 0", f"v_max_f32 v{vM+rg}, v{vM+rg}, v{vT}")
    E(f"s_mov_b32 s{sFLAG}, 1", "s_branch L_restart", "L_code_end:")

K = NAME + "_kernel"
hdr = open("cdna_kernels/" + NAME + ".s.ref").read().split("; Override launch")[0]
out = [hdr.rstrip()]
out.append("; @launch grid=(256,1,1) block=(256,1,1) lds=163840")
out.append('.amdgcn_target "amdgcn-amd-amdhsa--gfx950"')
out.append(".text")
main_kernel(K)
out += L
out.append('.section .rodata,"a"')
out.append(f""".p2align 6
.amdhsa_kernel {K}
  .amdhsa_next_free_vgpr 512
  .amdhsa_next_free_sgpr 102
  .amdhsa_accum_offset 256
  .amdhsa_group_segment_fixed_size 0
  .amdhsa_kernarg_size 104
  .amdhsa_user_sgpr_count 2
  .amdhsa_user_sgpr_kernarg_segment_ptr 1
  .amdhsa_system_sgpr_workgroup_id_x 1
.end_amdhsa_kernel""")
print("\n".join(out))
```

```python
import sys, math, struct
from collections import deque
NAME = "recurrent_scan__sliding_block_cached__dense_activation_squared_relu__prompt"
OPT = dict(stamps=0, codepf=1, budget=24, thr=40, memc=12, dmac=8, hg=2, spd=3, rot=4, spp=1, wqpf=1, outsc="", skip="", spin=200000, pfpos=1, puba=25, skpre="", hst="24_25_26_27_28_29_30", skpost="", sst="17_18_19_20", dropoob=1, front=1, wrf=4, barg=15, rt=0, lda=28, bfirst=0)
for a in sys.argv[1:]:
    k, v = a.split("="); OPT[k] = int(v) if v.lstrip("-").isdigit() else v

def vr(b, n=1): return f"v{b}" if n == 1 else f"v[{b}:{b+n-1}]"
def ar(b, n=1): return f"a{b}" if n == 1 else f"a[{b}:{b+n-1}]"
def R(kind, b, n=1): return vr(b, n) if kind == "v" else ar(b, n)
def sr(b, n=1): return f"s{b}" if n == 1 else f"s[{b}:{b+n-1}]"
def f32(x): return "0x%08x" % struct.unpack("<I", struct.pack("<f", x))[0]

class W:
    def __init__(s, cnt, tag): s.cnt, s.tag = cnt, tag
class T:
    def __init__(s, text, tag): s.text, s.tag = text, tag
L = []; VM = []; LG = []
def E(*xs):
    for x in xs:
        if isinstance(x, (list, tuple)): E(*x); continue
        if isinstance(x, W):
            q = VM if x.cnt == "vm" else LG
            idx = [i for i, t in enumerate(q) if t == x.tag]
            if not idx: continue
            n = len(q) - 1 - idx[-1]
            n = min(n, 63 if x.cnt == "vm" else 15)
            del q[:len(q) - n]
            L.append(f"    s_waitcnt {'vmcnt' if x.cnt == 'vm' else 'lgkmcnt'}({n})"); continue
        tag = None
        if isinstance(x, T): x, tag = x.text, x.tag
        op = x.split()[0]
        if op.startswith("buffer_") or op.startswith("global_"): VM.append(tag)
        if op.startswith("ds_"): LG.append(tag)
        if op == "s_waitcnt":
            for w in x.split()[1:]:
                n = int(w[w.index("(")+1:-1]); q = VM if w.startswith("vm") else LG
                if len(q) > n: del q[:len(q) - n]
        L.append("    " + x if not x.endswith(":") and not x.startswith(".") else x)
def opof(x):
    if isinstance(x, (list, tuple)): return opof(x[0])
    if isinstance(x, W): return "s_waitcnt"
    return (x.text if isinstance(x, T) else x).split()[0]
def ismem(x):
    if isinstance(x, (list, tuple)): return any(ismem(y) for y in x)
    return opof(x).split("_")[0] in ("ds", "buffer", "global")
def isvalu(x): return opof(x).startswith("v_")
def cost(x):
    if isinstance(x, (list, tuple)): return sum(cost(y) for y in x)
    if isinstance(x, W): return 4
    t = x.text if isinstance(x, T) else x
    op = t.split()[0]
    assert not op.startswith("v_pk_"), t
    if op in ("v_exp_f32", "v_rcp_f32", "v_sqrt_f32"): return 8
    if op.startswith("buffer_store_dwordx4"): return 24
    if op.startswith("buffer_") or op.startswith("global_"): return OPT["dmac"]
    if op == "s_nop": return 4 * (int(t.split()[1]) + 1)
    if op == "ds_write_b128": return 20
    return 4
BG = deque()
def gaps(mf, plan, budget=None, wr_from=0):
    budget = OPT["budget"] if budget is None else budget
    for g, m in enumerate(mf):
        E(m)
        items = plan[g] if g < len(plan) else []
        endi = [x[1:] for x in items if isinstance(x, tuple) and x[0] == "end"]
        items = [x for x in items if not (isinstance(x, tuple) and x[0] == "end")]
        c = sum(cost(x) for x in items) + sum(cost(x) for x in endi)
        E([x for x in items if not isvalu(x)])
        while True:
            while BG and ismem(BG[0]) and len(PM) < 3: PM.append(BG.popleft())
            if PM and opof(PM[0]).startswith("ds_write") and g < wr_from: break
            if PM and (c + cost(PM[0]) <= budget or c <= OPT["memc"]):
                x = PM.popleft(); E(x); c += cost(x)
            else: break
        E([x for x in items if isvalu(x)])
        while BG:
            if ismem(BG[0]):
                if len(PM) < 3: PM.append(BG.popleft()); continue
                break
            if opof(BG[0]) in ("s_waitcnt", "s_barrier") and PM: break
            if c + cost(BG[0]) > budget: break
            x = BG.popleft(); E(x); c += cost(x)
        E(endi)
PM = deque()
def flush():
    print("flush", len(PM), len(BG), "at line", len(L), file=sys.stderr)
    while PM: E(PM.popleft())
    while BG: E(BG.popleft())
def spread(items, n, per):
    return [items[g*per:(g+1)*per] for g in range(n)]


CS = 128**-0.5 * math.log2(math.e)
X_BASE, R_BASE, NS = 0, 65536, 6
KR_BASE = 32768
FLAG_OFF = 32 << 20
OOB = 0x40000000
sX, sK, sV, sWQ, sWO, sW1, sW2, sB1, sP = 4, 8, 12, 16, 20, 24, 28, 32, 36
sW, sG, sRB, sRING, sOFF, sCNT, sT0, sT1, sKOFF, sVOFF, sVL, sC0, sT2, sT3, sFLAG, sT4, sROT, sJJ = range(40, 58)
sFL, sDBG, sPR, sB2, sOUT = 60, 64, 88, 92, 96
sST = 72
vLANE, vTF, vPUB, vPOLL, vB, vBC, vDO, vKR, vTV, vDK, vDV, vST, vM, vL = 1, 2, 4, 5, 6, 10, 14, 18, 26, 30, 32, 33, 34, 36
vDQ, vD1, vRD = 40, 44, 48
vT = 50
B0, B1, B2, B3, B4, B5 = 64, 96, 128, 160, 192, 224
S0, S1, P0, P1, NEGM = B5, (B5+16, B1), (56, B1+16), B1+24, (B3, B3+16)
FT = (B2, B2+16)
aO, aVF, aKF, aFL = 0, 128, 160, 192
def QFr(rg, s_): return (B0 if s_ < 4 else B4) + 16*((s_ >> 1) & 1) + 8*rg + 4*(s_ & 1)

nstamp = [0]
def stamp(lvl=1):
    if not OPT["stamps"]: return
    if OPT["stamps"] != lvl and lvl != 0: return
    i = nstamp[0]; nstamp[0] += 1
    assert i < 14
    E("s_memrealtime s[70:71]" if OPT["rt"] else "s_memtime s[70:71]", "s_waitcnt lgkmcnt(0)", f"s_mov_b32 s{sST+i}, s70")

def mfma(dk, d, ak, a, bk, b, c=None, ck=None):
    cs = R(dk, d, 16) if c is None else (str(c) if ck is None else R(ck, c, 16))
    return f"v_mfma_f32_32x32x16_bf16 {R(dk,d,16)}, {R(ak,a,4)}, {R(bk,b,4)}, {cs}"
def dma_k(t):
    return [f"s_add_u32 m0, s{sVL}, {KR_BASE+(t&3)*8192}", f"s_mov_b32 s{sKOFF}, {t*8192}",
            T(f"buffer_load_dwordx4 v{vDK}, {sr(sK,4)}, s{sKOFF} offen lds", ("K", t)),
            T(f"buffer_load_dwordx4 v{vDK+1}, {sr(sK,4)}, s{sKOFF} offen offset:1024 lds", ("K", t))]
def dma_v(t):
    return [f"s_add_u32 m0, s{sVL}, {X_BASE+(t&3)*8192}", f"s_mov_b32 s{sKOFF}, {t*8192}",
            T(f"buffer_load_dwordx4 v{vDV}, {sr(sV,4)}, s{sKOFF} offen lds", ("V", t)),
            T(f"buffer_load_dwordx4 v{vDV}, {sr(sV,4)}, s{sKOFF} offen offset:1024 lds", ("V", t))]

class Stage:
    def __init__(s, idx, mat, j, ps, acc, areg, readb, vb, first):
        s.idx, s.mat, s.j, s.ps, s.acc, s.areg, s.readb, s.vb, s.first = idx, mat, j, ps, acc, areg, readb, vb, first
        s.slot = idx % NS; s.tag = (mat, ps, j)
    def dma(s):
        srd_, vd, stride = {"w1": (sW1, vD1, 3584), "wq": (sWQ, vDQ, 8192), "w2": (sW2, vDO, 1024), "wo": (sWO, vDO, 1024)}[s.mat]
        o = [f"s_add_u32 m0, s{sRING}, {s.slot*4096}", f"s_mov_b32 s{sOFF}, {s.j*32*stride + s.ps*128}"]
        if OPT["rot"] and s.mat == "wq":
            o[1] = [f"s_add_u32 s{sOFF}, s{sROT}, {s.j*32*8192 + s.ps*128}", f"s_and_b32 s{sOFF}, s{sOFF}, {512*8192-1}"]
        if OPT["rot"] and s.mat == "w1":
            o[1] = [f"s_add_u32 s{sOFF}, s{sROT}, {s.j*32*8192}", f"s_bfe_u32 s{sOFF}, s{sOFF}, {(9<<16)|13}", f"s_mul_i32 s{sOFF}, s{sOFF}, 3584"]
        return o + [T(f"buffer_load_dwordx4 v{vd+p}, {sr(srd_,4)}, s{sOFF} offen offset:{p*1024} lds", s.tag) for p in range(4)]
    def areads(s):
        ak, a = s.areg
        return [W("vm", s.tag)] + [T(f"ds_read_b64_tr_b16 {R(ak, a+8*ks+4*Tt+2*t, 2)}, v{vTF+Tt} offset:{s.slot*4096+ks*2048+t*512}", s.tag)
                                   for ks in range(2) for Tt in range(2) for t in range(2)]
    def breads(s):
        if not s.readb: return []
        return [T(f"ds_read_b128 {ar(8*kk+4*rg, 4)}, v{s.vb+(kk&3)} offset:{kk*2048+rg*1024}", s.tag) for kk in (2*s.j, 2*s.j+1) for rg in range(2)]
    def reads(s): return s.breads() + s.areads()
    def one(s, ks, Tt, rg):
        ak, a = s.areg; dk, d = s.acc(Tt, rg)
        return mfma(dk, d, ak, a+8*ks+4*Tt, "a", 8*(2*s.j+ks)+4*rg, 0 if (s.first and s.j == 0 and ks == 0) else None)
    def mf(s): return [s.one(ks, Tt, rg) for ks in range(2) for Tt in range(2) for rg in range(2)]
def step(st, nxt_reads, dma, post=()):
    E(W("lg", st.tag))
    plan = [[] for _ in range(8)]
    q = list(nxt_reads); cnt = [2, 2, 3, 1, 3, 2, 3, 0] if dma else [3, 3, 3, 3, 3, 3, 3, 3]
    if len(q) > 16: cnt = [3, 2, 3, 2, 3, 2, 3, 2]
    if len(q) <= 9: cnt = [1, 1, 2, 1, 2, 1, 1, 0] if dma else [2, 2, 2, 2, 1, 0, 0, 0]
    if len(q) <= 9 and OPT["front"]: cnt = [3, 2, 3, 1, 0, 0, 0, 0]
    if len(dma) == 6: sl = {0: dma[:2], 1: dma[2:3], 3: dma[3:4], 5: dma[4:5], 7: dma[5:6]}
    elif len(dma) == 8: sl = {0: dma[:2], 1: dma[2:3], 3: dma[3:4], 4: dma[4:6], 5: dma[6:7], 7: dma[7:8]}
    elif len(dma) == 4: sl = {0: dma[:2], 1: dma[2:3], 3: dma[3:4]}
    else: assert not dma; sl = {}
    for g in range(8):
        if g in (0, 4): plan[g] += sl.get(g, [])
        plan[g] += q[:cnt[g]]; q = q[cnt[g]:]
        if g not in (0, 4): plan[g] += sl.get(g, [])
    assert not q
    plan[7] += list(post)
    gaps(st.mf(), plan, wr_from=OPT["wrf"])

def srd(d, ptr, off, size):
    E(f"s_add_u32 s{d}, s{ptr}, s{off}", f"s_addc_u32 s{d+1}, s{ptr+1}, 0")
    if size[0] == "rest": E(f"s_sub_u32 s{d+2}, {size[1]}, s{off}")
    else: E(f"s_mov_b32 s{d+2}, {size[1]}")
    E(f"s_mov_b32 s{d+3}, 0x00020000")

SPINS = []
def check_ready(name, vreg, load, val, pre=()):
    SPINS.append((name, vreg, load, val, pre))
    return [f"v_cmp_le_u32 vcc, {val}, v{vreg}", "s_nop 1", ["s_cmp_eq_u64 vcc, -1", f"s_cbranch_scc0 L_spin_{name}", f"L_ok_{name}:"]]

def blk(kind, lo, hi): return lambda Tt, rg: (kind, (lo, hi)[Tt] + 16*rg)

def main_kernel(K):
    PRE = []
    def add(lst, mat, n, ps, acc, aregs, readb, vb, first=True):
        for j in range(n): lst.append(Stage(len(lst), mat, j, ps, acc, aregs(len(lst)), readb, vb, first))
    av = lambda i: ("v", B3 + 16*(i & 1)); aa = lambda i: ("a", 112 + 16*(i & 1))
    add(PRE, "w1", 16, 0, blk("v", B4, B5), av, True, vB, first=False)
    add(PRE, "wq", 16, 0, blk("v", B0, B1), av, False, vB)
    add(PRE, "wq", 16, 1, blk("v", B4, B5), av, False, vB)
    add(PRE, "w2", 7, 0, blk("v", B1, B2), aa, True, vBC)
    add(PRE, "w2", 7, 1, blk("a", 192, 224), aa, False, vBC)
    POST = []
    ao = lambda i: ("v", B0 + 16*(i % 3))
    add(POST, "wo", 16, 0, blk("v", B4, B5), ao, True, vB)
    add(POST, "wo", 16, 1, blk("v", B2, B3), ao, False, vB)

    E(".p2align 8", f".globl {K}", f".type {K},@function", f"{K}:")
    E("s_cmp_ge_u32 s2, 256", "s_cbranch_scc1 L_main_end")
    E(f"s_mov_b32 s{sFLAG}, 0", f"v_mov_b32 v{vM}, 0", f"v_mov_b32 v{vM+1}, 0")
    E("L_restart:")
    if OPT["stamps"]:
        E("s_memrealtime s[86:87]"); stamp(0)
    E("s_load_dwordx8 s[60:67], s[0:1], 0", "s_load_dwordx2 s[68:69], s[0:1], 32", "s_load_dwordx4 s[88:91], s[0:1], 48",
      "s_load_dwordx8 s[92:99], s[0:1], 64", "s_load_dwordx2 s[58:59], s[0:1], 96")
    PFD = vRD + 1
    if OPT["codepf"]:
        E("s_getpc_b64 s[100:101]", "L_pc:", f"s_sub_u32 s100, s100, L_pc-{K}", "s_subb_u32 s101, s101, 0")
        E(f"s_bfe_u32 s{sT0}, s2, 0x20003", f"s_lshl_b32 s{sT0}, s{sT0}, 14", f"v_lshlrev_b32 v{vT}, 6, v0", f"v_add_u32 v{vT}, s{sT0}, v{vT}",
          f"v_min_u32 v{vT}, L_code_end-{K}-4, v{vT}")
        E(f"global_load_dword v{PFD}, v{vT}, s[100:101]")
    l = vLANE
    pt = 128
    row, c7, xo, t0, t1, t2, t3, t4 = pt, pt+1, pt+2, pt+4, pt+5, pt+6, pt+7, pt+8
    wa, pw = 58, 60
    E(f"v_lshrrev_b32 v{t0}, 6, v0", f"v_and_b32 v{l}, 63, v0")
    HG = OPT["hg"]; lh = HG.bit_length() - 1
    E(f"s_and_b32 s{sG}, s2, {8//HG-1}", f"s_lshl_b32 s{sG}, s{sG}, {lh}", f"s_bfe_u32 s{sT0}, s2, {(lh<<16)|3}", f"s_or_b32 s{sG}, s{sG}, s{sT0}",
      f"s_lshr_b32 s{sJJ}, s2, {3+lh}", f"s_bfe_u32 s{sRB}, s2, {(lh<<16)|(3-lh)}", f"s_lshl_b32 s{sRB}, s{sRB}, {5-lh}", f"s_or_b32 s{sRB}, s{sRB}, s{sJJ}")
    E(f"v_readfirstlane_b32 s{sW}, v{t0}")
    E(f"v_bfe_u32 v{row}, v0, 3, 3", f"v_lshl_add_u32 v{row}, v{t0}, 4, v{row}",
      f"v_and_b32 v{c7}, 7, v0", f"v_lshlrev_b32 v{xo}, 4, v{c7}", f"v_lshl_add_u32 v{xo}, v{row}, 10, v{xo}", f"v_add_u32 v{xo+1}, 8192, v{xo}")
    E(f"s_or_b32 s{sT0}, s{sG}, s{sW}", f"s_or_b32 s{sT0}, s{sT0}, s{sFLAG}", f"s_cmp_eq_u32 s{sT0}, 0", f"s_cselect_b32 s{sT2}, 0, {OOB}",
      f"v_lshrrev_b32 v{t1}, 3, v{l}", f"v_lshlrev_b32 v{t1}, 8, v{t1}", f"v_lshl_add_u32 v{t1}, v{c7}, 2, v{t1}", f"v_add_u32 v{t1}, s{sT2}, v{t1}",
      f"v_mov_b32 v{t2}, 0", f"v_lshrrev_b32 v{t3}, 5, v{l}", f"v_lshlrev_b32 v{t3}, 4, v{t3}")
    E(f"s_lshl_b32 s{sT0}, s{sRB}, 16", f"s_lshl_b32 s{sT1}, s{sRB}, 12", f"s_add_u32 s{sT1}, s{sT1}, {FLAG_OFF}")
    E(f"s_lshr_b32 s{sT3}, s{sG}, 1", f"s_mul_i32 s{sT3}, s{sT3}, 896", f"s_and_b32 s{sT4}, s{sG}, 1", f"s_mul_i32 s{sT4}, s{sT4}, 384",
      f"s_add_u32 s{sT3}, s{sT3}, s{sT4}", f"s_lshl_b32 s{sT4}, s{sW}, 7")
    XS = 20
    if OPT["rot"]:
        E(f"s_and_b32 s{sROT}, s{sJJ}, {OPT['rot']-1}", f"s_mul_i32 s{sROT}, s{sROT}, {8//OPT['rot']}", f"s_lshl_b32 s{XS}, s{sROT}, 7")
        for i in range(1, 8): E(f"s_add_u32 s{XS+i}, s{XS}, {128*i}", f"s_and_b32 s{XS+i}, s{XS+i}, 1023")
        E(f"s_lshl_b32 s{sROT}, s{sROT}, 19")
    E("s_waitcnt lgkmcnt(0)")
    srd(sX, 60, sT0, ("imm", 65536))
    srd(sB1, 90, sT3, ("rest", 3584))
    srd(sP, 58, sT1, ("imm", 1024))
    E(T(f"buffer_store_dword v{t2}, v{t1}, {sr(sP,4)}, 0 offen sc1", "clr"))
    BR = 240
    for q in range(4): E(T(f"buffer_load_dwordx4 {vr(BR+4*q,4)}, v{t3}, {sr(sB1,4)}, s{sT4} offen offset:{q*32}", "bias"))
    RAW = 64
    for p in range(2):
        for i in range(8):
            if OPT["rot"]: E(T(f"buffer_load_dwordx4 {vr(RAW+32*p+4*i,4)}, v{xo+p}, {sr(sX,4)}, s{XS+i} offen", ("x", p, i)))
            else: E(T(f"buffer_load_dwordx4 {vr(RAW+32*p+4*i,4)}, v{xo+p}, {sr(sX,4)}, 0 offen offset:{i*128}", ("x", p, i)))
    stamp(2)
    srd(sW1, 88, sT3, ("rest", 1835008))
    E(f"s_lshl_b32 s{sT0}, s{sG}, 10"); srd(sWQ, 66, sT0, ("rest", 4194304))
    E(f"s_lshl_b32 s{sT0}, s{sG}, 19"); srd(sWO, 68, sT0, ("rest", 4194304))
    E(f"s_add_u32 s{sT0}, s{sT0}, {1536*256}"); srd(sK, 62, sT0, ("imm", 131072)); srd(sV, 64, sT0, ("imm", 131072))
    E(f"s_mul_i32 s{sT0}, s{sG}, {224*1024}"); srd(sW2, 92, sT0, ("rest", 1835008))
    srd(sFL, 58, sT1, ("imm", 1024))
    E(f"s_lshl_b32 s{sT0}, s{sRB}, 2"); srd(sDBG, 98, sT0, ("imm", 4))
    E(f"s_lshl_b32 s{sT0}, s{sRB}, 3", f"s_or_b32 s{sT0}, s{sT0}, s{sG}", f"s_lshl_b32 s{sT0}, s{sT0}, 17"); srd(sP, 58, sT0, ("imm", 131072))
    E(f"s_lshr_b32 s{sT1}, s{sG}, 1", f"s_lshl_b32 s{sT1}, s{sT1}, 2", f"s_and_b32 s{sT0}, s{sG}, 1", f"s_or_b32 s{sT4}, s{sT1}, s{sT0}")
    E(f"s_lshl_b32 s{sT0}, s{sRB}, 20", f"s_lshl_b32 s{sT1}, s{sT4}, 12", f"s_add_u32 s{sT0}, s{sT0}, s{sT1}"); srd(sPR, 58, sT0, ("imm", 1 << 20))
    E(f"s_lshl_b32 s{sVOFF}, s{sT4}, 6"); srd(sB2, 94, sVOFF, ("rest", 1024))
    E(f"s_lshl_b32 s{sT0}, s{sRB}, 16"); srd(sOUT, 96, sT0, ("imm", 65536))
    E(f"s_mul_i32 s{sRING}, s{sW}, {NS*4096}", f"s_add_u32 s{sRING}, s{sRING}, {R_BASE}", f"s_lshl_b32 s{sVL}, s{sW}, 11")
    E(f"v_lshrrev_b32 v{t0}, 3, v{l}", f"v_bfe_u32 v{t1}, v{l}, 2, 1", f"v_bfe_u32 v{t2}, v{l}, 4, 1", f"v_xor_b32 v{t1}, v{t1}, v{t2}",
      f"v_lshlrev_b32 v{t1}, 6, v{t1}", f"v_and_b32 v{t2}, 3, v{l}", f"v_lshl_add_u32 v{t1}, v{t2}, 4, v{t1}",
      f"s_mov_b32 s{sT1}, 3584", f"v_mul_lo_u32 v{t2}, v{t0}, s{sT1}", f"s_lshl_b32 s{sT0}, s{sW}, 7",
      f"v_add3_u32 v{vD1}, v{t2}, v{t1}, s{sT0}", f"s_lshl_b32 s{sT0}, s{sW}, 8", f"v_add_u32 v{t1}, s{sT0}, v{t1}",
      f"v_lshl_add_u32 v{vDQ}, v{t0}, 13, v{t1}", f"v_lshl_add_u32 v{vDO}, v{t0}, 10, v{t1}")
    if OPT["dropoob"]:
        E(f"s_and_b32 s{sT0}, s{sG}, 1", f"s_xor_b32 s{sT0}, s{sT0}, 1", f"s_mul_i32 s{sT0}, s{sT0}, 7",
          f"v_bfe_u32 v{t2}, v{t1}, 6, 1", f"s_lshl_b32 s{sT3}, s{sW}, 1", f"v_or_b32 v{t2}, s{sT3}, v{t2}",
          f"v_cmp_eq_u32 vcc, s{sT0}, v{t2}", f"v_mov_b32 v{t2}, {OOB}", "s_nop 0", f"v_cndmask_b32 v{vD1}, v{vD1}, v{t2}, vcc")
    for p in range(1, 4):
        E(f"v_add_u32 v{vD1+p}, {p*(8*3584-1024)}, v{vD1}", f"v_add_u32 v{vDQ+p}, {p*(8*8192-1024)}, v{vDQ}", f"v_add_u32 v{vDO+p}, {p*(8*1024-1024)}, v{vDO}")
    E(f"v_lshrrev_b32 v{t0}, 4, v{l}", f"v_bfe_u32 v{t1}, v{l}, 2, 2", f"v_xor_b32 v{t1}, v{t1}, v{t0}", f"v_lshlrev_b32 v{t1}, 6, v{t1}",
      f"v_and_b32 v{t2}, 3, v{l}", f"v_lshl_add_u32 v{t1}, v{t2}, 4, v{t1}")
    E(f"v_lshl_add_u32 v{vDV}, v{t0}, 8, v{t1}", f"v_add_u32 v{vDV}, s{sVL}, v{vDV}")
    for p in range(2):
        E(f"s_lshl_b32 s{sT0}, s{sW}, 3", f"s_add_u32 s{sT0}, s{sT0}, {4*p}", f"v_add_u32 v{t2}, s{sT0}, v{t0}",
          f"v_xor_b32 v{t3}, v{t2}, v{l}", f"v_and_b32 v{t3}, 15, v{t3}", f"v_lshlrev_b32 v{t3}, 4, v{t3}",
          f"v_lshl_add_u32 v{vDK+p}, v{t2}, 8, v{t3}")
        if p: E(f"v_subrev_u32 v{vDK+p}, 1024, v{vDK+p}")
    E(f"v_bfe_u32 v{t0}, v{l}, 2, 2", f"v_lshrrev_b32 v{t1}, 5, v{l}", f"v_lshl_add_u32 v{t1}, v{t1}, 3, v{t0}",
      f"v_and_b32 v{t2}, 1, v{l}", f"v_lshlrev_b32 v{t2}, 4, v{t2}", f"v_bfe_u32 v{t3}, v{l}, 1, 1", f"v_lshl_add_u32 v{t2}, v{t3}, 3, v{t2}",
      f"v_bfe_u32 v{t3}, v{l}, 4, 1", f"v_lshl_add_u32 v{t2}, v{t3}, 5, v{t2}")
    E(f"v_lshl_add_u32 v{t3}, v{t1}, 8, v{t2}")
    for Tt in range(4):
        E(f"v_xor_b32 v{t4}, {Tt}, v{t0}", f"v_lshl_add_u32 v{vTV+Tt}, v{t4}, 6, v{t3}")
    E(f"v_lshl_add_u32 v{t3}, v{t1}, 7, v{t2}", f"v_add_u32 v{t3}, s{sRING}, v{t3}", f"v_lshrrev_b32 v{t0}, 1, v{t0}")
    for Tt in range(2):
        E(f"v_xor_b32 v{t4}, {Tt}, v{t0}", f"v_lshl_add_u32 v{vTF+Tt}, v{t4}, 6, v{t3}")
    E(f"v_lshrrev_b32 v{t1}, 5, v{l}")
    for j in range(4):
        E(f"v_or_b32 v{t2}, {2*j}, v{t1}", f"v_xor_b32 v{t2}, v{t2}, v{l}", f"v_lshlrev_b32 v{vB+j}, 4, v{t2}")
    E(f"v_and_b32 v{t0}, 19, v{l}", f"v_bfe_u32 v{t2}, v{l}, 2, 1", f"v_lshl_add_u32 v{t0}, v{t2}, 3, v{t0}",
      f"v_bfe_u32 v{t2}, v{l}, 3, 1", f"v_lshl_add_u32 v{t0}, v{t2}, 2, v{t0}",
      f"v_lshlrev_b32 v{t2}, 8, v{t0}", f"v_add_u32 v{t2}, {KR_BASE}, v{t2}", f"v_and_b32 v{t0}, 15, v{t0}", f"v_xor_b32 v{t0}, v{t0}, v{t1}")
    for s_ in range(8):
        E(f"v_xor_b32 v{t3}, {2*s_}, v{t0}", f"v_lshl_add_u32 v{vKR+s_}, v{t3}, 4, v{t2}")
    E(f"s_lshl_b32 s{sT0}, s{sW}, 14", f"v_lshlrev_b32 v{vST}, 4, v{l}", f"v_add_u32 v{vST}, s{sT0}, v{vST}")
    for p in range(2):
        E(f"v_add_u32 v{t0}, {8*p}, v{row}", f"v_lshrrev_b32 v{t1}, 5, v{t0}", f"v_and_b32 v{t0}, 31, v{t0}", f"v_xor_b32 v{t0}, v{t0}, v{c7}",
          f"v_lshlrev_b32 v{t0}, 4, v{t0}", f"v_lshl_add_u32 v{t0}, v{t1}, 10, v{t0}", f"v_and_b32 v{t1}, 1, v{l}", f"v_lshl_add_u32 v{t0}, v{t1}, 9, v{t0}",
          f"v_lshrrev_b32 v{t1}, 1, v{c7}", f"v_lshl_add_u32 v{wa+p}, v{t1}, 11, v{t0}")
    E(f"v_lshrrev_b32 v{t3}, 4, v0", f"v_and_b32 v{t4}, 15, v0", f"v_lshlrev_b32 v{pw}, 6, v{t4}", f"v_lshl_add_u32 v{pw}, v{t3}, 13, v{pw}")
    E(f"v_mul_lo_u32 v{t3}, v{t3}, s{sT1}", f"v_lshl_add_u32 v{pw+1}, v{t4}, 5, v{t3}", f"v_lshlrev_b32 v{pw+2}, 4, v0", f"v_lshlrev_b32 v{pw+3}, 5, v0")
    E(f"s_mov_b32 s{sC0}, 0xffff0000", f"v_mov_b32 v{vL}, s{sT2}", f"v_mov_b32 v{vL+1}, 1")
    ACCH = B4
    E(W("vm", "bias"))
    if OPT["wqpf"]: E(f"s_mul_i32 s{sT3}, s{sRB}, {16*3584}", f"buffer_load_dword v{PFD}, v{pw+1}, {sr(sW1,4)}, s{sT3} offen")
    for Tt in range(2):
        for r in range(16):
            src = BR + 8*Tt + r//2
            E((f"v_lshlrev_b32 v%d, 16, v{src}" if r % 2 == 0 else f"v_and_b32 v%d, s{sC0}, v{src}") % (ACCH+32*Tt+r))
    E(f"s_mov_b32 s{sT2}, {f32(CS)}", f"s_mov_b32 s{sT3}, s{sT2}")
    for Tt in range(2):
        for r in range(0, 16, 2):
            E(f"v_pk_mul_f32 {vr(ACCH+32*Tt+16+r,2)}, {vr(ACCH+32*Tt+r,2)}, {sr(sT2,2)}", f"v_pk_mul_f32 {vr(ACCH+32*Tt+r,2)}, {vr(ACCH+32*Tt+r,2)}, {sr(sT2,2)}")
    SP = deque()
    for s_ in range(NS):
        d = PRE[s_].dma(); SP.append(d[:3]); SP.extend(d[3:])
    PFS = [[f"s_lshl_b32 s{sT3}, s{sRB}, 17", f"buffer_load_dword v{PFD}, v{pw}, {sr(sWQ,4)}, s{sT3} offen"],
           [f"s_mul_i32 s{sT3}, s{sRB}, 7168", f"buffer_load_dword v{PFD}, v{pw+3}, {sr(sW2,4)}, s{sT3} offen"],
           [f"s_lshl_b32 s{sT3}, s{sRB}, 12", f"buffer_load_dword v{PFD}, v{pw+2}, {sr(sK,4)}, s{sT3} offen"],
           [f"buffer_load_dword v{PFD}, v{pw+2}, {sr(sV,4)}, s{sT3} offen"]]
    if OPT["pfpos"] == 0: SP.append(PFS[0])
    if OPT["pfpos"] == 1: SP.extend(PFS)
    def sp(n=1):
        for _ in range(n):
            if SP: E(SP.popleft())
    def dpp_sum(v):
        E("s_nop 1", f"v_add_f32_dpp v{v}, v{v}, v{v} quad_perm:[1,0,3,2] row_mask:0xf bank_mask:0xf",
          "s_nop 1", f"v_add_f32_dpp v{v}, v{v}, v{v} quad_perm:[2,3,0,1] row_mask:0xf bank_mask:0xf",
          "s_nop 1", f"v_add_f32_dpp v{v}, v{v}, v{v} row_half_mirror row_mask:0xf bank_mask:0xf")
    a0, a1, mean, rinv = 50, 52, 54, 56
    for p in range(2):
        Ub = 128
        for i in range(8):
            E(W("vm", ("x", p, i)))
            if p == 0 and i == 0: stamp(2)
            for j in range(4*i, 4*i+4):
                E(f"v_lshlrev_b32 v{Ub+2*j}, 16, v{RAW+32*p+j}", f"v_and_b32 v{Ub+2*j+1}, s{sC0}, v{RAW+32*p+j}")
            if i == 0:
                E(f"v_pk_add_f32 {vr(a0,2)}, {vr(Ub,2)}, {vr(Ub+2,2)}", f"v_pk_add_f32 {vr(a1,2)}, {vr(Ub+4,2)}, {vr(Ub+6,2)}")
            else:
                for j in range(4*i, 4*i+4):
                    a = a0 if j % 2 == 0 else a1
                    E(f"v_pk_add_f32 {vr(a,2)}, {vr(a,2)}, {vr(Ub+2*j,2)}")
        if p == 1:
            E(W("vm", "clr"), f"buffer_store_dword v{vL+1}, v{vL}, {sr(sDBG,4)}, 0 offen sc1")
        E(f"v_pk_add_f32 {vr(a0,2)}, {vr(a0,2)}, {vr(a1,2)}", f"v_add_f32 v{a0}, v{a0}, v{a0+1}")
        dpp_sum(a0)
        E(f"v_mul_f32 v{mean}, {f32(1/512)}, v{a0}")
        for j in range(32):
            E(f"v_pk_add_f32 {vr(Ub+2*j,2)}, {vr(Ub+2*j,2)}, {vr(mean,2)} op_sel_hi:[1,0] neg_lo:[0,1] neg_hi:[0,1]")
            if j % OPT["spd"] == 0 and p >= OPT["spp"]: sp()
        E(f"v_pk_mul_f32 {vr(a0,2)}, {vr(Ub,2)}, {vr(Ub,2)}", f"v_pk_mul_f32 {vr(a1,2)}, {vr(Ub+2,2)}, {vr(Ub+2,2)}")
        for j in range(2, 32):
            a = a0 if j % 2 == 0 else a1
            E(f"v_pk_fma_f32 {vr(a,2)}, {vr(Ub+2*j,2)}, {vr(Ub+2*j,2)}, {vr(a,2)}")
            if j % OPT["spd"] == 0 and p >= OPT["spp"]: sp()
        E(f"v_pk_add_f32 {vr(a0,2)}, {vr(a0,2)}, {vr(a1,2)}", f"v_add_f32 v{a0}, v{a0}, v{a0+1}")
        dpp_sum(a0)
        dl = a1
        E(f"v_mul_f32 v{a0}, {f32(1/512)}, v{a0}",
          f"v_cvt_pk_bf16_f32 v{a0}, v{a0}, v{mean}",
          f"v_and_b32 v{dl}, s{sC0}, v{a0}", f"v_lshlrev_b32 v{a0}, 16, v{a0}",
          f"v_sub_f32 v{dl}, v{mean}, v{dl}",
          f"v_add_f32 v{a0}, {f32(1e-5)}, v{a0}", f"v_cvt_pk_bf16_f32 v{a0}, v{a0}, v{a0}", f"v_lshlrev_b32 v{a0}, 16, v{a0}",
          f"v_sqrt_f32 v{a0}, v{a0}", "s_nop 0", f"v_cvt_pk_bf16_f32 v{a0}, v{a0}, v{a0}", f"v_lshlrev_b32 v{a0}, 16, v{a0}",
          f"v_rcp_f32 v{rinv}, v{a0}", "s_nop 0", f"v_mul_f32 v{rinv}, {f32(CS)}, v{rinv}", f"v_mul_f32 v{dl}, v{dl}, v{rinv}")
        for i in range(8):
            for j in range(4*i, 4*i+4):
                E(f"v_pk_fma_f32 {vr(Ub+2*j,2)}, {vr(Ub+2*j,2)}, {vr(rinv,2)}, {vr(dl,2)} op_sel_hi:[1,0,0]")
            for j in range(4):
                E(f"v_cvt_pk_bf16_f32 v{RAW+32*p+4*i+j}, v{Ub+8*i+2*j}, v{Ub+8*i+2*j+1}")
            E(f"ds_write_b128 v{wa+p}, {vr(RAW+32*p+4*i,4)} offset:{i*8192}")
            if p >= OPT["spp"]: sp()
    sp(99)
    E(PRE[0].areads())
    E("s_waitcnt lgkmcnt(8)", "s_barrier")
    if OPT["stamps"] < 4: stamp(0)
    E(PRE[0].breads())
    def kreads(t): return [T(f"ds_read_b128 {ar(aKF+4*s_,4)}, v{vKR+s_} offset:{(t&3)*8192}", ("kf", t)) for s_ in range(8)]
    def vreads(t): return [T(f"ds_read_b64_tr_b16 {ar(aVF+16*u+4*Tt+2*t_,2)}, v{vTV+Tt} offset:{(t&3)*8192+u*4096+t_*1024}", ("vf", t))
                           for u in range(2) for Tt in range(4) for t_ in range(2)]
    def qk(rg, dst, cinit):
        return [mfma("v", dst, "a", aKF+4*s_, "v", QFr(rg, s_), *(cinit if s_ == 0 else ())) for s_ in range(8)]
    def pv(rg, p, zero=False):
        return [mfma("a", aO+64*rg+16*Tt, "a", aVF+16*u+4*Tt, "v", p+4*u, 0 if (zero and u == 0) else None) for u in range(2) for Tt in range(4)]
    def sm_plan(rg, s, p):
        pl = [[] for _ in range(16)]
        for j in range(16): pl[max(0, j-1)].append(f"v_exp_f32 v{s+j}, v{s+j}")
        for j in range(16): pl[max(1, j)].append(f"v_add_f32 v{vL+2*rg+(j&1)}, v{vL+2*rg+(j&1)}, v{s+j}")
        for k in range(8): pl[2*k+1].append(f"v_cvt_pk_bf16_f32 v{p+k}, v{s+2*k}, v{s+2*k+1}")
        for key in ("add", "exp"):
            if key in OPT["skip"]: pl = [[x for x in g if not x.startswith("v_" + key)] for g in pl]
        return pl
    def epi_tile(kind, src, typ, Tt, rg, tmp, tag):
        o = []; b = tmp if kind == "a" else src
        for u in range(2):
            if kind == "a":
                for r in range(8*u, 8*u+8): o.append(f"v_accvgpr_read_b32 v{b+r}, a{src+r}")
            for j in range(4): o.append(f"v_cvt_pk_bf16_f32 v{b+8*u+j}, v{b+8*u+2*j}, v{b+8*u+2*j+1}")
            o.append([f"s_mov_b32 s{sT4}, {typ*65536 + Tt*4096}",
                      T(f"buffer_store_dwordx4 {vr(b+8*u,4)}, v{vST}, {sr(sP,4)}, s{sT4} offen offset:{u*2048+rg*1024} sc1", tag)])
        return o
    NP = len(PRE)
    nq = [NS]
    skp = [int(x) for x in str(OPT["skpre"]).split("_") if x]
    hsteps = [int(x) for x in str(OPT["hst"]).split("_")]
    KV = deque([dma_v(0) + dma_k(2), dma_v(1) + dma_k(3), dma_v(2)])
    for i, st in enumerate(PRE):
        d = []
        if i not in skp and nq[0] < NP:
            assert nq[0] >= i + 2
            d = PRE[nq[0]].dma(); nq[0] += 1
        elif nq[0] >= NP and i >= 55 and KV: d = KV.popleft()
        post = []; pre = []
        if OPT["pfpos"] == 0 and i in (4, 8, 12): post = PFS[i // 4]
        if i == 16:
            post = ["s_barrier"]
            BG.append(f"s_lshl_b32 s{sT0}, s{sW}, 13")
            for j in range(4): BG.append(f"v_add_u32 v{vBC+j}, s{sT0}, v{vB+j}")
        if i == 17:
            for n in range(8):
                b = ACCH + 8*n
                for r in range(8): BG.append(f"v_max_f32 v{b+r}, 0, v{b+r}")
                for r in range(8): BG.append(f"v_mul_f32 v{b+r}, v{b+r}, v{b+r}")
                for j in range(4): BG.append(f"v_cvt_pk_bf16_f32 v{b+j}, v{b+2*j}, v{b+2*j+1}")
        for n in range(8):
            if hsteps[n * len(hsteps) // 8] == i:
                Tt, rg, u = n >> 2, (n >> 1) & 1, n & 1
                BG.append(T(f"ds_write_b128 v{vBC+2*Tt+u}, {vr(ACCH+8*n,4)} offset:{(2*Tt+u)*2048+rg*1024}", "hw"))
        if i == 31: flush()
        if i == 33:
            for j in range(32): BG.append(f"v_cvt_pk_bf16_f32 v{B0+j}, v{B0+2*j}, v{B0+2*j+1}")
            BG.append([f"s_and_b32 s{sT0}, s{sG}, 1", f"s_lshl_b32 s{sT1}, s{sT0}, 12", f"s_lshl_b32 s{sT0}, s{sT0}, 6"])
            for j in range(4): BG.extend([f"v_xor_b32 v{vBC+j}, s{sT0}, v{vB+j}", f"v_add_u32 v{vBC+j}, s{sT1}, v{vBC+j}"])
            BG.extend([[f"s_lshl_b32 s{sT0}, s{sW}, 8", f"s_lshl_b32 s{sT1}, s{sG}, 2", f"s_add_u32 s{sT0}, s{sT0}, s{sT1}"],
                       f"v_min_u32 v{vPUB}, 1, v{l}", f"v_lshlrev_b32 v{vPUB}, 30, v{vPUB}", f"v_add_u32 v{vPUB}, s{sT0}, v{vPUB}",
                       [f"s_lshr_b32 s{sT0}, s{sG}, 1", f"s_lshl_b32 s{sT0}, s{sT0}, 8"],
                       f"v_and_b32 v{vPOLL}, 7, v{l}", f"v_lshlrev_b32 v{vPOLL}, 2, v{vPOLL}", f"v_add_u32 v{vPOLL}, s{sT0}, v{vPOLL}",
                       f"v_lshlrev_b32 v{vRD}, 4, v0"])
            for j in range(4): BG.append(f"v_mov_b32 v{vL+j}, 0")
        if i == 38: post = dma_k(0)
        if i == 40: post = dma_k(1)
        if i == 46: flush(); post = [W("lg", "hw"), W("vm", ("K", 1)), "s_barrier"]
        if i == 48: BG.extend(kreads(0))
        if i == 49:
            for j in range(32): BG.append(f"v_cvt_pk_bf16_f32 v{B4+j}, v{B4+2*j}, v{B4+2*j+1}")
        if i == 54: post = ["s_barrier"]
        if i in (58, 59, 60, 61):
            n = i - 58; BG.extend(epi_tile("v", (B1, B2)[n >> 1] + 16*(n & 1), 1, n >> 1, n & 1, None, "fst"))
        step(st, PRE[i + 1].reads() if i + 1 < NP else [], d, post=post)
        if i in (15, 47): stamp()
        if i in (3, 7, 11, 15, 19, 23, 27, 31, 35, 39, 43): stamp(3)
        if i == 50:
            flush()
            E(W("lg", ("kf", 0)), "s_nop 1")
            gaps(qk(0, S0, (0,)) + qk(1, S1[0], (0,)), [])
            BG.extend(kreads(1))
            for rg, s in ((0, S0), (1, S1[0])):
                m = vT + rg
                BG.append(f"v_max3_f32 v{m}, v{s}, v{s+1}, v{s+2}")
                for j in range(3, 15, 2): BG.append(f"v_max3_f32 v{m}, v{m}, v{s+j}, v{s+j+1}")
                BG.extend([f"v_max_f32 v{m}, v{m}, v{s+15}", f"v_mov_b32 v{vT+2}, v{m}", "s_nop 1", f"v_permlane32_swap_b32 v{m}, v{vT+2}",
                           [f"s_cmp_lg_u32 s{sFLAG}, 0", "s_cselect_b64 vcc, -1, 0"], f"v_max_f32 v{m}, v{m}, v{vT+2}",
                           f"v_cndmask_b32 v{m}, v{m}, v{vM+rg}, vcc"])
                BG.extend([f"v_sub_f32 v{NEGM[rg]}, 0, v{m}", f"v_sub_f32 v{NEGM[rg]+1}, 0, v{m}"])
                for r in range(2, 16, 2): BG.append(f"v_mov_b64 {vr(NEGM[rg]+r,2)}, {vr(NEGM[rg],2)}")
                for r in range(16): BG.append(f"v_sub_f32 v{s+r}, v{s+r}, v{m}")
            for g in sm_plan(0, S0, P0[0]): BG.extend(g)
    flush()
    while KV: E(KV.popleft())
    stamp()
    E(W("vm", ("K", 2)), "s_waitcnt lgkmcnt(0)")
    def att_iter(i, x1=(), x2=()):
        if i == 0 or OPT["barg"] == 16: E("s_barrier")
        pl = sm_plan(1, S1[i&1], P1)
        vrd = vreads(i); k = 0
        if "rd" in OPT["skip"] and i > 1: vrd = []
        for g in range(16):
            n = (1 if g == 0 else (1 if g % 2 == 1 else 2))
            pl[g] += vrd[k:k+n]; k += n
        x1 = list(x1)
        if x1:
            pl[11] += x1[:2]
            for g, x in zip((12, 13, 14, 15), x1[2:]): pl[g].append(x)
        gaps(qk(0, S0, (NEGM[0], "v")) + qk(1, S1[(i+1)&1], (NEGM[1], "v")), pl)
        E(W("lg", ("vf", i)))
        pl = sm_plan(0, S0, P0[(i+1)&1])
        if i + 2 < 16 and not ("rd" in OPT["skip"] and i > 1):
            krd = kreads(i + 2)
            for g in range(8): pl[g].append(krd[g])
        dv = dma_v(i + 3) if i + 3 < 16 else []
        dk = dma_k(i + 5) if i + 5 < 16 else []
        pl[4] += list(x2)
        if dv: pl[6] += dv[:1]; pl[8] += dv[1:3]; pl[9] += dv[3:]
        if dk: pl[10] += dk[:2]; pl[12] += dk[2:3]; pl[14] += dk[3:]
        ws_ = [W("vm", ("K", i+3)), W("vm", ("V", i+1)), W("lg", ("kf", i+2))]
        if OPT["barg"] == 16: pl[15] += [tuple(["end"] + ws_)]
        elif OPT["barg"] == 99: pl[15] += [tuple(["end"] + ws_)]
        else:
            pl[OPT["barg"] - 2] += ws_
            pl[OPT["barg"]] = ["s_barrier"] + pl[OPT["barg"]]
        gaps(pv(0, P0[i&1], zero=(i == 0)) + pv(1, P1, zero=(i == 0)), pl)
    VAL = vT + 3; GATE = vT + 4; POL = vT + 5
    poll = f"buffer_load_dword v{POL}, v{vPOLL}, {sr(sFL,4)}, 0 offen sc1"
    pub = f"buffer_store_dword v{VAL}, v{vPUB}, {sr(sFL,4)}, 0 offen sc1"
    SENT = 0xff81ff81
    PZ = vDQ
    for i in range(15):
        x1 = []; x2 = []
        if i == 0:
            x1 = dma_k(4)
            BG.extend([f"v_mov_b32 v{PZ+j}, {SENT:#x}" for j in range(4)])
            BG.extend([f"v_lshlrev_b32 v{vT}, 6, v0", f"v_mov_b32 v{vT+1}, 0", f"v_mov_b32 v{VAL}, 1",
                       [f"s_lshl_b32 s{sT1}, s{sRB}, 14", f"buffer_load_dword v{PFD}, v{vT}, {sr(sWO,4)}, s{sT1} offen"]])
        if i in (0, 1, 2, 3): BG.extend(epi_tile("a", 192 + 16*i, 1, 2 + (i >> 1), i & 1, FT[i & 1], "fst"))
        if i in (4, 5, 6, 7):
            for q in range(4):
                BG.append([f"s_mov_b32 s{sT4}, {(i-4)*4096}", f"buffer_store_dwordx4 {vr(PZ,4)}, v{vST}, {sr(sP,4)}, s{sT4} offen offset:{q*1024} sc1"])
        gl = f"buffer_load_dword v{GATE}, v{vT+1}, {sr(sDBG,4)}, 0 offen sc1"
        if i == 2: BG.append(T(gl, "gate"))
        if i == 5: BG.extend([W("vm", "gate")] + check_ready("gate", GATE, gl, 1))
        if i == 8: x2 = ["s_waitcnt vmcnt(0)", pub]
        if i == 10: x2 = [T(poll, "fpoll")]
        if i == 12: BG.extend([W("vm", "fpoll")] + check_ready("f", POL, poll, 1))
        if i in (12, 13, 14):
            for n in range((0, 5, 11)[i-12], (5, 11, 16)[i-12]):
                ps, g = n >> 3, n & 7
                BG.append([f"s_mov_b32 s{sT4}, {g*131072 + 65536 + ps*8192}", T(f"buffer_load_dwordx4 {ar(aFL+4*n,4)}, v{vRD}, {sr(sPR,4)}, s{sT4} offen sc1", ("fl", n))])
        if i in (2, 3, 9, 10, 11): x1 = POST[(2, 3, 9, 10, 11).index(i)].dma()
        if i < 12: stamp(4)
        att_iter(i, x1=x1, x2=x2)
        flush()
    i = 15
    if OPT["barg"] == 16: E("s_barrier")
    E(vreads(i))
    def lfin(rg):
        a, b = vL+2*rg, vL+2*rg+1
        return [f"v_add_f32 v{a}, v{a}, v{b}", f"v_mov_b32 v{b}, v{a}", "s_nop 1", f"v_permlane32_swap_b32 v{a}, v{b}", "s_nop 0",
                f"v_add_f32 v{b}, v{a}, v{b}", f"v_rcp_f32 v{a}, v{b}"]
    E(f"s_lshl_b32 s{sT0}, s{sW}, 14")
    for j in range(4): E(f"v_add_u32 v{vBC+j}, s{sT0}, v{vB+j}")
    E(lfin(0))
    pl16 = sm_plan(1, S1[i&1], P1)
    E(pl16[0], pl16[1])
    E("s_waitcnt lgkmcnt(0)")
    pl = [pl16[2+2*g] + pl16[3+2*g] if g < 7 else [] for g in range(8)]
    pl[0] = ["s_barrier"] + pl[0]
    pl[7] = ["s_nop 0"]
    gaps(pv(0, P0[i&1]), pl)
    BG.extend(lfin(1))
    BG.extend([f"v_add_f32 v{vT+1}, v{vL+1}, v{vL+3}", f"s_mov_b32 s{sT1}, {f32(2.0**OPT['thr'])}",
               f"v_cmp_nge_f32 vcc, s{sT1}, v{vT+1}", f"v_and_b32 v{vT+2}, 3, v{l}", f"v_mul_u32_u24 v{vT+2}, {NS*4096}, v{vT+2}",
               ["s_cmp_lg_u64 vcc, 0", f"s_cselect_b32 s{sT1}, 1, 0"], f"v_mov_b32 v{vT}, s{sT1}",
               [f"s_lshl_b32 s{sT1}, s{sW}, 2", f"s_add_u32 s{sT1}, s{sT1}, {R_BASE}"], f"v_add_u32 v{vT+2}, s{sT1}, v{vT+2}", f"v_mov_b32 v{vT+1}, s{sRING}",
               f"ds_write_b32 v{vT+2}, v{vT} offset:{5*4096}"])
    OT = B2
    for r in range(24): BG.append(f"v_accvgpr_read_b32 v{OT+r}, a{aO+r}")
    gaps(pv(1, P1), [])
    flush()
    stamp()
    for n in range(16):
        rg, Tt, u = n >> 3, (n >> 1) & 3, n & 1
        b = OT + 8*(n & 7)
        if n + 3 < 16:
            b3 = OT + 8*((n+3) & 7)
            for r in range(8): E(f"v_accvgpr_read_b32 v{b3+r}, a{aO+8*(n+3)+r}")
        for j in range(4): E(f"v_pk_mul_f32 {vr(b+2*j,2)}, {vr(b+2*j,2)}, {vr(vL+2*rg,2)} op_sel_hi:[1,0]")
        for j in range(4): E(f"v_cvt_pk_bf16_f32 v{b+j}, v{b+2*j}, v{b+2*j+1}")
        ks = 2*Tt + u
        E(f"ds_write_b128 v{vBC+(ks&3)}, {vr(b,4)} offset:{ks*2048+rg*1024}")
    POST[0].areg = ("v", B1)
    E(POST[0].areads())
    E("s_waitcnt lgkmcnt(8)", "s_barrier")
    E(T(f"ds_read_b128 {vr(56,4)}, v{vT+1} offset:{5*4096}", "flg"), POST[0].breads())
    E(W("lg", "flg"))
    E(f"v_or3_b32 v{vT}, v56, v57, v58", f"v_or_b32 v{vT}, v{vT}, v59", "s_nop 0", f"v_readfirstlane_b32 s{sT0}, v{vT}",
      "s_nop 0", f"s_andn2_b32 s{sT0}, s{sT0}, s{sFLAG}", "s_cbranch_scc1 L_slow")
    E(POST[5].dma())
    stamp(); stamp(5)
    GV, XO = 112, vT
    XF, XR, BRW = 18, 56, 40
    vST2 = 34 + 2
    FR = B2
    sepi = lambda ps, n: epi_tile("v", ((B4, B5), (B2, B3))[ps][n >> 1] + 16*(n & 1), 0, 2*ps + (n >> 1), n & 1, None, ("sst", ps))
    SL = B4
    def sloads(ps): return [[f"s_mov_b32 s{sT4}, {g*131072 + ps*8192}", T(f"buffer_load_dwordx4 {vr(SL+32*ps+4*g,4)}, v{vRD}, {sr(sPR,4)}, s{sT4} offen sc1", ("sl", ps, g))] for g in range(8)]
    nq2 = [NS]; skq = [int(x) for x in str(OPT["skpost"]).split("_") if x]
    sst = [int(x) for x in str(OPT["sst"]).split("_")]
    for i, st in enumerate(POST[:30]):
        if i == 0:
            for r in range(64): BG.append(f"v_accvgpr_read_b32 v{FR+r}, a{aFL+r}")
            BG.appendleft(W("vm", ("fl", 15)))
            TM = 10
            BG.extend([f"v_lshrrev_b32 v{TM}, 7, v0", f"v_bfe_u32 v{TM+1}, v0, 5, 1", f"v_lshlrev_b32 v{XO+1}, 5, v{TM}", f"v_lshl_add_u32 v{XO+1}, v{TM+1}, 4, v{XO+1}",
                       f"v_bfe_u32 v{TM}, v0, 6, 1", f"v_and_b32 v{TM+1}, 31, v0", f"v_lshl_add_u32 v{TM}, v{TM}, 5, v{TM+1}", f"v_lshl_add_u32 v{XO}, v{TM}, 10, v{XO+1}"])
            for ps in range(2):
                BG.append(T(f"buffer_load_dwordx4 {vr(XR+4*ps,4)}, v{XO}, {sr(sX,4)}, s{sVOFF} offen offset:{ps*128}", "xb"))
                BG.append(T(f"buffer_load_dwordx4 {vr(BRW+4*ps,4)}, v{XO+1}, {sr(sB2,4)}, 0 offen offset:{ps*128}", "xb"))
            for n in range(16):
                ps, g = n >> 3, n & 7
                dst = GV + 8*ps
                for j in range(4):
                    src = FR + 4*n + j
                    if g == 0: BG.extend([f"v_lshlrev_b32 v{dst+2*j}, 16, v{src}", f"v_and_b32 v{dst+2*j+1}, s{sC0}, v{src}"])
                    else: BG.extend([f"v_lshlrev_b32 v{TM+(j&1)}, 16, v{src}", f"v_and_b32 v{src}, s{sC0}, v{src}",
                                     f"v_add_f32 v{dst+2*j}, v{dst+2*j}, v{TM+(j&1)}", f"v_add_f32 v{dst+2*j+1}, v{dst+2*j+1}, v{src}"])
            TQ = 18
            BG.extend([W("vm", "xb"), f"s_mov_b32 s{sT0}, {f32(1/CS**2)}"])
            for ps in range(2):
                G_ = GV + 8*ps
                for j in range(4): BG.extend([f"v_lshlrev_b32 v{TQ+2*j}, 16, v{BRW+4*ps+j}", f"v_and_b32 v{TQ+2*j+1}, s{sC0}, v{BRW+4*ps+j}"])
                for j in range(8): BG.append(f"v_fma_f32 v{G_+j}, v{G_+j}, s{sT0}, v{TQ+j}")
                for j in range(8): BG.append(f"v_mul_f32 v{TQ+j}, {f32(-math.log2(math.e))}, v{G_+j}")
                for j in range(8): BG.append(f"v_exp_f32 v{TQ+j}, v{TQ+j}")
                for j in range(8): BG.append(f"v_add_f32 v{TQ+j}, 1.0, v{TQ+j}")
                for j in range(8): BG.append(f"v_rcp_f32 v{TQ+j}, v{TQ+j}")
                for j in range(8): BG.append(f"v_mul_f32 v{G_+j}, v{G_+j}, v{TQ+j}")
            nbg0 = len(BG)
        if i == 11: assert nbg0 - len(BG) >= 66, "f partials not yet copied out of a192.."
        if i == 16:
            left = [x for x in BG if isinstance(x, str) and any(f"v{r}" in x.replace(",", " ").split() for r in range(FR, FR+64))]
            print("f-sum items left at pass B start:", len(left), file=sys.stderr)
            while any(x in left for x in BG): E(BG.popleft())
        e = [x for n in range(4) if sst[n * len(sst) // 4] == i for x in sepi(0, n)]
        for x in reversed(e): BG.appendleft(x)
        post = []
        if i == OPT["lda"]: BG.extend(sloads(0))
        d = []
        if i not in skq and nq2[0] < 32:
            assert nq2[0] >= i + 2
            d = POST[nq2[0]].dma(); nq2[0] += 1
        nxt = POST[i + 1].reads() + (POST[31].reads() if i == 29 else [])
        step(st, nxt, d, post=post)
        if i == 15: stamp()
        if i % 3 == 2: stamp(5)
    flush()
    stamp()
    E(W("lg", POST[31].tag))
    for n in range(4):
        if n >= 2: BG.extend(sepi(1, n - 2))
        gaps([POST[j].one(ks, n >> 1, n & 1) for j in (30, 31) for ks in range(2)], [])
    flush()
    E(sepi(1, 2))
    E("s_nop 1")
    E(sepi(1, 3))
    stamp()
    SA, ST_, XT = B0, B0+8, B0+16
    def ost(ps): return f"buffer_store_dwordx4 {vr(B0+24+4*ps,4)}, v{XO}, {sr(sOUT,4)}, s{sVOFF} offen offset:{ps*128} {OPT['outsc']}"
    def fin(ps):
        E(f"s_mov_b64 s[{sT2}:{sT3}], -1")
        for j in range(4): E(f"v_lshlrev_b32 v{XT+2*j}, 16, v{XR+4*ps+j}", f"v_and_b32 v{XT+2*j+1}, s{sC0}, v{XR+4*ps+j}")
        E(f"L_sum{ps}:")
        for g in range(8):
            E(W("vm", ("sl", ps, g)))
            d0 = SA if g == 0 else ST_
            for j in range(4): E(f"v_lshlrev_b32 v{d0+2*j}, 16, v{SL+32*ps+4*g+j}", f"v_and_b32 v{d0+2*j+1}, s{sC0}, v{SL+32*ps+4*g+j}")
            if g:
                for j in range(4): E(f"v_pk_add_f32 {vr(SA+2*j,2)}, {vr(SA+2*j,2)}, {vr(ST_+2*j,2)}")
        E(f"v_pk_add_f32 {vr(ST_,2)}, {vr(SA,2)}, {vr(SA+2,2)}", f"v_pk_add_f32 {vr(ST_+2,2)}, {vr(SA+4,2)}, {vr(SA+6,2)}",
          f"v_pk_add_f32 {vr(ST_,2)}, {vr(ST_,2)}, {vr(ST_+2,2)}", f"v_cmp_u_f32 vcc, v{ST_}, v{ST_+1}")
        for j in range(4): E(f"v_pk_fma_f32 {vr(SA+2*j,2)}, {vr(SA+2*j,2)}, {vr(GV+8*ps+2*j,2)}, {vr(XT+2*j,2)}")
        E(f"s_and_b64 vcc, vcc, s[{sT2}:{sT3}]", f"s_cbranch_scc1 L_miss{ps}")
        for j in range(4): E(f"v_cvt_pk_bf16_f32 v{B0+24+4*ps+j}, v{SA+2*j}, v{SA+2*j+1}")
        E(ost(ps))
    if OPT["lda"] >= 30: E(sloads(0))
    if OPT["bfirst"]: E(sloads(1))
    fin(0)
    stamp()
    if not OPT["bfirst"]: E(sloads(1))
    fin(1)
    stamp()
    if OPT["stamps"]:
        E("s_waitcnt vmcnt(0)")
        stamp(0)
        E(f"s_lshl_b32 s{sT0}, s2, 2", f"s_add_u32 s{sT0}, s{sT0}, s{sW}", f"s_lshl_b32 s{sT0}, s{sT0}, 6", f"s_add_u32 s{sT0}, s{sT0}, {64<<20}")
        srd(sX, 58, sT0, ("imm", 64))
        E(f"v_mov_b32 v{vT}, 0", "s_memrealtime s[70:71]", "s_waitcnt lgkmcnt(0)", f"s_mov_b32 s87, s70")
        for i in list(range(nstamp[0])) + [14, 15]:
            E(f"v_mov_b32 v{vT+1}, s{sST+i}", f"buffer_store_dword v{vT+1}, v{vT}, {sr(sX,4)}, 0 offen offset:{4*i}")
    E("L_main_end:", "s_endpgm")
    for name, vreg, load, val, pre in SPINS:
        E(f"L_spin_{name}:", list(pre), f"s_mov_b32 s{sCNT}, {OPT['spin']}", f"L_spinl_{name}:", load, "s_waitcnt vmcnt(0)",
          f"v_cmp_le_u32 vcc, {val}, v{vreg}", f"s_sub_u32 s{sCNT}, s{sCNT}, 1", f"s_cbranch_scc1 L_ok_{name}",
          "s_cmp_eq_u64 vcc, -1", f"s_cbranch_scc0 L_spinl_{name}", f"s_branch L_ok_{name}")
    for ps in range(2):
        E(f"L_miss{ps}:", f"s_mov_b32 s{sCNT}, {OPT['spin']}", f"s_mov_b32 s{sT0}, {SENT:#x}", f"L_missl{ps}:", f"s_mov_b32 s{sT1}, 0")
        for g in range(8):
            r = SL + 32*ps + 4*g
            E(f"v_cmp_eq_u32 vcc, s{sT0}, v{r}", f"v_cmp_eq_u32 s[{sT2}:{sT3}], s{sT0}, v{r+1}", "s_nop 0", f"s_or_b64 s[70:71], vcc, s[{sT2}:{sT3}]",
              f"v_cmp_eq_u32 vcc, s{sT0}, v{r+2}", f"v_cmp_eq_u32 s[{sT2}:{sT3}], s{sT0}, v{r+3}", "s_nop 0", f"s_or_b64 s[70:71], vcc, s[70:71]",
              f"s_or_b64 s[70:71], s[70:71], s[{sT2}:{sT3}]", f"s_cbranch_scc0 L_have{ps}_{g}", f"s_mov_b32 s{sT1}, 1", sloads(ps)[g], f"L_have{ps}_{g}:")
        E("s_waitcnt vmcnt(0)", f"s_mov_b64 s[{sT2}:{sT3}], 0", f"s_sub_u32 s{sCNT}, s{sCNT}, 1", f"s_cbranch_scc1 L_sum{ps}",
          f"s_cmp_lg_u32 s{sT1}, 0", f"s_cbranch_scc1 L_missl{ps}", f"s_branch L_sum{ps}")
    E("L_slow:")
    E("s_waitcnt vmcnt(0) lgkmcnt(0)", "s_barrier")
    E(f"s_mov_b32 s{sKOFF}, 0", f"s_mov_b32 s{sCNT}, 16", f"v_mov_b32 v{vM}, 0xff800000", f"v_mov_b32 v{vM+1}, 0xff800000")
    E("L_slow_loop:")
    dk = dma_k(0); E(dk[0], "s_nop 0", dk[2:])
    E("s_waitcnt vmcnt(0)", "s_barrier")
    E(kreads(0))
    E("s_waitcnt lgkmcnt(0)", "s_barrier")
    E(qk(0, S0, (0,)), qk(1, S1[0], (0,)))
    E("s_nop 7", "s_nop 7", f"s_add_u32 s{sKOFF}, s{sKOFF}, 8192")
    for rg, s in ((0, S0), (1, S1[0])):
        for j in range(0, 16, 2): E(f"v_max3_f32 v{vM+rg}, v{vM+rg}, v{s+j}, v{s+j+1}")
    E(f"s_sub_u32 s{sCNT}, s{sCNT}, 1", f"s_cmp_lg_u32 s{sCNT}, 0", "s_cbranch_scc1 L_slow_loop")
    for rg in range(2):
        E(f"v_mov_b32 v{vT}, v{vM+rg}", "s_nop 1", f"v_permlane32_swap_b32 v{vM+rg}, v{vT}", "s_nop 0", f"v_max_f32 v{vM+rg}, v{vM+rg}, v{vT}")
    E(f"s_mov_b32 s{sFLAG}, 1", "s_branch L_restart", "L_code_end:")

K = NAME + "_kernel"
hdr = open("cdna_kernels/" + NAME + ".s.ref").read().split("; Override launch")[0]
out = [hdr.rstrip()]
out.append("; @launch grid=(256,1,1) block=(256,1,1) lds=163840")
out.append('.amdgcn_target "amdgcn-amd-amdhsa--gfx950"')
out.append(".text")
main_kernel(K)
out += L
out.append('.section .rodata,"a"')
out.append(f""".p2align 6
.amdhsa_kernel {K}
  .amdhsa_next_free_vgpr 512
  .amdhsa_next_free_sgpr 102
  .amdhsa_accum_offset 256
  .amdhsa_group_segment_fixed_size 0
  .amdhsa_kernarg_size 104
  .amdhsa_user_sgpr_count 2
  .amdhsa_user_sgpr_kernarg_segment_ptr 1
  .amdhsa_system_sgpr_workgroup_id_x 1
.end_amdhsa_kernel""")
print("\n".join(out))
```

```python
import sys, math, struct
from collections import deque
NAME = "recurrent_scan__sliding_block_cached__dense_activation_squared_relu__prompt"
OPT = dict(stamps=0, codepf=1, budget=24, thr=40, memc=12, dmac=8, hg=2, spd=3, rot=4, spp=1, wqpf=1, outsc="", skip="", spin=200000, pfpos=0, puba=25, skpre="", hst="27_28", skpost="", sst="17_18_19_20", dropoob=1, front=1, wrf=4, barg=15, rt=0, lda=28, bfirst=0, npre=12, sp0=4, spe=0, pf2=28)
for a in sys.argv[1:]:
    k, v = a.split("="); OPT[k] = int(v) if v.lstrip("-").isdigit() else v

def vr(b, n=1): return f"v{b}" if n == 1 else f"v[{b}:{b+n-1}]"
def ar(b, n=1): return f"a{b}" if n == 1 else f"a[{b}:{b+n-1}]"
def R(kind, b, n=1): return vr(b, n) if kind == "v" else ar(b, n)
def sr(b, n=1): return f"s{b}" if n == 1 else f"s[{b}:{b+n-1}]"
def f32(x): return "0x%08x" % struct.unpack("<I", struct.pack("<f", x))[0]

class W:
    def __init__(s, cnt, tag): s.cnt, s.tag = cnt, tag
class T:
    def __init__(s, text, tag): s.text, s.tag = text, tag
L = []; VM = []; LG = []
def E(*xs):
    for x in xs:
        if isinstance(x, (list, tuple)): E(*x); continue
        if isinstance(x, W):
            q = VM if x.cnt == "vm" else LG
            idx = [i for i, t in enumerate(q) if t == x.tag]
            if not idx: continue
            n = len(q) - 1 - idx[-1]
            n = min(n, 63 if x.cnt == "vm" else 15)
            del q[:len(q) - n]
            L.append(f"    s_waitcnt {'vmcnt' if x.cnt == 'vm' else 'lgkmcnt'}({n})"); continue
        tag = None
        if isinstance(x, T): x, tag = x.text, x.tag
        op = x.split()[0]
        if op.startswith("buffer_") or op.startswith("global_"): VM.append(tag)
        if op.startswith("ds_"): LG.append(tag)
        if op == "s_waitcnt":
            for w in x.split()[1:]:
                n = int(w[w.index("(")+1:-1]); q = VM if w.startswith("vm") else LG
                if len(q) > n: del q[:len(q) - n]
        L.append("    " + x if not x.endswith(":") and not x.startswith(".") else x)
def opof(x):
    if isinstance(x, (list, tuple)): return opof(x[0])
    if isinstance(x, W): return "s_waitcnt"
    return (x.text if isinstance(x, T) else x).split()[0]
def ismem(x):
    if isinstance(x, (list, tuple)): return any(ismem(y) for y in x)
    return opof(x).split("_")[0] in ("ds", "buffer", "global")
def isvalu(x): return opof(x).startswith("v_")
def cost(x):
    if isinstance(x, (list, tuple)): return sum(cost(y) for y in x)
    if isinstance(x, W): return 4
    t = x.text if isinstance(x, T) else x
    op = t.split()[0]
    assert not op.startswith("v_pk_"), t
    if op in ("v_exp_f32", "v_rcp_f32", "v_sqrt_f32"): return 8
    if op.startswith("buffer_store_dwordx4"): return 24
    if op.startswith("buffer_") or op.startswith("global_"): return OPT["dmac"]
    if op == "s_nop": return 4 * (int(t.split()[1]) + 1)
    if op == "ds_write_b128": return 20
    return 4
BG = deque()
def gaps(mf, plan, budget=None, wr_from=0):
    budget = OPT["budget"] if budget is None else budget
    for g, m in enumerate(mf):
        E(m)
        items = plan[g] if g < len(plan) else []
        endi = [x[1:] for x in items if isinstance(x, tuple) and x[0] == "end"]
        items = [x for x in items if not (isinstance(x, tuple) and x[0] == "end")]
        c = sum(cost(x) for x in items) + sum(cost(x) for x in endi)
        E([x for x in items if not isvalu(x)])
        while True:
            while BG and ismem(BG[0]) and len(PM) < 3: PM.append(BG.popleft())
            if PM and opof(PM[0]).startswith("ds_write") and g < wr_from: break
            if PM and (c + cost(PM[0]) <= budget or c <= OPT["memc"]):
                x = PM.popleft(); E(x); c += cost(x)
            else: break
        E([x for x in items if isvalu(x)])
        while BG:
            if ismem(BG[0]):
                if len(PM) < 3: PM.append(BG.popleft()); continue
                break
            if opof(BG[0]) in ("s_waitcnt", "s_barrier") and PM: break
            if c + cost(BG[0]) > budget: break
            x = BG.popleft(); E(x); c += cost(x)
        E(endi)
PM = deque()
def flush():
    print("flush", len(PM), len(BG), "at line", len(L), file=sys.stderr)
    while PM: E(PM.popleft())
    while BG: E(BG.popleft())
def spread(items, n, per):
    return [items[g*per:(g+1)*per] for g in range(n)]


CS = 128**-0.5 * math.log2(math.e)
X_BASE, R_BASE, NS = 0, 65536, 6
KR_BASE = 32768
FLAG_OFF = 32 << 20
OOB = 0x40000000
sX, sK, sV, sWQ, sWO, sW1, sW2, sB1, sP = 4, 8, 12, 16, 20, 24, 28, 32, 36
sW, sG, sRB, sRING, sOFF, sCNT, sT0, sT1, sKOFF, sVOFF, sVL, sC0, sT2, sT3, sFLAG, sT4, sROT, sJJ = range(40, 58)
sFL, sDBG, sPR, sB2, sOUT = 60, 64, 88, 92, 96
sST = 72
vLANE, vTF, vPUB, vPOLL, vB, vBC, vDO, vKR, vTV, vDK, vDV, vST, vM, vL = 1, 2, 4, 5, 6, 10, 14, 18, 26, 30, 32, 33, 34, 36
vDQ, vD1, vRD = 40, 44, 48
vT = 50
B0, B1, B2, B3, B4, B5 = 64, 96, 128, 160, 192, 224
S0, S1, P0, P1, NEGM = B5, (B5+16, B1), (56, B1+16), B1+24, (B3, B3+16)
FT = (B2, B2+16)
aO, aVF, aKF, aFL = 0, 128, 160, 192
def QFr(rg, s_): return (B0 if s_ < 4 else B4) + 16*((s_ >> 1) & 1) + 8*rg + 4*(s_ & 1)

nstamp = [0]
def stamp(lvl=1):
    if not OPT["stamps"]: return
    if OPT["stamps"] != lvl and lvl != 0: return
    i = nstamp[0]; nstamp[0] += 1
    assert i < 14
    E("s_memrealtime s[70:71]" if OPT["rt"] else "s_memtime s[70:71]", "s_waitcnt lgkmcnt(0)", f"s_mov_b32 s{sST+i}, s70")

def mfma(dk, d, ak, a, bk, b, c=None, ck=None):
    cs = R(dk, d, 16) if c is None else (str(c) if ck is None else R(ck, c, 16))
    return f"v_mfma_f32_32x32x16_bf16 {R(dk,d,16)}, {R(ak,a,4)}, {R(bk,b,4)}, {cs}"
def dma_k(t):
    return [f"s_add_u32 m0, s{sVL}, {KR_BASE+(t&3)*8192}", f"s_mov_b32 s{sKOFF}, {t*8192}",
            T(f"buffer_load_dwordx4 v{vDK}, {sr(sK,4)}, s{sKOFF} offen lds", ("K", t)),
            T(f"buffer_load_dwordx4 v{vDK+1}, {sr(sK,4)}, s{sKOFF} offen offset:1024 lds", ("K", t))]
def dma_v(t):
    return [f"s_add_u32 m0, s{sVL}, {X_BASE+(t&3)*8192}", f"s_mov_b32 s{sKOFF}, {t*8192}",
            T(f"buffer_load_dwordx4 v{vDV}, {sr(sV,4)}, s{sKOFF} offen lds", ("V", t)),
            T(f"buffer_load_dwordx4 v{vDV}, {sr(sV,4)}, s{sKOFF} offen offset:1024 lds", ("V", t))]

class Stage:
    def __init__(s, idx, mat, j, ps, acc, areg, readb, vb, first):
        s.idx, s.mat, s.j, s.ps, s.acc, s.areg, s.readb, s.vb, s.first = idx, mat, j, ps, acc, areg, readb, vb, first
        s.slot = idx % NS; s.tag = (mat, ps, j)
    def dma(s):
        srd_, vd, stride = {"w1": (sW1, vD1, 3584), "wq": (sWQ, vDQ, 8192), "w2": (sW2, vDO, 1024), "wo": (sWO, vDO, 1024)}[s.mat]
        o = [f"s_add_u32 m0, s{sRING}, {s.slot*4096}", f"s_mov_b32 s{sOFF}, {s.j*32*stride + s.ps*128}"]
        if OPT["rot"] and s.mat == "wq":
            o[1] = [f"s_add_u32 s{sOFF}, s{sROT}, {s.j*32*8192 + s.ps*128}", f"s_and_b32 s{sOFF}, s{sOFF}, {512*8192-1}"]
        if OPT["rot"] and s.mat == "w1":
            o[1] = [f"s_add_u32 s{sOFF}, s{sROT}, {s.j*32*8192}", f"s_bfe_u32 s{sOFF}, s{sOFF}, {(9<<16)|13}", f"s_mul_i32 s{sOFF}, s{sOFF}, 3584"]
        return o + [T(f"buffer_load_dwordx4 v{vd+p}, {sr(srd_,4)}, s{sOFF} offen offset:{p*1024} lds", s.tag) for p in range(4)]
    def areads(s):
        ak, a = s.areg
        return [W("vm", s.tag)] + [T(f"ds_read_b64_tr_b16 {R(ak, a+8*ks+4*Tt+2*t, 2)}, v{vTF+Tt} offset:{s.slot*4096+ks*2048+t*512}", s.tag)
                                   for ks in range(2) for Tt in range(2) for t in range(2)]
    def breads(s):
        if not s.readb: return []
        return [T(f"ds_read_b128 {ar(8*kk+4*rg, 4)}, v{s.vb+(kk&3)} offset:{kk*2048+rg*1024}", s.tag) for kk in (2*s.j, 2*s.j+1) for rg in range(2)]
    def reads(s): return s.breads() + s.areads()
    def one(s, ks, Tt, rg):
        ak, a = s.areg; dk, d = s.acc(Tt, rg)
        return mfma(dk, d, ak, a+8*ks+4*Tt, "a", 8*(2*s.j+ks)+4*rg, 0 if (s.first and s.j == 0 and ks == 0) else None)
    def mf(s): return [s.one(ks, Tt, rg) for ks in range(2) for Tt in range(2) for rg in range(2)]
def step(st, nxt_reads, dma, post=()):
    E(W("lg", st.tag))
    plan = [[] for _ in range(8)]
    q = list(nxt_reads); cnt = [2, 2, 3, 1, 3, 2, 3, 0] if dma else [3, 3, 3, 3, 3, 3, 3, 3]
    if len(q) > 16: cnt = [3, 2, 3, 2, 3, 2, 3, 2]
    if len(q) <= 9: cnt = [1, 1, 2, 1, 2, 1, 1, 0] if dma else [2, 2, 2, 2, 1, 0, 0, 0]
    if len(q) <= 9 and OPT["front"]: cnt = [3, 2, 3, 1, 0, 0, 0, 0]
    if len(dma) == 6: sl = {0: dma[:2], 1: dma[2:3], 3: dma[3:4], 5: dma[4:5], 7: dma[5:6]}
    elif len(dma) == 8: sl = {0: dma[:2], 1: dma[2:3], 3: dma[3:4], 4: dma[4:6], 5: dma[6:7], 7: dma[7:8]}
    elif len(dma) == 4: sl = {0: dma[:2], 1: dma[2:3], 3: dma[3:4]}
    else: assert not dma; sl = {}
    for g in range(8):
        if g in (0, 4): plan[g] += sl.get(g, [])
        plan[g] += q[:cnt[g]]; q = q[cnt[g]:]
        if g not in (0, 4): plan[g] += sl.get(g, [])
    assert not q
    plan[7] += list(post)
    gaps(st.mf(), plan, wr_from=OPT["wrf"])

def srd(d, ptr, off, size):
    E(f"s_add_u32 s{d}, s{ptr}, s{off}", f"s_addc_u32 s{d+1}, s{ptr+1}, 0")
    if size[0] == "rest": E(f"s_sub_u32 s{d+2}, {size[1]}, s{off}")
    else: E(f"s_mov_b32 s{d+2}, {size[1]}")
    E(f"s_mov_b32 s{d+3}, 0x00020000")

SPINS = []
def check_ready(name, vreg, load, val, pre=()):
    SPINS.append((name, vreg, load, val, pre))
    return [f"v_cmp_le_u32 vcc, {val}, v{vreg}", "s_nop 1", ["s_cmp_eq_u64 vcc, -1", f"s_cbranch_scc0 L_spin_{name}", f"L_ok_{name}:"]]

def blk(kind, lo, hi): return lambda Tt, rg: (kind, (lo, hi)[Tt] + 16*rg)

def main_kernel(K):
    PRE = []
    def add(lst, mat, n, ps, acc, aregs, readb, vb, first=True):
        for j in range(n): lst.append(Stage(len(lst), mat, j, ps, acc, aregs(len(lst)), readb, vb, first))
    av = lambda i: ("v", B3 + 16*(i & 1)); aa = lambda i: ("a", 112 + 16*(i & 1))
    add(PRE, "w1", 16, 0, blk("v", B4, B5), av, True, vB)
    add(PRE, "wq", 16, 0, blk("v", B0, B1), av, False, vB)
    add(PRE, "wq", 16, 1, blk("v", B4, B5), av, False, vB)
    add(PRE, "w2", 7, 0, blk("v", B1, B2), aa, True, vBC)
    add(PRE, "w2", 7, 1, blk("a", 192, 224), aa, False, vBC)
    POST = []
    ao = lambda i: ("v", B0 + 16*(i % 3))
    add(POST, "wo", 16, 0, blk("v", B4, B5), ao, True, vB)
    add(POST, "wo", 16, 1, blk("v", B2, B3), ao, False, vB)

    E(".p2align 8", f".globl {K}", f".type {K},@function", f"{K}:")
    E("s_cmp_ge_u32 s2, 256", "s_cbranch_scc1 L_main_end")
    E(f"s_mov_b32 s{sFLAG}, 0", f"v_mov_b32 v{vM}, 0", f"v_mov_b32 v{vM+1}, 0")
    E("L_restart:")
    if OPT["stamps"]:
        E("s_memrealtime s[86:87]"); stamp(0)
    E("s_load_dwordx8 s[60:67], s[0:1], 0", "s_load_dwordx2 s[68:69], s[0:1], 32", "s_load_dwordx4 s[88:91], s[0:1], 48",
      "s_load_dwordx8 s[92:99], s[0:1], 64", "s_load_dwordx2 s[58:59], s[0:1], 96")
    PFD = vRD + 1
    if OPT["codepf"]:
        E("s_getpc_b64 s[100:101]", "L_pc:", f"s_sub_u32 s100, s100, L_pc-{K}", "s_subb_u32 s101, s101, 0")
        E(f"s_bfe_u32 s{sT0}, s2, 0x20003", f"s_lshl_b32 s{sT0}, s{sT0}, 14", f"v_lshlrev_b32 v{vT}, 6, v0", f"v_add_u32 v{vT}, s{sT0}, v{vT}",
          f"v_min_u32 v{vT}, L_code_end-{K}-4, v{vT}")
        E(f"global_load_dword v{PFD}, v{vT}, s[100:101]")
    l = vLANE
    pt = 128
    row, c7, xo, t0, t1, t2, t3, t4, cl, zr, bo = range(pt, pt + 11)
    xo = pt + 12
    wa, pw = 58, 60
    def cap(fn):
        global L
        keep = L; L = []; fn(); got = [x.strip() for x in L]; L = keep
        return got
    def srdl(d, ptr, off, size): return [cap(lambda: srd(d, ptr, off, size))]
    E(f"v_lshrrev_b32 v{t0}, 6, v0", f"v_and_b32 v{l}, 63, v0")
    HG = OPT["hg"]; lh = HG.bit_length() - 1
    E(f"s_and_b32 s{sG}, s2, {8//HG-1}", f"s_lshl_b32 s{sG}, s{sG}, {lh}", f"s_bfe_u32 s{sT0}, s2, {(lh<<16)|3}", f"s_or_b32 s{sG}, s{sG}, s{sT0}",
      f"s_lshr_b32 s{sJJ}, s2, {3+lh}", f"s_bfe_u32 s{sRB}, s2, {(lh<<16)|(3-lh)}", f"s_lshl_b32 s{sRB}, s{sRB}, {5-lh}", f"s_or_b32 s{sRB}, s{sRB}, s{sJJ}")
    E(f"v_readfirstlane_b32 s{sW}, v{t0}")
    E(f"v_bfe_u32 v{row}, v0, 3, 3", f"v_lshl_add_u32 v{row}, v{t0}, 4, v{row}",
      f"v_and_b32 v{c7}, 7, v0", f"v_lshlrev_b32 v{xo}, 4, v{c7}", f"v_lshl_add_u32 v{xo}, v{row}, 10, v{xo}", f"v_add_u32 v{xo+1}, 8192, v{xo}")
    XS = 8
    if OPT["rot"]:
        E(f"s_and_b32 s{sROT}, s{sJJ}, {OPT['rot']-1}", f"s_mul_i32 s{sROT}, s{sROT}, {8//OPT['rot']}", f"s_lshl_b32 s{XS}, s{sROT}, 7")
        for i in range(1, 8): E(f"s_add_u32 s{XS+i}, s{XS}, {128*i}", f"s_and_b32 s{XS+i}, s{XS+i}, 1023")
        E(f"s_lshl_b32 s{sROT}, s{sROT}, 19")
    E(f"s_or_b32 s{sT0}, s{sG}, s{sW}", f"s_or_b32 s{sT0}, s{sT0}, s{sFLAG}", f"s_cmp_eq_u32 s{sT0}, 0", f"s_cselect_b32 s{sT2}, 0, {OOB}",
      f"v_lshrrev_b32 v{cl}, 3, v{l}", f"v_lshlrev_b32 v{cl}, 8, v{cl}", f"v_lshl_add_u32 v{cl}, v{c7}, 2, v{cl}", f"v_add_u32 v{cl}, s{sT2}, v{cl}",
      f"v_mov_b32 v{zr}, 0", f"v_lshrrev_b32 v{bo}, 5, v{l}", f"v_lshlrev_b32 v{bo}, 4, v{bo}", f"v_mov_b32 v{vL}, s{sT2}", f"v_mov_b32 v{vL+1}, 1")
    E(f"s_mul_i32 s{sRING}, s{sW}, {NS*4096}", f"s_add_u32 s{sRING}, s{sRING}, {R_BASE}", f"s_lshl_b32 s{sVL}, s{sW}, 11", f"s_mov_b32 s{sC0}, 0xffff0000")
    E(f"v_lshrrev_b32 v{t0}, 3, v{l}", f"v_bfe_u32 v{t1}, v{l}, 2, 1", f"v_bfe_u32 v{t2}, v{l}, 4, 1", f"v_xor_b32 v{t3}, v{t1}, v{t2}",
      f"v_lshlrev_b32 v{t1}, 6, v{t3}", f"v_and_b32 v{t2}, 3, v{l}", f"v_lshl_add_u32 v{t1}, v{t2}, 4, v{t1}",
      f"v_mul_u32_u24 v{t2}, 3584, v{t0}", f"s_lshl_b32 s{sT4}, s{sW}, 7",
      f"v_add3_u32 v{vD1}, v{t2}, v{t1}, s{sT4}", f"s_lshl_b32 s{sT0}, s{sW}, 8", f"v_add_u32 v{t1}, s{sT0}, v{t1}",
      f"v_lshl_add_u32 v{vDQ}, v{t0}, 13, v{t1}", f"v_lshl_add_u32 v{vDO}, v{t0}, 10, v{t1}")
    if OPT["dropoob"]:
        E(f"s_and_b32 s{sT0}, s{sG}, 1", f"s_xor_b32 s{sT0}, s{sT0}, 1", f"s_mul_i32 s{sT0}, s{sT0}, 7", f"s_lshl_b32 s{sT3}, s{sW}, 1",
          f"v_or_b32 v{t3}, s{sT3}, v{t3}", f"v_cmp_eq_u32 vcc, s{sT0}, v{t3}", f"v_mov_b32 v{t2}, {OOB}", "s_nop 0", f"v_cndmask_b32 v{vD1}, v{vD1}, v{t2}, vcc")
    for p in range(1, 4): E(f"v_add_u32 v{vD1+p}, {p*(8*3584-1024)}, v{vD1}")
    for p in range(2):
        E(f"v_add_u32 v{t0}, {8*p}, v{row}", f"v_lshrrev_b32 v{t1}, 5, v{t0}", f"v_and_b32 v{t0}, 31, v{t0}", f"v_xor_b32 v{t0}, v{t0}, v{c7}",
          f"v_lshlrev_b32 v{t0}, 4, v{t0}", f"v_lshl_add_u32 v{t0}, v{t1}, 10, v{t0}", f"v_and_b32 v{t1}, 1, v{l}", f"v_lshl_add_u32 v{t0}, v{t1}, 9, v{t0}",
          f"v_lshrrev_b32 v{t1}, 1, v{c7}", f"v_lshl_add_u32 v{wa+p}, v{t1}, 11, v{t0}")
    E(f"s_lshl_b32 s{sT0}, s{sRB}, 16", f"s_lshl_b32 s{sT1}, s{sRB}, 12", f"s_add_u32 s{sT1}, s{sT1}, {FLAG_OFF}")
    E(f"s_lshr_b32 s{sT3}, s{sG}, 1", f"s_mul_i32 s{sT3}, s{sT3}, 896", f"s_and_b32 s{sT2}, s{sG}, 1", f"s_mul_i32 s{sT2}, s{sT2}, 384",
      f"s_add_u32 s{sT3}, s{sT3}, s{sT2}")
    E("s_waitcnt lgkmcnt(0)")
    srd(sX, 60, sT0, ("imm", 65536))
    BR = 240; RAW = 64; ACCH = B4
    U1 = srdl(sB1, 90, sT3, ("rest", 3584)) + \
         srdl(sP, 58, sT1, ("imm", 1024)) + [T(f"buffer_store_dword v{zr}, v{cl}, {sr(sP,4)}, 0 offen sc1", "clr")] + \
         srdl(sW1, 88, sT3, ("rest", 1835008))
    def trs():
        E(f"v_bfe_u32 v{t0}, v{l}, 2, 2", f"v_lshrrev_b32 v{t1}, 5, v{l}", f"v_lshl_add_u32 v{t1}, v{t1}, 3, v{t0}",
          f"v_and_b32 v{t2}, 1, v{l}", f"v_lshlrev_b32 v{t2}, 4, v{t2}", f"v_bfe_u32 v{t3}, v{l}, 1, 1", f"v_lshl_add_u32 v{t2}, v{t3}, 3, v{t2}",
          f"v_bfe_u32 v{t3}, v{l}, 4, 1", f"v_lshl_add_u32 v{t2}, v{t3}, 5, v{t2}")
        E(f"v_lshl_add_u32 v{t3}, v{t1}, 8, v{t2}")
        for Tt in range(4):
            E(f"v_xor_b32 v{t4}, {Tt}, v{t0}", f"v_lshl_add_u32 v{vTV+Tt}, v{t4}, 6, v{t3}")
        E(f"v_lshl_add_u32 v{t3}, v{t1}, 7, v{t2}", f"v_add_u32 v{t3}, s{sRING}, v{t3}", f"v_lshrrev_b32 v{t0}, 1, v{t0}")
        for Tt in range(2):
            E(f"v_xor_b32 v{t4}, {Tt}, v{t0}", f"v_lshl_add_u32 v{vTF+Tt}, v{t4}, 6, v{t3}")
        E(f"v_lshrrev_b32 v{t1}, 5, v{l}")
        for j in range(4):
            E(f"v_or_b32 v{t2}, {2*j}, v{t1}", f"v_xor_b32 v{t2}, v{t2}, v{l}", f"v_lshlrev_b32 v{vB+j}, 4, v{t2}")
    U1 += cap(trs)
    U1 += [f"v_lshrrev_b32 v{t3}, 4, v0", f"v_and_b32 v{t4}, 15, v0", f"v_lshlrev_b32 v{pw}, 6, v{t4}", f"v_lshl_add_u32 v{pw}, v{t3}, 13, v{pw}",
           f"v_lshlrev_b32 v{pw+2}, 4, v0", f"v_lshlrev_b32 v{pw+3}, 5, v0"]
    U1 += [f"s_lshl_b32 s{sT0}, s{sG}, 10"] + srdl(sWQ, 66, sT0, ("rest", 4194304))
    U1 += [f"s_lshl_b32 s{sT0}, s{sG}, 19"] + srdl(sWO, 68, sT0, ("rest", 4194304))
    U1 += [f"s_mul_i32 s{sT2}, s{sG}, {224*1024}"] + srdl(sW2, 92, sT2, ("rest", 1835008))
    SUM, SQ = 50, 54
    U1 = deque(U1); per = (len(U1) + 15) // 16
    for i in range(8):
        for p in range(2):
            if OPT["rot"]: E(T(f"buffer_load_dwordx4 {vr(RAW+32*p+4*i,4)}, v{xo+p}, {sr(sX,4)}, s{XS+i} offen", ("x", p, i)))
            else: E(T(f"buffer_load_dwordx4 {vr(RAW+32*p+4*i,4)}, v{xo+p}, {sr(sX,4)}, 0 offen offset:{i*128}", ("x", p, i)))
            for _ in range(per):
                if U1: E(U1.popleft())
    stamp(2)
    E(f"s_add_u32 s{sT0}, s{sT0}, {1536*256}"); srd(sK, 62, sT0, ("imm", 131072)); srd(sV, 64, sT0, ("imm", 131072))
    srd(sFL, 58, sT1, ("imm", 1024))
    E(f"s_lshl_b32 s{sT0}, s{sRB}, 2"); srd(sDBG, 98, sT0, ("imm", 4))
    def later():
        for p in range(1, 4): E(f"v_add_u32 v{vDQ+p}, {p*(8*8192-1024)}, v{vDQ}", f"v_add_u32 v{vDO+p}, {p*(8*1024-1024)}, v{vDO}")
        E(f"v_lshrrev_b32 v{t0}, 4, v{l}", f"v_bfe_u32 v{t1}, v{l}, 2, 2", f"v_xor_b32 v{t1}, v{t1}, v{t0}", f"v_lshlrev_b32 v{t1}, 6, v{t1}",
          f"v_and_b32 v{t2}, 3, v{l}", f"v_lshl_add_u32 v{t1}, v{t2}, 4, v{t1}")
        E(f"v_lshl_add_u32 v{vDV}, v{t0}, 8, v{t1}", f"v_add_u32 v{vDV}, s{sVL}, v{vDV}")
        for p in range(2):
            E(f"s_lshl_b32 s{sT0}, s{sW}, 3", f"s_add_u32 s{sT0}, s{sT0}, {4*p}", f"v_add_u32 v{t2}, s{sT0}, v{t0}",
              f"v_xor_b32 v{t3}, v{t2}, v{l}", f"v_and_b32 v{t3}, 15, v{t3}", f"v_lshlrev_b32 v{t3}, 4, v{t3}",
              f"v_lshl_add_u32 v{vDK+p}, v{t2}, 8, v{t3}")
            if p: E(f"v_subrev_u32 v{vDK+p}, 1024, v{vDK+p}")
        E(f"v_lshrrev_b32 v{t1}, 5, v{l}")
        E(f"v_and_b32 v{t0}, 19, v{l}", f"v_bfe_u32 v{t2}, v{l}, 2, 1", f"v_lshl_add_u32 v{t0}, v{t2}, 3, v{t0}",
          f"v_bfe_u32 v{t2}, v{l}, 3, 1", f"v_lshl_add_u32 v{t0}, v{t2}, 2, v{t0}",
          f"v_lshlrev_b32 v{t2}, 8, v{t0}", f"v_add_u32 v{t2}, {KR_BASE}, v{t2}", f"v_and_b32 v{t0}, 15, v{t0}", f"v_xor_b32 v{t0}, v{t0}, v{t1}")
        for s_ in range(8):
            E(f"v_xor_b32 v{t3}, {2*s_}, v{t0}", f"v_lshl_add_u32 v{vKR+s_}, v{t3}, 4, v{t2}")
        E(f"s_lshl_b32 s{sT0}, s{sW}, 14", f"v_lshlrev_b32 v{vST}, 4, v{l}", f"v_add_u32 v{vST}, s{sT0}, v{vST}")
    LATER = cap(later)
    LATER += [f"s_lshl_b32 s{sT0}, s{sRB}, 3", f"s_or_b32 s{sT0}, s{sT0}, s{sG}", f"s_lshl_b32 s{sT0}, s{sT0}, 17"] + srdl(sP, 58, sT0, ("imm", 131072))
    LATER += [f"s_lshr_b32 s{sT1}, s{sG}, 1", f"s_lshl_b32 s{sT1}, s{sT1}, 2", f"s_and_b32 s{sT0}, s{sG}, 1", f"s_or_b32 s{sT4}, s{sT1}, s{sT0}",
              f"s_lshl_b32 s{sT0}, s{sRB}, 20", f"s_lshl_b32 s{sT1}, s{sT4}, 12", f"s_add_u32 s{sT0}, s{sT0}, s{sT1}"] + srdl(sPR, 58, sT0, ("imm", 1 << 20))
    LATER += [f"s_lshl_b32 s{sVOFF}, s{sT4}, 6"] + srdl(sB2, 94, sVOFF, ("rest", 1024))
    LATER += [f"s_lshl_b32 s{sT0}, s{sRB}, 16"] + srdl(sOUT, 96, sT0, ("imm", 65536))
    BRW1 = B1 + 16
    LATER = [f"v_lshrrev_b32 v{bo}, 5, v{l}", f"v_lshlrev_b32 v{bo}, 4, v{bo}", f"s_lshl_b32 s{sT2}, s{sW}, 7"] + \
            [T(f"buffer_load_dwordx4 {vr(BRW1+4*q,4)}, v{bo}, {sr(sB1,4)}, s{sT2} offen offset:{q*32}", "bias") for q in range(4)] + LATER
    BIASX = [W("vm", "bias")]
    for r in range(32):
        BIASX.append((f"v_lshlrev_b32 v%d, 16, v{BRW1+r//2}" if r % 2 == 0 else f"v_and_b32 v%d, s{sC0}, v{BRW1+r//2}") % (B2+r))
        BIASX.append(f"v_mul_f32 v{B2+r}, {f32(CS)}, v{B2+r}")
    PFS = [[f"s_lshl_b32 s{sT3}, s{sRB}, 17", f"buffer_load_dword v{PFD}, v{pw}, {sr(sWQ,4)}, s{sT3} offen"],
           [f"s_mul_i32 s{sT3}, s{sRB}, 7168", f"buffer_load_dword v{PFD}, v{pw+3}, {sr(sW2,4)}, s{sT3} offen"],
           [f"s_lshl_b32 s{sT3}, s{sRB}, 12", f"buffer_load_dword v{PFD}, v{pw+2}, {sr(sK,4)}, s{sT3} offen"],
           [f"buffer_load_dword v{PFD}, v{pw+2}, {sr(sV,4)}, s{sT3} offen"]]
    SP = deque()
    for s_ in range(NS):
        d = PRE[s_].dma(); SP.append(d[:3]); SP.extend(d[3:])
    if OPT["pfpos"] == 1: SP.extend(PFS)
    if OPT["pfpos"] == 2: SP.append(PFS[0])
    nsp = [0]
    def sp(n=1, force=False):
        for _ in range(n):
            if SP and (force or nsp[0] < OPT["npre"]): E(SP.popleft()); nsp[0] += 1
    SUM, SQ = 50, 54
    WR = deque()
    sp(OPT["spe"])
    stamp(2)
    for i in range(8):
        for p in range(2):
            E(W("vm", ("x", p, i)))
            r = RAW + 32*p + 4*i; u = B2 + 32*p + 4*i; m = SUM + 2*p; q = SQ + 2*p
            for j in range(4): E(f"v_lshlrev_b32 v{u+j}, 16, v{r+j}", f"v_and_b32 v{r+j}, s{sC0}, v{r+j}")
            for k, b_ in enumerate((u, r, u+2, r+2)):
                if i == 0 and k == 0: E(f"v_pk_add_f32 {vr(m,2)}, {vr(u,2)}, {vr(r,2)}", f"v_pk_mul_f32 {vr(q,2)}, {vr(u,2)}, {vr(u,2)}")
                elif i == 0 and k == 1: E(f"v_pk_fma_f32 {vr(q,2)}, {vr(b_,2)}, {vr(b_,2)}, {vr(q,2)}")
                else: E(f"v_pk_add_f32 {vr(m,2)}, {vr(m,2)}, {vr(b_,2)}", f"v_pk_fma_f32 {vr(q,2)}, {vr(b_,2)}, {vr(b_,2)}, {vr(q,2)}")
            if 2*i + p >= OPT["sp0"]: sp()
    stamp(2)
    E(W("vm", "clr"), f"buffer_store_dword v{vL+1}, v{vL}, {sr(sDBG,4)}, 0 offen sc1")
    R4 = [SUM, SUM+2, SQ, SQ+2]
    for v in R4: E(f"v_add_f32 v{v}, v{v}, v{v+1}")
    for md in ("quad_perm:[1,0,3,2]", "quad_perm:[2,3,0,1]", "row_half_mirror"):
        for v in R4: E(f"v_add_f32_dpp v{v}, v{v}, v{v} {md} row_mask:0xf bank_mask:0xf")
    def both(fmt): E([fmt.format(m=SUM+2*p, q=SQ+2*p) for p in range(2)])
    both(f"v_mul_f32 v{{m}}, {f32(1/512)}, v{{m}}"); both(f"v_mul_f32 v{{q}}, {f32(1/512)}, v{{q}}")
    both("v_fma_f32 v{q}, -v{m}, v{m}, v{q}"); both("v_max_f32 v{q}, 0, v{q}")
    both("v_cvt_pk_bf16_f32 v{q}, v{q}, v{m}")
    both(f"v_and_b32 v{{m}}, s{sC0}, v{{q}}"); both("v_lshlrev_b32 v{q}, 16, v{q}")
    both(f"v_add_f32 v{{q}}, {f32(1e-5)}, v{{q}}"); both("v_cvt_pk_bf16_f32 v{q}, v{q}, v{q}"); both("v_lshlrev_b32 v{q}, 16, v{q}")
    both("v_sqrt_f32 v{q}, v{q}"); E("s_nop 0"); both("v_cvt_pk_bf16_f32 v{q}, v{q}, v{q}"); both("v_lshlrev_b32 v{q}, 16, v{q}")
    both("v_rcp_f32 v{q}, v{q}"); E("s_nop 0"); both(f"v_mul_f32 v{{q}}, {f32(CS)}, v{{q}}"); both("v_mul_f32 v{m}, v{m}, v{q}")
    stamp(2)
    for i in range(8):
        for p in range(2):
            r = RAW + 32*p + 4*i; u = B2 + 32*p + 4*i
            for b_ in (u, r, u+2, r+2):
                E(f"v_pk_fma_f32 {vr(b_,2)}, {vr(b_,2)}, {vr(SQ+2*p,2)}, {vr(SUM+2*p,2)} op_sel_hi:[1,0,0] neg_lo:[0,0,1] neg_hi:[0,0,1]")
            for j in range(4): E(f"v_cvt_pk_bf16_f32 v{r+j}, v{u+j}, v{r+j}")
            E(f"ds_write_b128 v{wa+p}, {vr(r,4)} offset:{i*8192}")
        if i == 3: stamp(2)
    stamp(2)
    while WR: E(WR.popleft())
    sp(99, force=True)
    stamp(2)
    E(PRE[0].areads())
    E("s_waitcnt lgkmcnt(8)", "s_barrier")
    if OPT["stamps"] < 4: stamp(0)
    E(PRE[0].breads())
    BG.extend(LATER)
    def kreads(t): return [T(f"ds_read_b128 {ar(aKF+4*s_,4)}, v{vKR+s_} offset:{(t&3)*8192}", ("kf", t)) for s_ in range(8)]
    def vreads(t): return [T(f"ds_read_b64_tr_b16 {ar(aVF+16*u+4*Tt+2*t_,2)}, v{vTV+Tt} offset:{(t&3)*8192+u*4096+t_*1024}", ("vf", t))
                           for u in range(2) for Tt in range(4) for t_ in range(2)]
    def qk(rg, dst, cinit):
        return [mfma("v", dst, "a", aKF+4*s_, "v", QFr(rg, s_), *(cinit if s_ == 0 else ())) for s_ in range(8)]
    def pv(rg, p, zero=False):
        return [mfma("a", aO+64*rg+16*Tt, "a", aVF+16*u+4*Tt, "v", p+4*u, 0 if (zero and u == 0) else None) for u in range(2) for Tt in range(4)]
    def sm_plan(rg, s, p):
        pl = [[] for _ in range(16)]
        for j in range(16): pl[max(0, j-1)].append(f"v_exp_f32 v{s+j}, v{s+j}")
        for j in range(16): pl[max(1, j)].append(f"v_add_f32 v{vL+2*rg+(j&1)}, v{vL+2*rg+(j&1)}, v{s+j}")
        for k in range(8): pl[2*k+1].append(f"v_cvt_pk_bf16_f32 v{p+k}, v{s+2*k}, v{s+2*k+1}")
        for key in ("add", "exp"):
            if key in OPT["skip"]: pl = [[x for x in g if not x.startswith("v_" + key)] for g in pl]
        return pl
    def epi_tile(kind, src, typ, Tt, rg, tmp, tag):
        o = []; b = tmp if kind == "a" else src
        for u in range(2):
            if kind == "a":
                for r in range(8*u, 8*u+8): o.append(f"v_accvgpr_read_b32 v{b+r}, a{src+r}")
            for j in range(4): o.append(f"v_cvt_pk_bf16_f32 v{b+8*u+j}, v{b+8*u+2*j}, v{b+8*u+2*j+1}")
            o.append([f"s_mov_b32 s{sT4}, {typ*65536 + Tt*4096}",
                      T(f"buffer_store_dwordx4 {vr(b+8*u,4)}, v{vST}, {sr(sP,4)}, s{sT4} offen offset:{u*2048+rg*1024} sc1", tag)])
        return o
    NP = len(PRE)
    nq = [NS]
    skp = [int(x) for x in str(OPT["skpre"]).split("_") if x]
    hsteps = [int(x) for x in str(OPT["hst"]).split("_")]
    KV = deque([dma_v(0) + dma_k(2), dma_v(1) + dma_k(3), dma_v(2)])
    for i, st in enumerate(PRE):
        d = []
        if i not in skp and nq[0] < NP:
            assert nq[0] >= i + 2
            d = PRE[nq[0]].dma(); nq[0] += 1
        elif nq[0] >= NP and i >= 55 and KV: d = KV.popleft()
        post = []; pre = []
        if OPT["pfpos"] == 0 and i in (2, 6, 10, 14): post = PFS[i // 4]
        if OPT["pfpos"] == 2 and i == OPT["pf2"]: post = PFS[1] + PFS[2] + PFS[3]
        if i == 9: assert not BG and not PM; BG.extend(BIASX)
        if i == 15: flush()
        if i == 16:
            post = ["s_barrier"]
            BG.append(f"s_lshl_b32 s{sT0}, s{sW}, 13")
            for j in range(4): BG.append(f"v_add_u32 v{vBC+j}, s{sT0}, v{vB+j}")
        if i == 17:
            for n in range(8):
                b = ACCH + 8*n
                for r in range(8): BG.append(f"v_add_f32 v{b+r}, v{b+r}, v{B2+16*(n>>2)+8*(n&1)+r}")
                for r in range(8): BG.append(f"v_max_f32 v{b+r}, 0, v{b+r}")
                for r in range(8): BG.append(f"v_mul_f32 v{b+r}, v{b+r}, v{b+r}")
                for j in range(4): BG.append(f"v_cvt_pk_bf16_f32 v{b+j}, v{b+2*j}, v{b+2*j+1}")
        for n in range(8):
            if hsteps[n * len(hsteps) // 8] == i:
                Tt, rg, u = n >> 2, (n >> 1) & 1, n & 1
                BG.append(T(f"ds_write_b128 v{vBC+2*Tt+u}, {vr(ACCH+8*n,4)} offset:{(2*Tt+u)*2048+rg*1024}", "hw"))
        if i == 31: flush()
        if i == 33:
            for j in range(32): BG.append(f"v_cvt_pk_bf16_f32 v{B0+j}, v{B0+2*j}, v{B0+2*j+1}")
            BG.append([f"s_and_b32 s{sT0}, s{sG}, 1", f"s_lshl_b32 s{sT1}, s{sT0}, 12", f"s_lshl_b32 s{sT0}, s{sT0}, 6"])
            for j in range(4): BG.extend([f"v_xor_b32 v{vBC+j}, s{sT0}, v{vB+j}", f"v_add_u32 v{vBC+j}, s{sT1}, v{vBC+j}"])
            BG.extend([[f"s_lshl_b32 s{sT0}, s{sW}, 8", f"s_lshl_b32 s{sT1}, s{sG}, 2", f"s_add_u32 s{sT0}, s{sT0}, s{sT1}"],
                       f"v_min_u32 v{vPUB}, 1, v{l}", f"v_lshlrev_b32 v{vPUB}, 30, v{vPUB}", f"v_add_u32 v{vPUB}, s{sT0}, v{vPUB}",
                       [f"s_lshr_b32 s{sT0}, s{sG}, 1", f"s_lshl_b32 s{sT0}, s{sT0}, 8"],
                       f"v_and_b32 v{vPOLL}, 7, v{l}", f"v_lshlrev_b32 v{vPOLL}, 2, v{vPOLL}", f"v_add_u32 v{vPOLL}, s{sT0}, v{vPOLL}",
                       f"v_lshlrev_b32 v{vRD}, 4, v0"])
            for j in range(4): BG.append(f"v_mov_b32 v{vL+j}, 0")
        if i == 38: post = dma_k(0)
        if i == 40: post = dma_k(1)
        if i == 46: flush(); post = [W("lg", "hw"), W("vm", ("K", 1)), "s_barrier"]
        if i == 48: BG.extend(kreads(0))
        if i == 49:
            for j in range(32): BG.append(f"v_cvt_pk_bf16_f32 v{B4+j}, v{B4+2*j}, v{B4+2*j+1}")
        if i == 54: post = ["s_barrier"]
        if i in (58, 59, 60, 61):
            n = i - 58; BG.extend(epi_tile("v", (B1, B2)[n >> 1] + 16*(n & 1), 1, n >> 1, n & 1, None, "fst"))
        step(st, PRE[i + 1].reads() if i + 1 < NP else [], d, post=post)
        if i in (15, 47): stamp()
        if i in (0, 3): stamp(2)
        if i in (3, 7, 11, 15, 19, 23, 27, 31, 35, 39, 43): stamp(3)
        if i == 50:
            flush()
            E(W("lg", ("kf", 0)), "s_nop 1")
            gaps(qk(0, S0, (0,)) + qk(1, S1[0], (0,)), [])
            BG.extend(kreads(1))
            for rg, s in ((0, S0), (1, S1[0])):
                m = vT + rg
                BG.append(f"v_max3_f32 v{m}, v{s}, v{s+1}, v{s+2}")
                for j in range(3, 15, 2): BG.append(f"v_max3_f32 v{m}, v{m}, v{s+j}, v{s+j+1}")
                BG.extend([f"v_max_f32 v{m}, v{m}, v{s+15}", f"v_mov_b32 v{vT+2}, v{m}", "s_nop 1", f"v_permlane32_swap_b32 v{m}, v{vT+2}",
                           [f"s_cmp_lg_u32 s{sFLAG}, 0", "s_cselect_b64 vcc, -1, 0"], f"v_max_f32 v{m}, v{m}, v{vT+2}",
                           f"v_cndmask_b32 v{m}, v{m}, v{vM+rg}, vcc"])
                BG.extend([f"v_sub_f32 v{NEGM[rg]}, 0, v{m}", f"v_sub_f32 v{NEGM[rg]+1}, 0, v{m}"])
                for r in range(2, 16, 2): BG.append(f"v_mov_b64 {vr(NEGM[rg]+r,2)}, {vr(NEGM[rg],2)}")
                for r in range(16): BG.append(f"v_sub_f32 v{s+r}, v{s+r}, v{m}")
            for g in sm_plan(0, S0, P0[0]): BG.extend(g)
    flush()
    while KV: E(KV.popleft())
    stamp()
    E(W("vm", ("K", 2)), "s_waitcnt lgkmcnt(0)")
    def att_iter(i, x1=(), x2=()):
        if i == 0 or OPT["barg"] == 16: E("s_barrier")
        pl = sm_plan(1, S1[i&1], P1)
        vrd = vreads(i); k = 0
        if "rd" in OPT["skip"] and i > 1: vrd = []
        for g in range(16):
            n = (1 if g == 0 else (1 if g % 2 == 1 else 2))
            pl[g] += vrd[k:k+n]; k += n
        x1 = list(x1)
        if x1:
            pl[11] += x1[:2]
            for g, x in zip((12, 13, 14, 15), x1[2:]): pl[g].append(x)
        gaps(qk(0, S0, (NEGM[0], "v")) + qk(1, S1[(i+1)&1], (NEGM[1], "v")), pl)
        E(W("lg", ("vf", i)))
        pl = sm_plan(0, S0, P0[(i+1)&1])
        if i + 2 < 16 and not ("rd" in OPT["skip"] and i > 1):
            krd = kreads(i + 2)
            for g in range(8): pl[g].append(krd[g])
        dv = dma_v(i + 3) if i + 3 < 16 else []
        dk = dma_k(i + 5) if i + 5 < 16 else []
        pl[4] += list(x2)
        if dv: pl[6] += dv[:1]; pl[8] += dv[1:3]; pl[9] += dv[3:]
        if dk: pl[10] += dk[:2]; pl[12] += dk[2:3]; pl[14] += dk[3:]
        ws_ = [W("vm", ("K", i+3)), W("vm", ("V", i+1)), W("lg", ("kf", i+2))]
        if OPT["barg"] == 16: pl[15] += [tuple(["end"] + ws_)]
        elif OPT["barg"] == 99: pl[15] += [tuple(["end"] + ws_)]
        else:
            pl[OPT["barg"] - 2] += ws_
            pl[OPT["barg"]] = ["s_barrier"] + pl[OPT["barg"]]
        gaps(pv(0, P0[i&1], zero=(i == 0)) + pv(1, P1, zero=(i == 0)), pl)
    VAL = vT + 3; GATE = vT + 4; POL = vT + 5
    poll = f"buffer_load_dword v{POL}, v{vPOLL}, {sr(sFL,4)}, 0 offen sc1"
    pub = f"buffer_store_dword v{VAL}, v{vPUB}, {sr(sFL,4)}, 0 offen sc1"
    SENT = 0xff81ff81
    PZ = vDQ
    for i in range(15):
        x1 = []; x2 = []
        if i == 0:
            x1 = dma_k(4)
            BG.extend([f"v_mov_b32 v{PZ+j}, {SENT:#x}" for j in range(4)])
            BG.extend([f"v_lshlrev_b32 v{vT}, 6, v0", f"v_mov_b32 v{vT+1}, 0", f"v_mov_b32 v{VAL}, 1",
                       [f"s_lshl_b32 s{sT1}, s{sRB}, 14", f"buffer_load_dword v{PFD}, v{vT}, {sr(sWO,4)}, s{sT1} offen"]])
        if i in (0, 1, 2, 3): BG.extend(epi_tile("a", 192 + 16*i, 1, 2 + (i >> 1), i & 1, FT[i & 1], "fst"))
        if i in (4, 5, 6, 7):
            for q in range(4):
                BG.append([f"s_mov_b32 s{sT4}, {(i-4)*4096}", f"buffer_store_dwordx4 {vr(PZ,4)}, v{vST}, {sr(sP,4)}, s{sT4} offen offset:{q*1024} sc1"])
        gl = f"buffer_load_dword v{GATE}, v{vT+1}, {sr(sDBG,4)}, 0 offen sc1"
        if i == 2: BG.append(T(gl, "gate"))
        if i == 5: BG.extend([W("vm", "gate")] + check_ready("gate", GATE, gl, 1))
        if i == 8: x2 = ["s_waitcnt vmcnt(0)", pub]
        if i == 10: x2 = [T(poll, "fpoll")]
        if i == 12: BG.extend([W("vm", "fpoll")] + check_ready("f", POL, poll, 1))
        if i in (12, 13, 14):
            for n in range((0, 5, 11)[i-12], (5, 11, 16)[i-12]):
                ps, g = n >> 3, n & 7
                BG.append([f"s_mov_b32 s{sT4}, {g*131072 + 65536 + ps*8192}", T(f"buffer_load_dwordx4 {ar(aFL+4*n,4)}, v{vRD}, {sr(sPR,4)}, s{sT4} offen sc1", ("fl", n))])
        if i in (2, 3, 9, 10, 11): x1 = POST[(2, 3, 9, 10, 11).index(i)].dma()
        if i < 12: stamp(4)
        att_iter(i, x1=x1, x2=x2)
        flush()
    i = 15
    if OPT["barg"] == 16: E("s_barrier")
    E(vreads(i))
    def lfin(rg):
        a, b = vL+2*rg, vL+2*rg+1
        return [f"v_add_f32 v{a}, v{a}, v{b}", f"v_mov_b32 v{b}, v{a}", "s_nop 1", f"v_permlane32_swap_b32 v{a}, v{b}", "s_nop 0",
                f"v_add_f32 v{b}, v{a}, v{b}", f"v_rcp_f32 v{a}, v{b}"]
    E(f"s_lshl_b32 s{sT0}, s{sW}, 14")
    for j in range(4): E(f"v_add_u32 v{vBC+j}, s{sT0}, v{vB+j}")
    E(lfin(0))
    pl16 = sm_plan(1, S1[i&1], P1)
    E(pl16[0], pl16[1])
    E("s_waitcnt lgkmcnt(0)")
    pl = [pl16[2+2*g] + pl16[3+2*g] if g < 7 else [] for g in range(8)]
    pl[0] = ["s_barrier"] + pl[0]
    pl[7] = ["s_nop 0"]
    gaps(pv(0, P0[i&1]), pl)
    BG.extend(lfin(1))
    BG.extend([f"v_add_f32 v{vT+1}, v{vL+1}, v{vL+3}", f"s_mov_b32 s{sT1}, {f32(2.0**OPT['thr'])}",
               f"v_cmp_nge_f32 vcc, s{sT1}, v{vT+1}", f"v_and_b32 v{vT+2}, 3, v{l}", f"v_mul_u32_u24 v{vT+2}, {NS*4096}, v{vT+2}",
               ["s_cmp_lg_u64 vcc, 0", f"s_cselect_b32 s{sT1}, 1, 0"], f"v_mov_b32 v{vT}, s{sT1}",
               [f"s_lshl_b32 s{sT1}, s{sW}, 2", f"s_add_u32 s{sT1}, s{sT1}, {R_BASE}"], f"v_add_u32 v{vT+2}, s{sT1}, v{vT+2}", f"v_mov_b32 v{vT+1}, s{sRING}",
               f"ds_write_b32 v{vT+2}, v{vT} offset:{5*4096}"])
    OT = B2
    for r in range(24): BG.append(f"v_accvgpr_read_b32 v{OT+r}, a{aO+r}")
    gaps(pv(1, P1), [])
    flush()
    stamp()
    for n in range(16):
        rg, Tt, u = n >> 3, (n >> 1) & 3, n & 1
        b = OT + 8*(n & 7)
        if n + 3 < 16:
            b3 = OT + 8*((n+3) & 7)
            for r in range(8): E(f"v_accvgpr_read_b32 v{b3+r}, a{aO+8*(n+3)+r}")
        for j in range(4): E(f"v_pk_mul_f32 {vr(b+2*j,2)}, {vr(b+2*j,2)}, {vr(vL+2*rg,2)} op_sel_hi:[1,0]")
        for j in range(4): E(f"v_cvt_pk_bf16_f32 v{b+j}, v{b+2*j}, v{b+2*j+1}")
        ks = 2*Tt + u
        E(f"ds_write_b128 v{vBC+(ks&3)}, {vr(b,4)} offset:{ks*2048+rg*1024}")
    POST[0].areg = ("v", B1)
    E(POST[0].areads())
    E("s_waitcnt lgkmcnt(8)", "s_barrier")
    E(T(f"ds_read_b128 {vr(56,4)}, v{vT+1} offset:{5*4096}", "flg"), POST[0].breads())
    E(W("lg", "flg"))
    E(f"v_or3_b32 v{vT}, v56, v57, v58", f"v_or_b32 v{vT}, v{vT}, v59", "s_nop 0", f"v_readfirstlane_b32 s{sT0}, v{vT}",
      "s_nop 0", f"s_andn2_b32 s{sT0}, s{sT0}, s{sFLAG}", "s_cbranch_scc1 L_slow")
    E(POST[5].dma())
    stamp(); stamp(5)
    GV, XO = 112, vT
    XF, XR, BRW = 18, 56, 40
    vST2 = 34 + 2
    FR = B2
    sepi = lambda ps, n: epi_tile("v", ((B4, B5), (B2, B3))[ps][n >> 1] + 16*(n & 1), 0, 2*ps + (n >> 1), n & 1, None, ("sst", ps))
    SL = B4
    def sloads(ps): return [[f"s_mov_b32 s{sT4}, {g*131072 + ps*8192}", T(f"buffer_load_dwordx4 {vr(SL+32*ps+4*g,4)}, v{vRD}, {sr(sPR,4)}, s{sT4} offen sc1", ("sl", ps, g))] for g in range(8)]
    nq2 = [NS]; skq = [int(x) for x in str(OPT["skpost"]).split("_") if x]
    sst = [int(x) for x in str(OPT["sst"]).split("_")]
    for i, st in enumerate(POST[:30]):
        if i == 0:
            for r in range(64): BG.append(f"v_accvgpr_read_b32 v{FR+r}, a{aFL+r}")
            BG.appendleft(W("vm", ("fl", 15)))
            TM = 10
            BG.extend([f"v_lshrrev_b32 v{TM}, 7, v0", f"v_bfe_u32 v{TM+1}, v0, 5, 1", f"v_lshlrev_b32 v{XO+1}, 5, v{TM}", f"v_lshl_add_u32 v{XO+1}, v{TM+1}, 4, v{XO+1}",
                       f"v_bfe_u32 v{TM}, v0, 6, 1", f"v_and_b32 v{TM+1}, 31, v0", f"v_lshl_add_u32 v{TM}, v{TM}, 5, v{TM+1}", f"v_lshl_add_u32 v{XO}, v{TM}, 10, v{XO+1}"])
            for ps in range(2):
                BG.append(T(f"buffer_load_dwordx4 {vr(XR+4*ps,4)}, v{XO}, {sr(sX,4)}, s{sVOFF} offen offset:{ps*128}", "xb"))
                BG.append(T(f"buffer_load_dwordx4 {vr(BRW+4*ps,4)}, v{XO+1}, {sr(sB2,4)}, 0 offen offset:{ps*128}", "xb"))
            for n in range(16):
                ps, g = n >> 3, n & 7
                dst = GV + 8*ps
                for j in range(4):
                    src = FR + 4*n + j
                    if g == 0: BG.extend([f"v_lshlrev_b32 v{dst+2*j}, 16, v{src}", f"v_and_b32 v{dst+2*j+1}, s{sC0}, v{src}"])
                    else: BG.extend([f"v_lshlrev_b32 v{TM+(j&1)}, 16, v{src}", f"v_and_b32 v{src}, s{sC0}, v{src}",
                                     f"v_add_f32 v{dst+2*j}, v{dst+2*j}, v{TM+(j&1)}", f"v_add_f32 v{dst+2*j+1}, v{dst+2*j+1}, v{src}"])
            TQ = 18
            BG.extend([W("vm", "xb"), f"s_mov_b32 s{sT0}, {f32(1/CS**2)}"])
            for ps in range(2):
                G_ = GV + 8*ps
                for j in range(4): BG.extend([f"v_lshlrev_b32 v{TQ+2*j}, 16, v{BRW+4*ps+j}", f"v_and_b32 v{TQ+2*j+1}, s{sC0}, v{BRW+4*ps+j}"])
                for j in range(8): BG.append(f"v_fma_f32 v{G_+j}, v{G_+j}, s{sT0}, v{TQ+j}")
                for j in range(8): BG.append(f"v_mul_f32 v{TQ+j}, {f32(-math.log2(math.e))}, v{G_+j}")
                for j in range(8): BG.append(f"v_exp_f32 v{TQ+j}, v{TQ+j}")
                for j in range(8): BG.append(f"v_add_f32 v{TQ+j}, 1.0, v{TQ+j}")
                for j in range(8): BG.append(f"v_rcp_f32 v{TQ+j}, v{TQ+j}")
                for j in range(8): BG.append(f"v_mul_f32 v{G_+j}, v{G_+j}, v{TQ+j}")
            nbg0 = len(BG)
        if i == 11: assert nbg0 - len(BG) >= 66, "f partials not yet copied out of a192.."
        if i == 16:
            left = [x for x in BG if isinstance(x, str) and any(f"v{r}" in x.replace(",", " ").split() for r in range(FR, FR+64))]
            print("f-sum items left at pass B start:", len(left), file=sys.stderr)
            while any(x in left for x in BG): E(BG.popleft())
        e = [x for n in range(4) if sst[n * len(sst) // 4] == i for x in sepi(0, n)]
        for x in reversed(e): BG.appendleft(x)
        post = []
        if i == OPT["lda"]: BG.extend(sloads(0))
        d = []
        if i not in skq and nq2[0] < 32:
            assert nq2[0] >= i + 2
            d = POST[nq2[0]].dma(); nq2[0] += 1
        nxt = POST[i + 1].reads() + (POST[31].reads() if i == 29 else [])
        step(st, nxt, d, post=post)
        if i == 15: stamp()
        if i % 3 == 2: stamp(5)
    flush()
    stamp()
    E(W("lg", POST[31].tag))
    for n in range(4):
        if n >= 2: BG.extend(sepi(1, n - 2))
        gaps([POST[j].one(ks, n >> 1, n & 1) for j in (30, 31) for ks in range(2)], [])
    flush()
    E(sepi(1, 2))
    E("s_nop 1")
    E(sepi(1, 3))
    stamp()
    SA, ST_, XT = B0, B0+8, B0+16
    def ost(ps): return f"buffer_store_dwordx4 {vr(B0+24+4*ps,4)}, v{XO}, {sr(sOUT,4)}, s{sVOFF} offen offset:{ps*128} {OPT['outsc']}"
    def fin(ps):
        E(f"s_mov_b64 s[{sT2}:{sT3}], -1")
        for j in range(4): E(f"v_lshlrev_b32 v{XT+2*j}, 16, v{XR+4*ps+j}", f"v_and_b32 v{XT+2*j+1}, s{sC0}, v{XR+4*ps+j}")
        E(f"L_sum{ps}:")
        for g in range(8):
            E(W("vm", ("sl", ps, g)))
            d0 = SA if g == 0 else ST_
            for j in range(4): E(f"v_lshlrev_b32 v{d0+2*j}, 16, v{SL+32*ps+4*g+j}", f"v_and_b32 v{d0+2*j+1}, s{sC0}, v{SL+32*ps+4*g+j}")
            if g:
                for j in range(4): E(f"v_pk_add_f32 {vr(SA+2*j,2)}, {vr(SA+2*j,2)}, {vr(ST_+2*j,2)}")
        E(f"v_pk_add_f32 {vr(ST_,2)}, {vr(SA,2)}, {vr(SA+2,2)}", f"v_pk_add_f32 {vr(ST_+2,2)}, {vr(SA+4,2)}, {vr(SA+6,2)}",
          f"v_pk_add_f32 {vr(ST_,2)}, {vr(ST_,2)}, {vr(ST_+2,2)}", f"v_cmp_u_f32 vcc, v{ST_}, v{ST_+1}")
        for j in range(4): E(f"v_pk_fma_f32 {vr(SA+2*j,2)}, {vr(SA+2*j,2)}, {vr(GV+8*ps+2*j,2)}, {vr(XT+2*j,2)}")
        E(f"s_and_b64 vcc, vcc, s[{sT2}:{sT3}]", f"s_cbranch_scc1 L_miss{ps}")
        for j in range(4): E(f"v_cvt_pk_bf16_f32 v{B0+24+4*ps+j}, v{SA+2*j}, v{SA+2*j+1}")
        E(ost(ps))
    if OPT["lda"] >= 30: E(sloads(0))
    if OPT["bfirst"]: E(sloads(1))
    fin(0)
    stamp()
    if not OPT["bfirst"]: E(sloads(1))
    fin(1)
    stamp()
    if OPT["stamps"]:
        E("s_waitcnt vmcnt(0)")
        stamp(0)
        E(f"s_lshl_b32 s{sT0}, s2, 2", f"s_add_u32 s{sT0}, s{sT0}, s{sW}", f"s_lshl_b32 s{sT0}, s{sT0}, 6", f"s_add_u32 s{sT0}, s{sT0}, {64<<20}")
        srd(sX, 58, sT0, ("imm", 64))
        E(f"v_mov_b32 v{vT}, 0", "s_memrealtime s[70:71]", "s_waitcnt lgkmcnt(0)", f"s_mov_b32 s87, s70")
        for i in list(range(nstamp[0])) + [14, 15]:
            E(f"v_mov_b32 v{vT+1}, s{sST+i}", f"buffer_store_dword v{vT+1}, v{vT}, {sr(sX,4)}, 0 offen offset:{4*i}")
    E("L_main_end:", "s_endpgm")
    for name, vreg, load, val, pre in SPINS:
        E(f"L_spin_{name}:", list(pre), f"s_mov_b32 s{sCNT}, {OPT['spin']}", f"L_spinl_{name}:", load, "s_waitcnt vmcnt(0)",
          f"v_cmp_le_u32 vcc, {val}, v{vreg}", f"s_sub_u32 s{sCNT}, s{sCNT}, 1", f"s_cbranch_scc1 L_ok_{name}",
          "s_cmp_eq_u64 vcc, -1", f"s_cbranch_scc0 L_spinl_{name}", f"s_branch L_ok_{name}")
    for ps in range(2):
        E(f"L_miss{ps}:", f"s_mov_b32 s{sCNT}, {OPT['spin']}", f"s_mov_b32 s{sT0}, {SENT:#x}", f"L_missl{ps}:", f"s_mov_b32 s{sT1}, 0")
        for g in range(8):
            r = SL + 32*ps + 4*g
            E(f"v_cmp_eq_u32 vcc, s{sT0}, v{r}", f"v_cmp_eq_u32 s[{sT2}:{sT3}], s{sT0}, v{r+1}", "s_nop 0", f"s_or_b64 s[70:71], vcc, s[{sT2}:{sT3}]",
              f"v_cmp_eq_u32 vcc, s{sT0}, v{r+2}", f"v_cmp_eq_u32 s[{sT2}:{sT3}], s{sT0}, v{r+3}", "s_nop 0", f"s_or_b64 s[70:71], vcc, s[70:71]",
              f"s_or_b64 s[70:71], s[70:71], s[{sT2}:{sT3}]", f"s_cbranch_scc0 L_have{ps}_{g}", f"s_mov_b32 s{sT1}, 1", sloads(ps)[g], f"L_have{ps}_{g}:")
        E("s_waitcnt vmcnt(0)", f"s_mov_b64 s[{sT2}:{sT3}], 0", f"s_sub_u32 s{sCNT}, s{sCNT}, 1", f"s_cbranch_scc1 L_sum{ps}",
          f"s_cmp_lg_u32 s{sT1}, 0", f"s_cbranch_scc1 L_missl{ps}", f"s_branch L_sum{ps}")
    E("L_slow:")
    E("s_waitcnt vmcnt(0) lgkmcnt(0)", "s_barrier")
    E(f"s_mov_b32 s{sKOFF}, 0", f"s_mov_b32 s{sCNT}, 16", f"v_mov_b32 v{vM}, 0xff800000", f"v_mov_b32 v{vM+1}, 0xff800000")
    E("L_slow_loop:")
    dk = dma_k(0); E(dk[0], "s_nop 0", dk[2:])
    E("s_waitcnt vmcnt(0)", "s_barrier")
    E(kreads(0))
    E("s_waitcnt lgkmcnt(0)", "s_barrier")
    E(qk(0, S0, (0,)), qk(1, S1[0], (0,)))
    E("s_nop 7", "s_nop 7", f"s_add_u32 s{sKOFF}, s{sKOFF}, 8192")
    for rg, s in ((0, S0), (1, S1[0])):
        for j in range(0, 16, 2): E(f"v_max3_f32 v{vM+rg}, v{vM+rg}, v{s+j}, v{s+j+1}")
    E(f"s_sub_u32 s{sCNT}, s{sCNT}, 1", f"s_cmp_lg_u32 s{sCNT}, 0", "s_cbranch_scc1 L_slow_loop")
    for rg in range(2):
        E(f"v_mov_b32 v{vT}, v{vM+rg}", "s_nop 1", f"v_permlane32_swap_b32 v{vM+rg}, v{vT}", "s_nop 0", f"v_max_f32 v{vM+rg}, v{vM+rg}, v{vT}")
    E(f"s_mov_b32 s{sFLAG}, 1", "s_branch L_restart", "L_code_end:")

K = NAME + "_kernel"
hdr = open("cdna_kernels/" + NAME + ".s.ref").read().split("; Override launch")[0]
out = [hdr.rstrip()]
out.append("; @launch grid=(256,1,1) block=(256,1,1) lds=163840")
out.append('.amdgcn_target "amdgcn-amd-amdhsa--gfx950"')
out.append(".text")
main_kernel(K)
out += L
out.append('.section .rodata,"a"')
out.append(f""".p2align 6
.amdhsa_kernel {K}
  .amdhsa_next_free_vgpr 512
  .amdhsa_next_free_sgpr 102
  .amdhsa_accum_offset 256
  .amdhsa_group_segment_fixed_size 0
  .amdhsa_kernarg_size 104
  .amdhsa_user_sgpr_count 2
  .amdhsa_user_sgpr_kernarg_segment_ptr 1
  .amdhsa_system_sgpr_workgroup_id_x 1
.end_amdhsa_kernel""")
print("\n".join(out))
```

```python
import sys, math, struct
from collections import deque
NAME = "recurrent_scan__sliding_block_cached__dense_activation_squared_relu__prompt"
OPT = dict(stamps=0, rt=0, codepf=1, budget=8, thr=40, memc=4, dmac=8, hg=2, rot=8, outsc="", skip="", spin=200000, pfpos=4, pf2=28,
           sst="17_18_19_20", dropoob=1, lda=28, npre=12, sp0=4, hw0=12, gb=8, pf1=12, stubs=1, fbg=0, bdel=150, xbl=26, kvrot=15, pg0=2, pgo=0, f2b=12)
for a in sys.argv[1:]:
    k, v = a.split("="); OPT[k] = int(v) if v.lstrip("-").isdigit() else v

def vr(b, n=1): return f"v{b}" if n == 1 else f"v[{b}:{b+n-1}]"
def ar(b, n=1): return f"a{b}" if n == 1 else f"a[{b}:{b+n-1}]"
def R(kind, b, n=1): return vr(b, n) if kind == "v" else ar(b, n)
def sr(b, n=1): return f"s{b}" if n == 1 else f"s[{b}:{b+n-1}]"
def f32(x): return "0x%08x" % struct.unpack("<I", struct.pack("<f", x))[0]

class W:
    def __init__(s, cnt, tag): s.cnt, s.tag = cnt, tag
class T:
    def __init__(s, text, tag): s.text, s.tag = text, tag
L = []; VM = []; LG = []
def E(*xs):
    for x in xs:
        if isinstance(x, (list, tuple)): E(*x); continue
        if isinstance(x, W):
            q = VM if x.cnt == "vm" else LG
            idx = [i for i, t in enumerate(q) if t == x.tag]
            if not idx: continue
            n = len(q) - 1 - idx[-1]
            n = min(n, 63 if x.cnt == "vm" else 15)
            del q[:len(q) - n]
            L.append(f"    s_waitcnt {'vmcnt' if x.cnt == 'vm' else 'lgkmcnt'}({n})"); continue
        tag = None
        if isinstance(x, T): x, tag = x.text, x.tag
        op = x.split()[0]
        if op.startswith("buffer_") or op.startswith("global_"): VM.append(tag)
        if op.startswith("ds_"): LG.append(tag)
        if op == "s_waitcnt":
            for w in x.split()[1:]:
                n = int(w[w.index("(")+1:-1]); q = VM if w.startswith("vm") else LG
                if len(q) > n: del q[:len(q) - n]
        L.append("    " + x if not x.endswith(":") and not x.startswith(".") else x)
def opof(x):
    if isinstance(x, (list, tuple)): return opof(x[0])
    if isinstance(x, W): return "s_waitcnt"
    return (x.text if isinstance(x, T) else x).split()[0]
def ismem(x):
    if isinstance(x, (list, tuple)): return any(ismem(y) for y in x)
    return opof(x).split("_")[0] in ("ds", "buffer", "global")
def isvalu(x): return opof(x).startswith("v_")
def cost(x):
    if isinstance(x, (list, tuple)): return sum(cost(y) for y in x)
    if isinstance(x, W): return 4
    t = x.text if isinstance(x, T) else x
    op = t.split()[0]
    assert not op.startswith("v_pk_"), t
    if op in ("v_exp_f32", "v_rcp_f32", "v_sqrt_f32"): return 8
    if op.startswith("buffer_store_dwordx4"): return 24
    if op.startswith("buffer_") or op.startswith("global_"): return OPT["dmac"]
    if op == "s_nop": return 4 * (int(t.split()[1]) + 1)
    if op == "ds_write_b128": return 20
    return 4
BG = deque()
def gaps(mf, plan, budget=None, wr_from=0):
    budget = OPT["budget"] if budget is None else budget
    for g, m in enumerate(mf):
        E(m)
        items = plan[g] if g < len(plan) else []
        endi = [x[1:] for x in items if isinstance(x, tuple) and x[0] == "end"]
        items = [x for x in items if not (isinstance(x, tuple) and x[0] == "end")]
        c = sum(cost(x) for x in items) + sum(cost(x) for x in endi)
        E([x for x in items if not isvalu(x)])
        while True:
            while BG and ismem(BG[0]) and len(PM) < 3: PM.append(BG.popleft())
            if PM and opof(PM[0]).startswith("ds_write") and g < wr_from: break
            if PM and (c + cost(PM[0]) <= budget or c <= OPT["memc"]):
                x = PM.popleft(); E(x); c += cost(x)
            else: break
        E([x for x in items if isvalu(x)])
        while BG:
            if ismem(BG[0]):
                if len(PM) < 3: PM.append(BG.popleft()); continue
                break
            if opof(BG[0]) in ("s_waitcnt", "s_barrier") and PM: break
            if c + cost(BG[0]) > budget: break
            x = BG.popleft(); E(x); c += cost(x)
        E(endi)
PM = deque()
def flush():
    print("flush", len(PM), len(BG), "at line", len(L), file=sys.stderr)
    while PM: E(PM.popleft())
    while BG: E(BG.popleft())
def spread(items, n, per):
    return [items[g*per:(g+1)*per] for g in range(n)]


CS = 128**-0.5 * math.log2(math.e)
X_BASE, R_BASE, NS = 0, 65536, 6
KR_BASE = 32768
FLAG_OFF = 32 << 20
OOB = 0x40000000
SENT = 0xff81ff81
sX, sK, sV, sWQ, sWO, sW1, sW2, sB1, sP = 4, 8, 12, 16, 20, 24, 28, 32, 36
sW, sG, sRB, sRING, sOFF, sCNT, sT0, sT1, sKOFF, sVOFF, sVL, sC0, sT2, sT3, sFLAG, sT4, sROT, sJJ = range(40, 58)
sFL, sDBG, sPR, sB2, sOUT = 60, 64, 88, 92, 96
sST = 72
vLANE, vTF, vB, vBC, vPUB, vPOLL, vTQ, vDO, vKR, vTV, vDK, vDV, vST, vRD, vM, vL = 1, 2, 6, 8, 10, 11, 12, 14, 18, 22, 26, 28, 30, 31, 32, 36
vDQ, vD1, PFD = 40, 44, 49
vT = 50
B0, B1, B2, B3, B4, B5 = 64, 96, 128, 160, 192, 224
S0, S1, P0, P1, NEGM = B3, (B3+16, B4), (56, B4+16), B4+24, B5
LR = B5 + 16
aO, aVF, aKF, aFL = 0, 128, 160, 192
def QFr(rg, s_): return B0 + 16*s_ + 4*rg
BIAS = B2 + 16

nstamp = [0]
def stamp(lvl=1):
    if not OPT["stamps"]: return
    if OPT["stamps"] != lvl and lvl != 0: return
    i = nstamp[0]; nstamp[0] += 1
    assert i < 14
    E("s_memrealtime s[70:71]" if OPT["rt"] else "s_memtime s[70:71]", "s_waitcnt lgkmcnt(0)", f"s_mov_b32 s{sST+i}, s70")

def mfma(dk, d, ak, a, bk, b, c=None, ck=None):
    cs = R(dk, d, 4) if c is None else (str(c) if ck is None else R(ck, c, 4))
    return f"v_mfma_f32_16x16x32_bf16 {R(dk,d,4)}, {R(ak,a,4)}, {R(bk,b,4)}, {cs}"
def kvoff(t):
    return f"s_xor_b32 s{sKOFF}, s{sJJ}, {t*8192}" if OPT["kvrot"] else f"s_mov_b32 s{sKOFF}, {t*8192}"
def dma_k(t):
    return [f"s_add_u32 m0, s{sVL}, {KR_BASE+(t&3)*8192}", kvoff(t),
            T(f"buffer_load_dwordx4 v{vDK}, {sr(sK,4)}, s{sKOFF} offen lds", ("K", t)),
            T(f"buffer_load_dwordx4 v{vDK+1}, {sr(sK,4)}, s{sKOFF} offen offset:1024 lds", ("K", t))]
def dma_v(t):
    return [f"s_add_u32 m0, s{sVL}, {X_BASE+(t&3)*8192}", kvoff(t),
            T(f"buffer_load_dwordx4 v{vDV}, {sr(sV,4)}, s{sKOFF} offen lds", ("V", t)),
            T(f"buffer_load_dwordx4 v{vDV+1}, {sr(sV,4)}, s{sKOFF} offen offset:1024 lds", ("V", t))]

class Stage:
    def __init__(s, idx, mat, j, ps, acc, areg, readb, vb):
        s.idx, s.mat, s.j, s.ps, s.acc, s.areg, s.readb, s.vb = idx, mat, j, ps, acc, areg, readb, vb
        s.slot = idx % NS; s.tag = (mat, ps, j); s.breg = ("a", 16*j)
    def dma(s):
        srd_, vd, stride = {"w1": (sW1, vD1, 3584), "wq": (sWQ, vDQ, 8192), "w2": (sW2, vDO, 1024), "wo": (sWO, vDO, 1024)}[s.mat]
        o = [f"s_add_u32 m0, s{sRING}, {s.slot*4096}", f"s_mov_b32 s{sOFF}, {s.j*32*stride + s.ps*128}"]
        if OPT["rot"] and s.mat == "wq":
            o[1] = [f"s_add_u32 s{sOFF}, s{sROT}, {s.j*32*8192 + s.ps*128}", f"s_and_b32 s{sOFF}, s{sOFF}, {512*8192-1}"]
        if OPT["rot"] and s.mat == "w1":
            o[1] = [f"s_add_u32 s{sOFF}, s{sROT}, {s.j*32*8192}", f"s_bfe_u32 s{sOFF}, s{sOFF}, {(9<<16)|13}", f"s_mul_i32 s{sOFF}, s{sOFF}, 3584"]
        return o + [T(f"buffer_load_dwordx4 v{vd+p}, {sr(srd_,4)}, s{sOFF} offen offset:{p*1024} lds", s.tag) for p in range(4)]
    def areads(s):
        ak, a = s.areg; o = [W("vm", s.tag)]
        for Tt in range(4):
            for t in range(2):
                va, off = (vTQ + (Tt >> 1), 8*(Tt & 1)) if s.mat == "wq" else (vTF + Tt, 0)
                o.append(T(f"ds_read_b64_tr_b16 {R(ak, a+4*Tt+2*t, 2)}, v{va} offset:{s.slot*4096+t*2048+off}", s.tag))
        return o
    def breads(s):
        if not s.readb: return []
        bk, b = s.breg
        return [T(f"ds_read_b128 {R(bk, b+4*rg, 4)}, v{s.vb+(s.j&1)} offset:{s.j*4096+rg*1024}", s.tag) for rg in range(4)]
    def reads(s): return s.breads() + s.areads()
    def one(s, Tt, rg):
        ak, a = s.areg; dk, d = s.acc(Tt, rg)
        c = () if s.j else ((BIAS + 4*Tt, "v") if s.mat == "w1" else (0,))
        return mfma(dk, d, ak, a+4*Tt, s.breg[0], s.breg[1]+4*rg, *c)
    def mf(s): return [s.one(Tt, rg) for Tt in range(4) for rg in range(4)]
def step(st, nxt_reads, dma, post=(), gb=None):
    E(W("lg", st.tag))
    plan = [[] for _ in range(16)]
    q = list(nxt_reads)
    dg = {}
    if dma:
        dg = {0: dma[:2], 3: dma[2:3], 7: dma[3:4]}
        if len(dma) == 6: dg.update({11: dma[4:5], 15: dma[5:6]})
        elif len(dma) == 8: dg.update({9: dma[4:6], 11: dma[6:7], 15: dma[7:8]})
    per = 1 if len(q) <= (16 - len(dg) - 2) else 2
    for g in range(16):
        if g in dg: plan[g] += dg[g]
        else: plan[g] += q[:per]; q = q[per:]
    assert not q
    plan[15] += list(post)
    gaps(st.mf(), plan, budget=gb or OPT["gb"])

def srd(d, ptr, off, size):
    E(f"s_add_u32 s{d}, s{ptr}, s{off}", f"s_addc_u32 s{d+1}, s{ptr+1}, 0")
    if size[0] == "rest": E(f"s_sub_u32 s{d+2}, {size[1]}, s{off}")
    else: E(f"s_mov_b32 s{d+2}, {size[1]}")
    E(f"s_mov_b32 s{d+3}, 0x00020000")

SPINS = []
def check_ready(name, vreg, load, val):
    SPINS.append((name, vreg, load, val))
    return [f"v_cmp_le_u32 vcc, {val}, v{vreg}", "s_nop 1", ["s_cmp_eq_u64 vcc, -1", f"s_cbranch_scc0 L_spin_{name}", f"L_ok_{name}:"]]
def blk(kind, lo, hi): return lambda Tt, rg: (kind, (lo, hi)[Tt >> 1] + 8*rg + 4*(Tt & 1))
def xred(op, a, b):
    return [f"v_mov_b32 v{b}, v{a}", "s_nop 1", f"v_permlane32_swap_b32 v{a}, v{b}", "s_nop 0", f"{op} v{a}, v{a}, v{b}",
            f"v_mov_b32 v{b}, v{a}", "s_nop 1", f"v_permlane16_swap_b32 v{a}, v{b}", "s_nop 0", f"{op} v{a}, v{a}, v{b}"]

def main_kernel(K):
    PRE = []
    def add(lst, mat, n, ps, acc, aregs, readb, vb):
        for j in range(n): lst.append(Stage(len(lst), mat, j, ps, acc, aregs(len(lst)), readb, vb))
    av = lambda i: ("v", B3 + 16*(i & 1)); aa = lambda i: ("a", 112 + 16*(i & 1))
    add(PRE, "wq", 16, 0, blk("v", B0, B1), av, True, vB)
    add(PRE, "w1", 16, 0, blk("v", B4, B5), av, False, vB)
    add(PRE, "wq", 16, 1, blk("v", B1, B2), av, False, vB)
    add(PRE, "w2", 7, 0, blk("v", B2, B4), aa, True, vBC)
    add(PRE, "w2", 7, 1, blk("a", 192, 224), aa, False, vBC)
    POST = []
    ao = lambda i: ("v", B0 + 16*(i % 3))
    add(POST, "wo", 16, 0, blk("v", B4, B3), ao, True, vB)
    add(POST, "wo", 16, 1, blk("v", B2, B5), ao, False, vB)
    for st in POST:
        if st.j >= 12:
            st.readb = True
            st.breg = ("v", B2 + 16*(st.j & 1)) if st.ps == 0 else ("a", 16*(st.j - 12))

    E(".p2align 12", ".p2align 8", f".globl {K}", f".type {K},@function", f"{K}:")
    E("s_cmp_ge_u32 s2, 256", "s_cbranch_scc1 L_main_end")
    E(f"s_mov_b32 s{sFLAG}, 0", [f"v_mov_b32 v{vM+j}, 0" for j in range(4)])
    E("L_restart:")
    if OPT["stamps"]:
        E("s_memrealtime s[86:87]"); stamp(0)
    E("s_load_dwordx8 s[60:67], s[0:1], 0", "s_load_dwordx2 s[68:69], s[0:1], 32", "s_load_dwordx4 s[88:91], s[0:1], 48",
      "s_load_dwordx8 s[92:99], s[0:1], 64", "s_load_dwordx2 s[58:59], s[0:1], 96")
    if OPT["codepf"]:
        E("s_getpc_b64 s[100:101]", "L_pc:", f"s_sub_u32 s100, s100, L_pc-{K}", "s_subb_u32 s101, s101, 0")
        E(f"s_bfe_u32 s{sT0}, s2, 0x30003", f"s_lshl_b32 s{sT0}, s{sT0}, 14", f"v_lshlrev_b32 v{vT}, 6, v0", f"v_add_u32 v{vT}, s{sT0}, v{vT}",
          f"v_min_u32 v{vT}, L_code_end-{K}-4, v{vT}")
        E(f"global_load_dword v{PFD}, v{vT}, s[100:101]")
    l = vLANE
    pt = 128
    row, c7, t0, t1, t2, t3, t4, cl, zr, bo = range(pt, pt + 10)
    xo = pt + 12
    wa, pw = 58, 60
    def cap(fn):
        global L
        keep = L; L = []; fn(); got = [x.strip() for x in L]; L = keep
        return got
    def srdl(d, ptr, off, size):
        c = cap(lambda: srd(d, ptr, off, size)); return [c[:2], c[2], c[3]]
    E(f"v_lshrrev_b32 v{t0}, 6, v0", f"v_and_b32 v{l}, 63, v0")
    HG = OPT["hg"]; lh = HG.bit_length() - 1
    E(f"s_and_b32 s{sG}, s2, {8//HG-1}", f"s_lshl_b32 s{sG}, s{sG}, {lh}", f"s_bfe_u32 s{sT0}, s2, {(lh<<16)|3}", f"s_or_b32 s{sG}, s{sG}, s{sT0}",
      f"s_lshr_b32 s{sJJ}, s2, {3+lh}", f"s_bfe_u32 s{sRB}, s2, {(lh<<16)|(3-lh)}", f"s_lshl_b32 s{sRB}, s{sRB}, {5-lh}", f"s_or_b32 s{sRB}, s{sRB}, s{sJJ}")
    E(f"v_readfirstlane_b32 s{sW}, v{t0}")
    E(f"v_bfe_u32 v{row}, v0, 3, 3", f"v_lshl_add_u32 v{t1}, v{t0}, 4, v{row}",
      f"v_and_b32 v{c7}, 7, v0", f"v_lshlrev_b32 v{xo}, 4, v{c7}", f"v_lshl_add_u32 v{xo}, v{t1}, 10, v{xo}", f"v_add_u32 v{xo+1}, 8192, v{xo}")
    XS = 8
    if OPT["rot"]:
        E(f"s_and_b32 s{sROT}, s{sJJ}, {OPT['rot']-1}", f"s_mul_i32 s{sROT}, s{sROT}, {8//OPT['rot']}", f"s_lshl_b32 s{XS}, s{sROT}, 7")
        for i in range(1, 8): E(f"s_add_u32 s{XS+i}, s{XS}, {128*i}", f"s_and_b32 s{XS+i}, s{XS+i}, 1023")
        E(f"s_lshl_b32 s{sROT}, s{sROT}, 19")
    E(f"s_and_b32 s{sJJ}, s{sJJ}, {OPT['kvrot']}", f"s_lshl_b32 s{sJJ}, s{sJJ}, 13")
    E(f"s_or_b32 s{sT0}, s{sG}, s{sW}", f"s_or_b32 s{sT0}, s{sT0}, s{sFLAG}", f"s_cmp_eq_u32 s{sT0}, 0", f"s_cselect_b32 s{sT2}, 0, {OOB}",
      f"v_lshlrev_b32 v{cl}, 8, v{row}", f"v_lshl_add_u32 v{cl}, v{c7}, 2, v{cl}", f"v_add_u32 v{cl}, s{sT2}, v{cl}",
      f"v_mov_b32 v{zr}, 0", f"v_mov_b32 v{vL}, s{sT2}", f"v_mov_b32 v{vL+1}, 1")
    E(f"s_mul_i32 s{sRING}, s{sW}, {NS*4096}", f"s_add_u32 s{sRING}, s{sRING}, {R_BASE}", f"s_lshl_b32 s{sVL}, s{sW}, 11", f"s_mov_b32 s{sC0}, 0xffff0000")
    E(f"v_lshrrev_b32 v{t2}, 4, v{l}", f"v_lshlrev_b32 v{t2}, 1, v{t2}", f"v_xor_b32 v{t3}, v{c7}, v{t2}", f"v_lshlrev_b32 v{t1}, 4, v{t3}",
      f"v_lshrrev_b32 v{t0}, 5, v{l}", f"v_and_b32 v{t2}, 3, v{row}", f"v_lshl_add_u32 v{t0}, v{t0}, 3, v{t2}",
      f"v_mul_u32_u24 v{t2}, 3584, v{t0}", f"s_lshl_b32 s{sT4}, s{sW}, 7", f"v_add3_u32 v{vD1}, v{t2}, v{t1}, s{sT4}",
      f"v_lshl_add_u32 v{vDV}, v{row}, 8, v{t1}",
      f"s_lshl_b32 s{sT0}, s{sW}, 8", f"v_add_u32 v{t1}, s{sT0}, v{t1}",
      f"v_lshl_add_u32 v{vDQ}, v{t0}, 13, v{t1}", f"v_lshl_add_u32 v{vDO}, v{row}, 10, v{t1}")
    if OPT["dropoob"]:
        E(f"s_and_b32 s{sT0}, s{sG}, 1", f"s_xor_b32 s{sT0}, s{sT0}, 1", f"s_mul_i32 s{sT0}, s{sT0}, 7", f"s_lshl_b32 s{sT3}, s{sW}, 1",
          f"v_lshrrev_b32 v{t3}, 2, v{t3}", f"v_or_b32 v{t3}, s{sT3}, v{t3}", f"v_cmp_eq_u32 vcc, s{sT0}, v{t3}", f"v_mov_b32 v{t2}, {OOB}", "s_nop 0",
          f"v_cndmask_b32 v{vD1}, v{vD1}, v{t2}, vcc")
    natp = lambda p, stride: (16*(p & 1) + 4*(p >> 1)) * stride - p*1024
    for p in range(1, 4): E(f"v_add_u32 v{vDQ+p}, {natp(p, 8192)}, v{vDQ}")
    E(f"v_xor_b32 v{t0}, v{row}, v{c7}", f"v_and_b32 v{t1}, 3, v{c7}", f"v_lshl_add_u32 v{t0}, v{t1}, 4, v{t0}", f"v_lshlrev_b32 v{t0}, 4, v{t0}",
      f"v_lshrrev_b32 v{t1}, 2, v{c7}", f"v_lshl_add_u32 v{t0}, v{t1}, 12, v{t0}", f"s_lshl_b32 s{sT0}, s{sW}, 10", f"v_add_u32 v{wa}, s{sT0}, v{t0}")
    E(f"s_lshl_b32 s{sT0}, s{sRB}, 16", f"s_lshl_b32 s{sT1}, s{sRB}, 12", f"s_add_u32 s{sT1}, s{sT1}, {FLAG_OFF}")
    E(f"s_lshr_b32 s{sT3}, s{sG}, 1", f"s_mul_i32 s{sT3}, s{sT3}, 896", f"s_and_b32 s{sT2}, s{sG}, 1", f"s_mul_i32 s{sT2}, s{sT2}, 384",
      f"s_add_u32 s{sT3}, s{sT3}, s{sT2}")
    E("s_waitcnt lgkmcnt(0)")
    srd(sX, 60, sT0, ("imm", 65536))
    RAW = 64; ACCH = B4
    U1 = srdl(sB1, 90, sT3, ("rest", 3584)) + srdl(sP, 58, sT1, ("imm", 1024)) + \
         [T(f"buffer_store_dword v{zr}, v{cl}, {sr(sP,4)}, 0 offen sc1", "clr")] + srdl(sW1, 88, sT3, ("rest", 1835008))
    def trs():
        E(f"v_lshrrev_b32 v{t0}, 2, v{l}", f"v_lshlrev_b32 v{t0}, 7, v{t0}", f"v_bfe_u32 v{t1}, v{l}, 3, 2", f"v_and_b32 v{t2}, 3, v{l}",
          f"v_lshl_add_u32 v{t3}, v{t2}, 3, v{t0}")
        for Tt in range(4):
            E(f"v_xor_b32 v{t4}, {Tt}, v{t1}", f"v_lshl_add_u32 v{vTV+Tt}, v{t4}, 5, v{t3}", f"v_add_u32 v{vTF+Tt}, s{sRING}, v{vTV+Tt}")
        E(f"v_and_b32 v{t3}, 1, v{l}", f"v_lshl_add_u32 v{t3}, v{t3}, 4, v{t0}", f"v_add_u32 v{t3}, s{sRING}, v{t3}", f"v_lshrrev_b32 v{t2}, 1, v{t2}",
          f"v_xor_b32 v{t2}, v{t2}, v{t1}")
        for t32 in range(2): E(f"v_xor_b32 v{t4}, {2*t32}, v{t2}", f"v_lshl_add_u32 v{vTQ+t32}, v{t4}, 5, v{t3}")
        E(f"v_lshrrev_b32 v{t1}, 4, v{l}", f"v_xor_b32 v{t1}, v{t1}, v{l}", f"v_lshlrev_b32 v{vB}, 4, v{t1}", f"v_xor_b32 v{vB+1}, 64, v{vB}")
    U1 += cap(trs)
    U1 += [f"v_lshrrev_b32 v{t3}, 4, v0", f"v_and_b32 v{t4}, 15, v0", f"v_lshlrev_b32 v{pw}, 6, v{t4}", f"v_lshl_add_u32 v{pw}, v{t3}, 13, v{pw}",
           f"v_lshlrev_b32 v{pw+2}, 4, v0", f"v_lshlrev_b32 v{pw+3}, 5, v0", f"v_mul_u32_u24 v{t3}, 3584, v{t3}", f"v_lshl_add_u32 v{pw+1}, v{t4}, 5, v{t3}"]
    U1 += [f"s_lshl_b32 s{sT0}, s{sG}, 10"] + srdl(sWQ, 66, sT0, ("rest", 4194304))
    U1 += [f"s_lshl_b32 s{sT0}, s{sG}, 19"] + srdl(sWO, 68, sT0, ("rest", 4194304))
    U1 += [f"s_mul_i32 s{sT2}, s{sG}, {224*1024}"] + srdl(sW2, 92, sT2, ("rest", 1835008))
    U1 += [x for p in range(1, 4) for x in (f"v_add_u32 v{vD1+p}, {natp(p, 3584)}, v{vD1}", f"v_add_u32 v{vDO+p}, {p*(8*1024-1024)}, v{vDO}")]
    U1 = deque(U1); per = (len(U1) + 15) // 16
    for i in range(8):
        for p in range(2):
            if OPT["rot"]: E(T(f"buffer_load_dwordx4 {vr(RAW+32*p+4*i,4)}, v{xo+p}, {sr(sX,4)}, s{XS+i} offen", ("x", p, i)))
            else: E(T(f"buffer_load_dwordx4 {vr(RAW+32*p+4*i,4)}, v{xo+p}, {sr(sX,4)}, 0 offen offset:{i*128}", ("x", p, i)))
            for _ in range(per):
                if U1: E(U1.popleft())
    stamp(2)
    E(f"s_add_u32 s{sT0}, s{sT0}, {1536*256}"); srd(sK, 62, sT0, ("imm", 131072)); srd(sV, 64, sT0, ("imm", 131072))
    srd(sFL, 58, sT1, ("imm", 1024))
    E(f"s_lshl_b32 s{sT0}, s{sRB}, 2"); srd(sDBG, 98, sT0, ("imm", 4))
    if OPT["stubs"]:
        E("s_mov_b64 exec, 0")
        for w_ in range(3): E(f"s_cmp_eq_u32 s{sW}, {w_}", f"s_cbranch_scc1 L_pg{w_}")
        E("s_branch L_pg3", "L_pgret:", "s_mov_b64 exec, -1")
    def later():
        E(f"s_and_b32 s{sT0}, s{sW}, 1", f"s_lshl_b32 s{sT0}, s{sT0}, 12", f"s_lshr_b32 s{sT1}, s{sW}, 1", f"s_lshl_b32 s{sT1}, s{sT1}, 7",
          f"s_add_u32 s{sT0}, s{sT0}, s{sT1}", f"v_add_u32 v{vDV}, s{sT0}, v{vDV}", f"v_add_u32 v{vDV+1}, 1024, v{vDV}")
        E(f"v_lshrrev_b32 v{t0}, 4, v{l}")
        for p in range(2):
            E(f"s_lshl_b32 s{sT0}, s{sW}, 3", f"s_add_u32 s{sT0}, s{sT0}, {4*p}", f"v_add_u32 v{t2}, s{sT0}, v{t0}",
              f"v_xor_b32 v{t3}, v{t2}, v{l}", f"v_and_b32 v{t3}, 15, v{t3}", f"v_lshlrev_b32 v{t3}, 4, v{t3}",
              f"v_lshl_add_u32 v{vDK+p}, v{t2}, 8, v{t3}")
            if p: E(f"v_subrev_u32 v{vDK+p}, 1024, v{vDK+p}")
        E(f"v_and_b32 v{t1}, 15, v{l}", f"v_lshlrev_b32 v{t2}, 8, v{t1}", f"v_add_u32 v{t2}, {KR_BASE}, v{t2}", f"v_xor_b32 v{t1}, v{t1}, v{t0}")
        for s_ in range(4): E(f"v_xor_b32 v{t3}, {4*s_}, v{t1}", f"v_lshl_add_u32 v{vKR+s_}, v{t3}, 4, v{t2}")
        E(f"s_lshl_b32 s{sT0}, s{sW}, 14", f"v_lshlrev_b32 v{vST}, 4, v{l}", f"v_add_u32 v{vST}, s{sT0}, v{vST}")
    LATER = cap(later)
    LATER += [f"s_lshl_b32 s{sT0}, s{sRB}, 3", f"s_or_b32 s{sT0}, s{sT0}, s{sG}", f"s_lshl_b32 s{sT0}, s{sT0}, 17"] + srdl(sP, 58, sT0, ("imm", 131072))
    LATER += [f"s_lshr_b32 s{sT1}, s{sG}, 1", f"s_lshl_b32 s{sT1}, s{sT1}, 2", f"s_and_b32 s{sT0}, s{sG}, 1", f"s_or_b32 s{sT4}, s{sT1}, s{sT0}",
              f"s_lshl_b32 s{sT0}, s{sRB}, 20", f"s_lshl_b32 s{sT1}, s{sT4}, 12", f"s_add_u32 s{sT0}, s{sT0}, s{sT1}"] + srdl(sPR, 58, sT0, ("imm", 1 << 20))
    LATER += [f"s_lshl_b32 s{sVOFF}, s{sT4}, 6"] + srdl(sB2, 94, sVOFF, ("rest", 1024))
    LATER += [f"s_lshl_b32 s{sT0}, s{sRB}, 16"] + srdl(sOUT, 96, sT0, ("imm", 65536))
    LATER2 = LATER[38:]
    BRW1 = 50
    LATER = [f"v_lshrrev_b32 v{bo}, 4, v{l}", f"v_lshlrev_b32 v{bo}, 3, v{bo}", f"s_lshl_b32 s{sT2}, s{sW}, 7"] + \
            [T(f"buffer_load_dwordx2 {vr(BRW1+2*q,2)}, v{bo}, {sr(sB1,4)}, s{sT2} offen offset:{q*32}", "bias") for q in range(4)] + LATER[:38]
    LATER.append(W("vm", "bias"))
    for r in range(16):
        LATER.append((f"v_lshlrev_b32 v%d, 16, v{BRW1+r//2}" if r % 2 == 0 else f"v_and_b32 v%d, s{sC0}, v{BRW1+r//2}") % (BIAS+r))
        LATER.append(f"v_mul_f32 v{BIAS+r}, {f32(CS)}, v{BIAS+r}")
    PFS = [[f"s_lshl_b32 s{sT3}, s{sRB}, 17", f"buffer_load_dword v{PFD}, v{pw}, {sr(sWQ,4)}, s{sT3} offen"],
           [f"s_mul_i32 s{sT3}, s{sRB}, 7168", f"buffer_load_dword v{PFD}, v{pw+3}, {sr(sW2,4)}, s{sT3} offen"],
           [f"s_lshl_b32 s{sT3}, s{sRB}, 12", f"buffer_load_dword v{PFD}, v{pw+2}, {sr(sK,4)}, s{sT3} offen"],
           [f"buffer_load_dword v{PFD}, v{pw+2}, {sr(sV,4)}, s{sT3} offen"]]
    SP = deque()
    for s_ in range(NS):
        d = PRE[s_].dma(); SP.append(d[:3]); SP.extend(d[3:])
    if OPT["pfpos"] == 1: SP.extend(PFS)
    if OPT["pfpos"] == 2: SP.append([f"s_mul_i32 s{sT3}, s{sRB}, {16*3584}", f"buffer_load_dword v{PFD}, v{pw+1}, {sr(sW1,4)}, s{sT3} offen"])
    if OPT["pfpos"] == 3: SP.append([f"s_mul_i32 s{sT3}, s{sRB}, {16*3584}", f"buffer_load_dword v{PFD}, v{pw+1}, {sr(sW1,4)}, s{sT3} offen"]); SP.append(PFS[1])
    if OPT["pfpos"] == 4: SP.append(PFS[1])
    nsp = [0]
    def sp(n=1, force=False):
        for _ in range(n):
            if SP and (force or nsp[0] < OPT["npre"]): E(SP.popleft()); nsp[0] += 1
    SUM, SQ = 50, 54
    for i in range(8):
        for p in range(2):
            E(W("vm", ("x", p, i)))
            r = RAW + 32*p + 4*i; u = B2 + 32*p + 4*i; m = SUM + 2*p; q = SQ + 2*p
            for j in range(4): E(f"v_lshlrev_b32 v{u+j}, 16, v{r+j}", f"v_and_b32 v{r+j}, s{sC0}, v{r+j}")
            for k, b_ in enumerate((u, r, u+2, r+2)):
                if i == 0 and k == 0: E(f"v_pk_add_f32 {vr(m,2)}, {vr(u,2)}, {vr(r,2)}", f"v_pk_mul_f32 {vr(q,2)}, {vr(u,2)}, {vr(u,2)}")
                elif i == 0 and k == 1: E(f"v_pk_fma_f32 {vr(q,2)}, {vr(b_,2)}, {vr(b_,2)}, {vr(q,2)}")
                else: E(f"v_pk_add_f32 {vr(m,2)}, {vr(m,2)}, {vr(b_,2)}", f"v_pk_fma_f32 {vr(q,2)}, {vr(b_,2)}, {vr(b_,2)}, {vr(q,2)}")
            if 2*i + p >= OPT["sp0"]: sp()
    stamp(2)
    E(W("vm", "clr"), f"buffer_store_dword v{vL+1}, v{vL}, {sr(sDBG,4)}, 0 offen sc1")
    R4 = [SUM, SUM+2, SQ, SQ+2]
    for v in R4: E(f"v_add_f32 v{v}, v{v}, v{v+1}")
    for md in ("quad_perm:[1,0,3,2]", "quad_perm:[2,3,0,1]", "row_half_mirror"):
        for v in R4: E(f"v_add_f32_dpp v{v}, v{v}, v{v} {md} row_mask:0xf bank_mask:0xf")
    def both(fmt): E([fmt.format(m=SUM+2*p, q=SQ+2*p) for p in range(2)])
    both(f"v_mul_f32 v{{m}}, {f32(1/512)}, v{{m}}"); both(f"v_mul_f32 v{{q}}, {f32(1/512)}, v{{q}}")
    both("v_fma_f32 v{q}, -v{m}, v{m}, v{q}"); both("v_max_f32 v{q}, 0, v{q}")
    both("v_cvt_pk_bf16_f32 v{q}, v{q}, v{m}")
    both(f"v_and_b32 v{{m}}, s{sC0}, v{{q}}"); both("v_lshlrev_b32 v{q}, 16, v{q}")
    both(f"v_add_f32 v{{q}}, {f32(1e-5)}, v{{q}}"); both("v_cvt_pk_bf16_f32 v{q}, v{q}, v{q}"); both("v_lshlrev_b32 v{q}, 16, v{q}")
    both("v_sqrt_f32 v{q}, v{q}"); E("s_nop 0"); both("v_cvt_pk_bf16_f32 v{q}, v{q}, v{q}"); both("v_lshlrev_b32 v{q}, 16, v{q}")
    both("v_rcp_f32 v{q}, v{q}"); E("s_nop 0"); both(f"v_mul_f32 v{{q}}, {f32(CS)}, v{{q}}"); both("v_mul_f32 v{m}, v{m}, v{q}")
    stamp(2)
    for i in range(8):
        for p in range(2):
            r = RAW + 32*p + 4*i; u = B2 + 32*p + 4*i
            for b_ in (u, r, u+2, r+2):
                E(f"v_pk_fma_f32 {vr(b_,2)}, {vr(b_,2)}, {vr(SQ+2*p,2)}, {vr(SUM+2*p,2)} op_sel_hi:[1,0,0] neg_lo:[0,0,1] neg_hi:[0,0,1]")
            for j in range(4): E(f"v_cvt_pk_bf16_f32 v{r+j}, v{u+j}, v{r+j}")
            E(f"ds_write_b128 v{wa}, {vr(r,4)} offset:{i*8192+p*128}")
    stamp(2)
    sp(99, force=True)
    E(PRE[0].areads())
    E("s_waitcnt lgkmcnt(8)", "s_barrier")
    if OPT["stamps"] < 4: stamp(0)
    E(PRE[0].breads())
    BG.extend(LATER)
    def kreads(t): return [T(f"ds_read_b128 {ar(aKF+8*s_+4*hk,4)}, v{vKR+s_} offset:{(t&3)*8192+hk*4096}", ("kf", t)) for s_ in range(4) for hk in range(2)]
    def vreads(t): return [T(f"ds_read_b64_tr_b16 {ar(aVF+4*T8+2*t_,2)}, v{vTV+(T8&3)} offset:{(t&3)*8192+(T8>>2)*4096+t_*2048}", ("vf", t))
                           for T8 in range(8) for t_ in range(2)]
    def qk(x, dst, zero=False):
        return [mfma("v", dst+8*rl+4*hk, "a", aKF+8*s_+4*hk, "v", QFr(2*x+rl, s_), *(((0,) if zero else (NEGM+4*(2*x+rl), "v")) if s_ == 0 else ()))
                for s_ in range(4) for hk in range(2) for rl in range(2)]
    def pv(x, p, zero=False):
        return [mfma("a", aO+64*x+16*(T8>>1)+8*rl+4*(T8&1), "a", aVF+4*T8, "v", p+4*rl, 0 if zero else None) for T8 in range(8) for rl in range(2)]
    def sm_plan(x, s, p):
        pl = [[] for _ in range(32)]
        for j in range(16): pl[max(0, 2*j-1)].append(f"v_exp_f32 v{s+j}, v{s+j}")
        for j in range(16): pl[min(31, max(2, 2*j+2 if j else 2))].append(f"v_add_f32 v{vL+2*x+(j>>3)}, v{vL+2*x+(j>>3)}, v{s+j}")
        for k in range(8): pl[min(31, 4*k+4)].append(f"v_cvt_pk_bf16_f32 v{p+k}, v{s+2*k}, v{s+2*k+1}")
        return pl
    def epi_unit(kind, src, typ, T32, rg, tmp, tag):
        o = []; b = tmp if kind == "a" else src
        if kind == "a":
            for r in range(8): o.append(f"v_accvgpr_read_b32 v{b+r}, a{src+r}")
        for j in range(4): o.append(f"v_cvt_pk_bf16_f32 v{b+j}, v{b+2*j}, v{b+2*j+1}")
        o.append([f"s_mov_b32 s{sT4}, {typ*65536 + T32*4096}",
                  T(f"buffer_store_dwordx4 {vr(b,4)}, v{vST}, {sr(sP,4)}, s{sT4} offen offset:{rg*1024} sc1", tag)])
        return o
    NP = len(PRE)
    KV = deque([dma_v(0) + dma_k(2), dma_v(1) + dma_k(3), dma_v(2)])
    vHW = vD1
    HP = lambda n: B4 + 4*n
    for i, st in enumerate(PRE):
        d = PRE[i + NS].dma() if i + NS < NP else (KV.popleft() if KV else [])
        post = []
        if OPT["pfpos"] == 2 and i == OPT["pf2"]: post = PFS[1] + PFS[2] + PFS[3]
        if OPT["pfpos"] == 2 and i == OPT["pf1"]: post = PFS[0]
        if i == 16:
            flush(); E("s_nop 1")
            post = ["s_barrier"]
        if i == 17:
            for j in range(32): BG.append(f"v_cvt_pk_bf16_f32 v{B0+j}, v{B0+2*j}, v{B0+2*j+1}")
            BG.extend([f"s_and_b32 s{sT0}, s{sG}, 1", f"s_lshl_b32 s{sT1}, s{sT0}, 12", f"s_lshl_b32 s{sT0}, s{sT0}, 6"])
            for j in range(2): BG.extend([f"v_xor_b32 v{vBC+j}, s{sT0}, v{vB+j}", f"v_add_u32 v{vBC+j}, s{sT1}, v{vBC+j}"])
            BG.extend([f"s_lshl_b32 s{sT0}, s{sW}, 8", f"s_lshl_b32 s{sT1}, s{sG}, 2", f"s_add_u32 s{sT0}, s{sT0}, s{sT1}",
                       f"v_min_u32 v{vPUB}, 1, v{l}", f"v_lshlrev_b32 v{vPUB}, 30, v{vPUB}", f"v_add_u32 v{vPUB}, s{sT0}, v{vPUB}",
                       f"s_lshr_b32 s{sT0}, s{sG}, 1", f"s_lshl_b32 s{sT0}, s{sT0}, 8",
                       f"v_and_b32 v{vPOLL}, 7, v{l}", f"v_lshlrev_b32 v{vPOLL}, 2, v{vPOLL}", f"v_add_u32 v{vPOLL}, s{sT0}, v{vPOLL}",
                       f"v_lshlrev_b32 v{vRD}, 4, v0"])
            for j in range(4): BG.append(f"v_mov_b32 v{vL+j}, 0")
            BG.extend(LATER2)
        if i == 32: flush()
        if i == 33:
            BG.append(f"s_lshl_b32 s{sT0}, s{sW}, 13")
            for j in range(2): BG.append(f"v_add_u32 v{vHW+j}, s{sT0}, v{vB+j}")
            for n in range(8):
                b = ACCH + 8*n
                for r in range(8): BG.append(f"v_max_f32 v{b+r}, 0, v{b+r}")
                for r in range(8): BG.append(f"v_mul_f32 v{b+r}, v{b+r}, v{b+r}")
                for j in range(4): BG.append(f"v_cvt_pk_bf16_f32 v{HP(n)+j}, v{b+2*j}, v{b+2*j+1}")
        if i == 36: post = dma_k(0)
        if i == 38: post = dma_k(1)
        if i == 44: post = [W("vm", ("K", 1)), "s_barrier"]
        if i == 45:
            for x in reversed(kreads(0)): BG.appendleft(x)
        if i == 54: post = ["s_barrier"]
        if i in (58, 59, 60, 61):
            for n in (2*(i-58), 2*(i-58)+1): BG.extend(epi_unit("v", (B2, B4)[n >> 2] + 8*(n & 3), 1, n >> 2, n & 3, None, "fst"))
        step(st, PRE[48].areads() if i == 47 else PRE[i + 1].reads() if i + 1 < NP else [], d, post=post, gb=(OPT["f2b"] if 48 <= i < 54 else None))
        if i in (15, 47): stamp()
        if i in (3, 7, 11, 15, 19, 23, 27, 31, 35, 39, 43): stamp(3)
        if i == 47:
            flush()
            E(W("lg", ("kf", 0)))
            q0, q1 = qk(0, S0, True), qk(1, S1[0], True)
            cv = [f"v_cvt_pk_bf16_f32 v{B1+j}, v{B1+2*j}, v{B1+2*j+1}" for j in range(32)]
            hw = [T(f"ds_write_b128 v{vHW+(n>>2)}, {vr(HP(n),4)} offset:{(n>>2)*4096+(n&3)*1024}", "hw") for n in range(8)]
            pl = [[] for _ in range(32)]
            for g in range(2, 13): pl[g] = cv[3*(g-2):3*(g-1)]
            h0 = OPT["hw0"]
            for n in range(8): pl[h0 + 2*n].append(hw[n])
            pl[min(31, h0 + 18)] += [W("lg", "hw"), "s_barrier"] + PRE[48].breads()
            gaps(q0[:8] + q1[:8] + q0[8:] + q1[8:], pl)
            BG.extend(kreads(1))
            for rg in range(4):
                s = (S0, S1[0])[rg >> 1] + 8*(rg & 1); m = vT
                BG.extend([f"v_max3_f32 v{m}, v{s}, v{s+1}, v{s+2}", f"v_max3_f32 v{m}, v{m}, v{s+3}, v{s+4}", f"v_max3_f32 v{m}, v{m}, v{s+5}, v{s+6}",
                           f"v_max_f32 v{m}, v{m}, v{s+7}"] + xred("v_max_f32", m, vT+1))
                BG.extend([[f"s_cmp_lg_u32 s{sFLAG}, 0", "s_cselect_b64 vcc, -1, 0"], "s_nop 0", f"v_cndmask_b32 v{m}, v{m}, v{vM+rg}, vcc"])
                for r in range(4): BG.append(f"v_sub_f32 v{NEGM+4*rg+r}, 0, v{m}")
                for r in range(8): BG.append(f"v_sub_f32 v{s+r}, v{s+r}, v{m}")
            for g in sm_plan(0, S0, P0[0]): BG.extend(g)
    flush()
    stamp()
    E(W("vm", ("K", 2)), "s_waitcnt lgkmcnt(0)")
    def att_iter(i, x1=(), x2=()):
        if i == 0: E("s_barrier")
        pl = sm_plan(1, S1[i&1], P1)
        vrd = vreads(i)
        slots = [0, 2, 2, 4, 6, 6, 8, 10, 10, 12, 14, 14, 16, 18, 18, 20]
        for g, x in zip(slots, vrd): pl[g].append(x)
        x1 = list(x1)
        if x1:
            pl[22] += x1[:2]
            for g, x in zip((24, 26, 28, 30), x1[2:]): pl[g].append(x)
        gaps(qk(0, S0) + qk(1, S1[(i+1)&1]), pl)
        E(W("lg", ("vf", i)))
        pl = sm_plan(0, S0, P0[(i+1)&1])
        if i + 2 < 16:
            for g, x in zip((0, 2, 4, 6, 8, 10, 12, 14), kreads(i + 2)): pl[g].append(x)
        dv = dma_v(i + 3) if i + 3 < 16 else []
        dk = dma_k(i + 5) if i + 5 < 16 else []
        pl[9] += list(x2)
        if dv: pl[14] += dv[:1]; pl[16] += dv[1:2]; pl[18] += dv[2:3]; pl[20] += dv[3:]
        if dk: pl[22] += dk[:2]; pl[24] += dk[2:3]; pl[26] += dk[3:]
        pl[28] += [W("vm", ("K", i+3)), W("vm", ("V", i+1)), W("lg", ("kf", i+2))]
        pl[30] = ["s_barrier"] + pl[30]
        gaps(pv(0, P0[i&1], zero=(i == 0)) + pv(1, P1, zero=(i == 0)), pl)
    VAL = vT + 3; GATE = vT + 4; POL = vT + 5
    poll = f"buffer_load_dword v{POL}, v{vPOLL}, {sr(sFL,4)}, 0 offen sc1"
    pub = f"buffer_store_dword v{VAL}, v{vPUB}, {sr(sFL,4)}, 0 offen sc1"
    PZ = vDQ
    for i in range(15):
        x1 = []; x2 = []
        if i == 0:
            x1 = dma_k(4)
            BG.extend([f"v_mov_b32 v{PZ+j}, {SENT:#x}" for j in range(4)])
            BG.extend([f"v_lshlrev_b32 v{vT}, 6, v0", f"v_mov_b32 v{vT+1}, 0", f"v_mov_b32 v{VAL}, 1",
                       [f"s_lshl_b32 s{sT1}, s{sRB}, 14", f"buffer_load_dword v{PFD}, v{vT}, {sr(sWO,4)}, s{sT1} offen"]])
        if i < 8:
            BG.extend(epi_unit("a", 192 + 8*i, 1, 2 + (i >> 2), i & 3, B2 + 8*(i & 3), "fst"))
            for q in (2*i, 2*i+1):
                BG.append([f"s_mov_b32 s{sT4}, {(q>>2)*4096}", f"buffer_store_dwordx4 {vr(PZ,4)}, v{vST}, {sr(sP,4)}, s{sT4} offen offset:{(q&3)*1024} sc1"])
        gl = f"buffer_load_dword v{GATE}, v{vT+1}, {sr(sDBG,4)}, 0 offen sc1"
        if i == 2: BG.append(T(gl, "gate"))
        if i == 5: BG.extend([W("vm", "gate")] + check_ready("gate", GATE, gl, 1))
        if i == 8: x2 = ["s_waitcnt vmcnt(0)", pub]
        if i == 10: x2 = [T(poll, "fpoll")]
        if i == 12: BG.extend([W("vm", "fpoll")] + check_ready("f", POL, poll, 1))
        if i in (12, 13, 14):
            for n in range((0, 5, 11)[i-12], (5, 11, 16)[i-12]):
                ps, g = n >> 3, n & 7
                BG.append([f"s_mov_b32 s{sT4}, {g*131072 + 65536 + ps*8192}", T(f"buffer_load_dwordx4 {ar(aFL+4*n,4)}, v{vRD}, {sr(sPR,4)}, s{sT4} offen sc1", ("fl", n))])
        if i in (2, 3, 9, 10, 11): x1 = POST[(2, 3, 9, 10, 11).index(i)].dma()
        if i >= 3: stamp(4)
        keep = OPT["budget"]
        if BG: OPT["budget"] = 12
        att_iter(i, x1=x1, x2=x2)
        OPT["budget"] = keep
        flush()
    i = 15
    E(vreads(i))
    def lfin(rg): return xred("v_add_f32", vL+rg, LR+8) + [f"v_rcp_f32 v{LR+2*rg}, v{vL+rg}"]
    E(f"s_lshl_b32 s{sT0}, s{sW}, 14")
    for j in range(2): E(f"v_add_u32 v{vBC+j}, s{sT0}, v{vB+j}")
    E(lfin(0))
    pl32 = sm_plan(1, S1[i&1], P1)
    E(pl32[:4])
    E("s_waitcnt lgkmcnt(0)")
    pl = [pl32[4+2*g] + pl32[5+2*g] if g < 14 else [] for g in range(16)]
    pl[0] = ["s_barrier"] + pl[0]
    gaps(pv(0, P0[i&1]), pl)
    BG.extend(lfin(1) + lfin(2) + lfin(3))
    OT = B2
    gaps(pv(1, P1), [], budget=12)
    flush()
    E(f"v_add_f32 v{vT+1}, v{vL}, v{vL+1}", f"v_add_f32 v{vT+2}, v{vL+2}, v{vL+3}", f"s_mov_b32 s{sT1}, {f32(2.0**OPT['thr'])}", f"v_add_f32 v{vT+1}, v{vT+1}, v{vT+2}",
      f"v_cmp_nge_f32 vcc, s{sT1}, v{vT+1}", f"v_and_b32 v{vT+2}, 3, v{l}", f"v_mul_u32_u24 v{vT+2}, {NS*4096}, v{vT+2}",
      "s_cmp_lg_u64 vcc, 0", f"s_cselect_b32 s{sT1}, 1, 0", f"v_mov_b32 v{vT}, s{sT1}",
      f"s_lshl_b32 s{sT1}, s{sW}, 2", f"s_add_u32 s{sT1}, s{sT1}, {R_BASE}", f"v_add_u32 v{vT+2}, s{sT1}, v{vT+2}", f"v_mov_b32 v{vT+1}, s{sRING}",
      f"ds_write_b32 v{vT+2}, v{vT} offset:{5*4096}")
    stamp()
    for n in range(16):
        x, T32, rl = n >> 3, (n >> 1) & 3, n & 1
        b = OT + 8*(n & 7); rg = 2*x + rl
        for r in range(8): E(f"v_accvgpr_read_b32 v{b+r}, a{aO+8*n+r}")
        for j in range(4): E(f"v_pk_mul_f32 {vr(b+2*j,2)}, {vr(b+2*j,2)}, {vr(LR+2*rg,2)} op_sel_hi:[1,0]")
        for j in range(4): E(f"v_cvt_pk_bf16_f32 v{b+j}, v{b+2*j}, v{b+2*j+1}")
        E(f"ds_write_b128 v{vBC+(T32&1)}, {vr(b,4)} offset:{T32*4096+rg*1024}")
    POST[0].areg = ("v", B5)
    E(POST[0].areads())
    E("s_waitcnt lgkmcnt(8)", "s_barrier")
    E(T(f"ds_read_b128 {vr(56,4)}, v{vT+1} offset:{5*4096}", "flg"), POST[0].breads())
    E(W("lg", "flg"))
    E(f"v_or3_b32 v{vT}, v56, v57, v58", f"v_or_b32 v{vT}, v{vT}, v59", "s_nop 0", f"v_readfirstlane_b32 s{sT0}, v{vT}",
      "s_nop 0", f"s_andn2_b32 s{sT0}, s{sT0}, s{sFLAG}", "s_cbranch_scc1 L_slow")
    E(POST[5].dma())
    stamp(); stamp(5)
    GV, XO, XR, BRW, TM = 112, vT, 56, 40, 8
    sepi = lambda ps, n: epi_unit("v", ((B4, B3), (B2, B5))[ps][n >> 2] + 8*(n & 3), 0, 2*ps + (n >> 2), n & 3, None, ("sst", ps))
    SL = B3
    def sloads(ps): return [[f"s_mov_b32 s{sT4}, {g*131072 + ps*8192}", T(f"buffer_load_dwordx4 {vr(SL+32*ps+4*g,4)}, v{vRD}, {sr(sPR,4)}, s{sT4} offen sc1", ("sl", ps, g))] for g in range(8)]
    sst = [int(x) for x in str(OPT["sst"]).split("_")]
    def fmath(pk):
        o = []; TQ = 18
        for ps in range(2):
            G_ = GV + 8*ps
            for g in range(8):
                n = 8*ps + g
                for j in range(4): o.append(f"v_accvgpr_read_b32 v{TQ+8+j}, a{aFL+4*n+j}")
                d0 = G_ if g == 0 else TQ
                for j in range(4): o += [f"v_lshlrev_b32 v{d0+2*j}, 16, v{TQ+8+j}", f"v_and_b32 v{d0+2*j+1}, s{sC0}, v{TQ+8+j}"]
                if g and pk: o += [f"v_pk_add_f32 {vr(G_+2*j,2)}, {vr(G_+2*j,2)}, {vr(TQ+2*j,2)}" for j in range(4)]
                elif g: o += [f"v_add_f32 v{G_+j}, v{G_+j}, v{TQ+j}" for j in range(8)]
            for j in range(4): o += [f"v_lshlrev_b32 v{TQ+2*j}, 16, v{BRW+4*ps+j}", f"v_and_b32 v{TQ+2*j+1}, s{sC0}, v{BRW+4*ps+j}"]
            for j in range(8): o.append(f"v_fma_f32 v{G_+j}, v{G_+j}, s{sT0}, v{TQ+j}")
            for j in range(8): o.append(f"v_mul_f32 v{TQ+j}, {f32(-math.log2(math.e))}, v{G_+j}")
            for j in range(8): o.append(f"v_exp_f32 v{TQ+j}, v{TQ+j}")
            for j in range(8): o.append(f"v_add_f32 v{TQ+j}, 1.0, v{TQ+j}")
            for j in range(8): o.append(f"v_rcp_f32 v{TQ+j}, v{TQ+j}")
            for j in range(8): o.append(f"v_mul_f32 v{G_+j}, v{G_+j}, v{TQ+j}")
        return o
    for i, st in enumerate(POST[:30]):
        if i == 0:
            BG.extend([f"v_bfe_u32 v{XO+1}, v0, 4, 2", f"v_lshlrev_b32 v{XO+1}, 3, v{XO+1}", f"v_lshrrev_b32 v{TM}, 6, v0", f"v_and_b32 v{TM+1}, 15, v0",
                       f"v_lshl_add_u32 v{TM}, v{TM}, 4, v{TM+1}", f"v_lshl_add_u32 v{XO}, v{TM}, 10, v{XO+1}", f"s_mov_b32 s{sT0}, {f32(1/CS**2)}"])
        if i == (0 if OPT["fbg"] else OPT["xbl"]):
            for k in range(4):
                BG.append(T(f"buffer_load_dwordx2 {vr(XR+2*k,2)}, v{XO}, {sr(sX,4)}, s{sVOFF} offen offset:{(k>>1)*128+(k&1)*32}", "xb"))
                BG.append(T(f"buffer_load_dwordx2 {vr(BRW+2*k,2)}, v{XO+1}, {sr(sB2,4)}, 0 offen offset:{(k>>1)*128+(k&1)*32}", "xb"))
        if i == 6 and OPT["fbg"]: BG.extend([W("vm", "xb")] + fmath(False))
        e = [x for n in range(8) if sst[n * len(sst) // 8] == i for x in sepi(0, n)]
        for x in reversed(e): BG.appendleft(x)
        if i == OPT["lda"]:
            for x in reversed(sloads(0)): BG.appendleft(x)
        d = POST[i + NS].dma() if i + NS < 32 else []
        nxt = POST[i + 1].reads() + (POST[31].reads() if i == 29 else [])
        step(st, nxt, d)
        if i == 15: stamp()
        if i % 3 == 2: stamp(5)
    REST = list(BG); BG.clear()
    print("f math left for the tail:", len(REST), file=sys.stderr)
    flush()
    stamp()
    E(W("lg", POST[31].tag))
    for n in range(8):
        if n >= 2: BG.extend(sepi(1, n - 2))
        gaps([POST[j].one(2*(n >> 2) + h, n & 3) for j in (30, 31) for h in range(2)], [], budget=12)
    flush()
    E(sepi(1, 6))
    E("s_nop 3")
    E(sepi(1, 7))
    stamp()
    SA, ST_, XT = B0, B0+8, B0+16
    def fin(ps):
        E(f"s_mov_b64 s[{sT2}:{sT3}], -1", f"s_mov_b32 s{sCNT}, {OPT['spin']}")
        for j in range(4): E(f"v_lshlrev_b32 v{XT+2*j}, 16, v{XR+4*ps+j}", f"v_and_b32 v{XT+2*j+1}, s{sC0}, v{XR+4*ps+j}")
        E(f"L_sum{ps}:")
        for g in range(8):
            E(W("vm", ("sl", ps, g)))
            d0 = SA if g == 0 else ST_
            for j in range(4): E(f"v_lshlrev_b32 v{d0+2*j}, 16, v{SL+32*ps+4*g+j}", f"v_and_b32 v{d0+2*j+1}, s{sC0}, v{SL+32*ps+4*g+j}")
            if g:
                for j in range(4): E(f"v_pk_add_f32 {vr(SA+2*j,2)}, {vr(SA+2*j,2)}, {vr(ST_+2*j,2)}")
        E(f"v_pk_add_f32 {vr(ST_,2)}, {vr(SA,2)}, {vr(SA+2,2)}", f"v_pk_add_f32 {vr(ST_+2,2)}, {vr(SA+4,2)}, {vr(SA+6,2)}",
          f"v_pk_add_f32 {vr(ST_,2)}, {vr(ST_,2)}, {vr(ST_+2,2)}", f"v_cmp_u_f32 vcc, v{ST_}, v{ST_+1}")
        for j in range(4): E(f"v_pk_fma_f32 {vr(SA+2*j,2)}, {vr(SA+2*j,2)}, {vr(GV+8*ps+2*j,2)}, {vr(XT+2*j,2)}")
        E(f"s_and_b64 vcc, vcc, s[{sT2}:{sT3}]", f"s_cbranch_scc1 L_miss{ps}")
        for j in range(4): E(f"v_cvt_pk_bf16_f32 v{B0+24+4*ps+j}, v{SA+2*j}, v{SA+2*j+1}")
        for k in range(2): E(f"buffer_store_dwordx2 {vr(B0+24+4*ps+2*k,2)}, v{XO}, {sr(sOUT,4)}, s{sVOFF} offen offset:{ps*128+k*32} {OPT['outsc']}")
    if not OPT["fbg"]: REST = [W("vm", "xb")] + fmath(True)
    cut = min(len(REST), OPT["bdel"])
    if OPT["lda"] >= 30: E(REST[:cut//2], sloads(0), REST[cut//2:cut], sloads(1), REST[cut:])
    else: E(REST[:cut], sloads(1), REST[cut:])
    fin(0)
    stamp()
    fin(1)
    stamp()
    if OPT["stamps"]:
        E("s_waitcnt vmcnt(0)")
        stamp(0)
        E(f"s_lshl_b32 s{sT0}, s2, 2", f"s_add_u32 s{sT0}, s{sT0}, s{sW}", f"s_lshl_b32 s{sT0}, s{sT0}, 6", f"s_add_u32 s{sT0}, s{sT0}, {64<<20}")
        srd(sX, 58, sT0, ("imm", 64))
        E(f"v_mov_b32 v{vT}, 0", "s_memrealtime s[70:71]", "s_waitcnt lgkmcnt(0)", f"s_mov_b32 s87, s70")
        for i in list(range(nstamp[0])) + [14, 15]:
            E(f"v_mov_b32 v{vT+1}, s{sST+i}", f"buffer_store_dword v{vT+1}, v{vT}, {sr(sX,4)}, 0 offen offset:{4*i}")
    E("L_main_end:", "s_endpgm")
    for name, vreg, load, val in SPINS:
        E(f"L_spin_{name}:", f"s_mov_b32 s{sCNT}, {OPT['spin']}", f"L_spinl_{name}:", load, "s_waitcnt vmcnt(0)",
          f"v_cmp_le_u32 vcc, {val}, v{vreg}", f"s_sub_u32 s{sCNT}, s{sCNT}, 1", f"s_cbranch_scc1 L_ok_{name}",
          "s_cmp_eq_u64 vcc, -1", f"s_cbranch_scc0 L_spinl_{name}", f"s_branch L_ok_{name}")
    for ps in range(2):
        E(f"L_miss{ps}:", f"s_mov_b32 s{sT0}, {SENT:#x}", f"s_mov_b32 s{sT1}, 0")
        for g in range(8):
            r = SL + 32*ps + 4*g
            E(f"v_cmp_eq_u32 vcc, s{sT0}, v{r}", f"v_cmp_eq_u32 s[{sT2}:{sT3}], s{sT0}, v{r+1}", "s_nop 0", f"s_or_b64 s[70:71], vcc, s[{sT2}:{sT3}]",
              f"v_cmp_eq_u32 vcc, s{sT0}, v{r+2}", f"v_cmp_eq_u32 s[{sT2}:{sT3}], s{sT0}, v{r+3}", "s_nop 0", f"s_or_b64 s[70:71], vcc, s[70:71]",
              f"s_or_b64 s[70:71], s[70:71], s[{sT2}:{sT3}]", f"s_cbranch_scc0 L_have{ps}_{g}", f"s_mov_b32 s{sT1}, 1", sloads(ps)[g], f"L_have{ps}_{g}:")
        E(f"s_sub_u32 s{sCNT}, s{sCNT}, 1", f"s_cselect_b32 s{sT1}, 0, s{sT1}", f"s_cmp_lg_u32 s{sT1}, 0", f"s_cselect_b64 s[{sT2}:{sT3}], -1, 0",
          "s_waitcnt vmcnt(0)", f"s_branch L_sum{ps}")
    E("L_slow:")
    E("s_waitcnt vmcnt(0) lgkmcnt(0)", "s_barrier")
    E(f"s_mov_b32 s{sKOFF}, 0", f"s_mov_b32 s{sCNT}, 16", [f"v_mov_b32 v{vM+j}, 0xff800000" for j in range(4)])
    E("L_slow_loop:")
    dk = dma_k(0); E(dk[0], "s_nop 0", dk[2:])
    E("s_waitcnt vmcnt(0)", "s_barrier")
    E(kreads(0))
    E("s_waitcnt lgkmcnt(0)", "s_barrier")
    E(qk(0, S0, True), qk(1, S1[0], True))
    E("s_nop 7", "s_nop 7", f"s_add_u32 s{sKOFF}, s{sKOFF}, 8192")
    for rg in range(4):
        s = S0 + 8*rg
        for j in range(0, 8, 2): E(f"v_max3_f32 v{vM+rg}, v{vM+rg}, v{s+j}, v{s+j+1}")
    E(f"s_sub_u32 s{sCNT}, s{sCNT}, 1", f"s_cmp_lg_u32 s{sCNT}, 0", "s_cbranch_scc1 L_slow_loop")
    for rg in range(4): E(xred("v_max_f32", vM+rg, vT))
    E(f"s_mov_b32 s{sFLAG}, 1", "s_branch L_restart", "L_code_end:")

K = NAME + "_kernel"
hdr = open("cdna_kernels/" + NAME + ".s.ref").read().split("; Override launch")[0]
out = [hdr.rstrip()]
out.append("; @launch grid=(256,1,1) block=(256,1,1) lds=163840")
out.append('.amdgcn_target "amdgcn-amd-amdhsa--gfx950"')
out.append(".text")
main_kernel(K)
if OPT["stubs"]:
    import subprocess, tempfile, os, re
    tmp = tempfile.mkdtemp()
    open(tmp + "/a.s", "w").write("\n".join(out + L + [f"L_pg{i}:" for i in range(4)] + ["s_endpgm"]) + "\n")
    subprocess.run(["clang", "-x", "assembler", "-target", "amdgcn-amd-amdhsa", "-mcpu=gfx950", "-c", tmp + "/a.s", "-o", tmp + "/a.o"], check=True)
    dis = subprocess.run(["llvm-objdump", "-d", "--mcpu=gfx950", tmp + "/a.o"], capture_output=True, text=True).stdout
    addrs = [int(m.group(1), 16) for m in re.finditer(r"// ([0-9A-F]{12}):", dis)]
    idx = [i for i, x in enumerate(L) if x.startswith("    ")]
    assert len(addrs) == len(idx) + 1, (len(addrs), len(idx))
    end = L.index("L_main_end:")
    pos = []; page = OPT["pg0"]
    for a_, i in zip(addrs, idx):
        if i >= end: break
        if a_ + 4*len(pos) >= page * 4096 + OPT["pgo"]: pos.append(i); page += 1
    n = len(pos)
    for k in reversed(range(n)):
        L[pos[k]:pos[k]] = [f"L_pg{k}:", f"    s_cbranch_execz {'L_pg%d' % (k+4) if k + 4 < n else 'L_pgret'}"]
out += L
out.append('.section .rodata,"a"')
out.append(f""".p2align 6
.amdhsa_kernel {K}
  .amdhsa_next_free_vgpr 512
  .amdhsa_next_free_sgpr 102
  .amdhsa_accum_offset 256
  .amdhsa_group_segment_fixed_size 0
  .amdhsa_kernarg_size 104
  .amdhsa_user_sgpr_count 2
  .amdhsa_user_sgpr_kernarg_segment_ptr 1
  .amdhsa_system_sgpr_workgroup_id_x 1
.end_amdhsa_kernel""")
print("\n".join(out))
```

```python
import sys, math, struct
from collections import deque
NAME = "recurrent_scan__sliding_block_cached__dense_activation_squared_relu__prompt"
OPT = dict(stamps=0, rt=0, codepf=1, budget=8, thr=40, memc=4, dmac=8, hg=2, rot=8, outsc="", skip="", spin=200000, pfpos=4, pf2=28,
           sst="17_18_19_20", dropoob=1, lda=28, npre=12, sp0=4, hw0=12, gb=8, pf1=12, stubs=1, fbg=0, bdel=150, xbl=26, kvrot=15, pg0=2, pgo=0, f2b=12, hold=-1, hwg=100)
for a in sys.argv[1:]:
    k, v = a.split("="); OPT[k] = int(v) if v.lstrip("-").isdigit() else v

def vr(b, n=1): return f"v{b}" if n == 1 else f"v[{b}:{b+n-1}]"
def ar(b, n=1): return f"a{b}" if n == 1 else f"a[{b}:{b+n-1}]"
def R(kind, b, n=1): return vr(b, n) if kind == "v" else ar(b, n)
def sr(b, n=1): return f"s{b}" if n == 1 else f"s[{b}:{b+n-1}]"
def f32(x): return "0x%08x" % struct.unpack("<I", struct.pack("<f", x))[0]

class W:
    def __init__(s, cnt, tag): s.cnt, s.tag = cnt, tag
class T:
    def __init__(s, text, tag): s.text, s.tag = text, tag
L = []; VM = []; LG = []
def E(*xs):
    for x in xs:
        if isinstance(x, (list, tuple)): E(*x); continue
        if isinstance(x, W):
            q = VM if x.cnt == "vm" else LG
            idx = [i for i, t in enumerate(q) if t == x.tag]
            if not idx: continue
            n = len(q) - 1 - idx[-1]
            n = min(n, 63 if x.cnt == "vm" else 15)
            del q[:len(q) - n]
            L.append(f"    s_waitcnt {'vmcnt' if x.cnt == 'vm' else 'lgkmcnt'}({n})"); continue
        tag = None
        if isinstance(x, T): x, tag = x.text, x.tag
        op = x.split()[0]
        if op.startswith("buffer_") or op.startswith("global_"): VM.append(tag)
        if op.startswith("ds_"): LG.append(tag)
        if op == "s_waitcnt":
            for w in x.split()[1:]:
                n = int(w[w.index("(")+1:-1]); q = VM if w.startswith("vm") else LG
                if len(q) > n: del q[:len(q) - n]
        L.append("    " + x if not x.endswith(":") and not x.startswith(".") else x)
def opof(x):
    if isinstance(x, (list, tuple)): return opof(x[0])
    if isinstance(x, W): return "s_waitcnt"
    return (x.text if isinstance(x, T) else x).split()[0]
def ismem(x):
    if isinstance(x, (list, tuple)): return any(ismem(y) for y in x)
    return opof(x).split("_")[0] in ("ds", "buffer", "global")
def isvalu(x): return opof(x).startswith("v_")
def cost(x):
    if isinstance(x, (list, tuple)): return sum(cost(y) for y in x)
    if isinstance(x, W): return 4
    t = x.text if isinstance(x, T) else x
    op = t.split()[0]
    assert not op.startswith("v_pk_"), t
    if op in ("v_exp_f32", "v_rcp_f32", "v_sqrt_f32"): return 8
    if op.startswith("buffer_store_dwordx4"): return 24
    if op.startswith("buffer_") or op.startswith("global_"): return OPT["dmac"]
    if op == "s_nop": return 4 * (int(t.split()[1]) + 1)
    if op == "ds_write_b128": return 20
    return 4
BG = deque()
def gaps(mf, plan, budget=None, wr_from=0):
    budget = OPT["budget"] if budget is None else budget
    for g, m in enumerate(mf):
        E(m)
        items = plan[g] if g < len(plan) else []
        endi = [x[1:] for x in items if isinstance(x, tuple) and x[0] == "end"]
        items = [x for x in items if not (isinstance(x, tuple) and x[0] == "end")]
        c = sum(cost(x) for x in items) + sum(cost(x) for x in endi)
        E([x for x in items if not isvalu(x)])
        while True:
            while BG and ismem(BG[0]) and len(PM) < 3: PM.append(BG.popleft())
            if PM and opof(PM[0]).startswith("ds_write") and g < wr_from: break
            if PM and (c + cost(PM[0]) <= budget or c <= OPT["memc"]):
                x = PM.popleft(); E(x); c += cost(x)
            else: break
        E([x for x in items if isvalu(x)])
        while BG:
            if ismem(BG[0]):
                if len(PM) < 3: PM.append(BG.popleft()); continue
                break
            if opof(BG[0]) in ("s_waitcnt", "s_barrier") and PM: break
            if c + cost(BG[0]) > budget: break
            x = BG.popleft(); E(x); c += cost(x)
        E(endi)
PM = deque()
def flush():
    print("flush", len(PM), len(BG), "at line", len(L), file=sys.stderr)
    while PM: E(PM.popleft())
    while BG: E(BG.popleft())
def spread(items, n, per):
    return [items[g*per:(g+1)*per] for g in range(n)]


CS = 128**-0.5 * math.log2(math.e)
X_BASE, R_BASE, NS = 0, 65536, 6
KR_BASE = 32768
FLAG_OFF = 32 << 20
OOB = 0x40000000
SENT = 0xff81ff81
sX, sK, sV, sWQ, sWO, sW1, sW2, sB1, sP = 4, 8, 12, 16, 20, 24, 28, 32, 36
sW, sG, sRB, sRING, sOFF, sCNT, sT0, sT1, sKOFF, sVOFF, sVL, sC0, sT2, sT3, sFLAG, sT4, sROT, sJJ = range(40, 58)
sFL, sDBG, sPR, sB2, sOUT = 60, 64, 88, 92, 96
sST = 72
vLANE, vTF, vB, vBC, vPUB, vPOLL, vTQ, vDO, vKR, vTV, vDK, vDV, vST, vRD, vM, vL = 1, 2, 6, 8, 10, 11, 12, 14, 18, 22, 26, 28, 30, 31, 32, 36
vDQ, vD1, PFD = 40, 44, 49
vT = 50
B0, B1, B2, B3, B4, B5 = 64, 96, 128, 160, 192, 224
S0, S1, P0, P1, NEGM = B3, (B3+16, B4), (56, B4+16), B4+24, B5
LR = B5 + 16
aO, aVF, aKF, aFL = 0, 128, 160, 192
def QFr(rg, s_): return B0 + 16*s_ + 4*rg
BIAS = B2 + 16

nstamp = [0]
hcnt = [0]
def stamp(lvl=1):
    if OPT["hold"] >= 0 and lvl in (0, 1):
        if hcnt[0] == OPT["hold"]: E("s_memrealtime s[70:71]", "s_waitcnt lgkmcnt(0)", "s_mov_b32 s72, s70")
        hcnt[0] += 1
    if not OPT["stamps"]: return
    if OPT["stamps"] != lvl and lvl != 0: return
    i = nstamp[0]; nstamp[0] += 1
    assert i < 14
    E("s_memrealtime s[70:71]" if OPT["rt"] else "s_memtime s[70:71]", "s_waitcnt lgkmcnt(0)", f"s_mov_b32 s{sST+i}, s70")

def mfma(dk, d, ak, a, bk, b, c=None, ck=None):
    cs = R(dk, d, 4) if c is None else (str(c) if ck is None else R(ck, c, 4))
    return f"v_mfma_f32_16x16x32_bf16 {R(dk,d,4)}, {R(ak,a,4)}, {R(bk,b,4)}, {cs}"
def kvoff(t):
    return f"s_xor_b32 s{sKOFF}, s{sJJ}, {t*8192}" if OPT["kvrot"] else f"s_mov_b32 s{sKOFF}, {t*8192}"
def dma_k(t):
    return [f"s_add_u32 m0, s{sVL}, {KR_BASE+(t&3)*8192}", kvoff(t),
            T(f"buffer_load_dwordx4 v{vDK}, {sr(sK,4)}, s{sKOFF} offen lds", ("K", t)),
            T(f"buffer_load_dwordx4 v{vDK+1}, {sr(sK,4)}, s{sKOFF} offen offset:1024 lds", ("K", t))]
def dma_v(t):
    return [f"s_add_u32 m0, s{sVL}, {X_BASE+(t&3)*8192}", kvoff(t),
            T(f"buffer_load_dwordx4 v{vDV}, {sr(sV,4)}, s{sKOFF} offen lds", ("V", t)),
            T(f"buffer_load_dwordx4 v{vDV+1}, {sr(sV,4)}, s{sKOFF} offen offset:1024 lds", ("V", t))]

class Stage:
    def __init__(s, idx, mat, j, ps, acc, areg, readb, vb):
        s.idx, s.mat, s.j, s.ps, s.acc, s.areg, s.readb, s.vb = idx, mat, j, ps, acc, areg, readb, vb
        s.slot = idx % NS; s.tag = (mat, ps, j); s.breg = ("a", 16*j)
    def dma(s):
        srd_, vd, stride = {"w1": (sW1, vD1, 3584), "wq": (sWQ, vDQ, 8192), "w2": (sW2, vDO, 1024), "wo": (sWO, vDO, 1024)}[s.mat]
        o = [f"s_add_u32 m0, s{sRING}, {s.slot*4096}", f"s_mov_b32 s{sOFF}, {s.j*32*stride + s.ps*128}"]
        if OPT["rot"] and s.mat == "wq":
            o[1] = [f"s_add_u32 s{sOFF}, s{sROT}, {s.j*32*8192 + s.ps*128}", f"s_and_b32 s{sOFF}, s{sOFF}, {512*8192-1}"]
        if OPT["rot"] and s.mat == "w1":
            o[1] = [f"s_add_u32 s{sOFF}, s{sROT}, {s.j*32*8192}", f"s_bfe_u32 s{sOFF}, s{sOFF}, {(9<<16)|13}", f"s_mul_i32 s{sOFF}, s{sOFF}, 3584"]
        return o + [T(f"buffer_load_dwordx4 v{vd+p}, {sr(srd_,4)}, s{sOFF} offen offset:{p*1024} lds", s.tag) for p in range(4)]
    def areads(s):
        ak, a = s.areg; o = [W("vm", s.tag)]
        for Tt in range(4):
            for t in range(2):
                va, off = (vTQ + (Tt >> 1), 8*(Tt & 1)) if s.mat == "wq" else (vTF + Tt, 0)
                o.append(T(f"ds_read_b64_tr_b16 {R(ak, a+4*Tt+2*t, 2)}, v{va} offset:{s.slot*4096+t*2048+off}", s.tag))
        return o
    def breads(s):
        if not s.readb: return []
        bk, b = s.breg
        return [T(f"ds_read_b128 {R(bk, b+4*rg, 4)}, v{s.vb+(s.j&1)} offset:{s.j*4096+rg*1024}", s.tag) for rg in range(4)]
    def reads(s): return s.breads() + s.areads()
    def one(s, Tt, rg):
        ak, a = s.areg; dk, d = s.acc(Tt, rg)
        c = () if s.j else ((BIAS + 4*Tt, "v") if s.mat == "w1" else (0,))
        return mfma(dk, d, ak, a+4*Tt, s.breg[0], s.breg[1]+4*rg, *c)
    def mf(s): return [s.one(Tt, rg) for Tt in range(4) for rg in range(4)]
def step(st, nxt_reads, dma, post=(), gb=None):
    E(W("lg", st.tag))
    plan = [[] for _ in range(16)]
    q = list(nxt_reads)
    dg = {}
    if dma:
        dg = {0: dma[:2], 3: dma[2:3], 7: dma[3:4]}
        if len(dma) == 6: dg.update({11: dma[4:5], 15: dma[5:6]})
        elif len(dma) == 8: dg.update({9: dma[4:6], 11: dma[6:7], 15: dma[7:8]})
    per = 1 if len(q) <= (16 - len(dg) - 2) else 2
    for g in range(16):
        if g in dg: plan[g] += dg[g]
        else: plan[g] += q[:per]; q = q[per:]
    assert not q
    plan[15] += list(post)
    gaps(st.mf(), plan, budget=gb or OPT["gb"])

def srd(d, ptr, off, size):
    E(f"s_add_u32 s{d}, s{ptr}, s{off}", f"s_addc_u32 s{d+1}, s{ptr+1}, 0")
    if size[0] == "rest": E(f"s_sub_u32 s{d+2}, {size[1]}, s{off}")
    else: E(f"s_mov_b32 s{d+2}, {size[1]}")
    E(f"s_mov_b32 s{d+3}, 0x00020000")

SPINS = []
def check_ready(name, vreg, load, val):
    SPINS.append((name, vreg, load, val))
    return [f"v_cmp_le_u32 vcc, {val}, v{vreg}", "s_nop 1", ["s_cmp_eq_u64 vcc, -1", f"s_cbranch_scc0 L_spin_{name}", f"L_ok_{name}:"]]
def blk(kind, lo, hi): return lambda Tt, rg: (kind, (lo, hi)[Tt >> 1] + 8*rg + 4*(Tt & 1))
def xred(op, a, b):
    return [f"v_mov_b32 v{b}, v{a}", "s_nop 1", f"v_permlane32_swap_b32 v{a}, v{b}", "s_nop 0", f"{op} v{a}, v{a}, v{b}",
            f"v_mov_b32 v{b}, v{a}", "s_nop 1", f"v_permlane16_swap_b32 v{a}, v{b}", "s_nop 0", f"{op} v{a}, v{a}, v{b}"]

def main_kernel(K):
    PRE = []
    def add(lst, mat, n, ps, acc, aregs, readb, vb):
        for j in range(n): lst.append(Stage(len(lst), mat, j, ps, acc, aregs(len(lst)), readb, vb))
    av = lambda i: ("v", B3 + 16*(i & 1)); aa = lambda i: ("a", 112 + 16*(i & 1))
    add(PRE, "wq", 16, 0, blk("v", B0, B1), av, True, vB)
    add(PRE, "w1", 16, 0, blk("v", B4, B5), av, False, vB)
    add(PRE, "wq", 16, 1, blk("v", B1, B2), av, False, vB)
    add(PRE, "w2", 7, 0, blk("v", B2, B4), aa, True, vBC)
    add(PRE, "w2", 7, 1, blk("a", 192, 224), aa, False, vBC)
    POST = []
    ao = lambda i: ("v", B0 + 16*(i % 3))
    add(POST, "wo", 16, 0, blk("v", B4, B3), ao, True, vB)
    add(POST, "wo", 16, 1, blk("v", B2, B5), ao, False, vB)
    for st in POST:
        if st.j >= 12:
            st.readb = True
            st.breg = ("v", B2 + 16*(st.j & 1)) if st.ps == 0 else ("a", 16*(st.j - 12))

    E(".p2align 12", ".p2align 8", f".globl {K}", f".type {K},@function", f"{K}:")
    E("s_cmp_ge_u32 s2, 256", "s_cbranch_scc1 L_main_end")
    E(f"s_mov_b32 s{sFLAG}, 0", [f"v_mov_b32 v{vM+j}, 0" for j in range(4)])
    E("L_restart:")
    if OPT["stamps"]: E("s_memrealtime s[86:87]")
    stamp(0)
    E("s_load_dwordx8 s[60:67], s[0:1], 0", "s_load_dwordx2 s[68:69], s[0:1], 32", "s_load_dwordx4 s[88:91], s[0:1], 48",
      "s_load_dwordx8 s[92:99], s[0:1], 64", "s_load_dwordx2 s[58:59], s[0:1], 96")
    if OPT["codepf"]:
        E("s_getpc_b64 s[100:101]", "L_pc:", f"s_sub_u32 s100, s100, L_pc-{K}", "s_subb_u32 s101, s101, 0")
        E(f"s_bfe_u32 s{sT0}, s2, 0x30003", f"s_lshl_b32 s{sT0}, s{sT0}, 14", f"v_lshlrev_b32 v{vT}, 6, v0", f"v_add_u32 v{vT}, s{sT0}, v{vT}",
          f"v_min_u32 v{vT}, L_code_end-{K}-4, v{vT}")
        E(f"global_load_dword v{PFD}, v{vT}, s[100:101]")
    l = vLANE
    pt = 128
    row, c7, t0, t1, t2, t3, t4, cl, zr, bo = range(pt, pt + 10)
    xo = pt + 12
    wa, pw = 58, 60
    def cap(fn):
        global L
        keep = L; L = []; fn(); got = [x.strip() for x in L]; L = keep
        return got
    def srdl(d, ptr, off, size):
        c = cap(lambda: srd(d, ptr, off, size)); return [c[:2], c[2], c[3]]
    E(f"v_lshrrev_b32 v{t0}, 6, v0", f"v_and_b32 v{l}, 63, v0")
    HG = OPT["hg"]; lh = HG.bit_length() - 1
    E(f"s_and_b32 s{sG}, s2, {8//HG-1}", f"s_lshl_b32 s{sG}, s{sG}, {lh}", f"s_bfe_u32 s{sT0}, s2, {(lh<<16)|3}", f"s_or_b32 s{sG}, s{sG}, s{sT0}",
      f"s_lshr_b32 s{sJJ}, s2, {3+lh}", f"s_bfe_u32 s{sRB}, s2, {(lh<<16)|(3-lh)}", f"s_lshl_b32 s{sRB}, s{sRB}, {5-lh}", f"s_or_b32 s{sRB}, s{sRB}, s{sJJ}")
    E(f"v_readfirstlane_b32 s{sW}, v{t0}")
    E(f"v_bfe_u32 v{row}, v0, 3, 3", f"v_lshl_add_u32 v{t1}, v{t0}, 4, v{row}",
      f"v_and_b32 v{c7}, 7, v0", f"v_lshlrev_b32 v{xo}, 4, v{c7}", f"v_lshl_add_u32 v{xo}, v{t1}, 10, v{xo}", f"v_add_u32 v{xo+1}, 8192, v{xo}")
    XS = 8
    if OPT["rot"]:
        E(f"s_and_b32 s{sROT}, s{sJJ}, {OPT['rot']-1}", f"s_mul_i32 s{sROT}, s{sROT}, {8//OPT['rot']}", f"s_lshl_b32 s{XS}, s{sROT}, 7")
        for i in range(1, 8): E(f"s_add_u32 s{XS+i}, s{XS}, {128*i}", f"s_and_b32 s{XS+i}, s{XS+i}, 1023")
        E(f"s_lshl_b32 s{sROT}, s{sROT}, 19")
    E(f"s_and_b32 s{sJJ}, s{sJJ}, {OPT['kvrot']}", f"s_lshl_b32 s{sJJ}, s{sJJ}, 13")
    E(f"s_or_b32 s{sT0}, s{sG}, s{sW}", f"s_or_b32 s{sT0}, s{sT0}, s{sFLAG}", f"s_cmp_eq_u32 s{sT0}, 0", f"s_cselect_b32 s{sT2}, 0, {OOB}",
      f"v_lshlrev_b32 v{cl}, 8, v{row}", f"v_lshl_add_u32 v{cl}, v{c7}, 2, v{cl}", f"v_add_u32 v{cl}, s{sT2}, v{cl}",
      f"v_mov_b32 v{zr}, 0", f"v_mov_b32 v{vL}, s{sT2}", f"v_mov_b32 v{vL+1}, 1")
    E(f"s_mul_i32 s{sRING}, s{sW}, {NS*4096}", f"s_add_u32 s{sRING}, s{sRING}, {R_BASE}", f"s_lshl_b32 s{sVL}, s{sW}, 11", f"s_mov_b32 s{sC0}, 0xffff0000")
    E(f"v_lshrrev_b32 v{t2}, 4, v{l}", f"v_lshlrev_b32 v{t2}, 1, v{t2}", f"v_xor_b32 v{t3}, v{c7}, v{t2}", f"v_lshlrev_b32 v{t1}, 4, v{t3}",
      f"v_lshrrev_b32 v{t0}, 5, v{l}", f"v_and_b32 v{t2}, 3, v{row}", f"v_lshl_add_u32 v{t0}, v{t0}, 3, v{t2}",
      f"v_mul_u32_u24 v{t2}, 3584, v{t0}", f"s_lshl_b32 s{sT4}, s{sW}, 7", f"v_add3_u32 v{vD1}, v{t2}, v{t1}, s{sT4}",
      f"v_lshl_add_u32 v{vDV}, v{row}, 8, v{t1}",
      f"s_lshl_b32 s{sT0}, s{sW}, 8", f"v_add_u32 v{t1}, s{sT0}, v{t1}",
      f"v_lshl_add_u32 v{vDQ}, v{t0}, 13, v{t1}", f"v_lshl_add_u32 v{vDO}, v{row}, 10, v{t1}")
    if OPT["dropoob"]:
        E(f"s_and_b32 s{sT0}, s{sG}, 1", f"s_xor_b32 s{sT0}, s{sT0}, 1", f"s_mul_i32 s{sT0}, s{sT0}, 7", f"s_lshl_b32 s{sT3}, s{sW}, 1",
          f"v_lshrrev_b32 v{t3}, 2, v{t3}", f"v_or_b32 v{t3}, s{sT3}, v{t3}", f"v_cmp_eq_u32 vcc, s{sT0}, v{t3}", f"v_mov_b32 v{t2}, {OOB}", "s_nop 0",
          f"v_cndmask_b32 v{vD1}, v{vD1}, v{t2}, vcc")
    natp = lambda p, stride: (16*(p & 1) + 4*(p >> 1)) * stride - p*1024
    for p in range(1, 4): E(f"v_add_u32 v{vDQ+p}, {natp(p, 8192)}, v{vDQ}")
    E(f"v_xor_b32 v{t0}, v{row}, v{c7}", f"v_and_b32 v{t1}, 3, v{c7}", f"v_lshl_add_u32 v{t0}, v{t1}, 4, v{t0}", f"v_lshlrev_b32 v{t0}, 4, v{t0}",
      f"v_lshrrev_b32 v{t1}, 2, v{c7}", f"v_lshl_add_u32 v{t0}, v{t1}, 12, v{t0}", f"s_lshl_b32 s{sT0}, s{sW}, 10", f"v_add_u32 v{wa}, s{sT0}, v{t0}")
    E(f"s_lshl_b32 s{sT0}, s{sRB}, 16", f"s_lshl_b32 s{sT1}, s{sRB}, 12", f"s_add_u32 s{sT1}, s{sT1}, {FLAG_OFF}")
    E(f"s_lshr_b32 s{sT3}, s{sG}, 1", f"s_mul_i32 s{sT3}, s{sT3}, 896", f"s_and_b32 s{sT2}, s{sG}, 1", f"s_mul_i32 s{sT2}, s{sT2}, 384",
      f"s_add_u32 s{sT3}, s{sT3}, s{sT2}")
    E("s_waitcnt lgkmcnt(0)")
    srd(sX, 60, sT0, ("imm", 65536))
    RAW = 64; ACCH = B4
    U1 = srdl(sB1, 90, sT3, ("rest", 3584)) + srdl(sP, 58, sT1, ("imm", 1024)) + \
         [T(f"buffer_store_dword v{zr}, v{cl}, {sr(sP,4)}, 0 offen sc1", "clr")] + srdl(sW1, 88, sT3, ("rest", 1835008))
    def trs():
        E(f"v_lshrrev_b32 v{t0}, 2, v{l}", f"v_lshlrev_b32 v{t0}, 7, v{t0}", f"v_bfe_u32 v{t1}, v{l}, 3, 2", f"v_and_b32 v{t2}, 3, v{l}",
          f"v_lshl_add_u32 v{t3}, v{t2}, 3, v{t0}")
        for Tt in range(4):
            E(f"v_xor_b32 v{t4}, {Tt}, v{t1}", f"v_lshl_add_u32 v{vTV+Tt}, v{t4}, 5, v{t3}", f"v_add_u32 v{vTF+Tt}, s{sRING}, v{vTV+Tt}")
        E(f"v_and_b32 v{t3}, 1, v{l}", f"v_lshl_add_u32 v{t3}, v{t3}, 4, v{t0}", f"v_add_u32 v{t3}, s{sRING}, v{t3}", f"v_lshrrev_b32 v{t2}, 1, v{t2}",
          f"v_xor_b32 v{t2}, v{t2}, v{t1}")
        for t32 in range(2): E(f"v_xor_b32 v{t4}, {2*t32}, v{t2}", f"v_lshl_add_u32 v{vTQ+t32}, v{t4}, 5, v{t3}")
        E(f"v_lshrrev_b32 v{t1}, 4, v{l}", f"v_xor_b32 v{t1}, v{t1}, v{l}", f"v_lshlrev_b32 v{vB}, 4, v{t1}", f"v_xor_b32 v{vB+1}, 64, v{vB}")
    U1 += cap(trs)
    U1 += [f"v_lshrrev_b32 v{t3}, 4, v0", f"v_and_b32 v{t4}, 15, v0", f"v_lshlrev_b32 v{pw}, 6, v{t4}", f"v_lshl_add_u32 v{pw}, v{t3}, 13, v{pw}",
           f"v_lshlrev_b32 v{pw+2}, 4, v0", f"v_lshlrev_b32 v{pw+3}, 5, v0", f"v_mul_u32_u24 v{t3}, 3584, v{t3}", f"v_lshl_add_u32 v{pw+1}, v{t4}, 5, v{t3}"]
    U1 += [f"s_lshl_b32 s{sT0}, s{sG}, 10"] + srdl(sWQ, 66, sT0, ("rest", 4194304))
    U1 += [f"s_lshl_b32 s{sT0}, s{sG}, 19"] + srdl(sWO, 68, sT0, ("rest", 4194304))
    U1 += [f"s_mul_i32 s{sT2}, s{sG}, {224*1024}"] + srdl(sW2, 92, sT2, ("rest", 1835008))
    U1 += [x for p in range(1, 4) for x in (f"v_add_u32 v{vD1+p}, {natp(p, 3584)}, v{vD1}", f"v_add_u32 v{vDO+p}, {p*(8*1024-1024)}, v{vDO}")]
    U1 = deque(U1); per = (len(U1) + 15) // 16
    for i in range(8):
        for p in range(2):
            if OPT["rot"]: E(T(f"buffer_load_dwordx4 {vr(RAW+32*p+4*i,4)}, v{xo+p}, {sr(sX,4)}, s{XS+i} offen", ("x", p, i)))
            else: E(T(f"buffer_load_dwordx4 {vr(RAW+32*p+4*i,4)}, v{xo+p}, {sr(sX,4)}, 0 offen offset:{i*128}", ("x", p, i)))
            for _ in range(per):
                if U1: E(U1.popleft())
    stamp(2)
    E(f"s_add_u32 s{sT0}, s{sT0}, {1536*256}"); srd(sK, 62, sT0, ("imm", 131072)); srd(sV, 64, sT0, ("imm", 131072))
    srd(sFL, 58, sT1, ("imm", 1024))
    E(f"s_lshl_b32 s{sT0}, s{sRB}, 2"); srd(sDBG, 98, sT0, ("imm", 4))
    if OPT["stubs"]:
        E("s_mov_b64 exec, 0")
        for w_ in range(3): E(f"s_cmp_eq_u32 s{sW}, {w_}", f"s_cbranch_scc1 L_pg{w_}")
        E("s_branch L_pg3", "L_pgret:", "s_mov_b64 exec, -1")
    def later():
        E(f"s_and_b32 s{sT0}, s{sW}, 1", f"s_lshl_b32 s{sT0}, s{sT0}, 12", f"s_lshr_b32 s{sT1}, s{sW}, 1", f"s_lshl_b32 s{sT1}, s{sT1}, 7",
          f"s_add_u32 s{sT0}, s{sT0}, s{sT1}", f"v_add_u32 v{vDV}, s{sT0}, v{vDV}", f"v_add_u32 v{vDV+1}, 1024, v{vDV}")
        E(f"v_lshrrev_b32 v{t0}, 4, v{l}")
        for p in range(2):
            E(f"s_lshl_b32 s{sT0}, s{sW}, 3", f"s_add_u32 s{sT0}, s{sT0}, {4*p}", f"v_add_u32 v{t2}, s{sT0}, v{t0}",
              f"v_xor_b32 v{t3}, v{t2}, v{l}", f"v_and_b32 v{t3}, 15, v{t3}", f"v_lshlrev_b32 v{t3}, 4, v{t3}",
              f"v_lshl_add_u32 v{vDK+p}, v{t2}, 8, v{t3}")
            if p: E(f"v_subrev_u32 v{vDK+p}, 1024, v{vDK+p}")
        E(f"v_and_b32 v{t1}, 15, v{l}", f"v_lshlrev_b32 v{t2}, 8, v{t1}", f"v_add_u32 v{t2}, {KR_BASE}, v{t2}", f"v_xor_b32 v{t1}, v{t1}, v{t0}")
        for s_ in range(4): E(f"v_xor_b32 v{t3}, {4*s_}, v{t1}", f"v_lshl_add_u32 v{vKR+s_}, v{t3}, 4, v{t2}")
        E(f"s_lshl_b32 s{sT0}, s{sW}, 14", f"v_lshlrev_b32 v{vST}, 4, v{l}", f"v_add_u32 v{vST}, s{sT0}, v{vST}")
    LATER = cap(later)
    LATER += [f"s_lshl_b32 s{sT0}, s{sRB}, 3", f"s_or_b32 s{sT0}, s{sT0}, s{sG}", f"s_lshl_b32 s{sT0}, s{sT0}, 17"] + srdl(sP, 58, sT0, ("imm", 131072))
    LATER += [f"s_lshr_b32 s{sT1}, s{sG}, 1", f"s_lshl_b32 s{sT1}, s{sT1}, 2", f"s_and_b32 s{sT0}, s{sG}, 1", f"s_or_b32 s{sT4}, s{sT1}, s{sT0}",
              f"s_lshl_b32 s{sT0}, s{sRB}, 20", f"s_lshl_b32 s{sT1}, s{sT4}, 12", f"s_add_u32 s{sT0}, s{sT0}, s{sT1}"] + srdl(sPR, 58, sT0, ("imm", 1 << 20))
    LATER += [f"s_lshl_b32 s{sVOFF}, s{sT4}, 6"] + srdl(sB2, 94, sVOFF, ("rest", 1024))
    LATER += [f"s_lshl_b32 s{sT0}, s{sRB}, 16"] + srdl(sOUT, 96, sT0, ("imm", 65536))
    LATER2 = LATER[38:]
    BRW1 = 50
    LATER = [f"v_lshrrev_b32 v{bo}, 4, v{l}", f"v_lshlrev_b32 v{bo}, 3, v{bo}", f"s_lshl_b32 s{sT2}, s{sW}, 7"] + \
            [T(f"buffer_load_dwordx2 {vr(BRW1+2*q,2)}, v{bo}, {sr(sB1,4)}, s{sT2} offen offset:{q*32}", "bias") for q in range(4)] + LATER[:38]
    LATER.append(W("vm", "bias"))
    for r in range(16):
        LATER.append((f"v_lshlrev_b32 v%d, 16, v{BRW1+r//2}" if r % 2 == 0 else f"v_and_b32 v%d, s{sC0}, v{BRW1+r//2}") % (BIAS+r))
        LATER.append(f"v_mul_f32 v{BIAS+r}, {f32(CS)}, v{BIAS+r}")
    PFS = [[f"s_lshl_b32 s{sT3}, s{sRB}, 17", f"buffer_load_dword v{PFD}, v{pw}, {sr(sWQ,4)}, s{sT3} offen"],
           [f"s_mul_i32 s{sT3}, s{sRB}, 7168", f"buffer_load_dword v{PFD}, v{pw+3}, {sr(sW2,4)}, s{sT3} offen"],
           [f"s_lshl_b32 s{sT3}, s{sRB}, 12", f"buffer_load_dword v{PFD}, v{pw+2}, {sr(sK,4)}, s{sT3} offen"],
           [f"buffer_load_dword v{PFD}, v{pw+2}, {sr(sV,4)}, s{sT3} offen"]]
    SP = deque()
    for s_ in range(NS):
        d = PRE[s_].dma(); SP.append(d[:3]); SP.extend(d[3:])
    if OPT["pfpos"] == 1: SP.extend(PFS)
    if OPT["pfpos"] == 2: SP.append([f"s_mul_i32 s{sT3}, s{sRB}, {16*3584}", f"buffer_load_dword v{PFD}, v{pw+1}, {sr(sW1,4)}, s{sT3} offen"])
    if OPT["pfpos"] == 3: SP.append([f"s_mul_i32 s{sT3}, s{sRB}, {16*3584}", f"buffer_load_dword v{PFD}, v{pw+1}, {sr(sW1,4)}, s{sT3} offen"]); SP.append(PFS[1])
    if OPT["pfpos"] == 4: SP.append(PFS[1])
    nsp = [0]
    def sp(n=1, force=False):
        for _ in range(n):
            if SP and (force or nsp[0] < OPT["npre"]): E(SP.popleft()); nsp[0] += 1
    SUM, SQ = 50, 54
    for i in range(8):
        for p in range(2):
            E(W("vm", ("x", p, i)))
            r = RAW + 32*p + 4*i; u = B2 + 32*p + 4*i; m = SUM + 2*p; q = SQ + 2*p
            for j in range(4): E(f"v_lshlrev_b32 v{u+j}, 16, v{r+j}", f"v_and_b32 v{r+j}, s{sC0}, v{r+j}")
            for k, b_ in enumerate((u, r, u+2, r+2)):
                if i == 0 and k == 0: E(f"v_pk_add_f32 {vr(m,2)}, {vr(u,2)}, {vr(r,2)}", f"v_pk_mul_f32 {vr(q,2)}, {vr(u,2)}, {vr(u,2)}")
                elif i == 0 and k == 1: E(f"v_pk_fma_f32 {vr(q,2)}, {vr(b_,2)}, {vr(b_,2)}, {vr(q,2)}")
                else: E(f"v_pk_add_f32 {vr(m,2)}, {vr(m,2)}, {vr(b_,2)}", f"v_pk_fma_f32 {vr(q,2)}, {vr(b_,2)}, {vr(b_,2)}, {vr(q,2)}")
            if 2*i + p >= OPT["sp0"]: sp()
    stamp(2)
    E(W("vm", "clr"), f"buffer_store_dword v{vL+1}, v{vL}, {sr(sDBG,4)}, 0 offen sc1")
    R4 = [SUM, SUM+2, SQ, SQ+2]
    for v in R4: E(f"v_add_f32 v{v}, v{v}, v{v+1}")
    for md in ("quad_perm:[1,0,3,2]", "quad_perm:[2,3,0,1]", "row_half_mirror"):
        for v in R4: E(f"v_add_f32_dpp v{v}, v{v}, v{v} {md} row_mask:0xf bank_mask:0xf")
    def both(fmt): E([fmt.format(m=SUM+2*p, q=SQ+2*p) for p in range(2)])
    both(f"v_mul_f32 v{{m}}, {f32(1/512)}, v{{m}}"); both(f"v_mul_f32 v{{q}}, {f32(1/512)}, v{{q}}")
    both("v_fma_f32 v{q}, -v{m}, v{m}, v{q}"); both("v_max_f32 v{q}, 0, v{q}")
    both("v_cvt_pk_bf16_f32 v{q}, v{q}, v{m}")
    both(f"v_and_b32 v{{m}}, s{sC0}, v{{q}}"); both("v_lshlrev_b32 v{q}, 16, v{q}")
    both(f"v_add_f32 v{{q}}, {f32(1e-5)}, v{{q}}"); both("v_cvt_pk_bf16_f32 v{q}, v{q}, v{q}"); both("v_lshlrev_b32 v{q}, 16, v{q}")
    both("v_sqrt_f32 v{q}, v{q}"); E("s_nop 0"); both("v_cvt_pk_bf16_f32 v{q}, v{q}, v{q}"); both("v_lshlrev_b32 v{q}, 16, v{q}")
    both("v_rcp_f32 v{q}, v{q}"); E("s_nop 0"); both(f"v_mul_f32 v{{q}}, {f32(CS)}, v{{q}}"); both("v_mul_f32 v{m}, v{m}, v{q}")
    stamp(2)
    for i in range(8):
        for p in range(2):
            r = RAW + 32*p + 4*i; u = B2 + 32*p + 4*i
            for b_ in (u, r, u+2, r+2):
                E(f"v_pk_fma_f32 {vr(b_,2)}, {vr(b_,2)}, {vr(SQ+2*p,2)}, {vr(SUM+2*p,2)} op_sel_hi:[1,0,0] neg_lo:[0,0,1] neg_hi:[0,0,1]")
            for j in range(4): E(f"v_cvt_pk_bf16_f32 v{r+j}, v{u+j}, v{r+j}")
            E(f"ds_write_b128 v{wa}, {vr(r,4)} offset:{i*8192+p*128}")
    stamp(2)
    sp(99, force=True)
    E(PRE[0].areads())
    E("s_waitcnt lgkmcnt(8)", "s_barrier")
    if OPT["stamps"] < 4: stamp(0)
    E(PRE[0].breads())
    BG.extend(LATER)
    def kreads(t): return [T(f"ds_read_b128 {ar(aKF+8*s_+4*hk,4)}, v{vKR+s_} offset:{(t&3)*8192+hk*4096}", ("kf", t)) for s_ in range(4) for hk in range(2)]
    def vreads(t): return [T(f"ds_read_b64_tr_b16 {ar(aVF+4*T8+2*t_,2)}, v{vTV+(T8&3)} offset:{(t&3)*8192+(T8>>2)*4096+t_*2048}", ("vf", t))
                           for T8 in range(8) for t_ in range(2)]
    def qk(x, dst, zero=False):
        return [mfma("v", dst+8*rl+4*hk, "a", aKF+8*s_+4*hk, "v", QFr(2*x+rl, s_), *(((0,) if zero else (NEGM+4*(2*x+rl), "v")) if s_ == 0 else ()))
                for s_ in range(4) for hk in range(2) for rl in range(2)]
    def pv(x, p, zero=False):
        return [mfma("a", aO+64*x+16*(T8>>1)+8*rl+4*(T8&1), "a", aVF+4*T8, "v", p+4*rl, 0 if zero else None) for T8 in range(8) for rl in range(2)]
    def sm_plan(x, s, p):
        pl = [[] for _ in range(32)]
        for j in range(16): pl[max(0, 2*j-1)].append(f"v_exp_f32 v{s+j}, v{s+j}")
        for j in range(16): pl[min(31, max(2, 2*j+2 if j else 2))].append(f"v_add_f32 v{vL+2*x+(j>>3)}, v{vL+2*x+(j>>3)}, v{s+j}")
        for k in range(8): pl[min(31, 4*k+4)].append(f"v_cvt_pk_bf16_f32 v{p+k}, v{s+2*k}, v{s+2*k+1}")
        return pl
    def epi_unit(kind, src, typ, T32, rg, tmp, tag):
        o = []; b = tmp if kind == "a" else src
        if kind == "a":
            for r in range(8): o.append(f"v_accvgpr_read_b32 v{b+r}, a{src+r}")
        for j in range(4): o.append(f"v_cvt_pk_bf16_f32 v{b+j}, v{b+2*j}, v{b+2*j+1}")
        o.append([f"s_mov_b32 s{sT4}, {typ*65536 + T32*4096}",
                  T(f"buffer_store_dwordx4 {vr(b,4)}, v{vST}, {sr(sP,4)}, s{sT4} offen offset:{rg*1024} sc1", tag)])
        return o
    NP = len(PRE)
    KV = deque([dma_v(0) + dma_k(2), dma_v(1) + dma_k(3), dma_v(2)])
    vHW = vD1
    HP = lambda n: B4 + 4*n
    for i, st in enumerate(PRE):
        d = PRE[i + NS].dma() if i + NS < NP else (KV.popleft() if KV else [])
        post = []
        if OPT["pfpos"] == 2 and i == OPT["pf2"]: post = PFS[1] + PFS[2] + PFS[3]
        if OPT["pfpos"] == 2 and i == OPT["pf1"]: post = PFS[0]
        if i == 16:
            flush(); E("s_nop 1")
            post = ["s_barrier"]
        if i == 17:
            for j in range(32): BG.append(f"v_cvt_pk_bf16_f32 v{B0+j}, v{B0+2*j}, v{B0+2*j+1}")
            BG.extend([f"s_and_b32 s{sT0}, s{sG}, 1", f"s_lshl_b32 s{sT1}, s{sT0}, 12", f"s_lshl_b32 s{sT0}, s{sT0}, 6"])
            for j in range(2): BG.extend([f"v_xor_b32 v{vBC+j}, s{sT0}, v{vB+j}", f"v_add_u32 v{vBC+j}, s{sT1}, v{vBC+j}"])
            BG.extend([f"s_lshl_b32 s{sT0}, s{sW}, 8", f"s_lshl_b32 s{sT1}, s{sG}, 2", f"s_add_u32 s{sT0}, s{sT0}, s{sT1}",
                       f"v_min_u32 v{vPUB}, 1, v{l}", f"v_lshlrev_b32 v{vPUB}, 30, v{vPUB}", f"v_add_u32 v{vPUB}, s{sT0}, v{vPUB}",
                       f"s_lshr_b32 s{sT0}, s{sG}, 1", f"s_lshl_b32 s{sT0}, s{sT0}, 8",
                       f"v_and_b32 v{vPOLL}, 7, v{l}", f"v_lshlrev_b32 v{vPOLL}, 2, v{vPOLL}", f"v_add_u32 v{vPOLL}, s{sT0}, v{vPOLL}",
                       f"v_lshlrev_b32 v{vRD}, 4, v0"])
            for j in range(4): BG.append(f"v_mov_b32 v{vL+j}, 0")
            BG.extend(LATER2)
        if i == 32: flush()
        if i == 33:
            BG.append(f"s_lshl_b32 s{sT0}, s{sW}, 13")
            for j in range(2): BG.append(f"v_add_u32 v{vHW+j}, s{sT0}, v{vB+j}")
            for n in range(8):
                b = ACCH + 8*n
                for r in range(8): BG.append(f"v_max_f32 v{b+r}, 0, v{b+r}")
                for r in range(8): BG.append(f"v_mul_f32 v{b+r}, v{b+r}, v{b+r}")
                for j in range(4): BG.append(f"v_cvt_pk_bf16_f32 v{HP(n)+j}, v{b+2*j}, v{b+2*j+1}")
        if i == 36: post = dma_k(0)
        if i == 38: post = dma_k(1)
        if i == 44: post = [W("vm", ("K", 1)), "s_barrier"]
        if i == 45:
            for x in reversed(kreads(0)): BG.appendleft(x)
        if i == 54: post = ["s_barrier"]
        if i in (58, 59, 60, 61):
            for n in (2*(i-58), 2*(i-58)+1): BG.extend(epi_unit("v", (B2, B4)[n >> 2] + 8*(n & 3), 1, n >> 2, n & 3, None, "fst"))
        step(st, PRE[48].areads() if i == 47 else PRE[i + 1].reads() if i + 1 < NP else [], d, post=post, gb=(OPT["f2b"] if 48 <= i < 54 else None))
        if i in (15, 47): stamp()
        if i in (3, 7, 11, 15, 19, 23, 27, 31, 35, 39, 43): stamp(3)
        if i == 47:
            flush()
            E(W("lg", ("kf", 0)))
            q0, q1 = qk(0, S0, True), qk(1, S1[0], True)
            cv = [f"v_cvt_pk_bf16_f32 v{B1+j}, v{B1+2*j}, v{B1+2*j+1}" for j in range(32)]
            hw = [T(f"ds_write_b128 v{vHW+(n>>2)}, {vr(HP(n),4)} offset:{(n>>2)*4096+(n&3)*1024}", "hw") for n in range(8)]
            pl = [[] for _ in range(32)]
            for g in range(2, 13): pl[g] = cv[3*(g-2):3*(g-1)]
            h0 = OPT["hw0"]
            for n in range(8): pl[h0 + 2*n].append(hw[n])
            pl[min(31, h0 + 18)] += [W("lg", "hw"), "s_barrier"] + PRE[48].breads()
            gaps(q0[:8] + q1[:8] + q0[8:] + q1[8:], pl)
            BG.extend(kreads(1))
            for rg in range(4):
                s = (S0, S1[0])[rg >> 1] + 8*(rg & 1); m = vT
                BG.extend([f"v_max3_f32 v{m}, v{s}, v{s+1}, v{s+2}", f"v_max3_f32 v{m}, v{m}, v{s+3}, v{s+4}", f"v_max3_f32 v{m}, v{m}, v{s+5}, v{s+6}",
                           f"v_max_f32 v{m}, v{m}, v{s+7}"] + xred("v_max_f32", m, vT+1))
                BG.extend([[f"s_cmp_lg_u32 s{sFLAG}, 0", "s_cselect_b64 vcc, -1, 0"], "s_nop 0", f"v_cndmask_b32 v{m}, v{m}, v{vM+rg}, vcc"])
                for r in range(4): BG.append(f"v_sub_f32 v{NEGM+4*rg+r}, 0, v{m}")
                for r in range(8): BG.append(f"v_sub_f32 v{s+r}, v{s+r}, v{m}")
            for g in sm_plan(0, S0, P0[0]): BG.extend(g)
    flush()
    stamp()
    E(W("vm", ("K", 2)), "s_waitcnt lgkmcnt(0)")
    def att_iter(i, x1=(), x2=()):
        if i == 0: E("s_barrier")
        pl = sm_plan(1, S1[i&1], P1)
        vrd = vreads(i)
        slots = [0, 2, 2, 4, 6, 6, 8, 10, 10, 12, 14, 14, 16, 18, 18, 20]
        for g, x in zip(slots, vrd): pl[g].append(x)
        x1 = list(x1)
        if x1:
            pl[22] += x1[:2]
            for g, x in zip((24, 26, 28, 30), x1[2:]): pl[g].append(x)
        gaps(qk(0, S0) + qk(1, S1[(i+1)&1]), pl)
        E(W("lg", ("vf", i)))
        pl = sm_plan(0, S0, P0[(i+1)&1])
        if i + 2 < 16:
            for g, x in zip((0, 2, 4, 6, 8, 10, 12, 14), kreads(i + 2)): pl[g].append(x)
        dv = dma_v(i + 3) if i + 3 < 16 else []
        dk = dma_k(i + 5) if i + 5 < 16 else []
        pl[9] += list(x2)
        if dv: pl[14] += dv[:1]; pl[16] += dv[1:2]; pl[18] += dv[2:3]; pl[20] += dv[3:]
        if dk: pl[22] += dk[:2]; pl[24] += dk[2:3]; pl[26] += dk[3:]
        pl[28] += [W("vm", ("K", i+3)), W("vm", ("V", i+1)), W("lg", ("kf", i+2))]
        pl[30] = ["s_barrier"] + pl[30]
        gaps(pv(0, P0[i&1], zero=(i == 0)) + pv(1, P1, zero=(i == 0)), pl)
    VAL = vT + 3; GATE = vT + 4; POL = vT + 5
    poll = f"buffer_load_dword v{POL}, v{vPOLL}, {sr(sFL,4)}, 0 offen sc1"
    pub = f"buffer_store_dword v{VAL}, v{vPUB}, {sr(sFL,4)}, 0 offen sc1"
    PZ = vDQ
    for i in range(15):
        x1 = []; x2 = []
        if i == 0:
            x1 = dma_k(4)
            BG.extend([f"v_mov_b32 v{PZ+j}, {SENT:#x}" for j in range(4)])
            BG.extend([f"v_lshlrev_b32 v{vT}, 6, v0", f"v_mov_b32 v{vT+1}, 0", f"v_mov_b32 v{VAL}, 1",
                       [f"s_lshl_b32 s{sT1}, s{sRB}, 14", f"buffer_load_dword v{PFD}, v{vT}, {sr(sWO,4)}, s{sT1} offen"]])
        if i < 8:
            BG.extend(epi_unit("a", 192 + 8*i, 1, 2 + (i >> 2), i & 3, B2 + 8*(i & 3), "fst"))
            for q in (2*i, 2*i+1):
                BG.append([f"s_mov_b32 s{sT4}, {(q>>2)*4096}", f"buffer_store_dwordx4 {vr(PZ,4)}, v{vST}, {sr(sP,4)}, s{sT4} offen offset:{(q&3)*1024} sc1"])
        gl = f"buffer_load_dword v{GATE}, v{vT+1}, {sr(sDBG,4)}, 0 offen sc1"
        if i == 2: BG.append(T(gl, "gate"))
        if i == 5: BG.extend([W("vm", "gate")] + check_ready("gate", GATE, gl, 1))
        if i == 8: x2 = ["s_waitcnt vmcnt(0)", pub]
        if i == 10: x2 = [T(poll, "fpoll")]
        if i == 12: BG.extend([W("vm", "fpoll")] + check_ready("f", POL, poll, 1))
        if i in (12, 13, 14):
            for n in range((0, 5, 11)[i-12], (5, 11, 16)[i-12]):
                ps, g = n >> 3, n & 7
                BG.append([f"s_mov_b32 s{sT4}, {g*131072 + 65536 + ps*8192}", T(f"buffer_load_dwordx4 {ar(aFL+4*n,4)}, v{vRD}, {sr(sPR,4)}, s{sT4} offen sc1", ("fl", n))])
        if i in (2, 3, 9, 10, 11): x1 = POST[(2, 3, 9, 10, 11).index(i)].dma()
        if i >= 3: stamp(4)
        keep = OPT["budget"]
        if BG: OPT["budget"] = 12
        att_iter(i, x1=x1, x2=x2)
        OPT["budget"] = keep
        flush()
    i = 15
    E(vreads(i))
    def lfin(rg): return xred("v_add_f32", vL+rg, LR+8) + [f"v_rcp_f32 v{LR+2*rg}, v{vL+rg}"]
    E(f"s_lshl_b32 s{sT0}, s{sW}, 14")
    for j in range(2): E(f"v_add_u32 v{vBC+j}, s{sT0}, v{vB+j}")
    E(lfin(0))
    pl32 = sm_plan(1, S1[i&1], P1)
    E(pl32[:4])
    E("s_waitcnt lgkmcnt(0)")
    pl = [pl32[4+2*g] + pl32[5+2*g] if g < 14 else [] for g in range(16)]
    pl[0] = ["s_barrier"] + pl[0]
    gaps(pv(0, P0[i&1]), pl)
    BG.extend(lfin(1) + lfin(2) + lfin(3))
    OT = B2
    gaps(pv(1, P1), [], budget=12)
    flush()
    E(f"v_add_f32 v{vT+1}, v{vL}, v{vL+1}", f"v_add_f32 v{vT+2}, v{vL+2}, v{vL+3}", f"s_mov_b32 s{sT1}, {f32(2.0**OPT['thr'])}", f"v_add_f32 v{vT+1}, v{vT+1}, v{vT+2}",
      f"v_cmp_nge_f32 vcc, s{sT1}, v{vT+1}", f"v_and_b32 v{vT+2}, 3, v{l}", f"v_mul_u32_u24 v{vT+2}, {NS*4096}, v{vT+2}",
      "s_cmp_lg_u64 vcc, 0", f"s_cselect_b32 s{sT1}, 1, 0", f"v_mov_b32 v{vT}, s{sT1}",
      f"s_lshl_b32 s{sT1}, s{sW}, 2", f"s_add_u32 s{sT1}, s{sT1}, {R_BASE}", f"v_add_u32 v{vT+2}, s{sT1}, v{vT+2}", f"v_mov_b32 v{vT+1}, s{sRING}",
      f"ds_write_b32 v{vT+2}, v{vT} offset:{5*4096}")
    stamp()
    for n in range(16):
        x, T32, rl = n >> 3, (n >> 1) & 3, n & 1
        b = OT + 8*(n & 7); rg = 2*x + rl
        for r in range(8): E(f"v_accvgpr_read_b32 v{b+r}, a{aO+8*n+r}")
        for j in range(4): E(f"v_pk_mul_f32 {vr(b+2*j,2)}, {vr(b+2*j,2)}, {vr(LR+2*rg,2)} op_sel_hi:[1,0]")
        for j in range(4): E(f"v_cvt_pk_bf16_f32 v{b+j}, v{b+2*j}, v{b+2*j+1}")
        E(f"ds_write_b128 v{vBC+(T32&1)}, {vr(b,4)} offset:{T32*4096+rg*1024}")
    POST[0].areg = ("v", B5)
    E(POST[0].areads())
    E("s_waitcnt lgkmcnt(8)", "s_barrier")
    E(T(f"ds_read_b128 {vr(56,4)}, v{vT+1} offset:{5*4096}", "flg"), POST[0].breads())
    E(W("lg", "flg"))
    E(f"v_or3_b32 v{vT}, v56, v57, v58", f"v_or_b32 v{vT}, v{vT}, v59", "s_nop 0", f"v_readfirstlane_b32 s{sT0}, v{vT}",
      "s_nop 0", f"s_andn2_b32 s{sT0}, s{sT0}, s{sFLAG}", "s_cbranch_scc1 L_slow")
    E(POST[5].dma())
    stamp(); stamp(5)
    GV, XO, XR, BRW, TM = 112, vT, 56, 40, 8
    sepi = lambda ps, n: epi_unit("v", ((B4, B3), (B2, B5))[ps][n >> 2] + 8*(n & 3), 0, 2*ps + (n >> 2), n & 3, None, ("sst", ps))
    SL = B3
    def sloads(ps): return [[f"s_mov_b32 s{sT4}, {g*131072 + ps*8192}", T(f"buffer_load_dwordx4 {vr(SL+32*ps+4*g,4)}, v{vRD}, {sr(sPR,4)}, s{sT4} offen sc1", ("sl", ps, g))] for g in range(8)]
    sst = [int(x) for x in str(OPT["sst"]).split("_")]
    def fmath(pk):
        o = []; TQ = 18
        for ps in range(2):
            G_ = GV + 8*ps
            for g in range(8):
                n = 8*ps + g
                for j in range(4): o.append(f"v_accvgpr_read_b32 v{TQ+8+j}, a{aFL+4*n+j}")
                d0 = G_ if g == 0 else TQ
                for j in range(4): o += [f"v_lshlrev_b32 v{d0+2*j}, 16, v{TQ+8+j}", f"v_and_b32 v{d0+2*j+1}, s{sC0}, v{TQ+8+j}"]
                if g and pk: o += [f"v_pk_add_f32 {vr(G_+2*j,2)}, {vr(G_+2*j,2)}, {vr(TQ+2*j,2)}" for j in range(4)]
                elif g: o += [f"v_add_f32 v{G_+j}, v{G_+j}, v{TQ+j}" for j in range(8)]
            for j in range(4): o += [f"v_lshlrev_b32 v{TQ+2*j}, 16, v{BRW+4*ps+j}", f"v_and_b32 v{TQ+2*j+1}, s{sC0}, v{BRW+4*ps+j}"]
            for j in range(8): o.append(f"v_fma_f32 v{G_+j}, v{G_+j}, s{sT0}, v{TQ+j}")
            for j in range(8): o.append(f"v_mul_f32 v{TQ+j}, {f32(-math.log2(math.e))}, v{G_+j}")
            for j in range(8): o.append(f"v_exp_f32 v{TQ+j}, v{TQ+j}")
            for j in range(8): o.append(f"v_add_f32 v{TQ+j}, 1.0, v{TQ+j}")
            for j in range(8): o.append(f"v_rcp_f32 v{TQ+j}, v{TQ+j}")
            for j in range(8): o.append(f"v_mul_f32 v{G_+j}, v{G_+j}, v{TQ+j}")
        return o
    for i, st in enumerate(POST[:30]):
        if i == 0:
            BG.extend([f"v_bfe_u32 v{XO+1}, v0, 4, 2", f"v_lshlrev_b32 v{XO+1}, 3, v{XO+1}", f"v_lshrrev_b32 v{TM}, 6, v0", f"v_and_b32 v{TM+1}, 15, v0",
                       f"v_lshl_add_u32 v{TM}, v{TM}, 4, v{TM+1}", f"v_lshl_add_u32 v{XO}, v{TM}, 10, v{XO+1}", f"s_mov_b32 s{sT0}, {f32(1/CS**2)}"])
        if i == (0 if OPT["fbg"] else OPT["xbl"]):
            for k in range(4):
                BG.append(T(f"buffer_load_dwordx2 {vr(XR+2*k,2)}, v{XO}, {sr(sX,4)}, s{sVOFF} offen offset:{(k>>1)*128+(k&1)*32}", "xb"))
                BG.append(T(f"buffer_load_dwordx2 {vr(BRW+2*k,2)}, v{XO+1}, {sr(sB2,4)}, 0 offen offset:{(k>>1)*128+(k&1)*32}", "xb"))
        if i == 6 and OPT["fbg"]: BG.extend([W("vm", "xb")] + fmath(False))
        e = [x for n in range(8) if sst[n * len(sst) // 8] == i for x in sepi(0, n)]
        for x in reversed(e): BG.appendleft(x)
        if i == OPT["lda"]:
            for x in reversed(sloads(0)): BG.appendleft(x)
        d = POST[i + NS].dma() if i + NS < 32 else []
        nxt = POST[i + 1].reads() + (POST[31].reads() if i == 29 else [])
        step(st, nxt, d)
        if i == 15: stamp()
        if i % 3 == 2: stamp(5)
    REST = list(BG); BG.clear()
    print("f math left for the tail:", len(REST), file=sys.stderr)
    flush()
    stamp()
    E(W("lg", POST[31].tag))
    for n in range(8):
        if n >= 2: BG.extend(sepi(1, n - 2))
        gaps([POST[j].one(2*(n >> 2) + h, n & 3) for j in (30, 31) for h in range(2)], [], budget=12)
    flush()
    E(sepi(1, 6))
    E("s_nop 3")
    E(sepi(1, 7))
    stamp()
    SA, ST_, XT = B0, B0+8, B0+16
    def fin(ps):
        E(f"s_mov_b64 s[{sT2}:{sT3}], -1", f"s_mov_b32 s{sCNT}, {OPT['spin']}")
        for j in range(4): E(f"v_lshlrev_b32 v{XT+2*j}, 16, v{XR+4*ps+j}", f"v_and_b32 v{XT+2*j+1}, s{sC0}, v{XR+4*ps+j}")
        E(f"L_sum{ps}:")
        for g in range(8):
            E(W("vm", ("sl", ps, g)))
            d0 = SA if g == 0 else ST_
            for j in range(4): E(f"v_lshlrev_b32 v{d0+2*j}, 16, v{SL+32*ps+4*g+j}", f"v_and_b32 v{d0+2*j+1}, s{sC0}, v{SL+32*ps+4*g+j}")
            if g:
                for j in range(4): E(f"v_pk_add_f32 {vr(SA+2*j,2)}, {vr(SA+2*j,2)}, {vr(ST_+2*j,2)}")
        E(f"v_pk_add_f32 {vr(ST_,2)}, {vr(SA,2)}, {vr(SA+2,2)}", f"v_pk_add_f32 {vr(ST_+2,2)}, {vr(SA+4,2)}, {vr(SA+6,2)}",
          f"v_pk_add_f32 {vr(ST_,2)}, {vr(ST_,2)}, {vr(ST_+2,2)}", f"v_cmp_u_f32 vcc, v{ST_}, v{ST_+1}")
        for j in range(4): E(f"v_pk_fma_f32 {vr(SA+2*j,2)}, {vr(SA+2*j,2)}, {vr(GV+8*ps+2*j,2)}, {vr(XT+2*j,2)}")
        E(f"s_and_b64 vcc, vcc, s[{sT2}:{sT3}]", f"s_cbranch_scc1 L_miss{ps}")
        for j in range(4): E(f"v_cvt_pk_bf16_f32 v{B0+24+4*ps+j}, v{SA+2*j}, v{SA+2*j+1}")
        for k in range(2): E(f"buffer_store_dwordx2 {vr(B0+24+4*ps+2*k,2)}, v{XO}, {sr(sOUT,4)}, s{sVOFF} offen offset:{ps*128+k*32} {OPT['outsc']}")
    if not OPT["fbg"]: REST = [W("vm", "xb")] + fmath(True)
    cut = min(len(REST), OPT["bdel"])
    if OPT["lda"] >= 30: E(REST[:cut//2], sloads(0), REST[cut//2:cut], sloads(1), REST[cut:])
    else: E(REST[:cut], sloads(1), REST[cut:])
    fin(0)
    stamp()
    fin(1)
    stamp()
    if OPT["stamps"]:
        E("s_waitcnt vmcnt(0)")
        stamp(0)
        E(f"s_lshl_b32 s{sT0}, s2, 2", f"s_add_u32 s{sT0}, s{sT0}, s{sW}", f"s_lshl_b32 s{sT0}, s{sT0}, 6", f"s_add_u32 s{sT0}, s{sT0}, {64<<20}")
        srd(sX, 58, sT0, ("imm", 64))
        E(f"v_mov_b32 v{vT}, 0", "s_memrealtime s[70:71]", "s_waitcnt lgkmcnt(0)", f"s_mov_b32 s87, s70")
        for i in list(range(nstamp[0])) + [14, 15]:
            E(f"v_mov_b32 v{vT+1}, s{sST+i}", f"buffer_store_dword v{vT+1}, v{vT}, {sr(sX,4)}, 0 offen offset:{4*i}")
    if OPT["hold"] >= 0:
        E(f"s_cmp_lg_u32 s2, {OPT['hwg']}", "s_cbranch_scc1 L_main_end", "s_mov_b32 s73, 3000", "L_hold:", "s_memrealtime s[70:71]", "s_waitcnt lgkmcnt(0)",
          "s_sub_u32 s70, s70, s72", "s_sub_u32 s73, s73, 1", "s_cbranch_scc1 L_main_end", "s_cmp_lt_u32 s70, 10000", "s_cbranch_scc1 L_hold")
    E("L_main_end:", "s_endpgm")
    for name, vreg, load, val in SPINS:
        E(f"L_spin_{name}:", f"s_mov_b32 s{sCNT}, {OPT['spin']}", f"L_spinl_{name}:", load, "s_waitcnt vmcnt(0)",
          f"v_cmp_le_u32 vcc, {val}, v{vreg}", f"s_sub_u32 s{sCNT}, s{sCNT}, 1", f"s_cbranch_scc1 L_ok_{name}",
          "s_cmp_eq_u64 vcc, -1", f"s_cbranch_scc0 L_spinl_{name}", f"s_branch L_ok_{name}")
    for ps in range(2):
        E(f"L_miss{ps}:", f"s_mov_b32 s{sT0}, {SENT:#x}", f"s_mov_b32 s{sT1}, 0")
        for g in range(8):
            r = SL + 32*ps + 4*g
            E(f"v_cmp_eq_u32 vcc, s{sT0}, v{r}", f"v_cmp_eq_u32 s[{sT2}:{sT3}], s{sT0}, v{r+1}", "s_nop 0", f"s_or_b64 s[70:71], vcc, s[{sT2}:{sT3}]",
              f"v_cmp_eq_u32 vcc, s{sT0}, v{r+2}", f"v_cmp_eq_u32 s[{sT2}:{sT3}], s{sT0}, v{r+3}", "s_nop 0", f"s_or_b64 s[70:71], vcc, s[70:71]",
              f"s_or_b64 s[70:71], s[70:71], s[{sT2}:{sT3}]", f"s_cbranch_scc0 L_have{ps}_{g}", f"s_mov_b32 s{sT1}, 1", sloads(ps)[g], f"L_have{ps}_{g}:")
        E(f"s_sub_u32 s{sCNT}, s{sCNT}, 1", f"s_cselect_b32 s{sT1}, 0, s{sT1}", f"s_cmp_lg_u32 s{sT1}, 0", f"s_cselect_b64 s[{sT2}:{sT3}], -1, 0",
          "s_waitcnt vmcnt(0)", f"s_branch L_sum{ps}")
    E("L_slow:")
    E("s_waitcnt vmcnt(0) lgkmcnt(0)", "s_barrier")
    E(f"s_mov_b32 s{sKOFF}, 0", f"s_mov_b32 s{sCNT}, 16", [f"v_mov_b32 v{vM+j}, 0xff800000" for j in range(4)])
    E("L_slow_loop:")
    dk = dma_k(0); E(dk[0], "s_nop 0", dk[2:])
    E("s_waitcnt vmcnt(0)", "s_barrier")
    E(kreads(0))
    E("s_waitcnt lgkmcnt(0)", "s_barrier")
    E(qk(0, S0, True), qk(1, S1[0], True))
    E("s_nop 7", "s_nop 7", f"s_add_u32 s{sKOFF}, s{sKOFF}, 8192")
    for rg in range(4):
        s = S0 + 8*rg
        for j in range(0, 8, 2): E(f"v_max3_f32 v{vM+rg}, v{vM+rg}, v{s+j}, v{s+j+1}")
    E(f"s_sub_u32 s{sCNT}, s{sCNT}, 1", f"s_cmp_lg_u32 s{sCNT}, 0", "s_cbranch_scc1 L_slow_loop")
    for rg in range(4): E(xred("v_max_f32", vM+rg, vT))
    E(f"s_mov_b32 s{sFLAG}, 1", "s_branch L_restart", "L_code_end:")

K = NAME + "_kernel"
hdr = open("cdna_kernels/" + NAME + ".s.ref").read().split("; Override launch")[0]
out = [hdr.rstrip()]
out.append("; @launch grid=(256,1,1) block=(256,1,1) lds=163840")
out.append('.amdgcn_target "amdgcn-amd-amdhsa--gfx950"')
out.append(".text")
main_kernel(K)
if OPT["stubs"]:
    import subprocess, tempfile, os, re
    tmp = tempfile.mkdtemp()
    open(tmp + "/a.s", "w").write("\n".join(out + L + [f"L_pg{i}:" for i in range(4)] + ["s_endpgm"]) + "\n")
    subprocess.run(["clang", "-x", "assembler", "-target", "amdgcn-amd-amdhsa", "-mcpu=gfx950", "-c", tmp + "/a.s", "-o", tmp + "/a.o"], check=True)
    dis = subprocess.run(["llvm-objdump", "-d", "--mcpu=gfx950", tmp + "/a.o"], capture_output=True, text=True).stdout
    addrs = [int(m.group(1), 16) for m in re.finditer(r"// ([0-9A-F]{12}):", dis)]
    idx = [i for i, x in enumerate(L) if x.startswith("    ")]
    assert len(addrs) == len(idx) + 1, (len(addrs), len(idx))
    end = L.index("L_main_end:")
    pos = []; page = OPT["pg0"]
    for a_, i in zip(addrs, idx):
        if i >= end: break
        if a_ + 4*len(pos) >= page * 4096 + OPT["pgo"]: pos.append(i); page += 1
    n = len(pos)
    for k in reversed(range(n)):
        L[pos[k]:pos[k]] = [f"L_pg{k}:", f"    s_cbranch_execz {'L_pg%d' % (k+4) if k + 4 < n else 'L_pgret'}"]
out += L
out.append('.section .rodata,"a"')
out.append(f""".p2align 6
.amdhsa_kernel {K}
  .amdhsa_next_free_vgpr 512
  .amdhsa_next_free_sgpr 102
  .amdhsa_accum_offset 256
  .amdhsa_group_segment_fixed_size 0
  .amdhsa_kernarg_size 104
  .amdhsa_user_sgpr_count 2
  .amdhsa_user_sgpr_kernarg_segment_ptr 1
  .amdhsa_system_sgpr_workgroup_id_x 1
.end_amdhsa_kernel""")
print("\n".join(out))
```

```python
import sys, math, struct
from collections import deque
NAME = "recurrent_scan__sliding_block_cached__dense_activation_squared_relu__prompt"
OPT = dict(stamps=0, rt=0, codepf=1, budget=8, thr=40, memc=4, dmac=8, hg=2, rot=8, outsc="", skip="", spin=200000, pfpos=9, pfs="w2@-1_k@20_v@20", pf2=28,
           sst="23_24_25_26", dropoob=1, lda=99, npre=12, sp0=4, hw0=12, gb=8, pf1=12, stubs=1, fbg=0, bdel=60, xbl=27, kvrot=0, pg0=2, pgo=0, f2b=12, hold=-1, hwg=100, hold2="", wol="5_6_9_11_12_13", wopf=1, fldo=1, wo4=0, slp=0, fs0=5, pad=4352)
for a in sys.argv[1:]:
    k, v = a.split("="); OPT[k] = int(v) if v.lstrip("-").isdigit() else v

def vr(b, n=1): return f"v{b}" if n == 1 else f"v[{b}:{b+n-1}]"
def ar(b, n=1): return f"a{b}" if n == 1 else f"a[{b}:{b+n-1}]"
def R(kind, b, n=1): return vr(b, n) if kind == "v" else ar(b, n)
def sr(b, n=1): return f"s{b}" if n == 1 else f"s[{b}:{b+n-1}]"
def f32(x): return "0x%08x" % struct.unpack("<I", struct.pack("<f", x))[0]

class W:
    def __init__(s, cnt, tag): s.cnt, s.tag = cnt, tag
class W2:
    def __init__(s, *ws): s.ws = ws
class T:
    def __init__(s, text, tag): s.text, s.tag = text, tag
L = []; VM = []; LG = []
def E(*xs):
    for x in xs:
        if isinstance(x, (list, tuple)): E(*x); continue
        if isinstance(x, W2):
            n0 = len(L)
            for w_ in x.ws: E(w_)
            parts = {}
            for ln in L[n0:]:
                p_ = ln.split()[1]; parts[p_[:2]] = p_
            del L[n0:]
            if parts: L.append("    s_waitcnt " + " ".join(parts[k] for k in ("vm", "lg") if k in parts))
            continue
        if isinstance(x, W):
            q = VM if x.cnt == "vm" else LG
            idx = [i for i, t in enumerate(q) if t == x.tag]
            if not idx: continue
            n = len(q) - 1 - idx[-1]
            n = min(n, 63 if x.cnt == "vm" else 15)
            del q[:len(q) - n]
            L.append(f"    s_waitcnt {'vmcnt' if x.cnt == 'vm' else 'lgkmcnt'}({n})"); continue
        tag = None
        if isinstance(x, T): x, tag = x.text, x.tag
        op = x.split()[0]
        if op.startswith("buffer_") or op.startswith("global_"): VM.append(tag)
        if op.startswith("ds_"): LG.append(tag)
        if op == "s_waitcnt":
            for w in x.split()[1:]:
                n = int(w[w.index("(")+1:-1]); q = VM if w.startswith("vm") else LG
                if len(q) > n: del q[:len(q) - n]
        L.append("    " + x if not x.endswith(":") and not x.startswith(".") else x)
def opof(x):
    if isinstance(x, (list, tuple)): return opof(x[0])
    if isinstance(x, (W, W2)): return "s_waitcnt"
    return (x.text if isinstance(x, T) else x).split()[0]
def ismem(x):
    if isinstance(x, (list, tuple)): return any(ismem(y) for y in x)
    return opof(x).split("_")[0] in ("ds", "buffer", "global")
def isvalu(x): return opof(x).startswith("v_")
def cost(x):
    if isinstance(x, (list, tuple)): return sum(cost(y) for y in x)
    if isinstance(x, (W, W2)): return 4
    t = x.text if isinstance(x, T) else x
    op = t.split()[0]
    assert not op.startswith("v_pk_"), t
    if op in ("v_exp_f32", "v_rcp_f32", "v_sqrt_f32"): return 8
    if op.startswith("buffer_store_dwordx4"): return 24
    if op.startswith("buffer_") or op.startswith("global_"): return OPT["dmac"]
    if op == "s_nop": return 4 * (int(t.split()[1]) + 1)
    if op == "ds_write_b128": return 20
    return 4
BG = deque()
def gaps(mf, plan, budget=None, wr_from=0):
    budget = OPT["budget"] if budget is None else budget
    for g, m in enumerate(mf):
        E(m)
        items = plan[g] if g < len(plan) else []
        endi = [x[1:] for x in items if isinstance(x, tuple) and x[0] == "end"]
        items = [x for x in items if not (isinstance(x, tuple) and x[0] == "end")]
        c = sum(cost(x) for x in items) + sum(cost(x) for x in endi)
        E([x for x in items if not isvalu(x)])
        while True:
            while BG and ismem(BG[0]) and len(PM) < 3: PM.append(BG.popleft())
            if PM and opof(PM[0]).startswith("ds_write") and g < wr_from: break
            if PM and (c + cost(PM[0]) <= budget or c <= OPT["memc"]):
                x = PM.popleft(); E(x); c += cost(x)
            else: break
        E([x for x in items if isvalu(x)])
        while BG:
            if ismem(BG[0]):
                if len(PM) < 3: PM.append(BG.popleft()); continue
                break
            if opof(BG[0]) in ("s_waitcnt", "s_barrier") and PM: break
            if c + cost(BG[0]) > budget: break
            x = BG.popleft(); E(x); c += cost(x)
        E(endi)
PM = deque()
def flush():
    print("flush", len(PM), len(BG), "at line", len(L), file=sys.stderr)
    while PM: E(PM.popleft())
    while BG: E(BG.popleft())
def spread(items, n, per):
    return [items[g*per:(g+1)*per] for g in range(n)]


CS = 128**-0.5 * math.log2(math.e)
X_BASE, R_BASE, NS = 0, 65536, 6
KR_BASE = 32768
FLAG_OFF = 48 << 20
OOB = 0x40000000
PSTR = 131072 + OPT['pad']
SENT = 0xff81ff81
sX, sK, sV, sWQ, sWO, sW1, sW2, sB1, sP = 4, 8, 12, 16, 20, 24, 28, 32, 36
sW, sG, sRB, sRING, sOFF, sCNT, sT0, sT1, sKOFF, sVOFF, sVL, sC0, sT2, sT3, sFLAG, sT4, sROT, sJJ = range(40, 58)
sFL, sDBG, sPR, sB2, sOUT = 60, 64, 88, 92, 96
sST = 72
vLANE, vTF, vB, vBC, vPUB, vPOLL, vTQ, vDO, vKR, vTV, vDK, vDV, vST, vRD, vM, vL = 1, 2, 6, 8, 10, 11, 12, 14, 18, 22, 26, 28, 30, 31, 32, 36
vDQ, vD1, PFD = 40, 44, 49
vT = 50
B0, B1, B2, B3, B4, B5 = 64, 96, 128, 160, 192, 224
S0, S1, P0, P1, NEGM = B3, (B3+16, B4), (56, B4+16), B4+24, B5
LR = B5 + 16
aO, aVF, aKF, aFL = 0, 128, 160, 192
def QFr(rg, s_): return B0 + 16*s_ + 4*rg
BIAS = B2 + 16

nstamp = [0]
hcnt = [0]
def stamp(lvl=1):
    if OPT["hold"] >= 0 and lvl in (0, 1):
        if hcnt[0] == OPT["hold"]: E("s_memrealtime s[70:71]", "s_waitcnt lgkmcnt(0)", "s_mov_b32 s72, s70")
        hcnt[0] += 1
    if not OPT["stamps"]: return
    if OPT["stamps"] != lvl and lvl != 0: return
    i = nstamp[0]; nstamp[0] += 1
    assert i < 14
    E("s_memrealtime s[70:71]" if OPT["rt"] else "s_memtime s[70:71]", "s_waitcnt lgkmcnt(0)", f"s_mov_b32 s{sST+i}, s70")

def mfma(dk, d, ak, a, bk, b, c=None, ck=None):
    cs = R(dk, d, 4) if c is None else (str(c) if ck is None else R(ck, c, 4))
    return f"v_mfma_f32_16x16x32_bf16 {R(dk,d,4)}, {R(ak,a,4)}, {R(bk,b,4)}, {cs}"
def kvoff(t):
    return f"s_xor_b32 s{sKOFF}, s{sJJ}, {t*8192}" if OPT["kvrot"] else f"s_mov_b32 s{sKOFF}, {t*8192}"
def dma_k(t):
    return [f"s_add_u32 m0, s{sVL}, {KR_BASE+(t&3)*8192}", kvoff(t),
            T(f"buffer_load_dwordx4 v{vDK}, {sr(sK,4)}, s{sKOFF} offen lds", ("K", t)),
            T(f"buffer_load_dwordx4 v{vDK+1}, {sr(sK,4)}, s{sKOFF} offen offset:1024 lds", ("K", t))]
def dma_v(t):
    return [f"s_add_u32 m0, s{sVL}, {X_BASE+(t&3)*8192}", kvoff(t),
            T(f"buffer_load_dwordx4 v{vDV}, {sr(sV,4)}, s{sKOFF} offen lds", ("V", t)),
            T(f"buffer_load_dwordx4 v{vDV+1}, {sr(sV,4)}, s{sKOFF} offen offset:1024 lds", ("V", t))]

class Stage:
    def __init__(s, idx, mat, j, ps, acc, areg, readb, vb):
        s.idx, s.mat, s.j, s.ps, s.acc, s.areg, s.readb, s.vb = idx, mat, j, ps, acc, areg, readb, vb
        s.slot = idx % NS; s.tag = (mat, ps, j); s.breg = ("a", 16*j)
    def dma(s):
        srd_, vd, stride = {"w1": (sW1, vD1, 3584), "wq": (sWQ, vDQ, 8192), "w2": (sW2, vDO, 1024), "wo": (sWO, vDO, 1024)}[s.mat]
        o = [f"s_add_u32 m0, s{sRING}, {s.slot*4096}", f"s_mov_b32 s{sOFF}, {s.j*32*stride + s.ps*128}"]
        if OPT["rot"] and s.mat == "wq":
            o[1] = [f"s_add_u32 s{sOFF}, s{sROT}, {s.j*32*8192 + s.ps*128}", f"s_and_b32 s{sOFF}, s{sOFF}, {512*8192-1}"]
        if OPT["rot"] and s.mat == "w1":
            o[1] = [f"s_add_u32 s{sOFF}, s{sROT}, {s.j*32*8192}", f"s_bfe_u32 s{sOFF}, s{sOFF}, {(9<<16)|13}", f"s_mul_i32 s{sOFF}, s{sOFF}, 3584"]
        return o + [T(f"buffer_load_dwordx4 v{vd+p}, {sr(srd_,4)}, s{sOFF} offen offset:{p*1024} lds", s.tag) for p in range(4)]
    def areads(s):
        ak, a = s.areg; o = [W("vm", s.tag)]
        for Tt in range(4):
            for t in range(2):
                va, off = (vTQ + (Tt >> 1), 8*(Tt & 1)) if s.mat == "wq" else (vTF + Tt, 0)
                o.append(T(f"ds_read_b64_tr_b16 {R(ak, a+4*Tt+2*t, 2)}, v{va} offset:{s.slot*4096+t*2048+off}", s.tag))
        return o
    def breads(s):
        if not s.readb: return []
        bk, b = s.breg
        return [T(f"ds_read_b128 {R(bk, b+4*rg, 4)}, v{s.vb+(s.j&1)} offset:{s.j*4096+rg*1024}", s.tag) for rg in range(4)]
    def reads(s): return s.breads() + s.areads()
    def one(s, Tt, rg):
        ak, a = s.areg; dk, d = s.acc(Tt, rg)
        c = () if s.j else ((BIAS + 4*Tt, "v") if s.mat == "w1" else (0,))
        return mfma(dk, d, ak, a+4*Tt, s.breg[0], s.breg[1]+4*rg, *c)
    def mf(s): return [s.one(Tt, rg) for Tt in range(4) for rg in range(4)]
def step(st, nxt_reads, dma, post=(), gb=None):
    E(W("lg", st.tag))
    plan = [[] for _ in range(16)]
    q = list(nxt_reads)
    dg = {}
    if dma:
        dg = {0: dma[:2], 3: dma[2:3], 7: dma[3:4]}
        if len(dma) == 6: dg.update({11: dma[4:5], 15: dma[5:6]})
        elif len(dma) == 8: dg.update({9: dma[4:6], 11: dma[6:7], 15: dma[7:8]})
    per = 1 if len(q) <= (16 - len(dg) - 2) else 2
    for g in range(16):
        if g in dg: plan[g] += dg[g]
        else: plan[g] += q[:per]; q = q[per:]
    assert not q
    plan[15] += list(post)
    gaps(st.mf(), plan, budget=gb or OPT["gb"])

def srd(d, ptr, off, size):
    E(f"s_add_u32 s{d}, s{ptr}, s{off}", f"s_addc_u32 s{d+1}, s{ptr+1}, 0")
    if size[0] == "rest": E(f"s_sub_u32 s{d+2}, {size[1]}, s{off}")
    else: E(f"s_mov_b32 s{d+2}, {size[1]}")
    E(f"s_mov_b32 s{d+3}, 0x00020000")

SPINS = []
def check_ready(name, vreg, load, val):
    SPINS.append((name, vreg, load, val))
    return [f"v_cmp_le_u32 vcc, {val}, v{vreg}", "s_nop 1", ["s_cmp_eq_u64 vcc, -1", f"s_cbranch_scc0 L_spin_{name}", f"L_ok_{name}:"]]
def blk(kind, lo, hi): return lambda Tt, rg: (kind, (lo, hi)[Tt >> 1] + 8*rg + 4*(Tt & 1))
def xred(op, a, b):
    return [f"v_mov_b32 v{b}, v{a}", "s_nop 1", f"v_permlane32_swap_b32 v{a}, v{b}", "s_nop 0", f"{op} v{a}, v{a}, v{b}",
            f"v_mov_b32 v{b}, v{a}", "s_nop 1", f"v_permlane16_swap_b32 v{a}, v{b}", "s_nop 0", f"{op} v{a}, v{a}, v{b}"]

def main_kernel(K):
    PRE = []
    def add(lst, mat, n, ps, acc, aregs, readb, vb):
        for j in range(n): lst.append(Stage(len(lst), mat, j, ps, acc, aregs(len(lst)), readb, vb))
    av = lambda i: ("v", B3 + 16*(i & 1)); aa = lambda i: ("a", 112 + 16*(i & 1))
    add(PRE, "wq", 16, 0, blk("v", B0, B1), av, True, vB)
    add(PRE, "w1", 16, 0, blk("v", B4, B5), av, False, vB)
    add(PRE, "wq", 16, 1, blk("v", B1, B2), av, False, vB)
    add(PRE, "w2", 7, 0, blk("v", B2, B4), aa, True, vBC)
    add(PRE, "w2", 7, 1, blk("a", 192, 224), aa, False, vBC)
    POST = []
    SETS = [("a", aKF), ("a", aKF+16), ("a", aVF), ("a", aVF+16), ("v", B0), ("v", B0+16), ("v", B0+32)]
    ao = lambda i: SETS[i % 7]
    add(POST, "wo", 16, 0, blk("v", B4, B3), ao, True, vB)
    add(POST, "wo", 16, 1, blk("v", B2, B5), ao, False, vB)
    for st in POST:
        if st.j >= 8:
            st.readb = True
            st.breg = ("v", B2 + 16*(st.j & 1)) if st.ps == 0 else ("a", 16*(st.j - 8))

    E(".p2align 12", ".p2align 8", f".globl {K}", f".type {K},@function", f"{K}:")
    E("s_cmp_ge_u32 s2, 256", "s_cbranch_scc1 L_main_end")
    E(f"s_mov_b32 s{sFLAG}, 0", [f"v_mov_b32 v{vM+j}, 0" for j in range(4)])
    E("L_restart:")
    if OPT["stamps"]: E("s_memrealtime s[86:87]")
    stamp(0)
    E("s_load_dwordx8 s[60:67], s[0:1], 0", "s_load_dwordx2 s[68:69], s[0:1], 32", "s_load_dwordx4 s[88:91], s[0:1], 48",
      "s_load_dwordx8 s[92:99], s[0:1], 64", "s_load_dwordx2 s[58:59], s[0:1], 96")
    if OPT["codepf"]:
        E("s_getpc_b64 s[100:101]", "L_pc:", f"s_sub_u32 s100, s100, L_pc-{K}", "s_subb_u32 s101, s101, 0")
        E(f"s_bfe_u32 s{sT0}, s2, 0x30003", f"s_lshl_b32 s{sT0}, s{sT0}, 14", f"v_lshlrev_b32 v{vT}, 6, v0", f"v_add_u32 v{vT}, s{sT0}, v{vT}",
          f"v_min_u32 v{vT}, L_code_end-{K}-4, v{vT}")
        E(f"global_load_dword v{PFD}, v{vT}, s[100:101]")
    l = vLANE
    pt = 128
    row, c7, t0, t1, t2, t3, t4, cl, zr, bo = range(pt, pt + 10)
    xo = pt + 12
    wa, pw = 58, 60
    def cap(fn):
        global L
        keep = L; L = []; fn(); got = [x.strip() for x in L]; L = keep
        return got
    def srdl(d, ptr, off, size):
        c = cap(lambda: srd(d, ptr, off, size)); return [c[:2], c[2], c[3]]
    E(f"v_lshrrev_b32 v{t0}, 6, v0", f"v_and_b32 v{l}, 63, v0")
    HG = OPT["hg"]; lh = HG.bit_length() - 1
    E(f"s_and_b32 s{sG}, s2, {8//HG-1}", f"s_lshl_b32 s{sG}, s{sG}, {lh}", f"s_bfe_u32 s{sT0}, s2, {(lh<<16)|3}", f"s_or_b32 s{sG}, s{sG}, s{sT0}",
      f"s_lshr_b32 s{sJJ}, s2, {3+lh}", f"s_bfe_u32 s{sRB}, s2, {(lh<<16)|(3-lh)}", f"s_lshl_b32 s{sRB}, s{sRB}, {5-lh}", f"s_or_b32 s{sRB}, s{sRB}, s{sJJ}")
    E(f"v_readfirstlane_b32 s{sW}, v{t0}")
    E(f"v_bfe_u32 v{row}, v0, 3, 3", f"v_lshl_add_u32 v{t1}, v{t0}, 4, v{row}",
      f"v_and_b32 v{c7}, 7, v0", f"v_lshlrev_b32 v{xo}, 4, v{c7}", f"v_lshl_add_u32 v{xo}, v{t1}, 10, v{xo}", f"v_add_u32 v{xo+1}, 8192, v{xo}")
    XS = 8
    if OPT["rot"]:
        E(f"s_and_b32 s{sROT}, s{sJJ}, {OPT['rot']-1}", f"s_mul_i32 s{sROT}, s{sROT}, {8//OPT['rot']}", f"s_lshl_b32 s{XS}, s{sROT}, 7")
        for i in range(1, 8): E(f"s_add_u32 s{XS+i}, s{XS}, {128*i}", f"s_and_b32 s{XS+i}, s{XS+i}, 1023")
        E(f"s_lshl_b32 s{sROT}, s{sROT}, 19")
    E(f"s_and_b32 s{sJJ}, s{sJJ}, {OPT['kvrot']}", f"s_lshl_b32 s{sJJ}, s{sJJ}, 13")
    E(f"s_or_b32 s{sT0}, s{sG}, s{sW}", f"s_or_b32 s{sT0}, s{sT0}, s{sFLAG}", f"s_cmp_eq_u32 s{sT0}, 0", f"s_cselect_b32 s{sT2}, 0, {OOB}",
      f"v_lshlrev_b32 v{cl}, 8, v{row}", f"v_lshl_add_u32 v{cl}, v{c7}, 2, v{cl}", f"v_add_u32 v{cl}, s{sT2}, v{cl}",
      f"v_mov_b32 v{zr}, 0", f"v_mov_b32 v{vL}, s{sT2}", f"v_mov_b32 v{vL+1}, 1")
    E(f"s_mul_i32 s{sRING}, s{sW}, {NS*4096}", f"s_add_u32 s{sRING}, s{sRING}, {R_BASE}", f"s_lshl_b32 s{sVL}, s{sW}, 11", f"s_mov_b32 s{sC0}, 0xffff0000")
    E(f"v_lshrrev_b32 v{t2}, 4, v{l}", f"v_lshlrev_b32 v{t2}, 1, v{t2}", f"v_xor_b32 v{t3}, v{c7}, v{t2}", f"v_lshlrev_b32 v{t1}, 4, v{t3}",
      f"v_lshrrev_b32 v{t0}, 5, v{l}", f"v_and_b32 v{t2}, 3, v{row}", f"v_lshl_add_u32 v{t0}, v{t0}, 3, v{t2}",
      f"v_mul_u32_u24 v{t2}, 3584, v{t0}", f"s_lshl_b32 s{sT4}, s{sW}, 7", f"v_add3_u32 v{vD1}, v{t2}, v{t1}, s{sT4}",
      f"v_lshl_add_u32 v{vDV}, v{row}, 8, v{t1}",
      f"s_lshl_b32 s{sT0}, s{sW}, 8", f"v_add_u32 v{t1}, s{sT0}, v{t1}",
      f"v_lshl_add_u32 v{vDQ}, v{t0}, 13, v{t1}", f"v_lshl_add_u32 v{vDO}, v{row}, 10, v{t1}")
    if OPT["dropoob"]:
        E(f"s_and_b32 s{sT0}, s{sG}, 1", f"s_xor_b32 s{sT0}, s{sT0}, 1", f"s_mul_i32 s{sT0}, s{sT0}, 7", f"s_lshl_b32 s{sT3}, s{sW}, 1",
          f"v_lshrrev_b32 v{t3}, 2, v{t3}", f"v_or_b32 v{t3}, s{sT3}, v{t3}", f"v_cmp_eq_u32 vcc, s{sT0}, v{t3}", f"v_mov_b32 v{t2}, {OOB}", "s_nop 0",
          f"v_cndmask_b32 v{vD1}, v{vD1}, v{t2}, vcc")
    natp = lambda p, stride: (16*(p & 1) + 4*(p >> 1)) * stride - p*1024
    for p in range(1, 4): E(f"v_add_u32 v{vDQ+p}, {natp(p, 8192)}, v{vDQ}")
    E(f"v_xor_b32 v{t0}, v{row}, v{c7}", f"v_and_b32 v{t1}, 3, v{c7}", f"v_lshl_add_u32 v{t0}, v{t1}, 4, v{t0}", f"v_lshlrev_b32 v{t0}, 4, v{t0}",
      f"v_lshrrev_b32 v{t1}, 2, v{c7}", f"v_lshl_add_u32 v{t0}, v{t1}, 12, v{t0}", f"s_lshl_b32 s{sT0}, s{sW}, 10", f"v_add_u32 v{wa}, s{sT0}, v{t0}")
    E(f"s_lshl_b32 s{sT0}, s{sRB}, 16", f"s_lshl_b32 s{sT1}, s{sRB}, 12", f"s_add_u32 s{sT1}, s{sT1}, {FLAG_OFF}")
    E(f"s_lshr_b32 s{sT3}, s{sG}, 1", f"s_mul_i32 s{sT3}, s{sT3}, 896", f"s_and_b32 s{sT2}, s{sG}, 1", f"s_mul_i32 s{sT2}, s{sT2}, 384",
      f"s_add_u32 s{sT3}, s{sT3}, s{sT2}")
    E("s_waitcnt lgkmcnt(0)")
    srd(sX, 60, sT0, ("imm", 65536))
    RAW = 64; ACCH = B4
    U1 = srdl(sB1, 90, sT3, ("rest", 3584)) + srdl(sP, 58, sT1, ("imm", 1024)) + \
         [T(f"buffer_store_dword v{zr}, v{cl}, {sr(sP,4)}, 0 offen sc1", "clr")] + srdl(sW1, 88, sT3, ("rest", 1835008))
    def trs():
        E(f"v_lshrrev_b32 v{t0}, 2, v{l}", f"v_lshlrev_b32 v{t0}, 7, v{t0}", f"v_bfe_u32 v{t1}, v{l}, 3, 2", f"v_and_b32 v{t2}, 3, v{l}",
          f"v_lshl_add_u32 v{t3}, v{t2}, 3, v{t0}")
        for Tt in range(4):
            E(f"v_xor_b32 v{t4}, {Tt}, v{t1}", f"v_lshl_add_u32 v{vTV+Tt}, v{t4}, 5, v{t3}", f"v_add_u32 v{vTF+Tt}, s{sRING}, v{vTV+Tt}")
        E(f"v_and_b32 v{t3}, 1, v{l}", f"v_lshl_add_u32 v{t3}, v{t3}, 4, v{t0}", f"v_add_u32 v{t3}, s{sRING}, v{t3}", f"v_lshrrev_b32 v{t2}, 1, v{t2}",
          f"v_xor_b32 v{t2}, v{t2}, v{t1}")
        for t32 in range(2): E(f"v_xor_b32 v{t4}, {2*t32}, v{t2}", f"v_lshl_add_u32 v{vTQ+t32}, v{t4}, 5, v{t3}")
        E(f"v_lshrrev_b32 v{t1}, 4, v{l}", f"v_xor_b32 v{t1}, v{t1}, v{l}", f"v_lshlrev_b32 v{vB}, 4, v{t1}", f"v_xor_b32 v{vB+1}, 64, v{vB}")
    U1 += cap(trs)
    U1 += [f"v_lshrrev_b32 v{t3}, 4, v0", f"v_and_b32 v{t4}, 15, v0", f"v_lshlrev_b32 v{pw}, 6, v{t4}", f"v_lshl_add_u32 v{pw}, v{t3}, 13, v{pw}",
           f"v_lshlrev_b32 v{pw+2}, 4, v0", f"v_lshlrev_b32 v{pw+3}, 5, v0", f"v_mul_u32_u24 v{t3}, 3584, v{t3}", f"v_lshl_add_u32 v{pw+1}, v{t4}, 5, v{t3}"]
    U1 += [f"s_lshl_b32 s{sT0}, s{sG}, 10"] + srdl(sWQ, 66, sT0, ("rest", 4194304))
    U1 += [f"s_lshl_b32 s{sT0}, s{sG}, 19"] + srdl(sWO, 68, sT0, ("rest", 4194304))
    U1 += [f"s_mul_i32 s{sT2}, s{sG}, {224*1024}"] + srdl(sW2, 92, sT2, ("rest", 1835008))
    U1 += [x for p in range(1, 4) for x in (f"v_add_u32 v{vD1+p}, {natp(p, 3584)}, v{vD1}", f"v_add_u32 v{vDO+p}, {p*(8*1024-1024)}, v{vDO}")]
    U1 = deque(U1); per = (len(U1) + 15) // 16
    for i in range(8):
        for p in range(2):
            if OPT["rot"]: E(T(f"buffer_load_dwordx4 {vr(RAW+32*p+4*i,4)}, v{xo+p}, {sr(sX,4)}, s{XS+i} offen", ("x", p, i)))
            else: E(T(f"buffer_load_dwordx4 {vr(RAW+32*p+4*i,4)}, v{xo+p}, {sr(sX,4)}, 0 offen offset:{i*128}", ("x", p, i)))
            for _ in range(per):
                if U1: E(U1.popleft())
    stamp(2)
    E(f"s_add_u32 s{sT0}, s{sT0}, {1536*256}"); srd(sK, 62, sT0, ("imm", 131072)); srd(sV, 64, sT0, ("imm", 131072))
    srd(sFL, 58, sT1, ("imm", 1024))
    E(f"s_lshl_b32 s{sT0}, s{sRB}, 2"); srd(sDBG, 98, sT0, ("imm", 4))
    if OPT["stubs"]:
        E("s_mov_b64 exec, 0")
        for w_ in range(3): E(f"s_cmp_eq_u32 s{sW}, {w_}", f"s_cbranch_scc1 L_pg{w_}")
        E("s_branch L_pg3", "L_pgret:", "s_mov_b64 exec, -1")
    def later():
        E(f"s_and_b32 s{sT0}, s{sW}, 1", f"s_lshl_b32 s{sT0}, s{sT0}, 12", f"s_lshr_b32 s{sT1}, s{sW}, 1", f"s_lshl_b32 s{sT1}, s{sT1}, 7",
          f"s_add_u32 s{sT0}, s{sT0}, s{sT1}", f"v_add_u32 v{vDV}, s{sT0}, v{vDV}", f"v_add_u32 v{vDV+1}, 1024, v{vDV}")
        E(f"v_lshrrev_b32 v{t0}, 4, v{l}")
        for p in range(2):
            E(f"s_lshl_b32 s{sT0}, s{sW}, 3", f"s_add_u32 s{sT0}, s{sT0}, {4*p}", f"v_add_u32 v{t2}, s{sT0}, v{t0}",
              f"v_xor_b32 v{t3}, v{t2}, v{l}", f"v_and_b32 v{t3}, 15, v{t3}", f"v_lshlrev_b32 v{t3}, 4, v{t3}",
              f"v_lshl_add_u32 v{vDK+p}, v{t2}, 8, v{t3}")
            if p: E(f"v_subrev_u32 v{vDK+p}, 1024, v{vDK+p}")
        E(f"v_and_b32 v{t1}, 15, v{l}", f"v_lshlrev_b32 v{t2}, 8, v{t1}", f"v_add_u32 v{t2}, {KR_BASE}, v{t2}", f"v_xor_b32 v{t1}, v{t1}, v{t0}")
        for s_ in range(4): E(f"v_xor_b32 v{t3}, {4*s_}, v{t1}", f"v_lshl_add_u32 v{vKR+s_}, v{t3}, 4, v{t2}")
        E(f"s_lshl_b32 s{sT0}, s{sW}, 14", f"v_lshlrev_b32 v{vST}, 4, v{l}", f"v_add_u32 v{vST}, s{sT0}, v{vST}")
    LATER = cap(later)
    LATER += [f"s_lshl_b32 s{sT0}, s{sRB}, 3", f"s_or_b32 s{sT0}, s{sT0}, s{sG}", f"s_mul_i32 s{sT0}, s{sT0}, {PSTR}"] + srdl(sP, 58, sT0, ("imm", 131072))
    LATER += [f"s_lshr_b32 s{sT1}, s{sG}, 1", f"s_lshl_b32 s{sT1}, s{sT1}, 2", f"s_and_b32 s{sT0}, s{sG}, 1", f"s_or_b32 s{sT4}, s{sT1}, s{sT0}",
              f"s_mul_i32 s{sT0}, s{sRB}, {8*PSTR}", f"s_lshl_b32 s{sT1}, s{sT4}, 12", f"s_add_u32 s{sT0}, s{sT0}, s{sT1}"] + srdl(sPR, 58, sT0, ("imm", 8*PSTR))
    LATER += [f"s_lshl_b32 s{sVOFF}, s{sT4}, 6"] + srdl(sB2, 94, sVOFF, ("rest", 1024))
    LATER += [f"s_lshl_b32 s{sT0}, s{sRB}, 16"] + srdl(sOUT, 96, sT0, ("imm", 65536))
    LATER2 = LATER[38:]
    BRW1 = 50
    LATER = [f"v_lshrrev_b32 v{bo}, 4, v{l}", f"v_lshlrev_b32 v{bo}, 3, v{bo}", f"s_lshl_b32 s{sT2}, s{sW}, 7"] + \
            [T(f"buffer_load_dwordx2 {vr(BRW1+2*q,2)}, v{bo}, {sr(sB1,4)}, s{sT2} offen offset:{q*32}", "bias") for q in range(4)] + LATER[:38]
    LATER.append(W("vm", "bias"))
    for r in range(16):
        LATER.append((f"v_lshlrev_b32 v%d, 16, v{BRW1+r//2}" if r % 2 == 0 else f"v_and_b32 v%d, s{sC0}, v{BRW1+r//2}") % (BIAS+r))
        LATER.append(f"v_mul_f32 v{BIAS+r}, {f32(CS)}, v{BIAS+r}")
    PFS = [[f"s_lshl_b32 s{sT3}, s{sRB}, 17", f"buffer_load_dword v{PFD}, v{pw}, {sr(sWQ,4)}, s{sT3} offen"],
           [f"s_mul_i32 s{sT3}, s{sRB}, 7168", f"buffer_load_dword v{PFD}, v{pw+3}, {sr(sW2,4)}, s{sT3} offen"],
           [f"s_lshl_b32 s{sT3}, s{sRB}, 12", f"buffer_load_dword v{PFD}, v{pw+2}, {sr(sK,4)}, s{sT3} offen"],
           [f"buffer_load_dword v{PFD}, v{pw+2}, {sr(sV,4)}, s{sT3} offen"]]
    SP = deque()
    for s_ in range(NS):
        d = PRE[s_].dma(); SP.append(d[:3]); SP.extend(d[3:])
    if OPT["pfpos"] == 1: SP.extend(PFS)
    if OPT["pfpos"] == 2: SP.append([f"s_mul_i32 s{sT3}, s{sRB}, {16*3584}", f"buffer_load_dword v{PFD}, v{pw+1}, {sr(sW1,4)}, s{sT3} offen"])
    if OPT["pfpos"] == 3: SP.append([f"s_mul_i32 s{sT3}, s{sRB}, {16*3584}", f"buffer_load_dword v{PFD}, v{pw+1}, {sr(sW1,4)}, s{sT3} offen"]); SP.append(PFS[1])
    if OPT["pfpos"] == 4: SP.append(PFS[1])
    PFN = {"q": PFS[0], "w2": PFS[1], "k": PFS[2], "v": [f"s_lshl_b32 s{sT3}, s{sRB}, 12"] + PFS[3],
           "w1": [f"s_mul_i32 s{sT3}, s{sRB}, {16*3584}", f"buffer_load_dword v{PFD}, v{pw+1}, {sr(sW1,4)}, s{sT3} offen"]}
    PFAT = {}
    for it_ in str(OPT["pfs"]).split("_"):
        if it_:
            nm, at = it_.split("@"); PFAT.setdefault(int(at), []).extend(PFN[nm])
    if -1 in PFAT: SP.append(PFAT[-1])
    if -2 in PFAT: SP.appendleft(PFAT[-2])
    nsp = [0]
    def sp(n=1, force=False):
        for _ in range(n):
            if SP and (force or nsp[0] < OPT["npre"]): E(SP.popleft()); nsp[0] += 1
    SUM, SQ = 50, 54
    for i in range(8):
        for p in range(2):
            E(W("vm", ("x", p, i)))
            r = RAW + 32*p + 4*i; u = B2 + 32*p + 4*i; m = SUM + 2*p; q = SQ + 2*p
            for j in range(4): E(f"v_lshlrev_b32 v{u+j}, 16, v{r+j}", f"v_and_b32 v{r+j}, s{sC0}, v{r+j}")
            for k, b_ in enumerate((u, r, u+2, r+2)):
                if i == 0 and k == 0: E(f"v_pk_add_f32 {vr(m,2)}, {vr(u,2)}, {vr(r,2)}", f"v_pk_mul_f32 {vr(q,2)}, {vr(u,2)}, {vr(u,2)}")
                elif i == 0 and k == 1: E(f"v_pk_fma_f32 {vr(q,2)}, {vr(b_,2)}, {vr(b_,2)}, {vr(q,2)}")
                else: E(f"v_pk_add_f32 {vr(m,2)}, {vr(m,2)}, {vr(b_,2)}", f"v_pk_fma_f32 {vr(q,2)}, {vr(b_,2)}, {vr(b_,2)}, {vr(q,2)}")
            if 2*i + p >= OPT["sp0"]: sp()
    stamp(2)
    E(W("vm", "clr"), f"buffer_store_dword v{vL+1}, v{vL}, {sr(sDBG,4)}, 0 offen sc1")
    R4 = [SUM, SUM+2, SQ, SQ+2]
    for v in R4: E(f"v_add_f32 v{v}, v{v}, v{v+1}")
    for md in ("quad_perm:[1,0,3,2]", "quad_perm:[2,3,0,1]", "row_half_mirror"):
        for v in R4: E(f"v_add_f32_dpp v{v}, v{v}, v{v} {md} row_mask:0xf bank_mask:0xf")
    def both(fmt): E([fmt.format(m=SUM+2*p, q=SQ+2*p) for p in range(2)])
    both(f"v_mul_f32 v{{m}}, {f32(1/512)}, v{{m}}"); both(f"v_mul_f32 v{{q}}, {f32(1/512)}, v{{q}}")
    both("v_fma_f32 v{q}, -v{m}, v{m}, v{q}"); both("v_max_f32 v{q}, 0, v{q}")
    both("v_cvt_pk_bf16_f32 v{q}, v{q}, v{m}")
    both(f"v_and_b32 v{{m}}, s{sC0}, v{{q}}"); both("v_lshlrev_b32 v{q}, 16, v{q}")
    both(f"v_add_f32 v{{q}}, {f32(1e-5)}, v{{q}}"); both("v_cvt_pk_bf16_f32 v{q}, v{q}, v{q}"); both("v_lshlrev_b32 v{q}, 16, v{q}")
    both("v_sqrt_f32 v{q}, v{q}"); E("s_nop 0"); both("v_cvt_pk_bf16_f32 v{q}, v{q}, v{q}"); both("v_lshlrev_b32 v{q}, 16, v{q}")
    both("v_rcp_f32 v{q}, v{q}"); E("s_nop 0"); both(f"v_mul_f32 v{{q}}, {f32(CS)}, v{{q}}"); both("v_mul_f32 v{m}, v{m}, v{q}")
    stamp(2)
    for i in range(8):
        for p in range(2):
            r = RAW + 32*p + 4*i; u = B2 + 32*p + 4*i
            for b_ in (u, r, u+2, r+2):
                E(f"v_pk_fma_f32 {vr(b_,2)}, {vr(b_,2)}, {vr(SQ+2*p,2)}, {vr(SUM+2*p,2)} op_sel_hi:[1,0,0] neg_lo:[0,0,1] neg_hi:[0,0,1]")
            for j in range(4): E(f"v_cvt_pk_bf16_f32 v{r+j}, v{u+j}, v{r+j}")
            E(f"ds_write_b128 v{wa}, {vr(r,4)} offset:{i*8192+p*128}")
    stamp(2)
    sp(99, force=True)
    E(PRE[0].areads())
    E("s_waitcnt lgkmcnt(8)", "s_barrier")
    if OPT["stamps"] < 4: stamp(0)
    E(PRE[0].breads())
    BG.extend(LATER)
    def kreads(t): return [T(f"ds_read_b128 {ar(aKF+8*s_+4*hk,4)}, v{vKR+s_} offset:{(t&3)*8192+hk*4096}", ("kf", t)) for s_ in range(4) for hk in range(2)]
    def vreads(t): return [T(f"ds_read_b64_tr_b16 {ar(aVF+4*T8+2*t_,2)}, v{vTV+(T8&3)} offset:{(t&3)*8192+(T8>>2)*4096+t_*2048}", ("vf", t))
                           for T8 in range(8) for t_ in range(2)]
    def qk(x, dst, zero=False):
        return [mfma("v", dst+8*rl+4*hk, "a", aKF+8*s_+4*hk, "v", QFr(2*x+rl, s_), *(((0,) if zero else (NEGM+4*(2*x+rl), "v")) if s_ == 0 else ()))
                for s_ in range(4) for hk in range(2) for rl in range(2)]
    def pv(x, p, zero=False):
        return [mfma("a", aO+64*x+16*(T8>>1)+8*rl+4*(T8&1), "a", aVF+4*T8, "v", p+4*rl, 0 if zero else None) for T8 in range(8) for rl in range(2)]
    def sm_plan(x, s, p):
        pl = [[] for _ in range(32)]
        for j in range(16): pl[max(0, 2*j-1)].append(f"v_exp_f32 v{s+j}, v{s+j}")
        for j in range(16): pl[min(31, max(2, 2*j+2 if j else 2))].append(f"v_add_f32 v{vL+2*x+(j>>3)}, v{vL+2*x+(j>>3)}, v{s+j}")
        for k in range(8): pl[min(31, 4*k+4)].append(f"v_cvt_pk_bf16_f32 v{p+k}, v{s+2*k}, v{s+2*k+1}")
        return pl
    def epi_unit(kind, src, typ, T32, rg, tmp, tag):
        o = []; b = tmp if kind == "a" else src
        if kind == "a":
            for r in range(8): o.append(f"v_accvgpr_read_b32 v{b+r}, a{src+r}")
        for j in range(4): o.append(f"v_cvt_pk_bf16_f32 v{b+j}, v{b+2*j}, v{b+2*j+1}")
        o.append([f"s_mov_b32 s{sT4}, {typ*65536 + T32*4096}",
                  T(f"buffer_store_dwordx4 {vr(b,4)}, v{vST}, {sr(sP,4)}, s{sT4} offen offset:{rg*1024} sc1", tag)])
        return o
    NP = len(PRE)
    KV = deque([dma_v(0) + dma_k(2), dma_v(1) + dma_k(3), dma_v(2)])
    vHW = vD1
    PZ = vDQ
    def pst(reg, off): return [f"s_mov_b32 s{sT4}, {off & ~4095}", f"buffer_store_dwordx4 {vr(reg,4)}, v{vST}, {sr(sP,4)}, s{sT4} offen offset:{off & 4095} sc1"]
    POI = [pst(PZ, q*1024) for q in range(16)]
    FTB = lambda n: B5 + 16 + 8*(n & 1)
    STQ = deque(POI[:5])
    for n in range(8): STQ.extend([pst(B2 + 4*n, 65536 + n*1024), POI[5 + n], pst(FTB(n), 65536 + 8192 + n*1024)])
    STQ.extend(POI[13:])
    HP = lambda n: B4 + 4*n
    for i, st in enumerate(PRE):
        d = PRE[i + NS].dma() if i + NS < NP else (KV.popleft() if KV else [])
        post = []
        if OPT["pfpos"] == 2 and i == OPT["pf2"]: post = PFS[1] + PFS[2] + PFS[3]
        if OPT["pfpos"] == 2 and i == OPT["pf1"]: post = PFS[0]
        post = post + PFAT.get(i, [])
        if i == 16:
            flush(); E("s_nop 1")
            post = post + ["s_barrier"]
        if i == 17:
            for j in range(32): BG.append(f"v_cvt_pk_bf16_f32 v{B0+j}, v{B0+2*j}, v{B0+2*j+1}")
            BG.extend([f"s_and_b32 s{sT0}, s{sG}, 1", f"s_lshl_b32 s{sT1}, s{sT0}, 12", f"s_lshl_b32 s{sT0}, s{sT0}, 6"])
            for j in range(2): BG.extend([f"v_xor_b32 v{vBC+j}, s{sT0}, v{vB+j}", f"v_add_u32 v{vBC+j}, s{sT1}, v{vBC+j}"])
            BG.extend([f"s_lshl_b32 s{sT0}, s{sW}, 8", f"s_lshl_b32 s{sT1}, s{sG}, 2", f"s_add_u32 s{sT0}, s{sT0}, s{sT1}",
                       f"v_min_u32 v{vPUB}, 1, v{l}", f"v_lshlrev_b32 v{vPUB}, 30, v{vPUB}", f"v_add_u32 v{vPUB}, s{sT0}, v{vPUB}",
                       f"s_lshr_b32 s{sT0}, s{sG}, 1", f"s_lshl_b32 s{sT0}, s{sT0}, 8",
                       f"v_and_b32 v{vPOLL}, 7, v{l}", f"v_lshlrev_b32 v{vPOLL}, 2, v{vPOLL}", f"v_add_u32 v{vPOLL}, s{sT0}, v{vPOLL}",
                       f"v_lshlrev_b32 v{vRD}, 4, v0"])
            for j in range(4): BG.append(f"v_mov_b32 v{vL+j}, 0")
            BG.extend(LATER2)
        if i == 32: flush()
        if i == 33:
            BG.append(f"s_lshl_b32 s{sT0}, s{sW}, 13")
            for j in range(2): BG.append(f"v_add_u32 v{vHW+j}, s{sT0}, v{vB+j}")
            for n in range(8):
                b = ACCH + 8*n
                for r in range(8): BG.append(f"v_max_f32 v{b+r}, 0, v{b+r}")
                for r in range(8): BG.append(f"v_mul_f32 v{b+r}, v{b+r}, v{b+r}")
                for j in range(4): BG.append(f"v_cvt_pk_bf16_f32 v{HP(n)+j}, v{b+2*j}, v{b+2*j+1}")
        if i == 36: post = dma_k(0)
        if i == 38: post = dma_k(1)
        if i == 44: post = [W("vm", ("K", 1)), "s_barrier"]
        if i == 45:
            for x in reversed(kreads(0)): BG.appendleft(x)
        if i == 54: post = ["s_barrier"]
        if i == 56:
            for n in range(8):
                b_ = (B2, B4)[n >> 2] + 8*(n & 3)
                for j in range(4): BG.append(f"v_cvt_pk_bf16_f32 v{B2+4*n+j}, v{b_+2*j}, v{b_+2*j+1}")
        if i == 46: BG.extend([f"v_mov_b32 v{PZ+j}, {SENT:#x}" for j in range(4)])
        if i >= 57: post = post + [STQ.popleft()]
        step(st, PRE[48].areads() if i == 47 else PRE[i + 1].reads() if i + 1 < NP else [], d, post=post, gb=(OPT["f2b"] if 48 <= i < 54 else None))
        if i in (15, 47): stamp()
        if i in (3, 7, 11, 15, 19, 23, 27, 31, 35, 39, 43): stamp(3)
        if i == 47:
            flush()
            E(W("lg", ("kf", 0)))
            q0, q1 = qk(0, S0, True), qk(1, S1[0], True)
            cv = [f"v_cvt_pk_bf16_f32 v{B1+j}, v{B1+2*j}, v{B1+2*j+1}" for j in range(32)]
            hw = [T(f"ds_write_b128 v{vHW+(n>>2)}, {vr(HP(n),4)} offset:{(n>>2)*4096+(n&3)*1024}", "hw") for n in range(8)]
            pl = [[] for _ in range(32)]
            for g in range(2, 13): pl[g] = cv[3*(g-2):3*(g-1)]
            h0 = OPT["hw0"]
            for n in range(8): pl[h0 + 2*n].append(hw[n])
            pl[min(31, h0 + 18)] += [W("lg", "hw"), "s_barrier"] + PRE[48].breads()
            gaps(q0[:8] + q1[:8] + q0[8:] + q1[8:], pl)
            BG.extend(kreads(1))
            for rg in range(4):
                s = (S0, S1[0])[rg >> 1] + 8*(rg & 1); m = vT
                BG.extend([f"v_max3_f32 v{m}, v{s}, v{s+1}, v{s+2}", f"v_max3_f32 v{m}, v{m}, v{s+3}, v{s+4}", f"v_max3_f32 v{m}, v{m}, v{s+5}, v{s+6}",
                           f"v_max_f32 v{m}, v{m}, v{s+7}"] + xred("v_max_f32", m, vT+1))
                BG.extend([[f"s_cmp_lg_u32 s{sFLAG}, 0", "s_cselect_b64 vcc, -1, 0"], "s_nop 0", f"v_cndmask_b32 v{m}, v{m}, v{vM+rg}, vcc"])
                for r in range(4): BG.append(f"v_sub_f32 v{NEGM+4*rg+r}, 0, v{m}")
                for r in range(8): BG.append(f"v_sub_f32 v{s+r}, v{s+r}, v{m}")
            for g in sm_plan(0, S0, P0[0]): BG.extend(g)
    flush()
    stamp()
    E(W("vm", ("K", 2)), "s_waitcnt lgkmcnt(0)")
    def att_iter(i, x1=(), x2=()):
        if i == 0: E("s_barrier")
        pl = sm_plan(1, S1[i&1], P1)
        vrd = vreads(i)
        x1 = list(x1)
        if x1:
            slots = [0, 2, 2, 4, 6, 6, 8, 10, 10, 12, 14, 14, 16, 18, 18, 20]
            pl[22] += x1[:2]
            for g, x in zip((24, 26, 28, 30), x1[2:]): pl[g].append(x)
        else:
            slots = [2, 2, 4, 6, 6, 8, 10, 10, 12, 14, 14, 18, 18, 22, 26, 30]
            for x in vrd[12:]: x.tag = ("vf2", i)
        for g, x in zip(slots, vrd): pl[g].append(x)
        if STQ: pl[9].append(STQ.popleft())
        gaps(qk(0, S0) + qk(1, S1[(i+1)&1]), pl)
        E(W("lg", ("vf", i)))
        pl = sm_plan(0, S0, P0[(i+1)&1])
        if not x1: pl[10].append(W("lg", ("vf2", i)))
        if i + 2 < 16:
            for g, x in zip((2, 2, 4, 6, 8, 12, 14, 14) if not x1 else (2, 2, 4, 6, 8, 10, 12, 14), kreads(i + 2)): pl[g].append(x)
        if i == 14:
            for g, x in zip((2, 2, 4, 6, 6, 8, 12, 14, 14, 16, 18, 18, 20, 22, 22, 24, 26, 26), POST[0].areads() + POST[1].areads()): pl[g].append(x)
        dv = dma_v(i + 3) if i + 3 < 16 else []
        dk = dma_k(i + 5) if i + 5 < 16 else []
        pl[9] += list(x2)
        if STQ: pl[1].append(STQ.popleft())
        if STQ:
            assert not BG, (i, len(BG))
            pl[29].append(STQ.popleft())
        if dv: pl[16] += dv[:2]; pl[18] += dv[2:3]; pl[20] += dv[3:]
        if dk: pl[22] += dk[:2]; pl[24] += dk[2:3]; pl[26] += dk[3:]
        pl[28] += [W2(W("vm", ("K", i+3)), W("vm", ("V", i+1)), W("lg", ("kf", i+2)))]
        pl[30] = ["s_barrier"] + pl[30]
        gaps(pv(0, P0[i&1], zero=(i == 0)) + pv(1, P1, zero=(i == 0)), pl)
    VAL = vT + 3; GATE = vT + 4; POL = vT + 5
    poll = f"buffer_load_dword v{POL}, v{vPOLL}, {sr(sFL,4)}, 0 offen sc1"
    pub = f"buffer_store_dword v{VAL}, v{vPUB}, {sr(sFL,4)}, 0 offen sc1"
    for i in range(15):
        x1 = []; x2 = []
        if i == 0:
            x1 = dma_k(4)
            BG.extend([f"v_lshlrev_b32 v{vT}, 6, v0", f"v_mov_b32 v{vT+1}, 0", f"v_mov_b32 v{VAL}, 1"])
        if OPT["wo4"] and i < 4 * OPT["wo4"] and i % OPT["wo4"] == 0:
            x2 = [f"s_lshl_b32 s{sT1}, s{sRB}, 14", f"s_add_u32 s{sT1}, s{sT1}, {(i // OPT['wo4'])*4096}", f"buffer_load_dword v{PFD}, v{vRD}, {sr(sWO,4)}, s{sT1} offen"]
        if i == OPT["wopf"] and not OPT["wo4"]: BG.append([f"s_lshl_b32 s{sT1}, s{sRB}, 14", f"buffer_load_dword v{PFD}, v{vT}, {sr(sWO,4)}, s{sT1} offen"])
        if i < 8: BG.extend(epi_unit("a", 192 + 8*i, 1, 2 + (i >> 2), i & 3, FTB(i), "fst")[:-1])
        gl = f"buffer_load_dword v{GATE}, v{vT+1}, {sr(sDBG,4)}, 0 offen sc1"
        if i == 2: BG.append(T(gl, "gate"))
        if i == 9: BG.extend([W("vm", "gate")] + check_ready("gate", GATE, gl, 1))
        if i == 10: x2 = ["s_waitcnt vmcnt(0)", pub]
        if i == 12: x2 = [T(poll, "fpoll")]
        FLD = [[f"s_mov_b32 s{sT4}, {(n&7)*PSTR + 65536 + (n>>3)*8192}", T(f"buffer_load_dwordx4 {ar(aFL+4*n,4)}, v{vRD}, {sr(sPR,4)}, s{sT4} offen sc1", ("fl", n))] for n in range(16)]
        if i == 14: BG.extend([W("vm", "fpoll")] + check_ready("f", POL, poll, 1) + FLD[:6])
        wol = [int(x) for x in OPT["wol"].split("_")]
        if i in wol: x1 = POST[wol.index(i)].dma()
        if i >= 3: stamp(4)
        if i < 12: stamp(6)
        keep = OPT["budget"]
        if BG: OPT["budget"] = 12
        att_iter(i, x1=x1, x2=x2)
        OPT["budget"] = keep
        flush()
    i = 15
    E(vreads(i))
    def lfin(rg): return xred("v_add_f32", vL+rg, 48) + [f"v_rcp_f32 v{LR+2*rg}, v{vL+rg}"]
    E(f"s_lshl_b32 s{sT0}, s{sW}, 14")
    for j in range(2): E(f"v_add_u32 v{vBC+j}, s{sT0}, v{vB+j}")
    E(lfin(0))
    pl32 = sm_plan(1, S1[i&1], P1)
    E(pl32[:4])
    E("s_waitcnt lgkmcnt(0)")
    pl = [pl32[4+2*g] + pl32[5+2*g] if g < 14 else [] for g in range(16)]
    pl[0] = ["s_barrier"] + pl[0]
    d6 = POST[6].dma()
    pl[1] = d6[:2] + pl[1]
    for g, x in zip((2, 5, 8, 11), d6[2:]): pl[g] = [x] + pl[g]
    gaps(pv(0, P0[i&1]), pl)
    BG.extend(lfin(1) + lfin(2) + lfin(3))
    OT = B2
    gaps(pv(1, P1), [[x] for x in FLD[6:]] if OPT["fldo"] == 1 else [], budget=12)
    flush()
    E(f"v_add_f32 v{vT+1}, v{vL}, v{vL+1}", f"v_add_f32 v{vT+2}, v{vL+2}, v{vL+3}", f"s_mov_b32 s{sT1}, {f32(2.0**OPT['thr'])}", f"v_add_f32 v{vT+1}, v{vT+1}, v{vT+2}",
      f"v_cmp_nge_f32 vcc, s{sT1}, v{vT+1}", f"v_and_b32 v{vT+2}, 3, v{l}", f"v_mul_u32_u24 v{vT+2}, {NS*4096}, v{vT+2}",
      "s_cmp_lg_u64 vcc, 0", f"s_cselect_b32 s{sT1}, 1, 0", f"v_mov_b32 v{vT}, s{sT1}",
      f"s_lshl_b32 s{sT1}, s{sW}, 2", f"s_add_u32 s{sT1}, s{sT1}, {R_BASE}", f"v_add_u32 v{vT+2}, s{sT1}, v{vT+2}", f"v_mov_b32 v{vT+1}, s{sRING}",
      f"ds_write_b32 v{vT+2}, v{vT} offset:{1*4096}")
    E(POST[2].areads(), POST[3].areads())
    stamp()
    for n in range(16):
        x, T32, rl = n >> 3, (n >> 1) & 3, n & 1
        b = OT + 8*(n & 7); rg = 2*x + rl
        for r in range(8): E(f"v_accvgpr_read_b32 v{b+r}, a{aO+8*n+r}")
        for j in range(4): E(f"v_pk_mul_f32 {vr(b+2*j,2)}, {vr(b+2*j,2)}, {vr(LR+2*rg,2)} op_sel_hi:[1,0]")
        for j in range(4): E(f"v_cvt_pk_bf16_f32 v{b+j}, v{b+2*j}, v{b+2*j+1}")
        E(f"ds_write_b128 v{vBC+(T32&1)}, {vr(b,4)} offset:{T32*4096+rg*1024}")
    if OPT["fldo"] == 0: E(FLD[6:])
    E(W("lg", POST[3].tag), POST[8].dma(), POST[9].dma())
    E("s_waitcnt lgkmcnt(0)", "s_barrier")
    E(T(f"ds_read_b128 {vr(56,4)}, v{vT+1} offset:{1*4096}", "flg"), POST[0].breads())
    E(W("lg", "flg"))
    E(f"v_or3_b32 v{vT}, v56, v57, v58", f"v_or_b32 v{vT}, v{vT}, v59", "s_nop 0", f"v_readfirstlane_b32 s{sT0}, v{vT}",
      "s_nop 0", f"s_andn2_b32 s{sT0}, s{sT0}, s{sFLAG}", "s_cbranch_scc1 L_slow")
    E(POST[7].dma())
    stamp(); stamp(5)
    GV, XO, XR, BRW, TM = 112, vT, 56, 40, 8
    sepi = lambda ps, n: epi_unit("v", ((B4, B3), (B2, B5))[ps][n >> 2] + 8*(n & 3), 0, 2*ps + (n >> 2), n & 3, None, ("sst", ps))
    SL = B3
    def sloads(ps): return [[f"s_mov_b32 s{sT4}, {g*PSTR + ps*8192}", T(f"buffer_load_dwordx4 {vr(SL+32*ps+4*g,4)}, v{vRD}, {sr(sPR,4)}, s{sT4} offen sc1", ("sl", ps, g))] for g in range(8)]
    sst = [int(x) for x in str(OPT["sst"]).split("_")]
    def fmath(pk, part=2):
        o = []; TQ = 18
        for ps in range(2):
            G_ = GV + 8*ps
            for g in range(8):
                n = 8*ps + g
                for j in range(4): o.append(f"v_accvgpr_read_b32 v{TQ+8+j}, a{aFL+4*n+j}")
                d0 = G_ if g == 0 else TQ
                for j in range(4): o += [f"v_lshlrev_b32 v{d0+2*j}, 16, v{TQ+8+j}", f"v_and_b32 v{d0+2*j+1}, s{sC0}, v{TQ+8+j}"]
                if g and pk: o += [f"v_pk_add_f32 {vr(G_+2*j,2)}, {vr(G_+2*j,2)}, {vr(TQ+2*j,2)}" for j in range(4)]
                elif g: o += [f"v_add_f32 v{G_+j}, v{G_+j}, v{TQ+j}" for j in range(8)]
        if part == 0: return o
        if part == 1: o = []
        for ps in range(2):
            G_ = GV + 8*ps
            for j in range(4): o += [f"v_lshlrev_b32 v{TQ+2*j}, 16, v{BRW+4*ps+j}", f"v_and_b32 v{TQ+2*j+1}, s{sC0}, v{BRW+4*ps+j}"]
            for j in range(8): o.append(f"v_fma_f32 v{G_+j}, v{G_+j}, s{sT0}, v{TQ+j}")
            for j in range(8): o.append(f"v_mul_f32 v{TQ+j}, {f32(-math.log2(math.e))}, v{G_+j}")
            for j in range(8): o.append(f"v_exp_f32 v{TQ+j}, v{TQ+j}")
            for j in range(8): o.append(f"v_add_f32 v{TQ+j}, 1.0, v{TQ+j}")
            for j in range(8): o.append(f"v_rcp_f32 v{TQ+j}, v{TQ+j}")
            for j in range(8): o.append(f"v_mul_f32 v{G_+j}, v{G_+j}, v{TQ+j}")
        return o
    nd = [10]; nr = [4]; hold = [int(x) for x in str(OPT['hold2']).split('_') if x]
    for i, st in enumerate(POST[:30]):
        if i == 0:
            BG.extend([f"v_bfe_u32 v{XO+1}, v0, 4, 2", f"v_lshlrev_b32 v{XO+1}, 3, v{XO+1}", f"v_lshrrev_b32 v{TM}, 6, v0", f"v_and_b32 v{TM+1}, 15, v0",
                       f"v_lshl_add_u32 v{TM}, v{TM}, 4, v{TM+1}", f"v_lshl_add_u32 v{XO}, v{TM}, 10, v{XO+1}", f"s_mov_b32 s{sT0}, {f32(1/CS**2)}"])
        if i == OPT["fldo"] and i > 1: BG.extend(FLD[6:])
        if i == (0 if OPT["fbg"] else OPT["xbl"]):
            for k in range(4):
                BG.appendleft(T(f"buffer_load_dwordx2 {vr(XR+2*k,2)}, v{XO}, {sr(sX,4)}, s{sVOFF} offen offset:{(k>>1)*128+(k&1)*32}", "xb"))
                BG.appendleft(T(f"buffer_load_dwordx2 {vr(BRW+2*k,2)}, v{XO+1}, {sr(sB2,4)}, 0 offen offset:{(k>>1)*128+(k&1)*32}", "xb"))
        if i == OPT["fs0"]: BG.extend([W("vm", ("fl", 15))] + fmath(False, 0))
        e = [x for n in range(8) if sst[n * len(sst) // 8] == i for x in sepi(0, n)]
        for x in reversed(e): BG.appendleft(x)
        if i == OPT["lda"]:
            for x in reversed(sloads(0)): BG.appendleft(x)
        d = []
        if nd[0] < 32 and nd[0] - NS < nr[0]: d = POST[nd[0]].dma(); nd[0] += 1
        nxt = POST[i + 1].breads() + (POST[31].breads() if i == 29 else [])
        want = 32 if i == 29 else max(i + 2, nr[0] + (0 if i in hold else 1))
        while nr[0] < min(32, want):
            assert nr[0] < nd[0] - (1 if d else 0) and nr[0] <= i + 6
            nxt = nxt + POST[nr[0]].areads(); nr[0] += 1
        for x in nxt:
            if isinstance(x, T): x.tag = POST[i + 1].tag
        step(st, nxt, d)
        if i == 15: stamp()
        if i % 3 == 2: stamp(5)
    REST = list(BG); BG.clear()
    print("f math left for the tail:", len(REST), file=sys.stderr)
    flush()
    stamp()
    stamp(7)
    E(W("lg", POST[30].tag))
    for n in range(8):
        if n >= 2: BG.extend(sepi(1, n - 2))
        gaps([POST[j].one(2*(n >> 2) + h, n & 3) for j in (30, 31) for h in range(2)], [], budget=12)
    flush()
    E(sepi(1, 6))
    E("s_nop 3")
    E(sepi(1, 7))
    stamp(); stamp(7)
    SA, ST_, XT = B0, B0+8, B0+16
    def fin(ps):
        E(f"s_mov_b64 s[{sT2}:{sT3}], -1", f"s_mov_b32 s{sCNT}, {OPT['spin']}")
        for j in range(4): E(f"v_lshlrev_b32 v{XT+2*j}, 16, v{XR+4*ps+j}", f"v_and_b32 v{XT+2*j+1}, s{sC0}, v{XR+4*ps+j}")
        E(f"L_sum{ps}:")
        for g in range(8):
            E(W("vm", ("sl", ps, g)))
            d0 = SA if g == 0 else ST_
            for j in range(4): E(f"v_lshlrev_b32 v{d0+2*j}, 16, v{SL+32*ps+4*g+j}", f"v_and_b32 v{d0+2*j+1}, s{sC0}, v{SL+32*ps+4*g+j}")
            if g:
                for j in range(4): E(f"v_pk_add_f32 {vr(SA+2*j,2)}, {vr(SA+2*j,2)}, {vr(ST_+2*j,2)}")
        E(f"v_pk_add_f32 {vr(ST_,2)}, {vr(SA,2)}, {vr(SA+2,2)}", f"v_pk_add_f32 {vr(ST_+2,2)}, {vr(SA+4,2)}, {vr(SA+6,2)}",
          f"v_pk_add_f32 {vr(ST_,2)}, {vr(ST_,2)}, {vr(ST_+2,2)}", f"v_cmp_u_f32 vcc, v{ST_}, v{ST_+1}")
        for j in range(4): E(f"v_pk_fma_f32 {vr(SA+2*j,2)}, {vr(SA+2*j,2)}, {vr(GV+8*ps+2*j,2)}, {vr(XT+2*j,2)}")
        E(f"s_and_b64 vcc, vcc, s[{sT2}:{sT3}]", f"s_cbranch_scc1 L_miss{ps}")
        for j in range(4): E(f"v_cvt_pk_bf16_f32 v{B0+24+4*ps+j}, v{SA+2*j}, v{SA+2*j+1}")
        for k in range(2): E(f"buffer_store_dwordx2 {vr(B0+24+4*ps+2*k,2)}, v{XO}, {sr(sOUT,4)}, s{sVOFF} offen offset:{ps*128+k*32} {OPT['outsc']}")
    assert not any(ismem(x) for x in REST)
    REST = REST + [W("vm", "xb")] + (fmath(True, 1) if OPT["fs0"] < 30 else fmath(True))
    cut = min(len(REST), OPT["bdel"])
    if OPT["lda"] >= 30:
        E(REST[:cut//2], sloads(0)); stamp(7); E(REST[cut//2:cut], sloads(1)); stamp(7); E(REST[cut:]); stamp(7)
        if OPT["stamps"] == 7:
            E(W("vm", ("sst", 1))); stamp(7); E(W("vm", ("sl", 0, 0))); stamp(7); E(W("vm", ("sl", 0, 7))); stamp(7); E(W("vm", ("sl", 1, 7))); stamp(7)
    else: E(REST[:cut], sloads(1), REST[cut:])
    fin(0)
    stamp(); stamp(7)
    if OPT["stamps"] == 7: E(f"s_mov_b32 s{sJJ}, s{sCNT}")
    fin(1)
    stamp(); stamp(7)
    if OPT["stamps"] == 7:
        E(f"s_sub_u32 s{sJJ}, {OPT['spin']}, s{sJJ}", f"s_sub_u32 s{sCNT}, {OPT['spin']}, s{sCNT}", f"s_mul_i32 s{sJJ}, s{sJJ}, 100", f"s_mul_i32 s{sCNT}, s{sCNT}, 100",
          f"s_add_u32 s{sST+12}, s{sST+11}, s{sJJ}", f"s_add_u32 s{sST+13}, s{sST+12}, s{sCNT}")
        nstamp[0] = 14
    if OPT["stamps"]:
        E("s_waitcnt vmcnt(0)")
        if OPT["stamps"] != 7: stamp(0)
        E(f"s_lshl_b32 s{sT0}, s2, 2", f"s_add_u32 s{sT0}, s{sT0}, s{sW}", f"s_lshl_b32 s{sT0}, s{sT0}, 6", f"s_add_u32 s{sT0}, s{sT0}, {64<<20}")
        srd(sX, 58, sT0, ("imm", 64))
        E(f"v_mov_b32 v{vT}, 0", "s_memrealtime s[70:71]", "s_waitcnt lgkmcnt(0)", f"s_mov_b32 s87, s70")
        for i in list(range(nstamp[0])) + [14, 15]:
            E(f"v_mov_b32 v{vT+1}, s{sST+i}", f"buffer_store_dword v{vT+1}, v{vT}, {sr(sX,4)}, 0 offen offset:{4*i}")
    if OPT["hold"] >= 0:
        E(f"s_cmp_lg_u32 s2, {OPT['hwg']}", "s_cbranch_scc1 L_main_end", "s_mov_b32 s73, 3000", "L_hold:", "s_memrealtime s[70:71]", "s_waitcnt lgkmcnt(0)",
          "s_sub_u32 s70, s70, s72", "s_sub_u32 s73, s73, 1", "s_cbranch_scc1 L_main_end", "s_cmp_lt_u32 s70, 10000", "s_cbranch_scc1 L_hold")
    E("L_main_end:", "s_endpgm")
    for name, vreg, load, val in SPINS:
        E(f"L_spin_{name}:", f"s_mov_b32 s{sCNT}, {OPT['spin']}", f"L_spinl_{name}:", load, "s_waitcnt vmcnt(0)",
          f"v_cmp_le_u32 vcc, {val}, v{vreg}", f"s_sub_u32 s{sCNT}, s{sCNT}, 1", f"s_cbranch_scc1 L_ok_{name}",
          "s_cmp_eq_u64 vcc, -1", f"s_cbranch_scc0 L_spinl_{name}", f"s_branch L_ok_{name}")
    for ps in range(2):
        E(f"L_miss{ps}:", f"s_mov_b32 s{sT0}, {SENT:#x}", f"s_mov_b32 s{sT1}, 0")
        if OPT["slp"]: E(f"s_sleep {OPT['slp']}")
        for g in range(8):
            r = SL + 32*ps + 4*g
            E(f"v_cmp_eq_u32 vcc, s{sT0}, v{r}", f"v_cmp_eq_u32 s[{sT2}:{sT3}], s{sT0}, v{r+1}", "s_nop 0", f"s_or_b64 s[70:71], vcc, s[{sT2}:{sT3}]",
              f"v_cmp_eq_u32 vcc, s{sT0}, v{r+2}", f"v_cmp_eq_u32 s[{sT2}:{sT3}], s{sT0}, v{r+3}", "s_nop 0", f"s_or_b64 s[70:71], vcc, s[70:71]",
              f"s_or_b64 s[70:71], s[70:71], s[{sT2}:{sT3}]", f"s_cbranch_scc0 L_have{ps}_{g}", f"s_mov_b32 s{sT1}, 1", sloads(ps)[g], f"L_have{ps}_{g}:")
        E(f"s_sub_u32 s{sCNT}, s{sCNT}, 1", f"s_cselect_b32 s{sT1}, 0, s{sT1}", f"s_cmp_lg_u32 s{sT1}, 0", f"s_cselect_b64 s[{sT2}:{sT3}], -1, 0",
          "s_waitcnt vmcnt(0)", f"s_branch L_sum{ps}")
    E("L_slow:")
    E("s_waitcnt vmcnt(0) lgkmcnt(0)", "s_barrier")
    E(f"s_mov_b32 s{sKOFF}, 0", f"s_mov_b32 s{sCNT}, 16", [f"v_mov_b32 v{vM+j}, 0xff800000" for j in range(4)])
    E("L_slow_loop:")
    dk = dma_k(0); E(dk[0], "s_nop 0", dk[2:])
    E("s_waitcnt vmcnt(0)", "s_barrier")
    E(kreads(0))
    E("s_waitcnt lgkmcnt(0)", "s_barrier")
    E(qk(0, S0, True), qk(1, S1[0], True))
    E("s_nop 7", "s_nop 7", f"s_add_u32 s{sKOFF}, s{sKOFF}, 8192")
    for rg in range(4):
        s = S0 + 8*rg
        for j in range(0, 8, 2): E(f"v_max3_f32 v{vM+rg}, v{vM+rg}, v{s+j}, v{s+j+1}")
    E(f"s_sub_u32 s{sCNT}, s{sCNT}, 1", f"s_cmp_lg_u32 s{sCNT}, 0", "s_cbranch_scc1 L_slow_loop")
    for rg in range(4): E(xred("v_max_f32", vM+rg, vT))
    E(f"s_mov_b32 s{sFLAG}, 1", "s_branch L_restart", "L_code_end:")

K = NAME + "_kernel"
hdr = open("cdna_kernels/" + NAME + ".s.ref").read().split("; Override launch")[0]
out = [hdr.rstrip()]
out.append("; @launch grid=(256,1,1) block=(256,1,1) lds=163840")
out.append('.amdgcn_target "amdgcn-amd-amdhsa--gfx950"')
out.append(".text")
main_kernel(K)
if OPT["stubs"]:
    import subprocess, tempfile, os, re
    tmp = tempfile.mkdtemp()
    open(tmp + "/a.s", "w").write("\n".join(out + L + [f"L_pg{i}:" for i in range(4)] + ["s_endpgm"]) + "\n")
    subprocess.run(["clang", "-x", "assembler", "-target", "amdgcn-amd-amdhsa", "-mcpu=gfx950", "-c", tmp + "/a.s", "-o", tmp + "/a.o"], check=True)
    dis = subprocess.run(["llvm-objdump", "-d", "--mcpu=gfx950", tmp + "/a.o"], capture_output=True, text=True).stdout
    addrs = [int(m.group(1), 16) for m in re.finditer(r"// ([0-9A-F]{12}):", dis)]
    idx = [i for i, x in enumerate(L) if x.startswith("    ")]
    assert len(addrs) == len(idx) + 1, (len(addrs), len(idx))
    end = L.index("L_main_end:")
    pos = []; page = OPT["pg0"]
    for a_, i in zip(addrs, idx):
        if i >= end: break
        if a_ + 4*len(pos) >= page * 4096 + OPT["pgo"]: pos.append(i); page += 1
    n = len(pos)
    for k in reversed(range(n)):
        L[pos[k]:pos[k]] = [f"L_pg{k}:", f"    s_cbranch_execz {'L_pg%d' % (k+4) if k + 4 < n else 'L_pgret'}"]
out += L
out.append('.section .rodata,"a"')
out.append(f""".p2align 6
.amdhsa_kernel {K}
  .amdhsa_next_free_vgpr 512
  .amdhsa_next_free_sgpr 102
  .amdhsa_accum_offset 256
  .amdhsa_group_segment_fixed_size 0
  .amdhsa_kernarg_size 104
  .amdhsa_user_sgpr_count 2
  .amdhsa_user_sgpr_kernarg_segment_ptr 1
  .amdhsa_system_sgpr_workgroup_id_x 1
.end_amdhsa_kernel""")
print("\n".join(out))
```

```python
import sys, math, struct
from collections import deque
NAME = "recurrent_scan__sliding_block_cached__dense_activation_squared_relu__prompt"
OPT = dict(stamps=0, rt=0, codepf=1, budget=8, thr=40, memc=4, dmac=8, hg=2, rot=8, outsc="", skip="", spin=200000, pfpos=9, pfs="w2@-1_k@20_v@20", pf2=28,
           sst="19_20_21_22_23_24_25", dropoob=1, lda=99, npre=12, sp0=4, hw0=12, gb=8, pf1=12, stubs=1, fbg=0, bdel=60, xbl=27, kvrot=0, pg0=2, pgo=0, f2b=12, hold=-1, hwg=100, hold2="24", wol="7_8_9_11_12_13", wopf=5, fldo=1, wo4=0, slp=0, fs0=5, pad=4352, spn=1, pfk=12, fchk=13)
for a in sys.argv[1:]:
    k, v = a.split("="); OPT[k] = int(v) if v.lstrip("-").isdigit() else v

def vr(b, n=1): return f"v{b}" if n == 1 else f"v[{b}:{b+n-1}]"
def ar(b, n=1): return f"a{b}" if n == 1 else f"a[{b}:{b+n-1}]"
def R(kind, b, n=1): return vr(b, n) if kind == "v" else ar(b, n)
def sr(b, n=1): return f"s{b}" if n == 1 else f"s[{b}:{b+n-1}]"
def f32(x): return "0x%08x" % struct.unpack("<I", struct.pack("<f", x))[0]

class W:
    def __init__(s, cnt, tag): s.cnt, s.tag = cnt, tag
class W2:
    def __init__(s, *ws): s.ws = ws
class T:
    def __init__(s, text, tag): s.text, s.tag = text, tag
L = []; VM = []; LG = []
def E(*xs):
    for x in xs:
        if isinstance(x, (list, tuple)): E(*x); continue
        if isinstance(x, W2):
            n0 = len(L)
            for w_ in x.ws: E(w_)
            parts = {}
            for ln in L[n0:]:
                p_ = ln.split()[1]; parts[p_[:2]] = p_
            del L[n0:]
            if parts: L.append("    s_waitcnt " + " ".join(parts[k] for k in ("vm", "lg") if k in parts))
            continue
        if isinstance(x, W):
            q = VM if x.cnt == "vm" else LG
            idx = [i for i, t in enumerate(q) if t == x.tag]
            if not idx: continue
            n = len(q) - 1 - idx[-1]
            n = min(n, 63 if x.cnt == "vm" else 15)
            del q[:len(q) - n]
            L.append(f"    s_waitcnt {'vmcnt' if x.cnt == 'vm' else 'lgkmcnt'}({n})"); continue
        tag = None
        if isinstance(x, T): x, tag = x.text, x.tag
        op = x.split()[0]
        if op.startswith("buffer_") or op.startswith("global_"): VM.append(tag)
        if op.startswith("ds_"): LG.append(tag)
        if op == "s_waitcnt":
            for w in x.split()[1:]:
                n = int(w[w.index("(")+1:-1]); q = VM if w.startswith("vm") else LG
                if len(q) > n: del q[:len(q) - n]
        L.append("    " + x if not x.endswith(":") and not x.startswith(".") else x)
def opof(x):
    if isinstance(x, (list, tuple)): return opof(x[0])
    if isinstance(x, (W, W2)): return "s_waitcnt"
    return (x.text if isinstance(x, T) else x).split()[0]
def ismem(x):
    if isinstance(x, (list, tuple)): return any(ismem(y) for y in x)
    return opof(x).split("_")[0] in ("ds", "buffer", "global")
def isvalu(x): return opof(x).startswith("v_")
def cost(x):
    if isinstance(x, (list, tuple)): return sum(cost(y) for y in x)
    if isinstance(x, (W, W2)): return 4
    t = x.text if isinstance(x, T) else x
    op = t.split()[0]
    assert not op.startswith("v_pk_"), t
    if t.endswith(":"): return 0
    if op in ("v_exp_f32", "v_rcp_f32", "v_sqrt_f32"): return 8
    if op.startswith("buffer_store_dwordx4"): return 24
    if op.startswith("buffer_") or op.startswith("global_"): return OPT["dmac"]
    if op == "s_nop": return 4 * (int(t.split()[1]) + 1)
    if op == "ds_write_b128": return 20
    return 4
BG = deque()
def gaps(mf, plan, budget=None, wr_from=0):
    budget = OPT["budget"] if budget is None else budget
    for g, m in enumerate(mf):
        E(m)
        items = plan[g] if g < len(plan) else []
        endi = [x[1:] for x in items if isinstance(x, tuple) and x[0] == "end"]
        items = [x for x in items if not (isinstance(x, tuple) and x[0] == "end")]
        c = sum(cost(x) for x in items) + sum(cost(x) for x in endi)
        E([x for x in items if not isvalu(x)])
        while True:
            while BG and ismem(BG[0]) and len(PM) < 3: PM.append(BG.popleft())
            if PM and opof(PM[0]).startswith("ds_write") and g < wr_from: break
            if PM and (c + cost(PM[0]) <= budget or c <= OPT["memc"]):
                x = PM.popleft(); E(x); c += cost(x)
            else: break
        E([x for x in items if isvalu(x)])
        while BG:
            if ismem(BG[0]):
                if len(PM) < 3: PM.append(BG.popleft()); continue
                break
            if opof(BG[0]) in ("s_waitcnt", "s_barrier") and PM: break
            if c + cost(BG[0]) > budget: break
            x = BG.popleft(); E(x); c += cost(x)
        E(endi)
PM = deque()
def flush():
    print("flush", len(PM), len(BG), "at line", len(L), file=sys.stderr)
    while PM: E(PM.popleft())
    while BG: E(BG.popleft())
def spread(items, n, per):
    return [items[g*per:(g+1)*per] for g in range(n)]


CS = 128**-0.5 * math.log2(math.e)
X_BASE, R_BASE, NS = 0, 65536, 6
KR_BASE = 32768
FLAG_OFF = 48 << 20
OOB = 0x40000000
PSTR = 131072 + OPT['pad']
SENT = 0xff81ff81
sX, sK, sV, sWQ, sWO, sW1, sW2, sB1, sP = 4, 8, 12, 16, 20, 24, 28, 32, 36
sW, sG, sRB, sRING, sOFF, sCNT, sT0, sT1, sKOFF, sVOFF, sVL, sC0, sT2, sT3, sFLAG, sT4, sROT, sJJ = range(40, 58)
sFL, sDBG, sPR, sB2, sOUT = 60, 64, 88, 92, 96
sST = 72
sTAB = 16
def stab(p): return sTAB + p if p < 4 else 24 + (p - 4)
vLANE, vTF, vB, vBC, vPUB, vPOLL, vTQ, vDO, vKR, vTV, vDK, vDV, vST, vRD, vM, vL = 1, 2, 6, 8, 10, 11, 12, 14, 18, 22, 26, 28, 30, 31, 32, 36
vDQ, vD1, PFD = 40, 44, 49
vT = 50
B0, B1, B2, B3, B4, B5 = 64, 96, 128, 160, 192, 224
S0, S1, P0, P1, NEGM = B3, (B3+16, B4), (56, B4+16), B4+24, B5
LR = B5 + 16
aO, aVF, aKF, aFL = 0, 128, 160, 192
ONES = vL
LQ = (44, B5+24, B5+28, vM)
def QFr(rg, s_): return B0 + 16*s_ + 4*rg
BIAS = B2 + 16

nstamp = [0]
hcnt = [0]
def stamp(lvl=1):
    if OPT["hold"] >= 0 and lvl in (0, 1):
        if hcnt[0] == OPT["hold"]: E("s_memrealtime s[70:71]", "s_waitcnt lgkmcnt(0)", "s_mov_b32 s72, s70")
        hcnt[0] += 1
    if not OPT["stamps"]: return
    if OPT["stamps"] != lvl and lvl != 0: return
    i = nstamp[0]; nstamp[0] += 1
    assert i < 14
    E("s_memrealtime s[70:71]" if OPT["rt"] else "s_memtime s[70:71]", "s_waitcnt lgkmcnt(0)", f"s_mov_b32 s{sST+i}, s70")

def mfma(dk, d, ak, a, bk, b, c=None, ck=None):
    cs = R(dk, d, 4) if c is None else (str(c) if ck is None else R(ck, c, 4))
    return f"v_mfma_f32_16x16x32_bf16 {R(dk,d,4)}, {R(ak,a,4)}, {R(bk,b,4)}, {cs}"
def kvoff(t):
    return f"s_xor_b32 s{sKOFF}, s{sJJ}, {t*8192}" if OPT["kvrot"] else f"s_mov_b32 s{sKOFF}, {t*8192}"
def dma_k(t):
    return [f"s_add_u32 m0, s{sVL}, {KR_BASE+(t&3)*8192}", kvoff(t),
            T(f"buffer_load_dwordx4 v{vDK}, {sr(sK,4)}, s{sKOFF} offen lds", ("K", t)),
            T(f"buffer_load_dwordx4 v{vDK+1}, {sr(sK,4)}, s{sKOFF} offen offset:1024 lds", ("K", t))]
def dma_v(t):
    return [f"s_add_u32 m0, s{sVL}, {X_BASE+(t&3)*8192}", kvoff(t),
            T(f"buffer_load_dwordx4 v{vDV}, {sr(sV,4)}, s{sKOFF} offen lds", ("V", t)),
            T(f"buffer_load_dwordx4 v{vDV+1}, {sr(sV,4)}, s{sKOFF} offen offset:1024 lds", ("V", t))]

class Stage:
    def __init__(s, idx, mat, j, ps, acc, areg, readb, vb):
        s.idx, s.mat, s.j, s.ps, s.acc, s.areg, s.readb, s.vb = idx, mat, j, ps, acc, areg, readb, vb
        s.slot = idx % NS; s.tag = (mat, ps, j); s.breg = ("a", 16*j)
    def dma(s):
        srd_, vd, stride = {"w1": (sW1, vD1, 3584), "wq": (sWQ, vDQ, 8192), "w2": (sW2, vDO, 1024), "wo": (sWO, vDO, 1024)}[s.mat]
        o = [f"s_add_u32 m0, s{sRING}, {s.slot*4096}", f"s_mov_b32 s{sOFF}, {s.j*32*stride + s.ps*128}"]
        if OPT["rot"] and s.mat == "wq":
            o[1] = [f"s_add_u32 s{sOFF}, s{sROT}, {s.j*32*8192 + s.ps*128}", f"s_and_b32 s{sOFF}, s{sOFF}, {512*8192-1}"]
        if OPT["rot"] and s.mat == "w1":
            o[1] = [f"s_add_u32 s{sOFF}, s{sROT}, {s.j*32*8192}", f"s_bfe_u32 s{sOFF}, s{sOFF}, {(9<<16)|13}", f"s_mul_i32 s{sOFF}, s{sOFF}, 3584"]
        return o + [T(f"buffer_load_dwordx4 v{vd+p}, {sr(srd_,4)}, s{sOFF} offen offset:{p*1024} lds", s.tag) for p in range(4)]
    def areads(s):
        ak, a = s.areg; o = [W("vm", s.tag)]
        for Tt in range(4):
            for t in range(2):
                va, off = (vTQ + (Tt >> 1), 8*(Tt & 1)) if s.mat == "wq" else (vTF + Tt, 0)
                o.append(T(f"ds_read_b64_tr_b16 {R(ak, a+4*Tt+2*t, 2)}, v{va} offset:{s.slot*4096+t*2048+off}", s.tag))
        return o
    def breads(s):
        if not s.readb: return []
        bk, b = s.breg
        return [T(f"ds_read_b128 {R(bk, b+4*rg, 4)}, v{s.vb+(s.j&1)} offset:{s.j*4096+rg*1024}", s.tag) for rg in range(4)]
    def reads(s): return s.breads() + s.areads()
    def one(s, Tt, rg):
        ak, a = s.areg; dk, d = s.acc(Tt, rg)
        c = () if s.j else ((BIAS + 4*Tt, "v") if s.mat == "w1" else (0,))
        return mfma(dk, d, ak, a+4*Tt, s.breg[0], s.breg[1]+4*rg, *c)
    def mf(s): return [s.one(Tt, rg) for Tt in range(4) for rg in range(4)]
def step(st, nxt_reads, dma, post=(), gb=None):
    E(W("lg", st.tag))
    plan = [[] for _ in range(16)]
    q = list(nxt_reads)
    dg = {}
    if dma:
        dg = {0: dma[:2], 3: dma[2:3], 7: dma[3:4]}
        if len(dma) == 6: dg.update({11: dma[4:5], 15: dma[5:6]})
        elif len(dma) == 8: dg.update({9: dma[4:6], 11: dma[6:7], 15: dma[7:8]})
    per = 1 if len(q) <= (16 - len(dg) - 2) else 2
    for g in range(16):
        if g in dg: plan[g] += dg[g]
        else: plan[g] += q[:per]; q = q[per:]
    assert not q
    plan[15] += list(post)
    gaps(st.mf(), plan, budget=gb or OPT["gb"])

def srd(d, ptr, off, size):
    E(f"s_add_u32 s{d}, s{ptr}, s{off}", f"s_addc_u32 s{d+1}, s{ptr+1}, 0")
    if size[0] == "rest": E(f"s_sub_u32 s{d+2}, {size[1]}, s{off}")
    else: E(f"s_mov_b32 s{d+2}, {size[1]}")
    E(f"s_mov_b32 s{d+3}, 0x00020000")

SPINS = []
def check_ready(name, vreg, load, val):
    SPINS.append((name, vreg, load, val))
    return [f"v_cmp_le_u32 vcc, {val}, v{vreg}", ["s_cmp_eq_u64 vcc, -1", f"s_cbranch_scc0 L_spin_{name}", f"L_ok_{name}:"]]
def blk(kind, lo, hi): return lambda Tt, rg: (kind, (lo, hi)[Tt >> 1] + 8*rg + 4*(Tt & 1))
def xred(op, a, b):
    return [f"v_mov_b32 v{b}, v{a}", "s_nop 1", f"v_permlane32_swap_b32 v{a}, v{b}", "s_nop 0", f"{op} v{a}, v{a}, v{b}",
            f"v_mov_b32 v{b}, v{a}", "s_nop 1", f"v_permlane16_swap_b32 v{a}, v{b}", "s_nop 0", f"{op} v{a}, v{a}, v{b}"]

def main_kernel(K):
    PRE = []
    def add(lst, mat, n, ps, acc, aregs, readb, vb):
        for j in range(n): lst.append(Stage(len(lst), mat, j, ps, acc, aregs(len(lst)), readb, vb))
    av = lambda i: ("v", B3 + 16*(i & 1)); aa = lambda i: ("a", 112 + 16*(i & 1))
    add(PRE, "wq", 16, 0, blk("v", B0, B1), av, True, vB)
    add(PRE, "w1", 16, 0, blk("v", B4, B5), av, False, vB)
    add(PRE, "wq", 16, 1, blk("v", B1, B2), av, False, vB)
    add(PRE, "w2", 7, 0, blk("v", B2, B4), aa, True, vBC)
    add(PRE, "w2", 7, 1, blk("a", 192, 224), aa, False, vBC)
    POST = []
    SETS = [("a", aKF), ("a", aKF+16), ("a", aVF), ("a", aVF+16), ("v", B0), ("v", B0+16), ("v", B0+32)]
    ao = lambda i: SETS[i % 7]
    add(POST, "wo", 16, 0, blk("v", B4, B3), ao, True, vB)
    add(POST, "wo", 16, 1, blk("v", B2, B5), ao, False, vB)
    for st in POST:
        if st.j >= 8:
            st.readb = True
            st.breg = ("v", B2 + 16*(st.j & 1)) if st.ps == 0 else ("a", 16*(st.j - 8))

    E(".p2align 12", ".p2align 8", f".globl {K}", f".type {K},@function", f"{K}:")
    E("s_cmp_ge_u32 s2, 256", "s_cbranch_scc1 L_main_end")
    E(f"s_mov_b32 s{sFLAG}, 0", [f"v_mov_b32 v{vM+j}, 0" for j in range(4)])
    E("L_restart:")
    if OPT["stamps"]: E("s_memrealtime s[86:87]")
    stamp(0)
    E("s_load_dwordx8 s[60:67], s[0:1], 0", "s_load_dwordx2 s[68:69], s[0:1], 32", "s_load_dwordx4 s[88:91], s[0:1], 48",
      "s_load_dwordx8 s[92:99], s[0:1], 64", "s_load_dwordx2 s[58:59], s[0:1], 96")
    if OPT["codepf"]:
        E("s_getpc_b64 s[100:101]", "L_pc:", f"s_sub_u32 s100, s100, L_pc-{K}", "s_subb_u32 s101, s101, 0")
        E(f"s_bfe_u32 s{sT0}, s2, 0x30003", f"s_lshl_b32 s{sT0}, s{sT0}, 14", f"v_lshlrev_b32 v{vT}, 6, v0", f"v_add_u32 v{vT}, s{sT0}, v{vT}",
          f"v_min_u32 v{vT}, L_code_end-{K}-4, v{vT}")
        E(f"global_load_dword v{PFD}, v{vT}, s[100:101]")
    l = vLANE
    pt = 128
    row, c7, t0, t1, t2, t3, t4, cl, zr, bo = range(pt, pt + 10)
    xo = pt + 12
    wa, pw = 58, 60
    def cap(fn):
        global L
        keep = L; L = []; fn(); got = [x.strip() for x in L]; L = keep
        return got
    def srdl(d, ptr, off, size):
        c = cap(lambda: srd(d, ptr, off, size)); return [c[:2], c[2], c[3]]
    E(f"v_lshrrev_b32 v{t0}, 6, v0", f"v_and_b32 v{l}, 63, v0")
    HG = OPT["hg"]; lh = HG.bit_length() - 1
    E(f"s_and_b32 s{sG}, s2, {8//HG-1}", f"s_lshl_b32 s{sG}, s{sG}, {lh}", f"s_bfe_u32 s{sT0}, s2, {(lh<<16)|3}", f"s_or_b32 s{sG}, s{sG}, s{sT0}",
      f"s_lshr_b32 s{sJJ}, s2, {3+lh}", f"s_bfe_u32 s{sRB}, s2, {(lh<<16)|(3-lh)}", f"s_lshl_b32 s{sRB}, s{sRB}, {5-lh}", f"s_or_b32 s{sRB}, s{sRB}, s{sJJ}")
    E(f"v_readfirstlane_b32 s{sW}, v{t0}")
    E(f"v_bfe_u32 v{row}, v0, 3, 3", f"v_lshl_add_u32 v{t1}, v{t0}, 4, v{row}",
      f"v_and_b32 v{c7}, 7, v0", f"v_lshlrev_b32 v{xo}, 4, v{c7}", f"v_lshl_add_u32 v{xo}, v{t1}, 10, v{xo}", f"v_add_u32 v{xo+1}, 8192, v{xo}")
    XS = 8
    if OPT["rot"]:
        E(f"s_and_b32 s{sROT}, s{sJJ}, {OPT['rot']-1}", f"s_mul_i32 s{sROT}, s{sROT}, {8//OPT['rot']}", f"s_lshl_b32 s{XS}, s{sROT}, 7")
        for i in range(1, 8): E(f"s_add_u32 s{XS+i}, s{XS}, {128*i}", f"s_and_b32 s{XS+i}, s{XS+i}, 1023")
        E(f"s_lshl_b32 s{sROT}, s{sROT}, 19")
    E(f"s_and_b32 s{sJJ}, s{sJJ}, {OPT['kvrot']}", f"s_lshl_b32 s{sJJ}, s{sJJ}, 13")
    E(f"s_or_b32 s{sT0}, s{sG}, s{sW}", f"s_or_b32 s{sT0}, s{sT0}, s{sFLAG}", f"s_cmp_eq_u32 s{sT0}, 0", f"s_cselect_b32 s{sT2}, 0, {OOB}",
      f"v_lshlrev_b32 v{cl}, 8, v{row}", f"v_lshl_add_u32 v{cl}, v{c7}, 2, v{cl}", f"v_add_u32 v{cl}, s{sT2}, v{cl}",
      f"v_mov_b32 v{zr}, 0", f"v_mov_b32 v{vL}, s{sT2}", f"v_mov_b32 v{vL+1}, 1")
    E(f"s_mul_i32 s{sRING}, s{sW}, {NS*4096}", f"s_add_u32 s{sRING}, s{sRING}, {R_BASE}", f"s_lshl_b32 s{sVL}, s{sW}, 11", f"s_mov_b32 s{sC0}, 0xffff0000")
    E(f"v_lshrrev_b32 v{t2}, 4, v{l}", f"v_lshlrev_b32 v{t2}, 1, v{t2}", f"v_xor_b32 v{t3}, v{c7}, v{t2}", f"v_lshlrev_b32 v{t1}, 4, v{t3}",
      f"v_lshrrev_b32 v{t0}, 5, v{l}", f"v_and_b32 v{t2}, 3, v{row}", f"v_lshl_add_u32 v{t0}, v{t0}, 3, v{t2}",
      f"v_mul_u32_u24 v{t2}, 3584, v{t0}", f"s_lshl_b32 s{sT4}, s{sW}, 7", f"v_add3_u32 v{vD1}, v{t2}, v{t1}, s{sT4}",
      f"v_lshl_add_u32 v{vDV}, v{row}, 8, v{t1}",
      f"s_lshl_b32 s{sT0}, s{sW}, 8", f"v_add_u32 v{t1}, s{sT0}, v{t1}",
      f"v_lshl_add_u32 v{vDQ}, v{t0}, 13, v{t1}", f"v_lshl_add_u32 v{vDO}, v{row}, 10, v{t1}")
    if OPT["dropoob"]:
        E(f"s_and_b32 s{sT0}, s{sG}, 1", f"s_xor_b32 s{sT0}, s{sT0}, 1", f"s_mul_i32 s{sT0}, s{sT0}, 7", f"s_lshl_b32 s{sT3}, s{sW}, 1",
          f"v_lshrrev_b32 v{t3}, 2, v{t3}", f"v_or_b32 v{t3}, s{sT3}, v{t3}", f"v_cmp_eq_u32 vcc, s{sT0}, v{t3}", f"v_mov_b32 v{t2}, {OOB}", "s_nop 0",
          f"v_cndmask_b32 v{vD1}, v{vD1}, v{t2}, vcc")
    natp = lambda p, stride: (16*(p & 1) + 4*(p >> 1)) * stride - p*1024
    for p in range(1, 4): E(f"v_add_u32 v{vDQ+p}, {natp(p, 8192)}, v{vDQ}")
    E(f"v_xor_b32 v{t0}, v{row}, v{c7}", f"v_and_b32 v{t1}, 3, v{c7}", f"v_lshl_add_u32 v{t0}, v{t1}, 4, v{t0}", f"v_lshlrev_b32 v{t0}, 4, v{t0}",
      f"v_lshrrev_b32 v{t1}, 2, v{c7}", f"v_lshl_add_u32 v{t0}, v{t1}, 12, v{t0}", f"s_lshl_b32 s{sT0}, s{sW}, 10", f"v_add_u32 v{wa}, s{sT0}, v{t0}")
    E(f"s_lshl_b32 s{sT0}, s{sRB}, 16", f"s_lshl_b32 s{sT1}, s{sRB}, 12", f"s_add_u32 s{sT1}, s{sT1}, {FLAG_OFF}")
    E(f"s_lshr_b32 s{sT3}, s{sG}, 1", f"s_mul_i32 s{sT3}, s{sT3}, 896", f"s_and_b32 s{sT2}, s{sG}, 1", f"s_mul_i32 s{sT2}, s{sT2}, 384",
      f"s_add_u32 s{sT3}, s{sT3}, s{sT2}")
    E("s_waitcnt lgkmcnt(0)")
    srd(sX, 60, sT0, ("imm", 65536))
    RAW = 64; ACCH = B4
    U1 = srdl(sB1, 90, sT3, ("rest", 3584)) + srdl(sP, 58, sT1, ("imm", 1024)) + \
         [T(f"buffer_store_dword v{zr}, v{cl}, {sr(sP,4)}, 0 offen sc1", "clr")] + srdl(sW1, 88, sT3, ("rest", 1835008))
    def trs():
        E(f"v_lshrrev_b32 v{t0}, 2, v{l}", f"v_lshlrev_b32 v{t0}, 7, v{t0}", f"v_bfe_u32 v{t1}, v{l}, 3, 2", f"v_and_b32 v{t2}, 3, v{l}",
          f"v_lshl_add_u32 v{t3}, v{t2}, 3, v{t0}")
        for Tt in range(4):
            E(f"v_xor_b32 v{t4}, {Tt}, v{t1}", f"v_lshl_add_u32 v{vTV+Tt}, v{t4}, 5, v{t3}", f"v_add_u32 v{vTF+Tt}, s{sRING}, v{vTV+Tt}")
        E(f"v_and_b32 v{t3}, 1, v{l}", f"v_lshl_add_u32 v{t3}, v{t3}, 4, v{t0}", f"v_add_u32 v{t3}, s{sRING}, v{t3}", f"v_lshrrev_b32 v{t2}, 1, v{t2}",
          f"v_xor_b32 v{t2}, v{t2}, v{t1}")
        for t32 in range(2): E(f"v_xor_b32 v{t4}, {2*t32}, v{t2}", f"v_lshl_add_u32 v{vTQ+t32}, v{t4}, 5, v{t3}")
        E(f"v_lshrrev_b32 v{t1}, 4, v{l}", f"v_xor_b32 v{t1}, v{t1}, v{l}", f"v_lshlrev_b32 v{vB}, 4, v{t1}", f"v_xor_b32 v{vB+1}, 64, v{vB}")
    U1 += cap(trs)
    U1 += [f"v_lshrrev_b32 v{t3}, 4, v0", f"v_and_b32 v{t4}, 15, v0", f"v_lshlrev_b32 v{pw}, 6, v{t4}", f"v_lshl_add_u32 v{pw}, v{t3}, 13, v{pw}",
           f"v_lshlrev_b32 v{pw+2}, 4, v0", f"v_lshlrev_b32 v{pw+3}, 5, v0", f"v_mul_u32_u24 v{t3}, 3584, v{t3}", f"v_lshl_add_u32 v{pw+1}, v{t4}, 5, v{t3}"]
    U1 += [f"s_lshl_b32 s{sT0}, s{sG}, 10"] + srdl(sWQ, 66, sT0, ("rest", 4194304))
    U1 += [f"s_lshl_b32 s{sT0}, s{sG}, 19"] + srdl(sWO, 68, sT0, ("rest", 4194304))
    U1 += [f"s_mul_i32 s{sT2}, s{sG}, {224*1024}"] + srdl(sW2, 92, sT2, ("rest", 1835008))
    U1 += [x for p in range(1, 4) for x in (f"v_add_u32 v{vD1+p}, {natp(p, 3584)}, v{vD1}", f"v_add_u32 v{vDO+p}, {p*(8*1024-1024)}, v{vDO}")]
    U1 = deque(U1); per = (len(U1) + 15) // 16
    for i in range(8):
        for p in range(2):
            if OPT["rot"]: E(T(f"buffer_load_dwordx4 {vr(RAW+32*p+4*i,4)}, v{xo+p}, {sr(sX,4)}, s{XS+i} offen", ("x", p, i)))
            else: E(T(f"buffer_load_dwordx4 {vr(RAW+32*p+4*i,4)}, v{xo+p}, {sr(sX,4)}, 0 offen offset:{i*128}", ("x", p, i)))
            for _ in range(per):
                if U1: E(U1.popleft())
    stamp(2)
    E(f"s_add_u32 s{sT0}, s{sT0}, {1536*256}"); srd(sK, 62, sT0, ("imm", 131072)); srd(sV, 64, sT0, ("imm", 131072))
    srd(sFL, 58, sT1, ("imm", 1024))
    E(f"s_lshl_b32 s{sT0}, s{sRB}, 2"); srd(sDBG, 98, sT0, ("imm", 4))
    if OPT["stubs"]:
        E("s_mov_b64 exec, 0")
        for w_ in range(3): E(f"s_cmp_eq_u32 s{sW}, {w_}", f"s_cbranch_scc1 L_pg{w_}")
        E("s_branch L_pg3", "L_pgret:", "s_mov_b64 exec, -1")
    def later():
        E(f"s_and_b32 s{sT0}, s{sW}, 1", f"s_lshl_b32 s{sT0}, s{sT0}, 12", f"s_lshr_b32 s{sT1}, s{sW}, 1", f"s_lshl_b32 s{sT1}, s{sT1}, 7",
          f"s_add_u32 s{sT0}, s{sT0}, s{sT1}", f"v_add_u32 v{vDV}, s{sT0}, v{vDV}", f"v_add_u32 v{vDV+1}, 1024, v{vDV}")
        E(f"v_lshrrev_b32 v{t0}, 4, v{l}")
        for p in range(2):
            E(f"s_lshl_b32 s{sT0}, s{sW}, 3", f"s_add_u32 s{sT0}, s{sT0}, {4*p}", f"v_add_u32 v{t2}, s{sT0}, v{t0}",
              f"v_xor_b32 v{t3}, v{t2}, v{l}", f"v_and_b32 v{t3}, 15, v{t3}", f"v_lshlrev_b32 v{t3}, 4, v{t3}",
              f"v_lshl_add_u32 v{vDK+p}, v{t2}, 8, v{t3}")
            if p: E(f"v_subrev_u32 v{vDK+p}, 1024, v{vDK+p}")
        E(f"v_and_b32 v{t1}, 15, v{l}", f"v_lshlrev_b32 v{t2}, 8, v{t1}", f"v_add_u32 v{t2}, {KR_BASE}, v{t2}", f"v_xor_b32 v{t1}, v{t1}, v{t0}")
        for s_ in range(4): E(f"v_xor_b32 v{t3}, {4*s_}, v{t1}", f"v_lshl_add_u32 v{vKR+s_}, v{t3}, 4, v{t2}")
        E(f"s_lshl_b32 s{sT0}, s{sW}, 14", f"v_lshlrev_b32 v{vST}, 4, v{l}", f"v_add_u32 v{vST}, s{sT0}, v{vST}")
    LATER = cap(later)
    LATER += [f"s_mul_i32 s{sT0}, s{sRB}, {8*PSTR}"] + srdl(sP, 58, sT0, ("imm", 8*PSTR))
    LATER += [f"s_mul_i32 s{sT1}, s{sG}, {PSTR}", f"s_add_u32 s{sT0}, s{sT0}, s{sT1}"] + srdl(sPR, 58, sT0, ("imm", 131072))
    LATER += [f"s_lshr_b32 s{sT1}, s{sG}, 2", f"s_lshl_b32 s{sT1}, s{sT1}, 6", f"s_lshl_b32 s{sT0}, s{sW}, 8", f"s_add_u32 s{sT1}, s{sT1}, s{sT0}"] + srdl(sB2, 94, sT1, ("rest", 1024))
    LATER += [f"s_and_b32 s{sT0}, s{sG}, 3", f"s_lshl_b32 s{sT0}, s{sT0}, 14", f"s_add_u32 s{sVOFF}, s{sT0}, s{sT1}"]
    LATER += [f"s_lshl_b32 s{sT0}, s{sRB}, 16"] + srdl(sOUT, 96, sT0, ("imm", 65536))
    LATER2 = LATER[38:]
    BRW1 = 50
    LATER = [f"v_lshrrev_b32 v{bo}, 4, v{l}", f"v_lshlrev_b32 v{bo}, 3, v{bo}", f"s_lshl_b32 s{sT2}, s{sW}, 7"] + \
            [T(f"buffer_load_dwordx2 {vr(BRW1+2*q,2)}, v{bo}, {sr(sB1,4)}, s{sT2} offen offset:{q*32}", "bias") for q in range(4)] + LATER[:38]
    LATER.append(W("vm", "bias"))
    for r in range(16):
        LATER.append((f"v_lshlrev_b32 v%d, 16, v{BRW1+r//2}" if r % 2 == 0 else f"v_and_b32 v%d, s{sC0}, v{BRW1+r//2}") % (BIAS+r))
        LATER.append(f"v_mul_f32 v{BIAS+r}, {f32(CS)}, v{BIAS+r}")
    PFS = [[f"s_lshl_b32 s{sT3}, s{sRB}, 17", f"buffer_load_dword v{PFD}, v{pw}, {sr(sWQ,4)}, s{sT3} offen"],
           [f"s_mul_i32 s{sT3}, s{sRB}, 7168", f"buffer_load_dword v{PFD}, v{pw+3}, {sr(sW2,4)}, s{sT3} offen"],
           [f"s_lshl_b32 s{sT3}, s{sRB}, 12", f"buffer_load_dword v{PFD}, v{pw+2}, {sr(sK,4)}, s{sT3} offen"],
           [f"buffer_load_dword v{PFD}, v{pw+2}, {sr(sV,4)}, s{sT3} offen"]]
    SP = deque()
    for s_ in range(NS):
        d = PRE[s_].dma(); SP.append(d[:3]); SP.extend(d[3:])
    if OPT["pfpos"] == 1: SP.extend(PFS)
    if OPT["pfpos"] == 2: SP.append([f"s_mul_i32 s{sT3}, s{sRB}, {16*3584}", f"buffer_load_dword v{PFD}, v{pw+1}, {sr(sW1,4)}, s{sT3} offen"])
    if OPT["pfpos"] == 3: SP.append([f"s_mul_i32 s{sT3}, s{sRB}, {16*3584}", f"buffer_load_dword v{PFD}, v{pw+1}, {sr(sW1,4)}, s{sT3} offen"]); SP.append(PFS[1])
    if OPT["pfpos"] == 4: SP.append(PFS[1])
    PFN = {"q": PFS[0], "w2": PFS[1], "k": PFS[2], "v": [f"s_lshl_b32 s{sT3}, s{sRB}, 12"] + PFS[3],
           "w1": [f"s_mul_i32 s{sT3}, s{sRB}, {16*3584}", f"buffer_load_dword v{PFD}, v{pw+1}, {sr(sW1,4)}, s{sT3} offen"]}
    PFAT = {}
    for it_ in str(OPT["pfs"]).split("_"):
        if it_:
            nm, at = it_.split("@"); PFAT.setdefault(int(at), []).extend(PFN[nm])
    if -1 in PFAT: SP.append(PFAT[-1])
    if -3 in PFAT:
        l_ = list(SP); x_ = PFAT[-3]; SP.clear(); SP.extend(l_[:OPT["pfk"]] + [x_[k:k+2] for k in range(0, len(x_), 2)] + l_[OPT["pfk"]:])
    if -2 in PFAT: SP.appendleft(PFAT[-2])
    nsp = [0]
    def sp(n=1, force=False):
        for _ in range(n):
            if SP and (force or nsp[0] < OPT["npre"]): E(SP.popleft()); nsp[0] += 1
    SUM, SQ = 50, 54
    for i in range(8):
        for p in range(2):
            E(W("vm", ("x", p, i)))
            r = RAW + 32*p + 4*i; u = B2 + 32*p + 4*i; m = SUM + 2*p; q = SQ + 2*p
            for j in range(4): E(f"v_lshlrev_b32 v{u+j}, 16, v{r+j}", f"v_and_b32 v{r+j}, s{sC0}, v{r+j}")
            for k, b_ in enumerate((u, r, u+2, r+2)):
                if i == 0 and k == 0: E(f"v_pk_add_f32 {vr(m,2)}, {vr(u,2)}, {vr(r,2)}", f"v_pk_mul_f32 {vr(q,2)}, {vr(u,2)}, {vr(u,2)}")
                elif i == 0 and k == 1: E(f"v_pk_fma_f32 {vr(q,2)}, {vr(b_,2)}, {vr(b_,2)}, {vr(q,2)}")
                else: E(f"v_pk_add_f32 {vr(m,2)}, {vr(m,2)}, {vr(b_,2)}", f"v_pk_fma_f32 {vr(q,2)}, {vr(b_,2)}, {vr(b_,2)}, {vr(q,2)}")
            if 2*i + p >= OPT["sp0"]: sp(OPT["spn"])
    stamp(2)
    E(W("vm", "clr"), f"buffer_store_dword v{vL+1}, v{vL}, {sr(sDBG,4)}, 0 offen sc1")
    R4 = [SUM, SUM+2, SQ, SQ+2]
    for v in R4: E(f"v_add_f32 v{v}, v{v}, v{v+1}")
    for md in ("quad_perm:[1,0,3,2]", "quad_perm:[2,3,0,1]", "row_half_mirror"):
        for v in R4: E(f"v_add_f32_dpp v{v}, v{v}, v{v} {md} row_mask:0xf bank_mask:0xf")
    def both(fmt): E([fmt.format(m=SUM+2*p, q=SQ+2*p) for p in range(2)])
    both(f"v_mul_f32 v{{m}}, {f32(1/512)}, v{{m}}"); both(f"v_mul_f32 v{{q}}, {f32(1/512)}, v{{q}}")
    both("v_fma_f32 v{q}, -v{m}, v{m}, v{q}"); both("v_max_f32 v{q}, 0, v{q}")
    both("v_cvt_pk_bf16_f32 v{q}, v{q}, v{m}")
    both(f"v_and_b32 v{{m}}, s{sC0}, v{{q}}"); both("v_lshlrev_b32 v{q}, 16, v{q}")
    both(f"v_add_f32 v{{q}}, {f32(1e-5)}, v{{q}}"); both("v_cvt_pk_bf16_f32 v{q}, v{q}, v{q}"); both("v_lshlrev_b32 v{q}, 16, v{q}")
    both("v_sqrt_f32 v{q}, v{q}"); E("s_nop 0"); both("v_cvt_pk_bf16_f32 v{q}, v{q}, v{q}"); both("v_lshlrev_b32 v{q}, 16, v{q}")
    both("v_rcp_f32 v{q}, v{q}"); E("s_nop 0"); both(f"v_mul_f32 v{{q}}, {f32(CS)}, v{{q}}"); both("v_mul_f32 v{m}, v{m}, v{q}")
    stamp(2)
    for i in range(8):
        for p in range(2):
            r = RAW + 32*p + 4*i; u = B2 + 32*p + 4*i
            for b_ in (u, r, u+2, r+2):
                E(f"v_pk_fma_f32 {vr(b_,2)}, {vr(b_,2)}, {vr(SQ+2*p,2)}, {vr(SUM+2*p,2)} op_sel_hi:[1,0,0] neg_lo:[0,0,1] neg_hi:[0,0,1]")
            for j in range(4): E(f"v_cvt_pk_bf16_f32 v{r+j}, v{u+j}, v{r+j}")
            E(f"ds_write_b128 v{wa}, {vr(r,4)} offset:{i*8192+p*128}")
    stamp(2)
    sp(99, force=True)
    E(PRE[0].areads())
    E("s_waitcnt lgkmcnt(8)", "s_barrier")
    if OPT["stamps"] < 4: stamp(0)
    E(PRE[0].breads())
    BG.extend(LATER)
    def kreads(t): return [T(f"ds_read_b128 {ar(aKF+8*s_+4*hk,4)}, v{vKR+s_} offset:{(t&3)*8192+hk*4096}", ("kf", t)) for s_ in range(4) for hk in range(2)]
    def vreads(t): return [T(f"ds_read_b64_tr_b16 {ar(aVF+4*T8+2*t_,2)}, v{vTV+(T8&3)} offset:{(t&3)*8192+(T8>>2)*4096+t_*2048}", ("vf", t))
                           for T8 in range(8) for t_ in range(2)]
    def qk(x, dst, zero=False):
        return [mfma("v", dst+8*rl+4*hk, "a", aKF+8*s_+4*hk, "v", QFr(2*x+rl, s_), *(((0,) if zero else (NEGM+4*(2*x+rl), "v")) if s_ == 0 else ()))
                for s_ in range(4) for hk in range(2) for rl in range(2)]
    def pv(x, p, zero=False):
        return [mfma("v", LQ[2*x+rl], "v", ONES, "v", p+4*rl, 0 if zero else None) for rl in range(2)] + \
               [mfma("a", aO+64*x+16*(T8>>1)+8*rl+4*(T8&1), "a", aVF+4*T8, "v", p+4*rl, 0 if zero else None) for T8 in range(8) for rl in range(2)]
    def sm_plan(x, s, p, n=32):
        pl = [[] for _ in range(n)]
        for j in range(16): pl[max(0, 2*j-1) if n == 32 else 2*j+1].append(f"v_exp_f32 v{s+j}, v{s+j}")
        for k in range(8): pl[min(31, 4*k+4) if n == 32 else 4*k+6].append(f"v_cvt_pk_bf16_f32 v{p+k}, v{s+2*k}, v{s+2*k+1}")
        return pl
    vSTX = (vST, vRD, vTQ, vTQ + 1)
    def pst(reg, typ, ps, p, tag=None): return T(f"buffer_store_dwordx4 {vr(reg,4)}, v{vSTX[2*typ+ps]}, {sr(sP,4)}, s{stab(p)} offen sc1", tag)
    def pld(dst, typ, ps, p, tag): return T(f"buffer_load_dwordx4 {dst}, v{vSTX[2*typ+ps]}, {sr(sPR,4)}, {'0' if p < 4 else 's%d' % sROT} offen offset:{(p&3)*1024} sc1", tag)
    def pack(kind, src, tmp):
        o = []; b = tmp if kind == "a" else src
        if kind == "a":
            for r in range(8): o.append(f"v_accvgpr_read_b32 v{b+r}, a{src+r}")
        return o + [f"v_cvt_pk_bf16_f32 v{b+j}, v{b+2*j}, v{b+2*j+1}" for j in range(4)]
    NP = len(PRE)
    KV = deque([dma_v(0) + dma_k(2), dma_v(1) + dma_k(3), dma_v(2)])
    vHW = vD1
    PZ = vDQ
    POI = [pst(PZ, 0, q // 7, 1 + q % 7) for q in range(14)]
    FTB = lambda n: B5 + 16
    STQ = deque(POI[:5])
    for n in range(8): STQ.extend([pst(B2 + 4*n, 1, 0, n), POI[5 + n]])
    STQ.extend(POI[13:])
    FSQ = deque(pst(FTB(n), 1, 1, n) for n in range(8))
    WA8 = vDQ
    def wa8(sh):
        o = [f"s_and_b32 s{sT0}, s{sG}, 3", f"s_lshl_b32 s{sT0}, s{sT0}, 10", f"s_lshl_b32 s{sT1}, s{sW}, {sh}", f"s_add_u32 s{sT0}, s{sT0}, s{sT1}"]
        for j in range(2):
            o.append(f"v_add_u32 v{WA8+4*j}, s{sT0}, v{vB+j}")
            for rg in range(1, 4): o.append(f"v_xor_b32 v{WA8+4*j+rg}, {rg*1024}, v{WA8+4*j}")
        return o
    HP = lambda n: B4 + 4*n
    for i, st in enumerate(PRE):
        d = PRE[i + NS].dma() if i + NS < NP else (KV.popleft() if KV else [])
        post = []
        if OPT["pfpos"] == 2 and i == OPT["pf2"]: post = PFS[1] + PFS[2] + PFS[3]
        if OPT["pfpos"] == 2 and i == OPT["pf1"]: post = PFS[0]
        post = post + PFAT.get(i, [])
        if i == 16:
            flush(); E("s_nop 1")
            post = post + ["s_barrier"]
        if i == 17:
            for j in range(32): BG.append(f"v_cvt_pk_bf16_f32 v{B0+j}, v{B0+2*j}, v{B0+2*j+1}")
            BG.extend([f"s_and_b32 s{sT0}, s{sG}, 1", f"s_lshl_b32 s{sT1}, s{sT0}, 12", f"s_lshl_b32 s{sT0}, s{sT0}, 6"])
            for j in range(2): BG.extend([f"v_xor_b32 v{vBC+j}, s{sT0}, v{vB+j}", f"v_add_u32 v{vBC+j}, s{sT1}, v{vBC+j}"])
            BG.extend([f"s_lshl_b32 s{sT0}, s{sW}, 8", f"s_lshl_b32 s{sT1}, s{sG}, 2", f"s_add_u32 s{sT0}, s{sT0}, s{sT1}",
                       f"v_min_u32 v{vPUB}, 1, v{l}", f"v_lshlrev_b32 v{vPUB}, 30, v{vPUB}", f"v_add_u32 v{vPUB}, s{sT0}, v{vPUB}",
                       f"s_lshl_b32 s{sT0}, s{sW}, 8",
                       f"v_and_b32 v{vPOLL}, 7, v{l}", f"v_lshlrev_b32 v{vPOLL}, 2, v{vPOLL}", f"v_add_u32 v{vPOLL}, s{sT0}, v{vPOLL}",
                       f"v_add_u32 v{vRD}, 8192, v{vST}"])
            for j in range(4): BG.append(f"v_mov_b32 v{ONES+j}, 0x3f803f80")
            BG.extend(LATER2)
        if i == 32: flush()
        if i == 33:
            BG.extend([f"s_lshr_b32 s{sT0}, s{sG}, 2", f"s_lshl_b32 s{sT0}, s{sT0}, 6"])
            for j in range(4): BG.append(f"v_xor_b32 v{vTF+j}, s{sT0}, v{vTF+j}")
            for n in range(8):
                b = ACCH + 8*n
                for r in range(8): BG.append(f"v_max_f32 v{b+r}, 0, v{b+r}")
                for r in range(8): BG.append(f"v_mul_f32 v{b+r}, v{b+r}, v{b+r}")
                for j in range(4): BG.append(f"v_cvt_pk_bf16_f32 v{HP(n)+j}, v{b+2*j}, v{b+2*j+1}")
        if i == 36: post = dma_k(0)
        if i == 38: post = dma_k(1)
        if i == 44: post = [W("vm", ("K", 1)), "s_barrier"]
        if i == 45:
            for x in reversed(kreads(0)): BG.appendleft(x)
        if i == 54: post = ["s_barrier"]
        if i == 56:
            for n in range(8):
                b_ = (B2, B4)[n >> 2] + 8*(n & 3)
                for j in range(4): BG.append(f"v_cvt_pk_bf16_f32 v{B2+4*n+j}, v{b_+2*j}, v{b_+2*j+1}")
        if i == 43: BG.extend(wa8(13))
        if i == 49:
            for x in reversed([f"v_mov_b32 v{PZ+j}, {SENT:#x}" for j in range(4)] + [f"v_add_u32 v{vTQ}, 65536, v{vST}", f"v_add_u32 v{vTQ+1}, 65536, v{vRD}", f"s_mov_b32 s{sROT}, 4096"] +
                              [y for p in range(8) for y in (f"s_xor_b32 s{stab(p)}, s{sG}, {p}", f"s_mul_i32 s{stab(p)}, s{stab(p)}, {PSTR}", f"s_add_u32 s{stab(p)}, s{stab(p)}, {p*1024}")]):
                BG.appendleft(x)
        if i >= 57: post = post + [STQ.popleft()]
        step(st, PRE[48].areads() if i == 47 else PRE[i + 1].reads() if i + 1 < NP else [], d, post=post, gb=(OPT["f2b"] if 48 <= i < 54 else None))
        if i in (15, 47): stamp()
        if i in (3, 7, 11, 15, 19, 23, 27, 31, 35, 39, 43): stamp(3)
        if i == 47:
            flush()
            E(W("lg", ("kf", 0)))
            q0, q1 = qk(0, S0, True), qk(1, S1[0], True)
            cv = [f"v_cvt_pk_bf16_f32 v{B1+j}, v{B1+2*j}, v{B1+2*j+1}" for j in range(32)]
            hw = [T(f"ds_write_b128 v{WA8+n}, {vr(HP(n),4)} offset:{(n>>2)*4096}", "hw") for n in range(8)]
            pl = [[] for _ in range(32)]
            for g in range(2, 13): pl[g] = cv[3*(g-2):3*(g-1)]
            h0 = OPT["hw0"]
            for n in range(8): pl[h0 + 2*n].append(hw[n])
            pl[min(31, h0 + 18)] += [W("lg", "hw"), "s_barrier"] + PRE[48].breads()
            gaps(q0[:8] + q1[:8] + q0[8:] + q1[8:], pl)
            BG.extend(kreads(1))
            for rg in range(4):
                s = (S0, S1[0])[rg >> 1] + 8*(rg & 1); m = vT
                BG.extend([f"v_max3_f32 v{m}, v{s}, v{s+1}, v{s+2}", f"v_max3_f32 v{m}, v{m}, v{s+3}, v{s+4}", f"v_max3_f32 v{m}, v{m}, v{s+5}, v{s+6}",
                           f"v_max_f32 v{m}, v{m}, v{s+7}"] + xred("v_max_f32", m, vT+1))
                BG.extend([[f"s_cmp_lg_u32 s{sFLAG}, 0", "s_cselect_b64 vcc, -1, 0"], "s_nop 0", f"v_cndmask_b32 v{m}, v{m}, v{vM+rg}, vcc"])
                for r in range(4): BG.append(f"v_sub_f32 v{NEGM+4*rg+r}, 0, v{m}")
                for r in range(8): BG.append(f"v_sub_f32 v{s+r}, v{s+r}, v{m}")
            sp0_ = [y for g in sm_plan(0, S0, P0[0]) for y in g]
            BG.extend(sp0_[:-1] + ["s_nop 0"] + sp0_[-1:])
    flush()
    stamp()
    E(W("vm", ("K", 2)), "s_waitcnt lgkmcnt(0)")
    def att_iter(i, x1=(), x2=()):
        if i == 0: E("s_barrier")
        pl = sm_plan(1, S1[i&1], P1)
        x1 = list(x1)
        for g, x in zip((2, 2, 4, 6, 6, 8, 10, 10, 12, 14, 14, 16, 18, 18, 20, 22), vreads(i)): pl[g].append(x)
        if x1:
            pl[22] += x1[:1]; pl[24] += x1[1:2]
            for g, x in zip((26, 28, 30, 31), x1[2:]): pl[g].append(x)
        elif STQ: pl[26].append(STQ.popleft())
        gaps(qk(0, S0) + qk(1, S1[(i+1)&1]), pl)
        pl = sm_plan(0, S0, P0[(i+1)&1], 36)
        pl[1] = [W("lg", ("vf", i))] + pl[1]
        if i + 2 < 16:
            for g, x in zip((2, 2, 4, 4, 6, 8, 8, 10), kreads(i + 2)): pl[g].append(x)
        if i == 14:
            for g, x in zip((2, 2, 4, 4, 6, 8, 8, 10, 12, 12, 14, 16, 16, 18, 20, 20, 22, 24), POST[0].areads() + POST[1].areads()): pl[g].append(x)
        dv = dma_v(i + 3) if i + 3 < 16 else []
        dk = dma_k(i + 5) if i + 5 < 16 else []
        pl[0] += list(x2)
        if STQ: pl[12].append(STQ.popleft())
        if dv: pl[14] += dv[:1]; pl[14] += dv[1:2]; pl[16] += dv[2:3]; pl[20] += dv[3:]
        if dk: pl[22] += dk[:2]; pl[24] += dk[2:3]; pl[28] += dk[3:]
        pl[32] += [W2(W("vm", ("K", i+3)), W("vm", ("V", i+1)), W("lg", ("kf", i+2)))]
        pl[33] = ["s_barrier"] + pl[33]
        mf = pv(0, P0[i&1], zero=(i == 0)) + pv(1, P1, zero=(i == 0))
        gaps(mf[:35], pl[:35])
        flush()
        if FSQ: pl[35].append(FSQ.popleft())
        elif STQ: pl[35].append(STQ.popleft())
        gaps(mf[35:], pl[35:])
    VAL = vT + 3; GATE = vT + 4; POL = vT + 5
    poll = f"buffer_load_dword v{POL}, v{vPOLL}, {sr(sFL,4)}, 0 offen sc1"
    pub = f"buffer_store_dword v{VAL}, v{vPUB}, {sr(sFL,4)}, 0 offen sc1"
    for i in range(15):
        x1 = []; x2 = []
        if i == 0:
            x1 = dma_k(4)
            BG.extend([f"v_lshlrev_b32 v{vT}, 6, v0", f"v_mov_b32 v{vT+1}, 0", f"v_mov_b32 v{VAL}, 1"])
        if i == OPT["wopf"] and not OPT["wo4"]: BG.append([f"s_lshl_b32 s{sT1}, s{sRB}, 14", f"buffer_load_dword v{PFD}, v{vT}, {sr(sWO,4)}, s{sT1} offen"])
        if i < 8: BG.extend(pack("a", 192 + 8*i, FTB(i)))
        gl = f"buffer_load_dword v{GATE}, v{vT+1}, {sr(sDBG,4)}, 0 offen sc1"
        if i == 2: BG.append(T(gl, "gate"))
        if i == 9: BG.extend([W("vm", "gate")] + check_ready("gate", GATE, gl, 1))
        if i == 10: x2 = ["s_waitcnt vmcnt(0)", pub]
        if i == 12: x2 = [T(poll, "fpoll")]
        FLD = [pld(ar(aFL+4*n,4), 1, n >> 3, n & 7, ("fl", n)) for n in range(16)]
        nf1 = 6
        if OPT["fchk"] == 14:
            if i == 14: BG.extend([W("vm", "fpoll")] + check_ready("f", POL, poll, 1) + FLD[:6])
        else:
            nf1 = 16
            if i == 13: BG.extend([W("vm", "fpoll")] + check_ready("f", POL, poll, 1) + FLD[:9])
            if i == 14: BG.extend(FLD[9:])
        wol = [int(x) for x in OPT["wol"].split("_")]
        if i in wol: x1 = POST[wol.index(i)].dma()
        if i >= 3: stamp(4)
        if i < 12: stamp(6)
        if i == 10: assert not STQ and not FSQ, (len(STQ), len(FSQ))
        att_iter(i, x1=x1, x2=x2)
    i = 15
    E(vreads(i))
    WA8 = NEGM
    E(wa8(14))
    pl32 = sm_plan(1, S1[i&1], P1)
    E(pl32[:2])
    mf = pv(0, P0[i&1])
    gaps(mf[:2], [pl32[2] + pl32[3], pl32[4] + pl32[5]])
    E("s_waitcnt lgkmcnt(0)")
    pl = [pl32[6+2*g] + pl32[7+2*g] if g < 13 else [] for g in range(16)]
    pl[0] = ["s_barrier"] + pl[0]
    d6 = POST[6].dma()
    pl[13] = d6[:3]; pl[14] = d6[3:4]; pl[15] = d6[4:5]
    gaps(mf[2:], pl)
    OT = B2
    pl = [d6[5:]] + ([[x] for x in FLD[nf1:]] or [[]] * 6) + [[f"v_rcp_f32 v{LR+2*rg}, v{LQ[rg]}"] for rg in range(4)]
    gaps(pv(1, P1), pl)
    E(f"v_add_f32 v{vT+1}, v{LQ[0]}, v{LQ[1]}", f"v_add_f32 v{vT+2}, v{LQ[2]}, v{LQ[3]}", f"s_mov_b32 s{sT1}, {f32(2.0**OPT['thr'])}", f"v_add_f32 v{vT+1}, v{vT+1}, v{vT+2}",
      f"v_cmp_nge_f32 vcc, s{sT1}, v{vT+1}", f"v_and_b32 v{vT+2}, 3, v{l}", f"v_mul_u32_u24 v{vT+2}, {NS*4096}, v{vT+2}",
      "s_cmp_lg_u64 vcc, 0", f"s_cselect_b32 s{sT1}, 1, 0", f"v_mov_b32 v{vT}, s{sT1}",
      f"s_lshl_b32 s{sT1}, s{sW}, 2", f"s_add_u32 s{sT1}, s{sT1}, {R_BASE}", f"v_add_u32 v{vT+2}, s{sT1}, v{vT+2}", f"v_mov_b32 v{vT+1}, s{sRING}",
      f"ds_write_b32 v{vT+2}, v{vT} offset:{1*4096}")
    E(POST[2].areads(), POST[3].areads())
    stamp()
    for n in range(16):
        x, T32, rl = n >> 3, (n >> 1) & 3, n & 1
        b = OT + 8*(n & 7); rg = 2*x + rl
        for r in range(8): E(f"v_accvgpr_read_b32 v{b+r}, a{aO+8*n+r}")
        for j in range(4): E(f"v_pk_mul_f32 {vr(b+2*j,2)}, {vr(b+2*j,2)}, {vr(LR+2*rg,2)} op_sel_hi:[1,0]")
        for j in range(4): E(f"v_cvt_pk_bf16_f32 v{b+j}, v{b+2*j}, v{b+2*j+1}")
        E(f"ds_write_b128 v{WA8+4*(T32&1)+rg}, {vr(b,4)} offset:{T32*4096}")
    E(W("lg", POST[3].tag), POST[8].dma(), POST[9].dma())
    E("s_waitcnt lgkmcnt(0)", "s_barrier")
    E(T(f"ds_read_b128 {vr(56,4)}, v{vT+1} offset:{1*4096}", "flg"), POST[0].breads())
    E(W("lg", "flg"))
    E(f"v_or3_b32 v{vT}, v56, v57, v58", f"v_or_b32 v{vT}, v{vT}, v59", "s_nop 0", f"v_readfirstlane_b32 s{sT0}, v{vT}",
      "s_nop 0", f"s_andn2_b32 s{sT0}, s{sT0}, s{sFLAG}", "s_cbranch_scc1 L_slow")
    E(POST[7].dma())
    stamp(); stamp(5)
    GV, XO, XR, BRW, TM = 112, vT, 56, 40, 8
    sacc = lambda ps, n: ((B4, B3), (B2, B5))[ps][n >> 2] + 8*(n & 3)
    sepi = lambda ps, n: pack("v", sacc(ps, n), None) + [pst(sacc(ps, n), 0, ps, n, ("sst", ps))] if n else []
    def SLr(ps, p): return B3 + 4*(p - 1) if ps == 0 else (B4 + 4 + 4*p if p < 7 else B3 + 28)
    def sloads(ps): return [pld(vr(SLr(ps, p), 4), 0, ps, p, ("sl", ps, p)) for p in range(1, 8)]
    sst = [int(x) for x in str(OPT["sst"]).split("_")]
    def fmath(pk, part=2):
        o = []; TQ = 18
        for ps in range(2):
            G_ = GV + 8*ps
            for g in range(8):
                n = 8*ps + g
                for j in range(4): o.append(f"v_accvgpr_read_b32 v{TQ+8+j}, a{aFL+4*n+j}")
                d0 = G_ if g == 0 else TQ
                for j in range(4): o += [f"v_lshlrev_b32 v{d0+2*j}, 16, v{TQ+8+j}", f"v_and_b32 v{d0+2*j+1}, s{sC0}, v{TQ+8+j}"]
                if g and pk: o += [f"v_pk_add_f32 {vr(G_+2*j,2)}, {vr(G_+2*j,2)}, {vr(TQ+2*j,2)}" for j in range(4)]
                elif g: o += [f"v_add_f32 v{G_+j}, v{G_+j}, v{TQ+j}" for j in range(8)]
        if part == 0: return o
        if part == 1: o = []
        for ps in range(2):
            G_ = GV + 8*ps
            for j in range(4): o += [f"v_lshlrev_b32 v{TQ+2*j}, 16, v{BRW+4*ps+j}", f"v_and_b32 v{TQ+2*j+1}, s{sC0}, v{BRW+4*ps+j}"]
            for j in range(8): o.append(f"v_fma_f32 v{G_+j}, v{G_+j}, s{sT0}, v{TQ+j}")
            for j in range(8): o.append(f"v_mul_f32 v{TQ+j}, {f32(-math.log2(math.e))}, v{G_+j}")
            for j in range(8): o.append(f"v_exp_f32 v{TQ+j}, v{TQ+j}")
            for j in range(8): o.append(f"v_add_f32 v{TQ+j}, 1.0, v{TQ+j}")
            for j in range(8): o.append(f"v_rcp_f32 v{TQ+j}, v{TQ+j}")
            for j in range(8): o.append(f"v_mul_f32 v{G_+j}, v{G_+j}, v{TQ+j}")
        return o
    nd = [10]; nr = [4]; hold = [int(x) for x in str(OPT['hold2']).split('_') if x]
    for i, st in enumerate(POST[:30]):
        if i == 0:
            BG.extend([f"v_bfe_u32 v{XO+1}, v0, 4, 2", f"v_lshlrev_b32 v{XO+1}, 3, v{XO+1}", f"v_and_b32 v{TM}, 15, v0",
                       f"v_lshl_add_u32 v{XO}, v{TM}, 10, v{XO+1}", f"s_mov_b32 s{sT0}, {f32(1/CS**2)}"])
        if i == OPT["fldo"] and i > 1: BG.extend(FLD[6:])
        if i == (0 if OPT["fbg"] else OPT["xbl"]):
            for k in range(4):
                BG.appendleft(T(f"buffer_load_dwordx2 {vr(XR+2*k,2)}, v{XO}, {sr(sX,4)}, s{sVOFF} offen offset:{(k>>1)*128+(k&1)*32}", "xb"))
                BG.appendleft(T(f"buffer_load_dwordx2 {vr(BRW+2*k,2)}, v{XO+1}, {sr(sB2,4)}, 0 offen offset:{(k>>1)*128+(k&1)*32}", "xb"))
        if i == OPT["fs0"]: BG.extend([W("vm", ("fl", 15))] + fmath(False, 0))
        e = [x for n in range(8) if sst[n * len(sst) // 8] == i for x in sepi(0, n)]
        for x in reversed(e): BG.appendleft(x)
        if i == OPT["lda"]:
            for x in reversed(sloads(0)): BG.appendleft(x)
        d = []
        if nd[0] < 32 and nd[0] - NS < nr[0]: d = POST[nd[0]].dma(); nd[0] += 1
        nxt = POST[i + 1].breads() + (POST[31].breads() if i == 29 else [])
        want = 32 if i == 29 else max(i + 2, nr[0] + (0 if i in hold else 1))
        while nr[0] < min(32, want):
            assert nr[0] < nd[0] - (1 if d else 0) and nr[0] <= i + 6
            nxt = nxt + POST[nr[0]].areads(); nr[0] += 1
        for x in nxt:
            if isinstance(x, T): x.tag = POST[i + 1].tag
        step(st, nxt, d)
        if i == 15: stamp()
        if i % 3 == 2: stamp(5)
    REST = list(BG); BG.clear()
    print("f math left for the tail:", len(REST), file=sys.stderr)
    flush()
    stamp()
    stamp(7)
    E(W("lg", POST[30].tag))
    order = [1, 2, 3, 4, 5, 6, 7, 0]
    for k, n in enumerate(order):
        if k == 1: BG.append("s_nop 1")
        if k >= 2: BG.extend(sepi(1, order[k - 2]))
        gaps([POST[j].one(2*(n >> 2) + h, n & 3) for j in (30, 31) for h in range(2)], [], budget=12)
    flush()
    E(sepi(1, 7))
    stamp(); stamp(7)
    SA, ST_, XT, OP = B0, B0+16, B0+24, B0+40
    def fin():
        E(f"s_mov_b64 s[{sT2}:{sT3}], -1")
        for j in range(8): E(f"v_lshlrev_b32 v{XT+2*j}, 16, v{XR+j}", f"v_and_b32 v{XT+2*j+1}, s{sC0}, v{XR+j}")
        E("L_sum:")
        for ps in range(2):
            A_ = SA + 8*ps
            for p in range(1, 8):
                E(W("vm", ("sl", ps, p)))
                for j in range(4): E(f"v_lshlrev_b32 v{ST_+2*j}, 16, v{SLr(ps,p)+j}", f"v_and_b32 v{ST_+2*j+1}, s{sC0}, v{SLr(ps,p)+j}")
                for j in range(4): E(f"v_pk_add_f32 {vr(A_+2*j,2)}, {vr((sacc(ps,0) if p == 1 else A_)+2*j,2)}, {vr(ST_+2*j,2)}")
            E(f"v_pk_add_f32 {vr(ST_,2)}, {vr(A_,2)}, {vr(A_+2,2)}", f"v_pk_add_f32 {vr(ST_+2,2)}, {vr(A_+4,2)}, {vr(A_+6,2)}",
              f"v_pk_add_f32 {vr(ST_,2)}, {vr(ST_,2)}, {vr(ST_+2,2)}", f"v_cmp_u_f32 vcc, v{ST_}, v{ST_+1}")
            for j in range(4): E(f"v_pk_fma_f32 {vr(A_+2*j,2)}, {vr(A_+2*j,2)}, {vr(GV+8*ps+2*j,2)}, {vr(XT+8*ps+2*j,2)}")
            E(f"s_and_b64 vcc, vcc, s[{sT2}:{sT3}]", f"s_cbranch_scc1 L_miss{ps}")
            for j in range(4): E(f"v_cvt_pk_bf16_f32 v{OP+4*ps+j}, v{A_+2*j}, v{A_+2*j+1}")
            for k in range(2): E(f"buffer_store_dwordx2 {vr(OP+4*ps+2*k,2)}, v{XO}, {sr(sOUT,4)}, s{sVOFF} offen offset:{ps*128+k*32} {OPT['outsc']}")
            if ps == 0: stamp(); E("L_sum1:")
    assert not any(ismem(x) for x in REST)
    REST = REST + [W("vm", "xb")] + (fmath(True, 1) if OPT["fs0"] < 30 else fmath(True))
    cut = min(len(REST), OPT["bdel"])
    if OPT["lda"] >= 30:
        E(REST[:cut//2], sloads(0)); stamp(7); E(REST[cut//2:cut], sloads(1)); stamp(7); E(REST[cut:]); stamp(7)
        if OPT["stamps"] == 7:
            E(W("vm", ("sst", 1))); stamp(7); E(W("vm", ("sl", 0, 1))); stamp(7); E(W("vm", ("sl", 0, 7))); stamp(7); E(W("vm", ("sl", 1, 7))); stamp(7)
    else: E(REST[:cut], sloads(1), REST[cut:])
    fin()
    stamp()
    if OPT["stamps"]:
        E("s_waitcnt vmcnt(0)")
        if OPT["stamps"] != 7: stamp(0)
        E(f"s_lshl_b32 s{sT0}, s2, 2", f"s_add_u32 s{sT0}, s{sT0}, s{sW}", f"s_lshl_b32 s{sT0}, s{sT0}, 6", f"s_add_u32 s{sT0}, s{sT0}, {64<<20}")
        srd(sX, 58, sT0, ("imm", 64))
        E(f"v_mov_b32 v{vT}, 0", "s_memrealtime s[70:71]", "s_waitcnt lgkmcnt(0)", f"s_mov_b32 s87, s70")
        for i in list(range(nstamp[0])) + [14, 15]:
            E(f"v_mov_b32 v{vT+1}, s{sST+i}", f"buffer_store_dword v{vT+1}, v{vT}, {sr(sX,4)}, 0 offen offset:{4*i}")
    if OPT["hold"] >= 0:
        E(f"s_cmp_lg_u32 s2, {OPT['hwg']}", "s_cbranch_scc1 L_main_end", "s_mov_b32 s73, 3000", "L_hold:", "s_memrealtime s[70:71]", "s_waitcnt lgkmcnt(0)",
          "s_sub_u32 s70, s70, s72", "s_sub_u32 s73, s73, 1", "s_cbranch_scc1 L_main_end", "s_cmp_lt_u32 s70, 10000", "s_cbranch_scc1 L_hold")
    E("L_main_end:", "s_endpgm")
    for name, vreg, load, val in SPINS:
        E(f"L_spin_{name}:", f"s_mov_b32 s{sCNT}, {OPT['spin']}", f"L_spinl_{name}:", load, "s_waitcnt vmcnt(0)",
          f"v_cmp_le_u32 vcc, {val}, v{vreg}", f"s_sub_u32 s{sCNT}, s{sCNT}, 1", f"s_cbranch_scc1 L_ok_{name}",
          "s_cmp_eq_u64 vcc, -1", f"s_cbranch_scc0 L_spinl_{name}", f"s_branch L_ok_{name}")
    E("L_miss0:", f"s_mov_b32 s{sT1}, 0xfefe", f"s_mov_b32 s{sT4}, 0", "s_branch L_miss", "L_miss1:", f"s_mov_b32 s{sT1}, 0xfe00", f"s_mov_b32 s{sT4}, 1",
      "L_miss:", f"s_mov_b32 s{sT0}, {SENT:#x}", f"s_mov_b32 s{sCNT}, {OPT['spin']}", "L_missl:", "s_waitcnt vmcnt(0)")
    if OPT["slp"]: E(f"s_sleep {OPT['slp']}")
    for ps in range(2):
        for g in range(1, 8):
            r = SLr(ps, g); bit = 8*ps + g
            E(f"s_bitcmp1_b32 s{sT1}, {bit}", f"s_cbranch_scc0 L_have{bit}",
              f"v_cmp_eq_u32 vcc, s{sT0}, v{r}", f"v_cmp_eq_u32 s[{sT2}:{sT3}], s{sT0}, v{r+1}", f"v_cmp_eq_u32 s[70:71], s{sT0}, v{r+2}", f"s_or_b64 s[{sT2}:{sT3}], vcc, s[{sT2}:{sT3}]",
              f"v_cmp_eq_u32 vcc, s{sT0}, v{r+3}", f"s_or_b64 s[70:71], s[70:71], s[{sT2}:{sT3}]", f"s_bitset0_b32 s{sT1}, {bit}",
              f"s_or_b64 s[70:71], s[70:71], vcc", f"s_cbranch_scc0 L_have{bit}", f"s_bitset1_b32 s{sT1}, {bit}", sloads(ps)[g-1], f"L_have{bit}:")
    E(f"s_sub_u32 s{sCNT}, s{sCNT}, 1", f"s_cselect_b32 s{sT1}, 0, s{sT1}", f"s_cmp_lg_u32 s{sT1}, 0", "s_cbranch_scc1 L_missl",
      "s_waitcnt vmcnt(0)", f"s_mov_b64 s[{sT2}:{sT3}], 0", f"s_cmp_eq_u32 s{sT4}, 0", "s_cbranch_scc1 L_sum", "s_branch L_sum1")
    E("L_slow:")
    E("s_waitcnt vmcnt(0) lgkmcnt(0)", "s_barrier")
    E(f"s_mov_b32 s{sKOFF}, 0", f"s_mov_b32 s{sCNT}, 16", [f"v_mov_b32 v{vM+j}, 0xff800000" for j in range(4)])
    E("L_slow_loop:")
    dk = dma_k(0); E(dk[0], "s_nop 0", dk[2:])
    E("s_waitcnt vmcnt(0)", "s_barrier")
    E(kreads(0))
    E("s_waitcnt lgkmcnt(0)", "s_barrier")
    E(qk(0, S0, True), qk(1, S1[0], True))
    E("s_nop 7", "s_nop 7", f"s_add_u32 s{sKOFF}, s{sKOFF}, 8192")
    for rg in range(4):
        s = S0 + 8*rg
        for j in range(0, 8, 2): E(f"v_max3_f32 v{vM+rg}, v{vM+rg}, v{s+j}, v{s+j+1}")
    E(f"s_sub_u32 s{sCNT}, s{sCNT}, 1", f"s_cmp_lg_u32 s{sCNT}, 0", "s_cbranch_scc1 L_slow_loop")
    for rg in range(4): E(xred("v_max_f32", vM+rg, vT))
    E(f"s_mov_b32 s{sFLAG}, 1", "s_branch L_restart", "L_code_end:")

K = NAME + "_kernel"
hdr = open("cdna_kernels/" + NAME + ".s.ref").read().split("; Override launch")[0]
out = [hdr.rstrip()]
out.append("; @launch grid=(256,1,1) block=(256,1,1) lds=163840")
out.append('.amdgcn_target "amdgcn-amd-amdhsa--gfx950"')
out.append(".text")
main_kernel(K)
if OPT["stubs"]:
    import subprocess, tempfile, os, re
    tmp = tempfile.mkdtemp()
    open(tmp + "/a.s", "w").write("\n".join(out + L + [f"L_pg{i}:" for i in range(4)] + ["s_endpgm"]) + "\n")
    subprocess.run(["clang", "-x", "assembler", "-target", "amdgcn-amd-amdhsa", "-mcpu=gfx950", "-c", tmp + "/a.s", "-o", tmp + "/a.o"], check=True)
    dis = subprocess.run(["llvm-objdump", "-d", "--mcpu=gfx950", tmp + "/a.o"], capture_output=True, text=True).stdout
    addrs = [int(m.group(1), 16) for m in re.finditer(r"// ([0-9A-F]{12}):", dis)]
    idx = [i for i, x in enumerate(L) if x.startswith("    ")]
    assert len(addrs) == len(idx) + 1, (len(addrs), len(idx))
    end = L.index("L_main_end:")
    pos = []; page = OPT["pg0"]
    for a_, i in zip(addrs, idx):
        if i >= end: break
        if a_ + 4*len(pos) >= page * 4096 + OPT["pgo"]: pos.append(i); page += 1
    n = len(pos)
    for k in reversed(range(n)):
        L[pos[k]:pos[k]] = [f"L_pg{k}:", f"    s_cbranch_execz {'L_pg%d' % (k+4) if k + 4 < n else 'L_pgret'}"]
out += L
out.append('.section .rodata,"a"')
out.append(f""".p2align 6
.amdhsa_kernel {K}
  .amdhsa_next_free_vgpr 512
  .amdhsa_next_free_sgpr 102
  .amdhsa_accum_offset 256
  .amdhsa_group_segment_fixed_size 0
  .amdhsa_kernarg_size 104
  .amdhsa_user_sgpr_count 2
  .amdhsa_user_sgpr_kernarg_segment_ptr 1
  .amdhsa_system_sgpr_workgroup_id_x 1
.end_amdhsa_kernel""")
print("\n".join(out))
```

```python
import sys, math, struct
from collections import deque
NAME = "recurrent_scan__sliding_block_cached__dense_activation_squared_relu__prompt"
OPT = dict(stamps=0, rt=0, codepf=1, budget=8, thr=40, memc=4, dmac=8, hg=2, rot=8, outsc="", skip="", spin=200000, pfpos=9, pfs="w2@-1_k@20_v@20", pf2=28,
           sst="19_20_21_22_23_24_25", dropoob=1, lda=99, npre=12, sp0=4, hw0=12, gb=8, pf1=12, stubs=1, fbg=0, bdel=60, xbl=27, kvrot=0, pg0=2, pgo=0, f2b=12, hold=-1, hwg=100, hold2="24", wol="7_8_9_11_12_13", wopf=5, fldo=1, wo4=0, slp=0, fs0=5, pad=4352, spn=1, pfk=12, fchk=13, mo=2, ao=0, ini=6, wb=0, wop2=11)
for a in sys.argv[1:]:
    k, v = a.split("="); OPT[k] = int(v) if v.lstrip("-").isdigit() else v

def vr(b, n=1): return f"v{b}" if n == 1 else f"v[{b}:{b+n-1}]"
def ar(b, n=1): return f"a{b}" if n == 1 else f"a[{b}:{b+n-1}]"
def R(kind, b, n=1): return vr(b, n) if kind == "v" else ar(b, n)
def sr(b, n=1): return f"s{b}" if n == 1 else f"s[{b}:{b+n-1}]"
def f32(x): return "0x%08x" % struct.unpack("<I", struct.pack("<f", x))[0]

class W:
    def __init__(s, cnt, tag): s.cnt, s.tag = cnt, tag
class W2:
    def __init__(s, *ws): s.ws = ws
class T:
    def __init__(s, text, tag): s.text, s.tag = text, tag
L = []; VM = []; LG = []
def E(*xs):
    for x in xs:
        if isinstance(x, (list, tuple)): E(*x); continue
        if isinstance(x, W2):
            n0 = len(L)
            for w_ in x.ws: E(w_)
            parts = {}
            for ln in L[n0:]:
                p_ = ln.split()[1]; parts[p_[:2]] = p_
            del L[n0:]
            if parts: L.append("    s_waitcnt " + " ".join(parts[k] for k in ("vm", "lg") if k in parts))
            continue
        if isinstance(x, W):
            q = VM if x.cnt == "vm" else LG
            idx = [i for i, t in enumerate(q) if t == x.tag]
            if not idx: continue
            n = len(q) - 1 - idx[-1]
            n = min(n, 63 if x.cnt == "vm" else 15)
            del q[:len(q) - n]
            L.append(f"    s_waitcnt {'vmcnt' if x.cnt == 'vm' else 'lgkmcnt'}({n})"); continue
        tag = None
        if isinstance(x, T): x, tag = x.text, x.tag
        op = x.split()[0]
        if op.startswith("buffer_") or op.startswith("global_"): VM.append(tag)
        if op.startswith("ds_"): LG.append(tag)
        if op == "s_waitcnt":
            for w in x.split()[1:]:
                n = int(w[w.index("(")+1:-1]); q = VM if w.startswith("vm") else LG
                if len(q) > n: del q[:len(q) - n]
        L.append("    " + x if not x.endswith(":") and not x.startswith(".") else x)
def opof(x):
    if isinstance(x, (list, tuple)): return opof(x[0])
    if isinstance(x, (W, W2)): return "s_waitcnt"
    return (x.text if isinstance(x, T) else x).split()[0]
def ismem(x):
    if isinstance(x, (list, tuple)): return any(ismem(y) for y in x)
    return opof(x).split("_")[0] in ("ds", "buffer", "global")
def isvalu(x): return opof(x).startswith("v_")
def cost(x):
    if isinstance(x, (list, tuple)): return sum(cost(y) for y in x)
    if isinstance(x, (W, W2)): return 4
    t = x.text if isinstance(x, T) else x
    op = t.split()[0]
    assert not op.startswith("v_pk_"), t
    if t.endswith(":"): return 0
    if op in ("v_exp_f32", "v_rcp_f32", "v_sqrt_f32"): return 8
    if op.startswith("buffer_store_dwordx4"): return 24
    if op.startswith("buffer_") or op.startswith("global_"): return OPT["dmac"]
    if op == "s_nop": return 4 * (int(t.split()[1]) + 1)
    if op == "ds_write_b128": return 20
    return 4
BG = deque()
def gaps(mf, plan, budget=None, wr_from=0):
    budget = OPT["budget"] if budget is None else budget
    for g, m in enumerate(mf):
        E(m)
        items = plan[g] if g < len(plan) else []
        endi = [x[1:] for x in items if isinstance(x, tuple) and x[0] == "end"]
        items = [x for x in items if not (isinstance(x, tuple) and x[0] == "end")]
        c = sum(cost(x) for x in items) + sum(cost(x) for x in endi)
        E([x for x in items if not isvalu(x)])
        while True:
            while BG and ismem(BG[0]) and len(PM) < 3: PM.append(BG.popleft())
            if PM and opof(PM[0]).startswith("ds_write") and g < wr_from: break
            if PM and (c + cost(PM[0]) <= budget or c <= OPT["memc"]):
                x = PM.popleft(); E(x); c += cost(x)
            else: break
        E([x for x in items if isvalu(x)])
        while BG:
            if ismem(BG[0]):
                if len(PM) < 3: PM.append(BG.popleft()); continue
                break
            if opof(BG[0]) in ("s_waitcnt", "s_barrier") and PM: break
            if c + cost(BG[0]) > budget: break
            x = BG.popleft(); E(x); c += cost(x)
        E(endi)
PM = deque()
def flush():
    print("flush", len(PM), len(BG), "at line", len(L), file=sys.stderr)
    while PM: E(PM.popleft())
    while BG: E(BG.popleft())
def spread(items, n, per):
    return [items[g*per:(g+1)*per] for g in range(n)]


CS = 128**-0.5 * math.log2(math.e)
X_BASE, R_BASE, NS = 0, 65536, 6
KR_BASE = 32768
FLAG_OFF = 48 << 20
OOB = 0x40000000
PSTR = 131072 + OPT['pad']
SENT = 0xff81ff81
sX, sK, sV, sWQ, sWO, sW1, sW2, sB1, sP = 4, 8, 12, 16, 20, 24, 28, 32, 36
sW, sG, sRB, sRING, sOFF, sCNT, sT0, sT1, sKOFF, sVOFF, sVL, sC0, sT2, sT3, sFLAG, sT4, sROT, sJJ = range(40, 58)
sFL, sDBG, sPR, sB2, sOUT = 60, 64, 88, 92, 96
sST = 72
sTAB = 16
def stab(p): return sTAB + p if p < 4 else 24 + (p - 4)
vLANE, vTF, vB, vBC, vPUB, vPOLL, vTQ, vDO, vKR, vTV, vDK, vDV, vST, vRD, vM, vL = 1, 2, 6, 8, 10, 11, 12, 14, 18, 22, 26, 28, 30, 31, 32, 36
vDQ, vD1, PFD = 40, 44, 49
vT = 50
B0, B1, B2, B3, B4, B5 = 64, 96, 128, 160, 192, 224
S0, S1, P0, P1, NEGM = B3, (B3+16, B4), (56, B4+16), B4+24, B5
LR = B5 + 16
aO, aVF, aKF, aFL = 0, 128, 160, 192
ONES = vL
LQ = (44, B5+24, B5+28, vM)
def QFr(rg, s_): return B0 + 16*s_ + 4*rg
BIAS = B2 + 16

nstamp = [0]
hcnt = [0]
def stamp(lvl=1):
    if OPT["hold"] >= 0 and lvl in (0, 1):
        if hcnt[0] == OPT["hold"]: E("s_memrealtime s[70:71]", "s_waitcnt lgkmcnt(0)", "s_mov_b32 s72, s70")
        hcnt[0] += 1
    if not OPT["stamps"]: return
    if OPT["stamps"] != lvl and lvl != 0: return
    i = nstamp[0]; nstamp[0] += 1
    assert i < 14
    E("s_memrealtime s[70:71]" if OPT["rt"] else "s_memtime s[70:71]", "s_waitcnt lgkmcnt(0)", f"s_mov_b32 s{sST+i}, s70")

def mfma(dk, d, ak, a, bk, b, c=None, ck=None):
    cs = R(dk, d, 4) if c is None else (str(c) if ck is None else R(ck, c, 4))
    return f"v_mfma_f32_16x16x32_bf16 {R(dk,d,4)}, {R(ak,a,4)}, {R(bk,b,4)}, {cs}"
def kvoff(t):
    return f"s_xor_b32 s{sKOFF}, s{sJJ}, {t*8192}" if OPT["kvrot"] else f"s_mov_b32 s{sKOFF}, {t*8192}"
def dma_k(t):
    return [f"s_add_u32 m0, s{sVL}, {KR_BASE+(t&3)*8192}", kvoff(t),
            T(f"buffer_load_dwordx4 v{vDK}, {sr(sK,4)}, s{sKOFF} offen lds", ("K", t)),
            T(f"buffer_load_dwordx4 v{vDK+1}, {sr(sK,4)}, s{sKOFF} offen offset:1024 lds", ("K", t))]
def dma_v(t):
    return [f"s_add_u32 m0, s{sVL}, {X_BASE+(t&3)*8192}", kvoff(t),
            T(f"buffer_load_dwordx4 v{vDV}, {sr(sV,4)}, s{sKOFF} offen lds", ("V", t)),
            T(f"buffer_load_dwordx4 v{vDV+1}, {sr(sV,4)}, s{sKOFF} offen offset:1024 lds", ("V", t))]

class Stage:
    def __init__(s, idx, mat, j, ps, acc, areg, readb, vb):
        s.idx, s.mat, s.j, s.ps, s.acc, s.areg, s.readb, s.vb = idx, mat, j, ps, acc, areg, readb, vb
        s.slot = idx % NS; s.tag = (mat, ps, j); s.breg = ("a", 16*j)
    def dma(s):
        srd_, vd, stride = {"w1": (sW1, vD1, 3584), "wq": (sWQ, vDQ, 8192), "w2": (sW2, vDO, 1024), "wo": (sWO, vDO, 1024)}[s.mat]
        o = [f"s_add_u32 m0, s{sRING}, {s.slot*4096}", f"s_mov_b32 s{sOFF}, {s.j*32*stride + s.ps*128}"]
        if OPT["rot"] and s.mat == "wq":
            o[1] = [f"s_add_u32 s{sOFF}, s{sROT}, {s.j*32*8192 + s.ps*128}", f"s_and_b32 s{sOFF}, s{sOFF}, {512*8192-1}"]
        if OPT["rot"] and s.mat == "w1":
            o[1] = [f"s_add_u32 s{sOFF}, s{sROT}, {s.j*32*8192}", f"s_bfe_u32 s{sOFF}, s{sOFF}, {(9<<16)|13}", f"s_mul_i32 s{sOFF}, s{sOFF}, 3584"]
        return o + [T(f"buffer_load_dwordx4 v{vd+p}, {sr(srd_,4)}, s{sOFF} offen offset:{p*1024} lds", s.tag) for p in range(4)]
    def areads(s):
        ak, a = s.areg; o = [W("vm", s.tag)]
        for Tt in range(4):
            for t in range(2):
                va, off = (vTQ + (Tt >> 1), 8*(Tt & 1)) if s.mat == "wq" else (vTF + Tt, 0)
                o.append(T(f"ds_read_b64_tr_b16 {R(ak, a+4*Tt+2*t, 2)}, v{va} offset:{s.slot*4096+t*2048+off}", s.tag))
        return o
    def breads(s):
        if not s.readb: return []
        bk, b = s.breg
        return [T(f"ds_read_b128 {R(bk, b+4*rg, 4)}, v{s.vb+(s.j&1)} offset:{s.j*4096+rg*1024}", s.tag) for rg in range(4)]
    def reads(s): return s.breads() + s.areads()
    def one(s, Tt, rg):
        ak, a = s.areg; dk, d = s.acc(Tt, rg)
        c = () if s.j else ((BIAS + 4*Tt, "v") if s.mat == "w1" else (0,))
        return mfma(dk, d, ak, a+4*Tt, s.breg[0], s.breg[1]+4*rg, *c)
    def mf(s):
        if OPT["mo"] == 1: return [s.one(Tt, rg) for rg in range(4) for Tt in range(4)]
        if OPT["mo"] == 2: return [s.one(Tt, rg if Tt % 2 == 0 else 3 - rg) for Tt in range(4) for rg in range(4)]
        return [s.one(Tt, rg) for Tt in range(4) for rg in range(4)]
def step(st, nxt_reads, dma, post=(), gb=None):
    E(W("lg", st.tag))
    plan = [[] for _ in range(16)]
    q = list(nxt_reads)
    dg = {}
    if dma:
        dg = {0: dma[:2], 3: dma[2:3], 7: dma[3:4]}
        if len(dma) == 6: dg.update({11: dma[4:5], 15: dma[5:6]})
        elif len(dma) == 8: dg.update({9: dma[4:6], 11: dma[6:7], 15: dma[7:8]})
    per = 1 if len(q) <= (16 - len(dg) - 2) else 2
    for g in range(16):
        if g in dg: plan[g] += dg[g]
        else: plan[g] += q[:per]; q = q[per:]
    assert not q
    plan[15] += list(post)
    gaps(st.mf(), plan, budget=gb or OPT["gb"])

def srd(d, ptr, off, size):
    E(f"s_add_u32 s{d}, s{ptr}, s{off}", f"s_addc_u32 s{d+1}, s{ptr+1}, 0")
    if size[0] == "rest": E(f"s_sub_u32 s{d+2}, {size[1]}, s{off}")
    else: E(f"s_mov_b32 s{d+2}, {size[1]}")
    E(f"s_mov_b32 s{d+3}, 0x00020000")

SPINS = []
def check_ready(name, vreg, load, val):
    SPINS.append((name, vreg, load, val))
    return [f"v_cmp_le_u32 vcc, {val}, v{vreg}", ["s_cmp_eq_u64 vcc, -1", f"s_cbranch_scc0 L_spin_{name}", f"L_ok_{name}:"]]
def blk(kind, lo, hi): return lambda Tt, rg: (kind, (lo, hi)[Tt >> 1] + 8*rg + 4*(Tt & 1))
def xred(op, a, b):
    return [f"v_mov_b32 v{b}, v{a}", "s_nop 1", f"v_permlane32_swap_b32 v{a}, v{b}", "s_nop 0", f"{op} v{a}, v{a}, v{b}",
            f"v_mov_b32 v{b}, v{a}", "s_nop 1", f"v_permlane16_swap_b32 v{a}, v{b}", "s_nop 0", f"{op} v{a}, v{a}, v{b}"]

def main_kernel(K):
    PRE = []
    def add(lst, mat, n, ps, acc, aregs, readb, vb):
        for j in range(n): lst.append(Stage(len(lst), mat, j, ps, acc, aregs(len(lst)), readb, vb))
    av = lambda i: ("v", B3 + 16*(i & 1)); aa = lambda i: ("a", 112 + 16*(i & 1))
    add(PRE, "wq", 16, 0, blk("v", B0, B1), av, True, vB)
    add(PRE, "w1", 16, 0, blk("v", B4, B5), av, False, vB)
    add(PRE, "wq", 16, 1, blk("v", B1, B2), av, False, vB)
    add(PRE, "w2", 7, 0, blk("v", B2, B4), aa, True, vBC)
    add(PRE, "w2", 7, 1, blk("a", 192, 224), aa, False, vBC)
    POST = []
    SETS = [("a", aKF), ("a", aKF+16), ("a", aVF), ("a", aVF+16), ("v", B0), ("v", B0+16), ("v", B0+32)]
    ao = lambda i: SETS[i % 7]
    add(POST, "wo", 16, 0, blk("v", B4, B3), ao, True, vB)
    add(POST, "wo", 16, 1, blk("v", B2, B5), ao, False, vB)
    for st in POST:
        if st.j >= 8:
            st.readb = True
            st.breg = ("v", B2 + 16*(st.j & 1)) if st.ps == 0 else ("a", 16*(st.j - 8))

    E(".p2align 12", ".p2align 8", f".globl {K}", f".type {K},@function", f"{K}:")
    E("s_cmp_ge_u32 s2, 256", "s_cbranch_scc1 L_main_end")
    E(f"s_mov_b32 s{sFLAG}, 0", [f"v_mov_b32 v{vM+j}, 0" for j in range(4)])
    E("L_restart:")
    if OPT["stamps"]: E("s_memrealtime s[86:87]")
    stamp(0)
    E("s_load_dwordx8 s[60:67], s[0:1], 0", "s_load_dwordx2 s[68:69], s[0:1], 32", "s_load_dwordx4 s[88:91], s[0:1], 48",
      "s_load_dwordx8 s[92:99], s[0:1], 64", "s_load_dwordx2 s[58:59], s[0:1], 96")
    if OPT["codepf"]:
        E("s_getpc_b64 s[100:101]", "L_pc:", f"s_sub_u32 s100, s100, L_pc-{K}", "s_subb_u32 s101, s101, 0")
        E(f"s_bfe_u32 s{sT0}, s2, 0x30003", f"s_lshl_b32 s{sT0}, s{sT0}, 14", f"v_lshlrev_b32 v{vT}, 6, v0", f"v_add_u32 v{vT}, s{sT0}, v{vT}",
          f"v_min_u32 v{vT}, L_code_end-{K}-4, v{vT}")
        E(f"global_load_dword v{PFD}, v{vT}, s[100:101]")
    l = vLANE
    pt = 128
    row, c7, t0, t1, t2, t3, t4, cl, zr, bo = range(pt, pt + 10)
    xo = pt + 12
    wa, pw = 58, 60
    def cap(fn):
        global L
        keep = L; L = []; fn(); got = [x.strip() for x in L]; L = keep
        return got
    def srdl(d, ptr, off, size):
        c = cap(lambda: srd(d, ptr, off, size)); return [c[:2], c[2], c[3]]
    E(f"v_lshrrev_b32 v{t0}, 6, v0", f"v_and_b32 v{l}, 63, v0")
    HG = OPT["hg"]; lh = HG.bit_length() - 1
    E(f"s_and_b32 s{sG}, s2, {8//HG-1}", f"s_lshl_b32 s{sG}, s{sG}, {lh}", f"s_bfe_u32 s{sT0}, s2, {(lh<<16)|3}", f"s_or_b32 s{sG}, s{sG}, s{sT0}",
      f"s_lshr_b32 s{sJJ}, s2, {3+lh}", f"s_bfe_u32 s{sRB}, s2, {(lh<<16)|(3-lh)}", f"s_lshl_b32 s{sRB}, s{sRB}, {5-lh}", f"s_or_b32 s{sRB}, s{sRB}, s{sJJ}")
    E(f"v_readfirstlane_b32 s{sW}, v{t0}")
    E(f"v_bfe_u32 v{row}, v0, 3, 3", f"v_lshl_add_u32 v{t1}, v{t0}, 4, v{row}",
      f"v_and_b32 v{c7}, 7, v0", f"v_lshlrev_b32 v{xo}, 4, v{c7}", f"v_lshl_add_u32 v{xo}, v{t1}, 10, v{xo}", f"v_add_u32 v{xo+1}, 8192, v{xo}")
    XS = 8
    if OPT["rot"]:
        E(f"s_and_b32 s{sROT}, s{sJJ}, {OPT['rot']-1}", f"s_mul_i32 s{sROT}, s{sROT}, {8//OPT['rot']}", f"s_lshl_b32 s{XS}, s{sROT}, 7")
        for i in range(1, 8): E(f"s_add_u32 s{XS+i}, s{XS}, {128*i}", f"s_and_b32 s{XS+i}, s{XS+i}, 1023")
        E(f"s_lshl_b32 s{sROT}, s{sROT}, 19")
    E(f"s_and_b32 s{sJJ}, s{sJJ}, {OPT['kvrot']}", f"s_lshl_b32 s{sJJ}, s{sJJ}, 13")
    E(f"s_or_b32 s{sT0}, s{sG}, s{sW}", f"s_or_b32 s{sT0}, s{sT0}, s{sFLAG}", f"s_cmp_eq_u32 s{sT0}, 0", f"s_cselect_b32 s{sT2}, 0, {OOB}",
      f"v_lshlrev_b32 v{cl}, 8, v{row}", f"v_lshl_add_u32 v{cl}, v{c7}, 2, v{cl}", f"v_add_u32 v{cl}, s{sT2}, v{cl}",
      f"v_mov_b32 v{zr}, 0", f"v_mov_b32 v{vL}, s{sT2}", f"v_mov_b32 v{vL+1}, 1")
    E(f"s_mul_i32 s{sRING}, s{sW}, {NS*4096}", f"s_add_u32 s{sRING}, s{sRING}, {R_BASE}", f"s_lshl_b32 s{sVL}, s{sW}, 11", f"s_mov_b32 s{sC0}, 0xffff0000")
    E(f"v_lshrrev_b32 v{t2}, 4, v{l}", f"v_lshlrev_b32 v{t2}, 1, v{t2}", f"v_xor_b32 v{t3}, v{c7}, v{t2}", f"v_lshlrev_b32 v{t1}, 4, v{t3}",
      f"v_lshrrev_b32 v{t0}, 5, v{l}", f"v_and_b32 v{t2}, 3, v{row}", f"v_lshl_add_u32 v{t0}, v{t0}, 3, v{t2}",
      f"v_mul_u32_u24 v{t2}, 3584, v{t0}", f"s_lshl_b32 s{sT4}, s{sW}, 7", f"v_add3_u32 v{vD1}, v{t2}, v{t1}, s{sT4}",
      f"v_lshl_add_u32 v{vDV}, v{row}, 8, v{t1}",
      f"s_lshl_b32 s{sT0}, s{sW}, 8", f"v_add_u32 v{t1}, s{sT0}, v{t1}",
      f"v_lshl_add_u32 v{vDQ}, v{t0}, 13, v{t1}", f"v_lshl_add_u32 v{vDO}, v{row}, 10, v{t1}")
    if OPT["dropoob"]:
        E(f"s_and_b32 s{sT0}, s{sG}, 1", f"s_xor_b32 s{sT0}, s{sT0}, 1", f"s_mul_i32 s{sT0}, s{sT0}, 7", f"s_lshl_b32 s{sT3}, s{sW}, 1",
          f"v_lshrrev_b32 v{t3}, 2, v{t3}", f"v_or_b32 v{t3}, s{sT3}, v{t3}", f"v_cmp_eq_u32 vcc, s{sT0}, v{t3}", f"v_mov_b32 v{t2}, {OOB}", "s_nop 0",
          f"v_cndmask_b32 v{vD1}, v{vD1}, v{t2}, vcc")
    natp = lambda p, stride: (16*(p & 1) + 4*(p >> 1)) * stride - p*1024
    for p in range(1, 4): E(f"v_add_u32 v{vDQ+p}, {natp(p, 8192)}, v{vDQ}")
    E(f"v_xor_b32 v{t0}, v{row}, v{c7}", f"v_and_b32 v{t1}, 3, v{c7}", f"v_lshl_add_u32 v{t0}, v{t1}, 4, v{t0}", f"v_lshlrev_b32 v{t0}, 4, v{t0}",
      f"v_lshrrev_b32 v{t1}, 2, v{c7}", f"v_lshl_add_u32 v{t0}, v{t1}, 12, v{t0}", f"s_lshl_b32 s{sT0}, s{sW}, 10", f"v_add_u32 v{wa}, s{sT0}, v{t0}")
    E(f"s_lshl_b32 s{sT0}, s{sRB}, 16", f"s_lshl_b32 s{sT1}, s{sRB}, 12", f"s_add_u32 s{sT1}, s{sT1}, {FLAG_OFF}")
    E(f"s_lshr_b32 s{sT3}, s{sG}, 1", f"s_mul_i32 s{sT3}, s{sT3}, 896", f"s_and_b32 s{sT2}, s{sG}, 1", f"s_mul_i32 s{sT2}, s{sT2}, 384",
      f"s_add_u32 s{sT3}, s{sT3}, s{sT2}")
    E("s_waitcnt lgkmcnt(0)")
    srd(sX, 60, sT0, ("imm", 65536))
    RAW = 64; ACCH = B4
    U1 = srdl(sB1, 90, sT3, ("rest", 3584)) + srdl(sP, 58, sT1, ("imm", 1024)) + \
         [T(f"buffer_store_dword v{zr}, v{cl}, {sr(sP,4)}, 0 offen sc1", "clr")] + srdl(sW1, 88, sT3, ("rest", 1835008))
    def trs():
        E(f"v_lshrrev_b32 v{t0}, 2, v{l}", f"v_lshlrev_b32 v{t0}, 7, v{t0}", f"v_bfe_u32 v{t1}, v{l}, 3, 2", f"v_and_b32 v{t2}, 3, v{l}",
          f"v_lshl_add_u32 v{t3}, v{t2}, 3, v{t0}")
        for Tt in range(4):
            E(f"v_xor_b32 v{t4}, {Tt}, v{t1}", f"v_lshl_add_u32 v{vTV+Tt}, v{t4}, 5, v{t3}", f"v_add_u32 v{vTF+Tt}, s{sRING}, v{vTV+Tt}")
        E(f"v_and_b32 v{t3}, 1, v{l}", f"v_lshl_add_u32 v{t3}, v{t3}, 4, v{t0}", f"v_add_u32 v{t3}, s{sRING}, v{t3}", f"v_lshrrev_b32 v{t2}, 1, v{t2}",
          f"v_xor_b32 v{t2}, v{t2}, v{t1}")
        for t32 in range(2): E(f"v_xor_b32 v{t4}, {2*t32}, v{t2}", f"v_lshl_add_u32 v{vTQ+t32}, v{t4}, 5, v{t3}")
        E(f"v_lshrrev_b32 v{t1}, 4, v{l}", f"v_xor_b32 v{t1}, v{t1}, v{l}", f"v_lshlrev_b32 v{vB}, 4, v{t1}", f"v_xor_b32 v{vB+1}, 64, v{vB}")
    U1 += cap(trs)
    U1 += [f"v_lshrrev_b32 v{t3}, 4, v0", f"v_and_b32 v{t4}, 15, v0", f"v_lshlrev_b32 v{pw}, 6, v{t4}", f"v_lshl_add_u32 v{pw}, v{t3}, 13, v{pw}",
           f"v_lshlrev_b32 v{pw+2}, 4, v0", f"v_lshlrev_b32 v{pw+3}, 5, v0", f"v_mul_u32_u24 v{t3}, 3584, v{t3}", f"v_lshl_add_u32 v{pw+1}, v{t4}, 5, v{t3}"]
    U1 += [f"s_lshl_b32 s{sT0}, s{sG}, 10"] + srdl(sWQ, 66, sT0, ("rest", 4194304))
    U1 += [f"s_lshl_b32 s{sT0}, s{sG}, 19"] + srdl(sWO, 68, sT0, ("rest", 4194304))
    U1 += [f"s_mul_i32 s{sT2}, s{sG}, {224*1024}"] + srdl(sW2, 92, sT2, ("rest", 1835008))
    U1 += [x for p in range(1, 4) for x in (f"v_add_u32 v{vD1+p}, {natp(p, 3584)}, v{vD1}", f"v_add_u32 v{vDO+p}, {p*(8*1024-1024)}, v{vDO}")]
    U1 = deque(U1); per = (len(U1) + 15) // 16
    for i in range(8):
        for p in range(2):
            if OPT["rot"]: E(T(f"buffer_load_dwordx4 {vr(RAW+32*p+4*i,4)}, v{xo+p}, {sr(sX,4)}, s{XS+i} offen", ("x", p, i)))
            else: E(T(f"buffer_load_dwordx4 {vr(RAW+32*p+4*i,4)}, v{xo+p}, {sr(sX,4)}, 0 offen offset:{i*128}", ("x", p, i)))
            for _ in range(per):
                if U1: E(U1.popleft())
    stamp(2)
    E(f"s_add_u32 s{sT0}, s{sT0}, {1536*256}"); srd(sK, 62, sT0, ("imm", 131072)); srd(sV, 64, sT0, ("imm", 131072))
    srd(sFL, 58, sT1, ("imm", 1024))
    E(f"s_lshl_b32 s{sT0}, s{sRB}, 2"); srd(sDBG, 98, sT0, ("imm", 4))
    if OPT["stubs"]:
        E("s_mov_b64 exec, 0")
        for w_ in range(3): E(f"s_cmp_eq_u32 s{sW}, {w_}", f"s_cbranch_scc1 L_pg{w_}")
        E("s_branch L_pg3", "L_pgret:", "s_mov_b64 exec, -1")
    def later():
        E(f"s_and_b32 s{sT0}, s{sW}, 1", f"s_lshl_b32 s{sT0}, s{sT0}, 12", f"s_lshr_b32 s{sT1}, s{sW}, 1", f"s_lshl_b32 s{sT1}, s{sT1}, 7",
          f"s_add_u32 s{sT0}, s{sT0}, s{sT1}", f"v_add_u32 v{vDV}, s{sT0}, v{vDV}", f"v_add_u32 v{vDV+1}, 1024, v{vDV}")
        E(f"v_lshrrev_b32 v{t0}, 4, v{l}")
        for p in range(2):
            E(f"s_lshl_b32 s{sT0}, s{sW}, 3", f"s_add_u32 s{sT0}, s{sT0}, {4*p}", f"v_add_u32 v{t2}, s{sT0}, v{t0}",
              f"v_xor_b32 v{t3}, v{t2}, v{l}", f"v_and_b32 v{t3}, 15, v{t3}", f"v_lshlrev_b32 v{t3}, 4, v{t3}",
              f"v_lshl_add_u32 v{vDK+p}, v{t2}, 8, v{t3}")
            if p: E(f"v_subrev_u32 v{vDK+p}, 1024, v{vDK+p}")
        E(f"v_and_b32 v{t1}, 15, v{l}", f"v_lshlrev_b32 v{t2}, 8, v{t1}", f"v_add_u32 v{t2}, {KR_BASE}, v{t2}", f"v_xor_b32 v{t1}, v{t1}, v{t0}")
        for s_ in range(4): E(f"v_xor_b32 v{t3}, {4*s_}, v{t1}", f"v_lshl_add_u32 v{vKR+s_}, v{t3}, 4, v{t2}")
        E(f"s_lshl_b32 s{sT0}, s{sW}, 14", f"v_lshlrev_b32 v{vST}, 4, v{l}", f"v_add_u32 v{vST}, s{sT0}, v{vST}")
    LATER = cap(later)
    LATER += [f"s_mul_i32 s{sT0}, s{sRB}, {8*PSTR}"] + srdl(sP, 58, sT0, ("imm", 8*PSTR))
    LATER += [f"s_mul_i32 s{sT1}, s{sG}, {PSTR}", f"s_add_u32 s{sT0}, s{sT0}, s{sT1}"] + srdl(sPR, 58, sT0, ("imm", 131072))
    LATER += [f"s_lshr_b32 s{sT1}, s{sG}, 2", f"s_lshl_b32 s{sT1}, s{sT1}, 6", f"s_lshl_b32 s{sT0}, s{sW}, 8", f"s_add_u32 s{sT1}, s{sT1}, s{sT0}"] + srdl(sB2, 94, sT1, ("rest", 1024))
    LATER += [f"s_and_b32 s{sT0}, s{sG}, 3", f"s_lshl_b32 s{sT0}, s{sT0}, 14", f"s_add_u32 s{sVOFF}, s{sT0}, s{sT1}"]
    LATER += [f"s_lshl_b32 s{sT0}, s{sRB}, 16"] + srdl(sOUT, 96, sT0, ("imm", 65536))
    LATER2 = LATER[38:]
    BRW1 = 50
    LATER = [f"v_lshrrev_b32 v{bo}, 4, v{l}", f"v_lshlrev_b32 v{bo}, 3, v{bo}", f"s_lshl_b32 s{sT2}, s{sW}, 7"] + \
            [T(f"buffer_load_dwordx2 {vr(BRW1+2*q,2)}, v{bo}, {sr(sB1,4)}, s{sT2} offen offset:{q*32}", "bias") for q in range(4)] + LATER[:38]
    LATER.append(W("vm", "bias"))
    for r in range(16):
        LATER.append((f"v_lshlrev_b32 v%d, 16, v{BRW1+r//2}" if r % 2 == 0 else f"v_and_b32 v%d, s{sC0}, v{BRW1+r//2}") % (BIAS+r))
        LATER.append(f"v_mul_f32 v{BIAS+r}, {f32(CS)}, v{BIAS+r}")
    PFS = [[f"s_lshl_b32 s{sT3}, s{sRB}, 17", f"buffer_load_dword v{PFD}, v{pw}, {sr(sWQ,4)}, s{sT3} offen"],
           [f"s_mul_i32 s{sT3}, s{sRB}, 7168", f"buffer_load_dword v{PFD}, v{pw+3}, {sr(sW2,4)}, s{sT3} offen"],
           [f"s_lshl_b32 s{sT3}, s{sRB}, 12", f"buffer_load_dword v{PFD}, v{pw+2}, {sr(sK,4)}, s{sT3} offen"],
           [f"buffer_load_dword v{PFD}, v{pw+2}, {sr(sV,4)}, s{sT3} offen"]]
    SP = deque()
    for s_ in range(OPT["ini"]):
        d = PRE[s_].dma(); SP.append(d[:3]); SP.extend(d[3:])
    if OPT["pfpos"] == 1: SP.extend(PFS)
    if OPT["pfpos"] == 2: SP.append([f"s_mul_i32 s{sT3}, s{sRB}, {16*3584}", f"buffer_load_dword v{PFD}, v{pw+1}, {sr(sW1,4)}, s{sT3} offen"])
    if OPT["pfpos"] == 3: SP.append([f"s_mul_i32 s{sT3}, s{sRB}, {16*3584}", f"buffer_load_dword v{PFD}, v{pw+1}, {sr(sW1,4)}, s{sT3} offen"]); SP.append(PFS[1])
    if OPT["pfpos"] == 4: SP.append(PFS[1])
    PFN = {"q": PFS[0], "w2": PFS[1], "k": PFS[2], "v": [f"s_lshl_b32 s{sT3}, s{sRB}, 12"] + PFS[3],
           "w1": [f"s_mul_i32 s{sT3}, s{sRB}, {16*3584}", f"buffer_load_dword v{PFD}, v{pw+1}, {sr(sW1,4)}, s{sT3} offen"]}
    PFAT = {}
    for it_ in str(OPT["pfs"]).split("_"):
        if it_:
            nm, at = it_.split("@"); PFAT.setdefault(int(at), []).extend(PFN[nm])
    if -1 in PFAT: SP.append(PFAT[-1])
    if -3 in PFAT:
        l_ = list(SP); x_ = PFAT[-3]; SP.clear(); SP.extend(l_[:OPT["pfk"]] + [x_[k:k+2] for k in range(0, len(x_), 2)] + l_[OPT["pfk"]:])
    if -2 in PFAT: SP.appendleft(PFAT[-2])
    nsp = [0]
    def sp(n=1, force=False):
        for _ in range(n):
            if SP and (force or nsp[0] < OPT["npre"]): E(SP.popleft()); nsp[0] += 1
    SUM, SQ = 50, 54
    for i in range(8):
        for p in range(2):
            E(W("vm", ("x", p, i)))
            r = RAW + 32*p + 4*i; u = B2 + 32*p + 4*i; m = SUM + 2*p; q = SQ + 2*p
            for j in range(4): E(f"v_lshlrev_b32 v{u+j}, 16, v{r+j}", f"v_and_b32 v{r+j}, s{sC0}, v{r+j}")
            for k, b_ in enumerate((u, r, u+2, r+2)):
                if i == 0 and k == 0: E(f"v_pk_add_f32 {vr(m,2)}, {vr(u,2)}, {vr(r,2)}", f"v_pk_mul_f32 {vr(q,2)}, {vr(u,2)}, {vr(u,2)}")
                elif i == 0 and k == 1: E(f"v_pk_fma_f32 {vr(q,2)}, {vr(b_,2)}, {vr(b_,2)}, {vr(q,2)}")
                else: E(f"v_pk_add_f32 {vr(m,2)}, {vr(m,2)}, {vr(b_,2)}", f"v_pk_fma_f32 {vr(q,2)}, {vr(b_,2)}, {vr(b_,2)}, {vr(q,2)}")
            if 2*i + p >= OPT["sp0"]: sp(OPT["spn"])
    stamp(2)
    E(W("vm", "clr"), f"buffer_store_dword v{vL+1}, v{vL}, {sr(sDBG,4)}, 0 offen sc1")
    R4 = [SUM, SUM+2, SQ, SQ+2]
    for v in R4: E(f"v_add_f32 v{v}, v{v}, v{v+1}")
    for md in ("quad_perm:[1,0,3,2]", "quad_perm:[2,3,0,1]", "row_half_mirror"):
        for v in R4: E(f"v_add_f32_dpp v{v}, v{v}, v{v} {md} row_mask:0xf bank_mask:0xf")
    def both(fmt): E([fmt.format(m=SUM+2*p, q=SQ+2*p) for p in range(2)])
    both(f"v_mul_f32 v{{m}}, {f32(1/512)}, v{{m}}"); both(f"v_mul_f32 v{{q}}, {f32(1/512)}, v{{q}}")
    both("v_fma_f32 v{q}, -v{m}, v{m}, v{q}"); both("v_max_f32 v{q}, 0, v{q}")
    both("v_cvt_pk_bf16_f32 v{q}, v{q}, v{m}")
    both(f"v_and_b32 v{{m}}, s{sC0}, v{{q}}"); both("v_lshlrev_b32 v{q}, 16, v{q}")
    both(f"v_add_f32 v{{q}}, {f32(1e-5)}, v{{q}}"); both("v_cvt_pk_bf16_f32 v{q}, v{q}, v{q}"); both("v_lshlrev_b32 v{q}, 16, v{q}")
    both("v_sqrt_f32 v{q}, v{q}"); E("s_nop 0"); both("v_cvt_pk_bf16_f32 v{q}, v{q}, v{q}"); both("v_lshlrev_b32 v{q}, 16, v{q}")
    both("v_rcp_f32 v{q}, v{q}"); E("s_nop 0"); both(f"v_mul_f32 v{{q}}, {f32(CS)}, v{{q}}"); both("v_mul_f32 v{m}, v{m}, v{q}")
    stamp(2)
    for i in range(8):
        for p in range(2):
            r = RAW + 32*p + 4*i; u = B2 + 32*p + 4*i
            for b_ in (u, r, u+2, r+2):
                E(f"v_pk_fma_f32 {vr(b_,2)}, {vr(b_,2)}, {vr(SQ+2*p,2)}, {vr(SUM+2*p,2)} op_sel_hi:[1,0,0] neg_lo:[0,0,1] neg_hi:[0,0,1]")
            for j in range(4): E(f"v_cvt_pk_bf16_f32 v{r+j}, v{u+j}, v{r+j}")
            E(f"ds_write_b128 v{wa}, {vr(r,4)} offset:{i*8192+p*128}")
    stamp(2)
    sp(99, force=True)
    E(PRE[0].areads())
    E("s_waitcnt lgkmcnt(8)", "s_barrier")
    if OPT["stamps"] < 4: stamp(0)
    E(PRE[0].breads())
    BG.extend(LATER)
    def kreads(t): return [T(f"ds_read_b128 {ar(aKF+8*s_+4*hk,4)}, v{vKR+s_} offset:{(t&3)*8192+hk*4096}", ("kf", t)) for s_ in range(4) for hk in range(2)]
    def vreads(t): return [T(f"ds_read_b64_tr_b16 {ar(aVF+4*T8+2*t_,2)}, v{vTV+(T8&3)} offset:{(t&3)*8192+(T8>>2)*4096+t_*2048}", ("vf", t))
                           for T8 in range(8) for t_ in range(2)]
    def qk(x, dst, zero=False):
        return [mfma("v", dst+8*rl+4*hk, "a", aKF+8*s_+4*hk, "v", QFr(2*x+rl, s_), *(((0,) if zero else (NEGM+4*(2*x+rl), "v")) if s_ == 0 else ()))
                for s_ in range(4) for hk in range(2) for rl in ((0, 1) if (hk == 0 or not OPT["ao"]) else (1, 0))]
    def pv(x, p, zero=False):
        return [mfma("v", LQ[2*x+rl], "v", ONES, "v", p+4*rl, 0 if zero else None) for rl in range(2)] + \
               [mfma("a", aO+64*x+16*(T8>>1)+8*rl+4*(T8&1), "a", aVF+4*T8, "v", p+4*rl, 0 if zero else None) for T8 in range(8) for rl in ((0, 1) if (T8 % 2 == 1 or not OPT["ao"]) else (1, 0))]
    def sm_plan(x, s, p, n=32):
        pl = [[] for _ in range(n)]
        for j in range(16): pl[max(0, 2*j-1) if n == 32 else 2*j+1].append(f"v_exp_f32 v{s+j}, v{s+j}")
        for k in range(8): pl[min(31, 4*k+4) if n == 32 else 4*k+6].append(f"v_cvt_pk_bf16_f32 v{p+k}, v{s+2*k}, v{s+2*k+1}")
        return pl
    vSTX = (vST, vRD, vTQ, vTQ + 1)
    def pst(reg, typ, ps, p, tag=None): return T(f"buffer_store_dwordx4 {vr(reg,4)}, v{vSTX[2*typ+ps]}, {sr(sP,4)}, s{stab(p)} offen{'' if (OPT['wb'] and tag == ('sst', 0)) else ' sc1'}", tag)
    def pld(dst, typ, ps, p, tag): return T(f"buffer_load_dwordx4 {dst}, v{vSTX[2*typ+ps]}, {sr(sPR,4)}, {'0' if p < 4 else 's%d' % sROT} offen offset:{(p&3)*1024} sc1", tag)
    def pack(kind, src, tmp):
        o = []; b = tmp if kind == "a" else src
        if kind == "a":
            for r in range(8): o.append(f"v_accvgpr_read_b32 v{b+r}, a{src+r}")
        return o + [f"v_cvt_pk_bf16_f32 v{b+j}, v{b+2*j}, v{b+2*j+1}" for j in range(4)]
    NP = len(PRE)
    KV = deque([dma_v(0) + dma_k(2), dma_v(1) + dma_k(3), dma_v(2)])
    vHW = vD1
    PZ = vDQ
    POI = [pst(PZ, 0, q // 7, 1 + q % 7) for q in range(14)]
    FTB = lambda n: B5 + 16
    STQ = deque(POI[:5])
    for n in range(8): STQ.extend([pst(B2 + 4*n, 1, 0, n), POI[5 + n]])
    STQ.extend(POI[13:])
    FSQ = deque(pst(FTB(n), 1, 1, n) for n in range(8))
    WA8 = vDQ
    def wa8(sh):
        o = [f"s_and_b32 s{sT0}, s{sG}, 3", f"s_lshl_b32 s{sT0}, s{sT0}, 10", f"s_lshl_b32 s{sT1}, s{sW}, {sh}", f"s_add_u32 s{sT0}, s{sT0}, s{sT1}"]
        for j in range(2):
            o.append(f"v_add_u32 v{WA8+4*j}, s{sT0}, v{vB+j}")
            for rg in range(1, 4): o.append(f"v_xor_b32 v{WA8+4*j+rg}, {rg*1024}, v{WA8+4*j}")
        return o
    nq = [OPT["ini"]]
    HP = lambda n: B4 + 4*n
    for i, st in enumerate(PRE):
        post = []
        if nq[0] < NP: d = PRE[nq[0]].dma(); nq[0] += 1
        else: d = KV.popleft() if KV else []
        if nq[0] <= i + NS and nq[0] < NP: post = PRE[nq[0]].dma(); nq[0] += 1
        if OPT["pfpos"] == 2 and i == OPT["pf2"]: post = PFS[1] + PFS[2] + PFS[3]
        if OPT["pfpos"] == 2 and i == OPT["pf1"]: post = PFS[0]
        post = post + PFAT.get(i, [])
        if i == 16:
            flush(); E("s_nop 1")
            post = post + ["s_barrier"]
        if i == 17:
            for j in range(32): BG.append(f"v_cvt_pk_bf16_f32 v{B0+j}, v{B0+2*j}, v{B0+2*j+1}")
            BG.extend([f"s_and_b32 s{sT0}, s{sG}, 1", f"s_lshl_b32 s{sT1}, s{sT0}, 12", f"s_lshl_b32 s{sT0}, s{sT0}, 6"])
            for j in range(2): BG.extend([f"v_xor_b32 v{vBC+j}, s{sT0}, v{vB+j}", f"v_add_u32 v{vBC+j}, s{sT1}, v{vBC+j}"])
            BG.extend([f"s_lshl_b32 s{sT0}, s{sW}, 8", f"s_lshl_b32 s{sT1}, s{sG}, 2", f"s_add_u32 s{sT0}, s{sT0}, s{sT1}",
                       f"v_min_u32 v{vPUB}, 1, v{l}", f"v_lshlrev_b32 v{vPUB}, 30, v{vPUB}", f"v_add_u32 v{vPUB}, s{sT0}, v{vPUB}",
                       f"s_lshl_b32 s{sT0}, s{sW}, 8",
                       f"v_and_b32 v{vPOLL}, 7, v{l}", f"v_lshlrev_b32 v{vPOLL}, 2, v{vPOLL}", f"v_add_u32 v{vPOLL}, s{sT0}, v{vPOLL}",
                       f"v_add_u32 v{vRD}, 8192, v{vST}"])
            for j in range(4): BG.append(f"v_mov_b32 v{ONES+j}, 0x3f803f80")
            BG.extend(LATER2)
        if i == 32: flush()
        if i == 33:
            BG.extend([f"s_lshr_b32 s{sT0}, s{sG}, 2", f"s_lshl_b32 s{sT0}, s{sT0}, 6"])
            for j in range(4): BG.append(f"v_xor_b32 v{vTF+j}, s{sT0}, v{vTF+j}")
            for n in range(8):
                b = ACCH + 8*n
                for r in range(8): BG.append(f"v_max_f32 v{b+r}, 0, v{b+r}")
                for r in range(8): BG.append(f"v_mul_f32 v{b+r}, v{b+r}, v{b+r}")
                for j in range(4): BG.append(f"v_cvt_pk_bf16_f32 v{HP(n)+j}, v{b+2*j}, v{b+2*j+1}")
        if i == 36: post = dma_k(0)
        if i == 38: post = dma_k(1)
        if i == 44: post = [W("vm", ("K", 1)), "s_barrier"]
        if i == 45:
            for x in reversed(kreads(0)): BG.appendleft(x)
        if i == 54: post = ["s_barrier"]
        if i == 56:
            for n in range(8):
                b_ = (B2, B4)[n >> 2] + 8*(n & 3)
                for j in range(4): BG.append(f"v_cvt_pk_bf16_f32 v{B2+4*n+j}, v{b_+2*j}, v{b_+2*j+1}")
        if i == 43: BG.extend(wa8(13))
        if i == 49:
            for x in reversed([f"v_mov_b32 v{PZ+j}, {SENT:#x}" for j in range(4)] + [f"v_add_u32 v{vTQ}, 65536, v{vST}", f"v_add_u32 v{vTQ+1}, 65536, v{vRD}", f"s_mov_b32 s{sROT}, 4096"] +
                              [y for p in range(8) for y in (f"s_xor_b32 s{stab(p)}, s{sG}, {p}", f"s_mul_i32 s{stab(p)}, s{stab(p)}, {PSTR}", f"s_add_u32 s{stab(p)}, s{stab(p)}, {p*1024}")]):
                BG.appendleft(x)
        if i >= 57: post = post + [STQ.popleft()]
        step(st, PRE[48].areads() if i == 47 else PRE[i + 1].reads() if i + 1 < NP else [], d, post=post, gb=(OPT["f2b"] if 48 <= i < 54 else None))
        if i in (15, 47): stamp()
        if i in (3, 7, 11, 15, 19, 23, 27, 31, 35, 39, 43): stamp(3)
        if i == 47:
            flush()
            E(W("lg", ("kf", 0)))
            q0, q1 = qk(0, S0, True), qk(1, S1[0], True)
            cv = [f"v_cvt_pk_bf16_f32 v{B1+j}, v{B1+2*j}, v{B1+2*j+1}" for j in range(32)]
            hw = [T(f"ds_write_b128 v{WA8+n}, {vr(HP(n),4)} offset:{(n>>2)*4096}", "hw") for n in range(8)]
            pl = [[] for _ in range(32)]
            for g in range(2, 13): pl[g] = cv[3*(g-2):3*(g-1)]
            h0 = OPT["hw0"]
            for n in range(8): pl[h0 + 2*n].append(hw[n])
            pl[min(31, h0 + 18)] += [W("lg", "hw"), "s_barrier"] + PRE[48].breads()
            gaps(q0[:8] + q1[:8] + q0[8:] + q1[8:], pl)
            BG.extend(kreads(1))
            for rg in range(4):
                s = (S0, S1[0])[rg >> 1] + 8*(rg & 1); m = vT
                BG.extend([f"v_max3_f32 v{m}, v{s}, v{s+1}, v{s+2}", f"v_max3_f32 v{m}, v{m}, v{s+3}, v{s+4}", f"v_max3_f32 v{m}, v{m}, v{s+5}, v{s+6}",
                           f"v_max_f32 v{m}, v{m}, v{s+7}"] + xred("v_max_f32", m, vT+1))
                BG.extend([[f"s_cmp_lg_u32 s{sFLAG}, 0", "s_cselect_b64 vcc, -1, 0"], "s_nop 0", f"v_cndmask_b32 v{m}, v{m}, v{vM+rg}, vcc"])
                for r in range(4): BG.append(f"v_sub_f32 v{NEGM+4*rg+r}, 0, v{m}")
                for r in range(8): BG.append(f"v_sub_f32 v{s+r}, v{s+r}, v{m}")
            sp0_ = [y for g in sm_plan(0, S0, P0[0]) for y in g]
            BG.extend(sp0_[:-1] + ["s_nop 0"] + sp0_[-1:])
    flush()
    stamp()
    E(W("vm", ("K", 2)), "s_waitcnt lgkmcnt(0)")
    def att_iter(i, x1=(), x2=()):
        if i == 0: E("s_barrier")
        pl = sm_plan(1, S1[i&1], P1)
        x1 = list(x1)
        for g, x in zip((2, 2, 4, 6, 6, 8, 10, 10, 12, 14, 14, 16, 18, 18, 20, 22), vreads(i)): pl[g].append(x)
        if x1:
            pl[22] += x1[:1]; pl[24] += x1[1:2]
            for g, x in zip((26, 28, 30, 31), x1[2:]): pl[g].append(x)
        elif STQ: pl[26].append(STQ.popleft())
        gaps(qk(0, S0) + qk(1, S1[(i+1)&1]), pl)
        pl = sm_plan(0, S0, P0[(i+1)&1], 36)
        pl[1] = [W("lg", ("vf", i))] + pl[1]
        if i + 2 < 16:
            for g, x in zip((2, 2, 4, 4, 6, 8, 8, 10), kreads(i + 2)): pl[g].append(x)
        if i == 14:
            for g, x in zip((2, 2, 4, 4, 6, 8, 8, 10, 12, 12, 14, 16, 16, 18, 20, 20, 22, 24), POST[0].areads() + POST[1].areads()): pl[g].append(x)
        dv = dma_v(i + 3) if i + 3 < 16 else []
        dk = dma_k(i + 5) if i + 5 < 16 else []
        pl[0] += list(x2)
        if STQ: pl[12].append(STQ.popleft())
        if dv: pl[14] += dv[:1]; pl[14] += dv[1:2]; pl[16] += dv[2:3]; pl[20] += dv[3:]
        if dk: pl[22] += dk[:2]; pl[24] += dk[2:3]; pl[28] += dk[3:]
        pl[32] += [W2(W("vm", ("K", i+3)), W("vm", ("V", i+1)), W("lg", ("kf", i+2)))]
        pl[33] = ["s_barrier"] + pl[33]
        mf = pv(0, P0[i&1], zero=(i == 0)) + pv(1, P1, zero=(i == 0))
        gaps(mf[:35], pl[:35])
        flush()
        if FSQ: pl[35].append(FSQ.popleft())
        elif STQ: pl[35].append(STQ.popleft())
        gaps(mf[35:], pl[35:])
    VAL = vT + 3; GATE = vT + 4; POL = vT + 5
    poll = f"buffer_load_dword v{POL}, v{vPOLL}, {sr(sFL,4)}, 0 offen sc1"
    pub = f"buffer_store_dword v{VAL}, v{vPUB}, {sr(sFL,4)}, 0 offen sc1"
    for i in range(15):
        x1 = []; x2 = []
        if i == 0:
            x1 = dma_k(4)
            BG.extend([f"v_lshlrev_b32 v{vT}, 6, v0", f"v_mov_b32 v{vT+1}, 0", f"v_mov_b32 v{VAL}, 1"])
        if i == OPT["wopf"] and not OPT["wo4"]: BG.append([f"s_lshl_b32 s{sT1}, s{sRB}, 14", f"buffer_load_dword v{PFD}, v{vT}, {sr(sWO,4)}, s{sT1} offen"])
        if i == OPT["wop2"]: BG.extend([f"s_xor_b32 s{sT1}, s{sRB}, 16", [f"s_lshl_b32 s{sT1}, s{sT1}, 14", f"buffer_load_dword v{PFD}, v{vT}, {sr(sWO,4)}, s{sT1} offen"]])
        if i < 8: BG.extend(pack("a", 192 + 8*i, FTB(i)))
        gl = f"buffer_load_dword v{GATE}, v{vT+1}, {sr(sDBG,4)}, 0 offen sc1"
        if i == 2: BG.append(T(gl, "gate"))
        if i == 9: BG.extend([W("vm", "gate")] + check_ready("gate", GATE, gl, 1))
        if i == 10: x2 = ["s_waitcnt vmcnt(0)", pub]
        if i == 12: x2 = [T(poll, "fpoll")]
        FLD = [pld(ar(aFL+4*n,4), 1, n >> 3, n & 7, ("fl", n)) for n in range(16)]
        nf1 = 6
        if OPT["fchk"] == 14:
            if i == 14: BG.extend([W("vm", "fpoll")] + check_ready("f", POL, poll, 1) + FLD[:6])
        else:
            nf1 = 16
            if i == 13: BG.extend([W("vm", "fpoll")] + check_ready("f", POL, poll, 1) + FLD[:9])
            if i == 14: BG.extend(FLD[9:])
        wol = [int(x) for x in OPT["wol"].split("_")]
        if i in wol: x1 = POST[wol.index(i)].dma()
        if i >= 3: stamp(4)
        if i < 12: stamp(6)
        if i == 10: assert not STQ and not FSQ, (len(STQ), len(FSQ))
        att_iter(i, x1=x1, x2=x2)
    i = 15
    E(vreads(i))
    WA8 = NEGM
    E(wa8(14))
    pl32 = sm_plan(1, S1[i&1], P1)
    E(pl32[:2])
    mf = pv(0, P0[i&1])
    gaps(mf[:2], [pl32[2] + pl32[3], pl32[4] + pl32[5]])
    E("s_waitcnt lgkmcnt(0)")
    pl = [pl32[6+2*g] + pl32[7+2*g] if g < 13 else [] for g in range(16)]
    pl[0] = ["s_barrier"] + pl[0]
    d6 = POST[6].dma()
    pl[13] = d6[:3]; pl[14] = d6[3:4]; pl[15] = d6[4:5]
    gaps(mf[2:], pl)
    OT = B2
    pl = [d6[5:]] + ([[x] for x in FLD[nf1:]] or [[]] * 6) + [[f"v_rcp_f32 v{LR+2*rg}, v{LQ[rg]}"] for rg in range(4)]
    gaps(pv(1, P1), pl)
    E(f"v_add_f32 v{vT+1}, v{LQ[0]}, v{LQ[1]}", f"v_add_f32 v{vT+2}, v{LQ[2]}, v{LQ[3]}", f"s_mov_b32 s{sT1}, {f32(2.0**OPT['thr'])}", f"v_add_f32 v{vT+1}, v{vT+1}, v{vT+2}",
      f"v_cmp_nge_f32 vcc, s{sT1}, v{vT+1}", f"v_and_b32 v{vT+2}, 3, v{l}", f"v_mul_u32_u24 v{vT+2}, {NS*4096}, v{vT+2}",
      "s_cmp_lg_u64 vcc, 0", f"s_cselect_b32 s{sT1}, 1, 0", f"v_mov_b32 v{vT}, s{sT1}",
      f"s_lshl_b32 s{sT1}, s{sW}, 2", f"s_add_u32 s{sT1}, s{sT1}, {R_BASE}", f"v_add_u32 v{vT+2}, s{sT1}, v{vT+2}", f"v_mov_b32 v{vT+1}, s{sRING}",
      f"ds_write_b32 v{vT+2}, v{vT} offset:{1*4096}")
    E(POST[2].areads(), POST[3].areads())
    stamp()
    for n in range(16):
        x, T32, rl = n >> 3, (n >> 1) & 3, n & 1
        b = OT + 8*(n & 7); rg = 2*x + rl
        for r in range(8): E(f"v_accvgpr_read_b32 v{b+r}, a{aO+8*n+r}")
        for j in range(4): E(f"v_pk_mul_f32 {vr(b+2*j,2)}, {vr(b+2*j,2)}, {vr(LR+2*rg,2)} op_sel_hi:[1,0]")
        for j in range(4): E(f"v_cvt_pk_bf16_f32 v{b+j}, v{b+2*j}, v{b+2*j+1}")
        E(f"ds_write_b128 v{WA8+4*(T32&1)+rg}, {vr(b,4)} offset:{T32*4096}")
    E(W("lg", POST[3].tag), POST[8].dma(), POST[9].dma())
    E("s_waitcnt lgkmcnt(0)", "s_barrier")
    E(T(f"ds_read_b128 {vr(56,4)}, v{vT+1} offset:{1*4096}", "flg"), POST[0].breads())
    E(W("lg", "flg"))
    E(f"v_or3_b32 v{vT}, v56, v57, v58", f"v_or_b32 v{vT}, v{vT}, v59", "s_nop 0", f"v_readfirstlane_b32 s{sT0}, v{vT}",
      "s_nop 0", f"s_andn2_b32 s{sT0}, s{sT0}, s{sFLAG}", "s_cbranch_scc1 L_slow")
    E(POST[7].dma())
    stamp(); stamp(5)
    GV, XO, XR, BRW, TM = 112, vT, 56, 40, 8
    sacc = lambda ps, n: ((B4, B3), (B2, B5))[ps][n >> 2] + 8*(n & 3)
    sepi = lambda ps, n: pack("v", sacc(ps, n), None) + [pst(sacc(ps, n), 0, ps, n, ("sst", ps))] if n else []
    def SLr(ps, p): return B3 + 4*(p - 1) if ps == 0 else (B4 + 4 + 4*p if p < 7 else B3 + 28)
    def sloads(ps): return [pld(vr(SLr(ps, p), 4), 0, ps, p, ("sl", ps, p)) for p in range(1, 8)]
    sst = [int(x) for x in str(OPT["sst"]).split("_")]
    def fmath(pk, part=2):
        o = []; TQ = 18
        for ps in range(2):
            G_ = GV + 8*ps
            for g in range(8):
                n = 8*ps + g
                for j in range(4): o.append(f"v_accvgpr_read_b32 v{TQ+8+j}, a{aFL+4*n+j}")
                d0 = G_ if g == 0 else TQ
                for j in range(4): o += [f"v_lshlrev_b32 v{d0+2*j}, 16, v{TQ+8+j}", f"v_and_b32 v{d0+2*j+1}, s{sC0}, v{TQ+8+j}"]
                if g and pk: o += [f"v_pk_add_f32 {vr(G_+2*j,2)}, {vr(G_+2*j,2)}, {vr(TQ+2*j,2)}" for j in range(4)]
                elif g: o += [f"v_add_f32 v{G_+j}, v{G_+j}, v{TQ+j}" for j in range(8)]
        if part == 0: return o
        if part == 1: o = []
        for ps in range(2):
            G_ = GV + 8*ps
            for j in range(4): o += [f"v_lshlrev_b32 v{TQ+2*j}, 16, v{BRW+4*ps+j}", f"v_and_b32 v{TQ+2*j+1}, s{sC0}, v{BRW+4*ps+j}"]
            for j in range(8): o.append(f"v_fma_f32 v{G_+j}, v{G_+j}, s{sT0}, v{TQ+j}")
            for j in range(8): o.append(f"v_mul_f32 v{TQ+j}, {f32(-math.log2(math.e))}, v{G_+j}")
            for j in range(8): o.append(f"v_exp_f32 v{TQ+j}, v{TQ+j}")
            for j in range(8): o.append(f"v_add_f32 v{TQ+j}, 1.0, v{TQ+j}")
            for j in range(8): o.append(f"v_rcp_f32 v{TQ+j}, v{TQ+j}")
            for j in range(8): o.append(f"v_mul_f32 v{G_+j}, v{G_+j}, v{TQ+j}")
        return o
    nd = [10]; nr = [4]; hold = [int(x) for x in str(OPT['hold2']).split('_') if x]
    for i, st in enumerate(POST[:30]):
        if i == 0:
            BG.extend([f"v_bfe_u32 v{XO+1}, v0, 4, 2", f"v_lshlrev_b32 v{XO+1}, 3, v{XO+1}", f"v_and_b32 v{TM}, 15, v0",
                       f"v_lshl_add_u32 v{XO}, v{TM}, 10, v{XO+1}", f"s_mov_b32 s{sT0}, {f32(1/CS**2)}"])
        if i == OPT["fldo"] and i > 1: BG.extend(FLD[6:])
        if i == (0 if OPT["fbg"] else OPT["xbl"]):
            for k in range(4):
                BG.appendleft(T(f"buffer_load_dwordx2 {vr(XR+2*k,2)}, v{XO}, {sr(sX,4)}, s{sVOFF} offen offset:{(k>>1)*128+(k&1)*32}", "xb"))
                BG.appendleft(T(f"buffer_load_dwordx2 {vr(BRW+2*k,2)}, v{XO+1}, {sr(sB2,4)}, 0 offen offset:{(k>>1)*128+(k&1)*32}", "xb"))
        if i == OPT["fs0"]: BG.extend([W("vm", ("fl", 15))] + fmath(False, 0))
        e = [x for n in range(8) if sst[n * len(sst) // 8] == i for x in sepi(0, n)]
        for x in reversed(e): BG.appendleft(x)
        if i == OPT["lda"]:
            for x in reversed(sloads(0)): BG.appendleft(x)
        d = []
        if nd[0] < 32 and nd[0] - NS < nr[0]: d = POST[nd[0]].dma(); nd[0] += 1
        nxt = POST[i + 1].breads() + (POST[31].breads() if i == 29 else [])
        want = 32 if i == 29 else max(i + 2, nr[0] + (0 if i in hold else 1))
        while nr[0] < min(32, want):
            assert nr[0] < nd[0] - (1 if d else 0) and nr[0] <= i + 6
            nxt = nxt + POST[nr[0]].areads(); nr[0] += 1
        for x in nxt:
            if isinstance(x, T): x.tag = POST[i + 1].tag
        step(st, nxt, d, post=([W("vm", ("sst", 0)), "buffer_wbl2 sc1"] if i == OPT["wb"] and i else []))
        if i == 15: stamp()
        if i % 3 == 2: stamp(5)
    REST = list(BG); BG.clear()
    print("f math left for the tail:", len(REST), file=sys.stderr)
    flush()
    stamp()
    stamp(7)
    E(W("lg", POST[30].tag))
    order = [1, 2, 3, 4, 5, 6, 7, 0]
    for k, n in enumerate(order):
        if k == 1: BG.append("s_nop 1")
        if k >= 2: BG.extend(sepi(1, order[k - 2]))
        gaps([POST[j].one(2*(n >> 2) + h, n & 3) for j in (30, 31) for h in range(2)], [], budget=12)
    flush()
    E(sepi(1, 7))
    stamp(); stamp(7)
    SA, ST_, XT, OP = B0, B0+16, B0+24, B0+40
    def fin():
        E(f"s_mov_b64 s[{sT2}:{sT3}], -1", f"s_mov_b32 s{sT1}, 0")
        for j in range(8): E(f"v_lshlrev_b32 v{XT+2*j}, 16, v{XR+j}", f"v_and_b32 v{XT+2*j+1}, s{sC0}, v{XR+j}")
        E("L_sum:")
        for ps in range(2):
            A_ = SA + 8*ps
            for p in range(1, 8):
                E(W("vm", ("sl", ps, p)))
                for j in range(4): E(f"v_lshlrev_b32 v{ST_+2*j}, 16, v{SLr(ps,p)+j}", f"v_and_b32 v{ST_+2*j+1}, s{sC0}, v{SLr(ps,p)+j}")
                for j in range(4): E(f"v_pk_add_f32 {vr(A_+2*j,2)}, {vr((sacc(ps,0) if p == 1 else A_)+2*j,2)}, {vr(ST_+2*j,2)}")
            E(f"v_pk_add_f32 {vr(ST_,2)}, {vr(A_,2)}, {vr(A_+2,2)}", f"v_pk_add_f32 {vr(ST_+2,2)}, {vr(A_+4,2)}, {vr(A_+6,2)}",
              f"v_pk_add_f32 {vr(ST_,2)}, {vr(ST_,2)}, {vr(ST_+2,2)}", f"v_cmp_u_f32 vcc, v{ST_}, v{ST_+1}")
            for j in range(4): E(f"v_pk_fma_f32 {vr(A_+2*j,2)}, {vr(A_+2*j,2)}, {vr(GV+8*ps+2*j,2)}, {vr(XT+8*ps+2*j,2)}")
            E(f"s_and_b64 vcc, vcc, s[{sT2}:{sT3}]", f"s_cbranch_scc1 L_miss{ps}")
            for j in range(4): E(f"v_cvt_pk_bf16_f32 v{OP+4*ps+j}, v{A_+2*j}, v{A_+2*j+1}")
            for k in range(2): E(f"buffer_store_dwordx2 {vr(OP+4*ps+2*k,2)}, v{XO}, {sr(sOUT,4)}, s{sVOFF} offen offset:{ps*128+k*32} {OPT['outsc']}")
            if ps == 0: stamp(); E(f"s_mov_b32 s{sT4}, 0xffff", f"s_cmp_lg_u32 s{sT1}, 0", "s_cbranch_scc1 L_missl", "L_sum1:")
    assert not any(ismem(x) for x in REST)
    REST = REST + [W("vm", "xb")] + (fmath(True, 1) if OPT["fs0"] < 30 else fmath(True))
    cut = min(len(REST), OPT["bdel"])
    if OPT["lda"] >= 30:
        E(REST[:cut//2], sloads(0)); stamp(7); E(REST[cut//2:cut], sloads(1)); stamp(7); E(REST[cut:]); stamp(7)
        if OPT["stamps"] == 7:
            E(W("vm", ("sst", 1))); stamp(7); E(W("vm", ("sl", 0, 1))); stamp(7); E(W("vm", ("sl", 0, 7))); stamp(7); E(W("vm", ("sl", 1, 7))); stamp(7)
    else: E(REST[:cut], sloads(1), REST[cut:])
    fin()
    stamp()
    if OPT["stamps"]:
        E("s_waitcnt vmcnt(0)")
        if OPT["stamps"] != 7: stamp(0)
        E(f"s_lshl_b32 s{sT0}, s2, 2", f"s_add_u32 s{sT0}, s{sT0}, s{sW}", f"s_lshl_b32 s{sT0}, s{sT0}, 6", f"s_add_u32 s{sT0}, s{sT0}, {64<<20}")
        srd(sX, 58, sT0, ("imm", 64))
        E(f"v_mov_b32 v{vT}, 0", "s_memrealtime s[70:71]", "s_waitcnt lgkmcnt(0)", f"s_mov_b32 s87, s70")
        for i in list(range(nstamp[0])) + [14, 15]:
            E(f"v_mov_b32 v{vT+1}, s{sST+i}", f"buffer_store_dword v{vT+1}, v{vT}, {sr(sX,4)}, 0 offen offset:{4*i}")
    if OPT["hold"] >= 0:
        E(f"s_cmp_lg_u32 s2, {OPT['hwg']}", "s_cbranch_scc1 L_main_end", "s_mov_b32 s73, 3000", "L_hold:", "s_memrealtime s[70:71]", "s_waitcnt lgkmcnt(0)",
          "s_sub_u32 s70, s70, s72", "s_sub_u32 s73, s73, 1", "s_cbranch_scc1 L_main_end", "s_cmp_lt_u32 s70, 10000", "s_cbranch_scc1 L_hold")
    E("L_main_end:", "s_endpgm")
    for name, vreg, load, val in SPINS:
        E(f"L_spin_{name}:", f"s_mov_b32 s{sCNT}, {OPT['spin']}", f"L_spinl_{name}:", load, "s_waitcnt vmcnt(0)",
          f"v_cmp_le_u32 vcc, {val}, v{vreg}", f"s_sub_u32 s{sCNT}, s{sCNT}, 1", f"s_cbranch_scc1 L_ok_{name}",
          "s_cmp_eq_u64 vcc, -1", f"s_cbranch_scc0 L_spinl_{name}", f"s_branch L_ok_{name}")
    E("L_miss0:", f"s_mov_b32 s{sT1}, 0xfefe", f"s_mov_b32 s{sT4}, 0xff", "s_branch L_miss", "L_miss1:", f"s_mov_b32 s{sT1}, 0xfe00",
      "L_miss:", f"s_mov_b32 s{sT0}, {SENT:#x}", f"s_mov_b32 s{sCNT}, {OPT['spin']}", "L_missl:", "s_waitcnt vmcnt(0)")
    if OPT["slp"]: E(f"s_sleep {OPT['slp']}")
    for ps in range(2):
        for g in range(1, 8):
            r = SLr(ps, g); bit = 8*ps + g
            E(f"s_bitcmp1_b32 s{sT1}, {bit}", f"s_cbranch_scc0 L_have{bit}",
              f"v_cmp_eq_u32 vcc, s{sT0}, v{r}", f"v_cmp_eq_u32 s[{sT2}:{sT3}], s{sT0}, v{r+1}", f"v_cmp_eq_u32 s[70:71], s{sT0}, v{r+2}", f"s_or_b64 s[{sT2}:{sT3}], vcc, s[{sT2}:{sT3}]",
              f"v_cmp_eq_u32 vcc, s{sT0}, v{r+3}", f"s_or_b64 s[70:71], s[70:71], s[{sT2}:{sT3}]", f"s_bitset0_b32 s{sT1}, {bit}",
              f"s_or_b64 s[70:71], s[70:71], vcc", f"s_cbranch_scc0 L_have{bit}", f"s_bitset1_b32 s{sT1}, {bit}", sloads(ps)[g-1], f"L_have{bit}:")
    E(f"s_sub_u32 s{sCNT}, s{sCNT}, 1", "s_cbranch_scc0 L_missc", "s_waitcnt vmcnt(0)", f"s_mov_b32 s{sT1}, 0", "L_missc:",
      f"s_and_b32 s70, s{sT1}, s{sT4}", "s_cbranch_scc1 L_missl",
      f"s_mov_b64 s[{sT2}:{sT3}], 0", f"s_cmp_eq_u32 s{sT4}, 0xff", "s_cbranch_scc1 L_sum", "s_branch L_sum1")
    E("L_slow:")
    E("s_waitcnt vmcnt(0) lgkmcnt(0)", "s_barrier")
    E(f"s_mov_b32 s{sKOFF}, 0", f"s_mov_b32 s{sCNT}, 16", [f"v_mov_b32 v{vM+j}, 0xff800000" for j in range(4)])
    E("L_slow_loop:")
    dk = dma_k(0); E(dk[0], "s_nop 0", dk[2:])
    E("s_waitcnt vmcnt(0)", "s_barrier")
    E(kreads(0))
    E("s_waitcnt lgkmcnt(0)", "s_barrier")
    E(qk(0, S0, True), qk(1, S1[0], True))
    E("s_nop 7", "s_nop 7", f"s_add_u32 s{sKOFF}, s{sKOFF}, 8192")
    for rg in range(4):
        s = S0 + 8*rg
        for j in range(0, 8, 2): E(f"v_max3_f32 v{vM+rg}, v{vM+rg}, v{s+j}, v{s+j+1}")
    E(f"s_sub_u32 s{sCNT}, s{sCNT}, 1", f"s_cmp_lg_u32 s{sCNT}, 0", "s_cbranch_scc1 L_slow_loop")
    for rg in range(4): E(xred("v_max_f32", vM+rg, vT))
    E(f"s_mov_b32 s{sFLAG}, 1", "s_branch L_restart", "L_code_end:")

K = NAME + "_kernel"
hdr = open("cdna_kernels/" + NAME + ".s.ref").read().split("; Override launch")[0]
out = [hdr.rstrip()]
out.append("; @launch grid=(256,1,1) block=(256,1,1) lds=163840")
out.append('.amdgcn_target "amdgcn-amd-amdhsa--gfx950"')
out.append(".text")
main_kernel(K)
if OPT["stubs"]:
    import subprocess, tempfile, os, re
    tmp = tempfile.mkdtemp()
    open(tmp + "/a.s", "w").write("\n".join(out + L + [f"L_pg{i}:" for i in range(4)] + ["s_endpgm"]) + "\n")
    subprocess.run(["clang", "-x", "assembler", "-target", "amdgcn-amd-amdhsa", "-mcpu=gfx950", "-c", tmp + "/a.s", "-o", tmp + "/a.o"], check=True)
    dis = subprocess.run(["llvm-objdump", "-d", "--mcpu=gfx950", tmp + "/a.o"], capture_output=True, text=True).stdout
    addrs = [int(m.group(1), 16) for m in re.finditer(r"// ([0-9A-F]{12}):", dis)]
    idx = [i for i, x in enumerate(L) if x.startswith("    ")]
    assert len(addrs) == len(idx) + 1, (len(addrs), len(idx))
    end = L.index("L_main_end:")
    pos = []; page = OPT["pg0"]
    for a_, i in zip(addrs, idx):
        if i >= end: break
        if a_ + 4*len(pos) >= page * 4096 + OPT["pgo"]: pos.append(i); page += 1
    n = len(pos)
    for k in reversed(range(n)):
        L[pos[k]:pos[k]] = [f"L_pg{k}:", f"    s_cbranch_execz {'L_pg%d' % (k+4) if k + 4 < n else 'L_pgret'}"]
out += L
out.append('.section .rodata,"a"')
out.append(f""".p2align 6
.amdhsa_kernel {K}
  .amdhsa_next_free_vgpr 512
  .amdhsa_next_free_sgpr 102
  .amdhsa_accum_offset 256
  .amdhsa_group_segment_fixed_size 0
  .amdhsa_kernarg_size 104
  .amdhsa_user_sgpr_count 2
  .amdhsa_user_sgpr_kernarg_segment_ptr 1
  .amdhsa_system_sgpr_workgroup_id_x 1
.end_amdhsa_kernel""")
print("\n".join(out))
```

```python
import sys, math, struct
from collections import deque
NAME = "recurrent_scan__sliding_block_cached__dense_activation_squared_relu__prompt"
OPT = dict(stamps=0, rt=0, codepf=1, budget=8, thr=40, memc=4, dmac=8, hg=2, rot=8, outsc="", skip="", spin=200000, pfpos=9, pfs="w2@-1_k@20_v@20", pf2=28,
           sst="19_20_21_22_23_24_25", dropoob=1, lda=99, npre=12, sp0=4, hw0=12, gb=8, pf1=12, stubs=1, fbg=0, bdel=60, xbl=27, kvrot=0, pg0=2, pgo=0, f2b=12, hold=-1, hwg=100, hold2="24", wol="7_8_9_11_12_13", wopf=5, fldo=1, wo4=0, slp=0, fs0=5, pad=4352, spn=1, pfk=12, fchk=13, mo=2, ao=0, ini=6, wb=0, wop2=11, o16=1)
for a in sys.argv[1:]:
    k, v = a.split("="); OPT[k] = int(v) if v.lstrip("-").isdigit() else v

def vr(b, n=1): return f"v{b}" if n == 1 else f"v[{b}:{b+n-1}]"
def ar(b, n=1): return f"a{b}" if n == 1 else f"a[{b}:{b+n-1}]"
def R(kind, b, n=1): return vr(b, n) if kind == "v" else ar(b, n)
def sr(b, n=1): return f"s{b}" if n == 1 else f"s[{b}:{b+n-1}]"
def f32(x): return "0x%08x" % struct.unpack("<I", struct.pack("<f", x))[0]

class W:
    def __init__(s, cnt, tag): s.cnt, s.tag = cnt, tag
class W2:
    def __init__(s, *ws): s.ws = ws
class T:
    def __init__(s, text, tag): s.text, s.tag = text, tag
L = []; VM = []; LG = []
def E(*xs):
    for x in xs:
        if isinstance(x, (list, tuple)): E(*x); continue
        if isinstance(x, W2):
            n0 = len(L)
            for w_ in x.ws: E(w_)
            parts = {}
            for ln in L[n0:]:
                p_ = ln.split()[1]; parts[p_[:2]] = p_
            del L[n0:]
            if parts: L.append("    s_waitcnt " + " ".join(parts[k] for k in ("vm", "lg") if k in parts))
            continue
        if isinstance(x, W):
            q = VM if x.cnt == "vm" else LG
            idx = [i for i, t in enumerate(q) if t == x.tag]
            if not idx: continue
            n = len(q) - 1 - idx[-1]
            n = min(n, 63 if x.cnt == "vm" else 15)
            del q[:len(q) - n]
            L.append(f"    s_waitcnt {'vmcnt' if x.cnt == 'vm' else 'lgkmcnt'}({n})"); continue
        tag = None
        if isinstance(x, T): x, tag = x.text, x.tag
        op = x.split()[0]
        if op.startswith("buffer_") or op.startswith("global_"): VM.append(tag)
        if op.startswith("ds_"): LG.append(tag)
        if op == "s_waitcnt":
            for w in x.split()[1:]:
                n = int(w[w.index("(")+1:-1]); q = VM if w.startswith("vm") else LG
                if len(q) > n: del q[:len(q) - n]
        L.append("    " + x if not x.endswith(":") and not x.startswith(".") else x)
def opof(x):
    if isinstance(x, (list, tuple)): return opof(x[0])
    if isinstance(x, (W, W2)): return "s_waitcnt"
    return (x.text if isinstance(x, T) else x).split()[0]
def ismem(x):
    if isinstance(x, (list, tuple)): return any(ismem(y) for y in x)
    return opof(x).split("_")[0] in ("ds", "buffer", "global")
def isvalu(x): return opof(x).startswith("v_")
def cost(x):
    if isinstance(x, (list, tuple)): return sum(cost(y) for y in x)
    if isinstance(x, (W, W2)): return 4
    t = x.text if isinstance(x, T) else x
    op = t.split()[0]
    assert not op.startswith("v_pk_"), t
    if t.endswith(":"): return 0
    if op in ("v_exp_f32", "v_rcp_f32", "v_sqrt_f32"): return 8
    if op.startswith("buffer_store_dwordx4"): return 24
    if op.startswith("buffer_") or op.startswith("global_"): return OPT["dmac"]
    if op == "s_nop": return 4 * (int(t.split()[1]) + 1)
    if op == "ds_write_b128": return 20
    return 4
BG = deque()
def gaps(mf, plan, budget=None, wr_from=0):
    budget = OPT["budget"] if budget is None else budget
    for g, m in enumerate(mf):
        E(m)
        items = plan[g] if g < len(plan) else []
        endi = [x[1:] for x in items if isinstance(x, tuple) and x[0] == "end"]
        items = [x for x in items if not (isinstance(x, tuple) and x[0] == "end")]
        c = sum(cost(x) for x in items) + sum(cost(x) for x in endi)
        E([x for x in items if not isvalu(x)])
        while True:
            while BG and ismem(BG[0]) and len(PM) < 3: PM.append(BG.popleft())
            if PM and opof(PM[0]).startswith("ds_write") and g < wr_from: break
            if PM and (c + cost(PM[0]) <= budget or c <= OPT["memc"]):
                x = PM.popleft(); E(x); c += cost(x)
            else: break
        E([x for x in items if isvalu(x)])
        while BG:
            if ismem(BG[0]):
                if len(PM) < 3: PM.append(BG.popleft()); continue
                break
            if opof(BG[0]) in ("s_waitcnt", "s_barrier") and PM: break
            if c + cost(BG[0]) > budget: break
            x = BG.popleft(); E(x); c += cost(x)
        E(endi)
PM = deque()
def flush():
    print("flush", len(PM), len(BG), "at line", len(L), file=sys.stderr)
    while PM: E(PM.popleft())
    while BG: E(BG.popleft())
def spread(items, n, per):
    return [items[g*per:(g+1)*per] for g in range(n)]


CS = 128**-0.5 * math.log2(math.e)
X_BASE, R_BASE, NS = 0, 65536, 6
KR_BASE = 32768
FLAG_OFF = 48 << 20
OOB = 0x40000000
PSTR = 131072 + OPT['pad']
SENT = 0xff81ff81
sX, sK, sV, sWQ, sWO, sW1, sW2, sB1, sP = 4, 8, 12, 16, 20, 24, 28, 32, 36
sW, sG, sRB, sRING, sOFF, sCNT, sT0, sT1, sKOFF, sVOFF, sVL, sC0, sT2, sT3, sFLAG, sT4, sROT, sJJ = range(40, 58)
sFL, sDBG, sPR, sB2, sOUT = 60, 64, 88, 92, 96
sST = 72
sTAB = 16
def stab(p): return sTAB + p if p < 4 else 24 + (p - 4)
vLANE, vTF, vB, vBC, vPUB, vPOLL, vTQ, vDO, vKR, vTV, vDK, vDV, vST, vRD, vM, vL = 1, 2, 6, 8, 10, 11, 12, 14, 18, 22, 26, 28, 30, 31, 32, 36
vDQ, vD1, PFD = 40, 44, 49
vT = 50
B0, B1, B2, B3, B4, B5 = 64, 96, 128, 160, 192, 224
S0, S1, P0, P1, NEGM = B3, (B3+16, B4), (56, B4+16), B4+24, B5
LR = B5 + 16
aO, aVF, aKF, aFL = 0, 128, 160, 192
ONES = vL
LQ = (44, B5+24, B5+28, vM)
def QFr(rg, s_): return B0 + 16*s_ + 4*rg
BIAS = B2 + 16

nstamp = [0]
hcnt = [0]
def stamp(lvl=1):
    if OPT["hold"] >= 0 and lvl in (0, 1):
        if hcnt[0] == OPT["hold"]: E("s_memrealtime s[70:71]", "s_waitcnt lgkmcnt(0)", "s_mov_b32 s72, s70")
        hcnt[0] += 1
    if not OPT["stamps"]: return
    if OPT["stamps"] != lvl and lvl != 0: return
    i = nstamp[0]; nstamp[0] += 1
    assert i < 14
    E("s_memrealtime s[70:71]" if OPT["rt"] else "s_memtime s[70:71]", "s_waitcnt lgkmcnt(0)", f"s_mov_b32 s{sST+i}, s70")

def mfma(dk, d, ak, a, bk, b, c=None, ck=None):
    cs = R(dk, d, 4) if c is None else (str(c) if ck is None else R(ck, c, 4))
    return f"v_mfma_f32_16x16x32_bf16 {R(dk,d,4)}, {R(ak,a,4)}, {R(bk,b,4)}, {cs}"
def kvoff(t):
    return f"s_xor_b32 s{sKOFF}, s{sJJ}, {t*8192}" if OPT["kvrot"] else f"s_mov_b32 s{sKOFF}, {t*8192}"
def dma_k(t):
    return [f"s_add_u32 m0, s{sVL}, {KR_BASE+(t&3)*8192}", kvoff(t),
            T(f"buffer_load_dwordx4 v{vDK}, {sr(sK,4)}, s{sKOFF} offen lds", ("K", t)),
            T(f"buffer_load_dwordx4 v{vDK+1}, {sr(sK,4)}, s{sKOFF} offen offset:1024 lds", ("K", t))]
def dma_v(t):
    return [f"s_add_u32 m0, s{sVL}, {X_BASE+(t&3)*8192}", kvoff(t),
            T(f"buffer_load_dwordx4 v{vDV}, {sr(sV,4)}, s{sKOFF} offen lds", ("V", t)),
            T(f"buffer_load_dwordx4 v{vDV+1}, {sr(sV,4)}, s{sKOFF} offen offset:1024 lds", ("V", t))]

class Stage:
    def __init__(s, idx, mat, j, ps, acc, areg, readb, vb):
        s.idx, s.mat, s.j, s.ps, s.acc, s.areg, s.readb, s.vb = idx, mat, j, ps, acc, areg, readb, vb
        s.slot = idx % NS; s.tag = (mat, ps, j); s.breg = ("a", 16*j)
    def dma(s):
        srd_, vd, stride = {"w1": (sW1, vD1, 3584), "wq": (sWQ, vDQ, 8192), "w2": (sW2, vDO, 1024), "wo": (sWO, vDO, 1024)}[s.mat]
        o = [f"s_add_u32 m0, s{sRING}, {s.slot*4096}", f"s_mov_b32 s{sOFF}, {s.j*32*stride + s.ps*128}"]
        if OPT["rot"] and s.mat == "wq":
            o[1] = [f"s_add_u32 s{sOFF}, s{sROT}, {s.j*32*8192 + s.ps*128}", f"s_and_b32 s{sOFF}, s{sOFF}, {512*8192-1}"]
        if OPT["rot"] and s.mat == "w1":
            o[1] = [f"s_add_u32 s{sOFF}, s{sROT}, {s.j*32*8192}", f"s_bfe_u32 s{sOFF}, s{sOFF}, {(9<<16)|13}", f"s_mul_i32 s{sOFF}, s{sOFF}, 3584"]
        return o + [T(f"buffer_load_dwordx4 v{vd+p}, {sr(srd_,4)}, s{sOFF} offen offset:{p*1024} lds", s.tag) for p in range(4)]
    def areads(s):
        ak, a = s.areg; o = [W("vm", s.tag)]
        for Tt in range(4):
            for t in range(2):
                va, off = (vTQ + (Tt >> 1), 8*(Tt & 1)) if s.mat == "wq" else (vTF + Tt, 0)
                o.append(T(f"ds_read_b64_tr_b16 {R(ak, a+4*Tt+2*t, 2)}, v{va} offset:{s.slot*4096+t*2048+off}", s.tag))
        return o
    def breads(s):
        if not s.readb: return []
        bk, b = s.breg
        return [T(f"ds_read_b128 {R(bk, b+4*rg, 4)}, v{s.vb+(s.j&1)} offset:{s.j*4096+rg*1024}", s.tag) for rg in range(4)]
    def reads(s): return s.breads() + s.areads()
    def one(s, Tt, rg):
        ak, a = s.areg; dk, d = s.acc(Tt, rg)
        c = () if s.j else ((BIAS + 4*Tt, "v") if s.mat == "w1" else (0,))
        return mfma(dk, d, ak, a+4*Tt, s.breg[0], s.breg[1]+4*rg, *c)
    def mf(s):
        if OPT["mo"] == 1: return [s.one(Tt, rg) for rg in range(4) for Tt in range(4)]
        if OPT["mo"] == 2: return [s.one(Tt, rg if Tt % 2 == 0 else 3 - rg) for Tt in range(4) for rg in range(4)]
        return [s.one(Tt, rg) for Tt in range(4) for rg in range(4)]
def step(st, nxt_reads, dma, post=(), gb=None):
    E(W("lg", st.tag))
    plan = [[] for _ in range(16)]
    q = list(nxt_reads)
    dg = {}
    if dma:
        dg = {0: dma[:2], 3: dma[2:3], 7: dma[3:4]}
        if len(dma) == 6: dg.update({11: dma[4:5], 15: dma[5:6]})
        elif len(dma) == 8: dg.update({9: dma[4:6], 11: dma[6:7], 15: dma[7:8]})
    per = 1 if len(q) <= (16 - len(dg) - 2) else 2
    for g in range(16):
        if g in dg: plan[g] += dg[g]
        else: plan[g] += q[:per]; q = q[per:]
    assert not q
    plan[15] += list(post)
    gaps(st.mf(), plan, budget=gb or OPT["gb"])

def srd(d, ptr, off, size):
    E(f"s_add_u32 s{d}, s{ptr}, s{off}", f"s_addc_u32 s{d+1}, s{ptr+1}, 0")
    if size[0] == "rest": E(f"s_sub_u32 s{d+2}, {size[1]}, s{off}")
    else: E(f"s_mov_b32 s{d+2}, {size[1]}")
    E(f"s_mov_b32 s{d+3}, 0x00020000")

SPINS = []
def check_ready(name, vreg, load, val):
    SPINS.append((name, vreg, load, val))
    return [f"v_cmp_le_u32 vcc, {val}, v{vreg}", ["s_cmp_eq_u64 vcc, -1", f"s_cbranch_scc0 L_spin_{name}", f"L_ok_{name}:"]]
def blk(kind, lo, hi): return lambda Tt, rg: (kind, (lo, hi)[Tt >> 1] + 8*rg + 4*(Tt & 1))
def xred(op, a, b):
    return [f"v_mov_b32 v{b}, v{a}", "s_nop 1", f"v_permlane32_swap_b32 v{a}, v{b}", "s_nop 0", f"{op} v{a}, v{a}, v{b}",
            f"v_mov_b32 v{b}, v{a}", "s_nop 1", f"v_permlane16_swap_b32 v{a}, v{b}", "s_nop 0", f"{op} v{a}, v{a}, v{b}"]

def main_kernel(K):
    PRE = []
    def add(lst, mat, n, ps, acc, aregs, readb, vb):
        for j in range(n): lst.append(Stage(len(lst), mat, j, ps, acc, aregs(len(lst)), readb, vb))
    av = lambda i: ("v", B3 + 16*(i & 1)); aa = lambda i: ("a", 112 + 16*(i & 1))
    add(PRE, "wq", 16, 0, blk("v", B0, B1), av, True, vB)
    add(PRE, "w1", 16, 0, blk("v", B4, B5), av, False, vB)
    add(PRE, "wq", 16, 1, blk("v", B1, B2), av, False, vB)
    add(PRE, "w2", 7, 0, blk("v", B2, B4), aa, True, vBC)
    add(PRE, "w2", 7, 1, blk("a", 192, 224), aa, False, vBC)
    POST = []
    SETS = [("a", aKF), ("a", aKF+16), ("a", aVF), ("a", aVF+16), ("v", B0), ("v", B0+16), ("v", B0+32)]
    ao = lambda i: SETS[i % 7]
    add(POST, "wo", 16, 0, blk("v", B4, B3), ao, True, vB)
    add(POST, "wo", 16, 1, blk("v", B2, B5), ao, False, vB)
    for st in POST:
        if st.j >= 8:
            st.readb = True
            st.breg = ("v", B2 + 16*(st.j & 1)) if st.ps == 0 else ("a", 16*(st.j - 8))

    E(".p2align 12", ".p2align 8", f".globl {K}", f".type {K},@function", f"{K}:")
    E("s_cmp_ge_u32 s2, 256", "s_cbranch_scc1 L_main_end")
    E(f"s_mov_b32 s{sFLAG}, 0", [f"v_mov_b32 v{vM+j}, 0" for j in range(4)])
    E("L_restart:")
    if OPT["stamps"]: E("s_memrealtime s[86:87]")
    stamp(0)
    E("s_load_dwordx8 s[60:67], s[0:1], 0", "s_load_dwordx2 s[68:69], s[0:1], 32", "s_load_dwordx4 s[88:91], s[0:1], 48",
      "s_load_dwordx8 s[92:99], s[0:1], 64", "s_load_dwordx2 s[58:59], s[0:1], 96")
    if OPT["codepf"]:
        E("s_getpc_b64 s[100:101]", "L_pc:", f"s_sub_u32 s100, s100, L_pc-{K}", "s_subb_u32 s101, s101, 0")
        E(f"s_bfe_u32 s{sT0}, s2, 0x30003", f"s_lshl_b32 s{sT0}, s{sT0}, 14", f"v_lshlrev_b32 v{vT}, 6, v0", f"v_add_u32 v{vT}, s{sT0}, v{vT}",
          f"v_min_u32 v{vT}, L_code_end-{K}-4, v{vT}")
        E(f"global_load_dword v{PFD}, v{vT}, s[100:101]")
    l = vLANE
    pt = 128
    row, c7, t0, t1, t2, t3, t4, cl, zr, bo = range(pt, pt + 10)
    xo = pt + 12
    wa, pw = 58, 60
    def cap(fn):
        global L
        keep = L; L = []; fn(); got = [x.strip() for x in L]; L = keep
        return got
    def srdl(d, ptr, off, size):
        c = cap(lambda: srd(d, ptr, off, size)); return [c[:2], c[2], c[3]]
    E(f"v_lshrrev_b32 v{t0}, 6, v0", f"v_and_b32 v{l}, 63, v0")
    HG = OPT["hg"]; lh = HG.bit_length() - 1
    E(f"s_and_b32 s{sG}, s2, {8//HG-1}", f"s_lshl_b32 s{sG}, s{sG}, {lh}", f"s_bfe_u32 s{sT0}, s2, {(lh<<16)|3}", f"s_or_b32 s{sG}, s{sG}, s{sT0}",
      f"s_lshr_b32 s{sJJ}, s2, {3+lh}", f"s_bfe_u32 s{sRB}, s2, {(lh<<16)|(3-lh)}", f"s_lshl_b32 s{sRB}, s{sRB}, {5-lh}", f"s_or_b32 s{sRB}, s{sRB}, s{sJJ}")
    E(f"v_readfirstlane_b32 s{sW}, v{t0}")
    E(f"v_bfe_u32 v{row}, v0, 3, 3", f"v_lshl_add_u32 v{t1}, v{t0}, 4, v{row}",
      f"v_and_b32 v{c7}, 7, v0", f"v_lshlrev_b32 v{xo}, 4, v{c7}", f"v_lshl_add_u32 v{xo}, v{t1}, 10, v{xo}", f"v_add_u32 v{xo+1}, 8192, v{xo}")
    XS = 8
    if OPT["rot"]:
        E(f"s_and_b32 s{sROT}, s{sJJ}, {OPT['rot']-1}", f"s_mul_i32 s{sROT}, s{sROT}, {8//OPT['rot']}", f"s_lshl_b32 s{XS}, s{sROT}, 7")
        for i in range(1, 8): E(f"s_add_u32 s{XS+i}, s{XS}, {128*i}", f"s_and_b32 s{XS+i}, s{XS+i}, 1023")
        E(f"s_lshl_b32 s{sROT}, s{sROT}, 19")
    E(f"s_and_b32 s{sJJ}, s{sJJ}, {OPT['kvrot']}", f"s_lshl_b32 s{sJJ}, s{sJJ}, 13")
    E(f"s_or_b32 s{sT0}, s{sG}, s{sW}", f"s_or_b32 s{sT0}, s{sT0}, s{sFLAG}", f"s_cmp_eq_u32 s{sT0}, 0", f"s_cselect_b32 s{sT2}, 0, {OOB}",
      f"v_lshlrev_b32 v{cl}, 8, v{row}", f"v_lshl_add_u32 v{cl}, v{c7}, 2, v{cl}", f"v_add_u32 v{cl}, s{sT2}, v{cl}",
      f"v_mov_b32 v{zr}, 0", f"v_mov_b32 v{vL}, s{sT2}", f"v_mov_b32 v{vL+1}, 1")
    E(f"s_mul_i32 s{sRING}, s{sW}, {NS*4096}", f"s_add_u32 s{sRING}, s{sRING}, {R_BASE}", f"s_lshl_b32 s{sVL}, s{sW}, 11", f"s_mov_b32 s{sC0}, 0xffff0000")
    E(f"v_lshrrev_b32 v{t2}, 4, v{l}", f"v_lshlrev_b32 v{t2}, 1, v{t2}", f"v_xor_b32 v{t3}, v{c7}, v{t2}", f"v_lshlrev_b32 v{t1}, 4, v{t3}",
      f"v_lshrrev_b32 v{t0}, 5, v{l}", f"v_and_b32 v{t2}, 3, v{row}", f"v_lshl_add_u32 v{t0}, v{t0}, 3, v{t2}",
      f"v_mul_u32_u24 v{t2}, 3584, v{t0}", f"s_lshl_b32 s{sT4}, s{sW}, 7", f"v_add3_u32 v{vD1}, v{t2}, v{t1}, s{sT4}",
      f"v_lshl_add_u32 v{vDV}, v{row}, 8, v{t1}",
      f"s_lshl_b32 s{sT0}, s{sW}, 8", f"v_add_u32 v{t1}, s{sT0}, v{t1}",
      f"v_lshl_add_u32 v{vDQ}, v{t0}, 13, v{t1}", f"v_lshl_add_u32 v{vDO}, v{row}, 10, v{t1}")
    if OPT["dropoob"]:
        E(f"s_and_b32 s{sT0}, s{sG}, 1", f"s_xor_b32 s{sT0}, s{sT0}, 1", f"s_mul_i32 s{sT0}, s{sT0}, 7", f"s_lshl_b32 s{sT3}, s{sW}, 1",
          f"v_lshrrev_b32 v{t3}, 2, v{t3}", f"v_or_b32 v{t3}, s{sT3}, v{t3}", f"v_cmp_eq_u32 vcc, s{sT0}, v{t3}", f"v_mov_b32 v{t2}, {OOB}", "s_nop 0",
          f"v_cndmask_b32 v{vD1}, v{vD1}, v{t2}, vcc")
    natp = lambda p, stride: (16*(p & 1) + 4*(p >> 1)) * stride - p*1024
    for p in range(1, 4): E(f"v_add_u32 v{vDQ+p}, {natp(p, 8192)}, v{vDQ}")
    E(f"v_xor_b32 v{t0}, v{row}, v{c7}", f"v_and_b32 v{t1}, 3, v{c7}", f"v_lshl_add_u32 v{t0}, v{t1}, 4, v{t0}", f"v_lshlrev_b32 v{t0}, 4, v{t0}",
      f"v_lshrrev_b32 v{t1}, 2, v{c7}", f"v_lshl_add_u32 v{t0}, v{t1}, 12, v{t0}", f"s_lshl_b32 s{sT0}, s{sW}, 10", f"v_add_u32 v{wa}, s{sT0}, v{t0}")
    E(f"s_lshl_b32 s{sT0}, s{sRB}, 16", f"s_lshl_b32 s{sT1}, s{sRB}, 12", f"s_add_u32 s{sT1}, s{sT1}, {FLAG_OFF}")
    E(f"s_lshr_b32 s{sT3}, s{sG}, 1", f"s_mul_i32 s{sT3}, s{sT3}, 896", f"s_and_b32 s{sT2}, s{sG}, 1", f"s_mul_i32 s{sT2}, s{sT2}, 384",
      f"s_add_u32 s{sT3}, s{sT3}, s{sT2}")
    E("s_waitcnt lgkmcnt(0)")
    srd(sX, 60, sT0, ("imm", 65536))
    RAW = 64; ACCH = B4
    U1 = srdl(sB1, 90, sT3, ("rest", 3584)) + srdl(sP, 58, sT1, ("imm", 1024)) + \
         [T(f"buffer_store_dword v{zr}, v{cl}, {sr(sP,4)}, 0 offen sc1", "clr")] + srdl(sW1, 88, sT3, ("rest", 1835008))
    def trs():
        E(f"v_lshrrev_b32 v{t0}, 2, v{l}", f"v_lshlrev_b32 v{t0}, 7, v{t0}", f"v_bfe_u32 v{t1}, v{l}, 3, 2", f"v_and_b32 v{t2}, 3, v{l}",
          f"v_lshl_add_u32 v{t3}, v{t2}, 3, v{t0}")
        for Tt in range(4):
            E(f"v_xor_b32 v{t4}, {Tt}, v{t1}", f"v_lshl_add_u32 v{vTV+Tt}, v{t4}, 5, v{t3}", f"v_add_u32 v{vTF+Tt}, s{sRING}, v{vTV+Tt}")
        E(f"v_and_b32 v{t3}, 1, v{l}", f"v_lshl_add_u32 v{t3}, v{t3}, 4, v{t0}", f"v_add_u32 v{t3}, s{sRING}, v{t3}", f"v_lshrrev_b32 v{t2}, 1, v{t2}",
          f"v_xor_b32 v{t2}, v{t2}, v{t1}")
        for t32 in range(2): E(f"v_xor_b32 v{t4}, {2*t32}, v{t2}", f"v_lshl_add_u32 v{vTQ+t32}, v{t4}, 5, v{t3}")
        E(f"v_lshrrev_b32 v{t1}, 4, v{l}", f"v_xor_b32 v{t1}, v{t1}, v{l}", f"v_lshlrev_b32 v{vB}, 4, v{t1}", f"v_xor_b32 v{vB+1}, 64, v{vB}")
    U1 += cap(trs)
    U1 += [f"v_lshrrev_b32 v{t3}, 4, v0", f"v_and_b32 v{t4}, 15, v0", f"v_lshlrev_b32 v{pw}, 6, v{t4}", f"v_lshl_add_u32 v{pw}, v{t3}, 13, v{pw}",
           f"v_lshlrev_b32 v{pw+2}, 4, v0", f"v_lshlrev_b32 v{pw+3}, 5, v0", f"v_mul_u32_u24 v{t3}, 3584, v{t3}", f"v_lshl_add_u32 v{pw+1}, v{t4}, 5, v{t3}"]
    U1 += [f"s_lshl_b32 s{sT0}, s{sG}, 10"] + srdl(sWQ, 66, sT0, ("rest", 4194304))
    U1 += [f"s_lshl_b32 s{sT0}, s{sG}, 19"] + srdl(sWO, 68, sT0, ("rest", 4194304))
    U1 += [f"s_mul_i32 s{sT2}, s{sG}, {224*1024}"] + srdl(sW2, 92, sT2, ("rest", 1835008))
    U1 += [x for p in range(1, 4) for x in (f"v_add_u32 v{vD1+p}, {natp(p, 3584)}, v{vD1}", f"v_add_u32 v{vDO+p}, {p*(8*1024-1024)}, v{vDO}")]
    U1 = deque(U1); per = (len(U1) + 15) // 16
    for i in range(8):
        for p in range(2):
            if OPT["rot"]: E(T(f"buffer_load_dwordx4 {vr(RAW+32*p+4*i,4)}, v{xo+p}, {sr(sX,4)}, s{XS+i} offen", ("x", p, i)))
            else: E(T(f"buffer_load_dwordx4 {vr(RAW+32*p+4*i,4)}, v{xo+p}, {sr(sX,4)}, 0 offen offset:{i*128}", ("x", p, i)))
            for _ in range(per):
                if U1: E(U1.popleft())
    stamp(2)
    E(f"s_add_u32 s{sT0}, s{sT0}, {1536*256}"); srd(sK, 62, sT0, ("imm", 131072)); srd(sV, 64, sT0, ("imm", 131072))
    srd(sFL, 58, sT1, ("imm", 1024))
    E(f"s_lshl_b32 s{sT0}, s{sRB}, 2"); srd(sDBG, 98, sT0, ("imm", 4))
    if OPT["stubs"]:
        E("s_mov_b64 exec, 0")
        for w_ in range(3): E(f"s_cmp_eq_u32 s{sW}, {w_}", f"s_cbranch_scc1 L_pg{w_}")
        E("s_branch L_pg3", "L_pgret:", "s_mov_b64 exec, -1")
    def later():
        E(f"s_and_b32 s{sT0}, s{sW}, 1", f"s_lshl_b32 s{sT0}, s{sT0}, 12", f"s_lshr_b32 s{sT1}, s{sW}, 1", f"s_lshl_b32 s{sT1}, s{sT1}, 7",
          f"s_add_u32 s{sT0}, s{sT0}, s{sT1}", f"v_add_u32 v{vDV}, s{sT0}, v{vDV}", f"v_add_u32 v{vDV+1}, 1024, v{vDV}")
        E(f"v_lshrrev_b32 v{t0}, 4, v{l}")
        for p in range(2):
            E(f"s_lshl_b32 s{sT0}, s{sW}, 3", f"s_add_u32 s{sT0}, s{sT0}, {4*p}", f"v_add_u32 v{t2}, s{sT0}, v{t0}",
              f"v_xor_b32 v{t3}, v{t2}, v{l}", f"v_and_b32 v{t3}, 15, v{t3}", f"v_lshlrev_b32 v{t3}, 4, v{t3}",
              f"v_lshl_add_u32 v{vDK+p}, v{t2}, 8, v{t3}")
            if p: E(f"v_subrev_u32 v{vDK+p}, 1024, v{vDK+p}")
        E(f"v_and_b32 v{t1}, 15, v{l}", f"v_lshlrev_b32 v{t2}, 8, v{t1}", f"v_add_u32 v{t2}, {KR_BASE}, v{t2}", f"v_xor_b32 v{t1}, v{t1}, v{t0}")
        for s_ in range(4): E(f"v_xor_b32 v{t3}, {4*s_}, v{t1}", f"v_lshl_add_u32 v{vKR+s_}, v{t3}, 4, v{t2}")
        E(f"s_lshl_b32 s{sT0}, s{sW}, 14", f"v_lshlrev_b32 v{vST}, 4, v{l}", f"v_add_u32 v{vST}, s{sT0}, v{vST}")
    LATER = cap(later)
    LATER += [f"s_mul_i32 s{sT0}, s{sRB}, {8*PSTR}"] + srdl(sP, 58, sT0, ("imm", 8*PSTR))
    LATER += [f"s_mul_i32 s{sT1}, s{sG}, {PSTR}", f"s_add_u32 s{sT0}, s{sT0}, s{sT1}"] + srdl(sPR, 58, sT0, ("imm", 131072))
    LATER += [f"s_lshr_b32 s{sT1}, s{sG}, 2", f"s_lshl_b32 s{sT1}, s{sT1}, 6", f"s_lshl_b32 s{sT0}, s{sW}, 8", f"s_add_u32 s{sT1}, s{sT1}, s{sT0}"] + srdl(sB2, 94, sT1, ("rest", 1024))
    LATER += [f"s_and_b32 s{sT0}, s{sG}, 3", f"s_lshl_b32 s{sT0}, s{sT0}, 14", f"s_add_u32 s{sVOFF}, s{sT0}, s{sT1}"]
    LATER += [f"s_lshl_b32 s{sT0}, s{sRB}, 16"] + srdl(sOUT, 96, sT0, ("imm", 65536))
    LATER2 = LATER[38:]
    BRW1 = 50
    LATER = [f"v_lshrrev_b32 v{bo}, 4, v{l}", f"v_lshlrev_b32 v{bo}, 3, v{bo}", f"s_lshl_b32 s{sT2}, s{sW}, 7"] + \
            [T(f"buffer_load_dwordx2 {vr(BRW1+2*q,2)}, v{bo}, {sr(sB1,4)}, s{sT2} offen offset:{q*32}", "bias") for q in range(4)] + LATER[:38]
    LATER.append(W("vm", "bias"))
    for r in range(16):
        LATER.append((f"v_lshlrev_b32 v%d, 16, v{BRW1+r//2}" if r % 2 == 0 else f"v_and_b32 v%d, s{sC0}, v{BRW1+r//2}") % (BIAS+r))
        LATER.append(f"v_mul_f32 v{BIAS+r}, {f32(CS)}, v{BIAS+r}")
    PFS = [[f"s_lshl_b32 s{sT3}, s{sRB}, 17", f"buffer_load_dword v{PFD}, v{pw}, {sr(sWQ,4)}, s{sT3} offen"],
           [f"s_mul_i32 s{sT3}, s{sRB}, 7168", f"buffer_load_dword v{PFD}, v{pw+3}, {sr(sW2,4)}, s{sT3} offen"],
           [f"s_lshl_b32 s{sT3}, s{sRB}, 12", f"buffer_load_dword v{PFD}, v{pw+2}, {sr(sK,4)}, s{sT3} offen"],
           [f"buffer_load_dword v{PFD}, v{pw+2}, {sr(sV,4)}, s{sT3} offen"]]
    SP = deque()
    for s_ in range(OPT["ini"]):
        d = PRE[s_].dma(); SP.append(d[:3]); SP.extend(d[3:])
    if OPT["pfpos"] == 1: SP.extend(PFS)
    if OPT["pfpos"] == 2: SP.append([f"s_mul_i32 s{sT3}, s{sRB}, {16*3584}", f"buffer_load_dword v{PFD}, v{pw+1}, {sr(sW1,4)}, s{sT3} offen"])
    if OPT["pfpos"] == 3: SP.append([f"s_mul_i32 s{sT3}, s{sRB}, {16*3584}", f"buffer_load_dword v{PFD}, v{pw+1}, {sr(sW1,4)}, s{sT3} offen"]); SP.append(PFS[1])
    if OPT["pfpos"] == 4: SP.append(PFS[1])
    PFN = {"q": PFS[0], "w2": PFS[1], "k": PFS[2], "v": [f"s_lshl_b32 s{sT3}, s{sRB}, 12"] + PFS[3],
           "w1": [f"s_mul_i32 s{sT3}, s{sRB}, {16*3584}", f"buffer_load_dword v{PFD}, v{pw+1}, {sr(sW1,4)}, s{sT3} offen"]}
    PFAT = {}
    for it_ in str(OPT["pfs"]).split("_"):
        if it_:
            nm, at = it_.split("@"); PFAT.setdefault(int(at), []).extend(PFN[nm])
    if -1 in PFAT: SP.append(PFAT[-1])
    if -3 in PFAT:
        l_ = list(SP); x_ = PFAT[-3]; SP.clear(); SP.extend(l_[:OPT["pfk"]] + [x_[k:k+2] for k in range(0, len(x_), 2)] + l_[OPT["pfk"]:])
    if -2 in PFAT: SP.appendleft(PFAT[-2])
    nsp = [0]
    def sp(n=1, force=False):
        for _ in range(n):
            if SP and (force or nsp[0] < OPT["npre"]): E(SP.popleft()); nsp[0] += 1
    SUM, SQ = 50, 54
    for i in range(8):
        for p in range(2):
            E(W("vm", ("x", p, i)))
            r = RAW + 32*p + 4*i; u = B2 + 32*p + 4*i; m = SUM + 2*p; q = SQ + 2*p
            for j in range(4): E(f"v_lshlrev_b32 v{u+j}, 16, v{r+j}", f"v_and_b32 v{r+j}, s{sC0}, v{r+j}")
            for k, b_ in enumerate((u, r, u+2, r+2)):
                if i == 0 and k == 0: E(f"v_pk_add_f32 {vr(m,2)}, {vr(u,2)}, {vr(r,2)}", f"v_pk_mul_f32 {vr(q,2)}, {vr(u,2)}, {vr(u,2)}")
                elif i == 0 and k == 1: E(f"v_pk_fma_f32 {vr(q,2)}, {vr(b_,2)}, {vr(b_,2)}, {vr(q,2)}")
                else: E(f"v_pk_add_f32 {vr(m,2)}, {vr(m,2)}, {vr(b_,2)}", f"v_pk_fma_f32 {vr(q,2)}, {vr(b_,2)}, {vr(b_,2)}, {vr(q,2)}")
            if 2*i + p >= OPT["sp0"]: sp(OPT["spn"])
    stamp(2)
    E(W("vm", "clr"), f"buffer_store_dword v{vL+1}, v{vL}, {sr(sDBG,4)}, 0 offen sc1")
    R4 = [SUM, SUM+2, SQ, SQ+2]
    for v in R4: E(f"v_add_f32 v{v}, v{v}, v{v+1}")
    for md in ("quad_perm:[1,0,3,2]", "quad_perm:[2,3,0,1]", "row_half_mirror"):
        for v in R4: E(f"v_add_f32_dpp v{v}, v{v}, v{v} {md} row_mask:0xf bank_mask:0xf")
    def both(fmt): E([fmt.format(m=SUM+2*p, q=SQ+2*p) for p in range(2)])
    both(f"v_mul_f32 v{{m}}, {f32(1/512)}, v{{m}}"); both(f"v_mul_f32 v{{q}}, {f32(1/512)}, v{{q}}")
    both("v_fma_f32 v{q}, -v{m}, v{m}, v{q}"); both("v_max_f32 v{q}, 0, v{q}")
    both("v_cvt_pk_bf16_f32 v{q}, v{q}, v{m}")
    both(f"v_and_b32 v{{m}}, s{sC0}, v{{q}}"); both("v_lshlrev_b32 v{q}, 16, v{q}")
    both(f"v_add_f32 v{{q}}, {f32(1e-5)}, v{{q}}"); both("v_cvt_pk_bf16_f32 v{q}, v{q}, v{q}"); both("v_lshlrev_b32 v{q}, 16, v{q}")
    both("v_sqrt_f32 v{q}, v{q}"); E("s_nop 0"); both("v_cvt_pk_bf16_f32 v{q}, v{q}, v{q}"); both("v_lshlrev_b32 v{q}, 16, v{q}")
    both("v_rcp_f32 v{q}, v{q}"); E("s_nop 0"); both(f"v_mul_f32 v{{q}}, {f32(CS)}, v{{q}}"); both("v_mul_f32 v{m}, v{m}, v{q}")
    stamp(2)
    for i in range(8):
        for p in range(2):
            r = RAW + 32*p + 4*i; u = B2 + 32*p + 4*i
            for b_ in (u, r, u+2, r+2):
                E(f"v_pk_fma_f32 {vr(b_,2)}, {vr(b_,2)}, {vr(SQ+2*p,2)}, {vr(SUM+2*p,2)} op_sel_hi:[1,0,0] neg_lo:[0,0,1] neg_hi:[0,0,1]")
            for j in range(4): E(f"v_cvt_pk_bf16_f32 v{r+j}, v{u+j}, v{r+j}")
            E(f"ds_write_b128 v{wa}, {vr(r,4)} offset:{i*8192+p*128}")
    stamp(2)
    sp(99, force=True)
    E(PRE[0].areads())
    E("s_waitcnt lgkmcnt(8)", "s_barrier")
    if OPT["stamps"] < 4: stamp(0)
    E(PRE[0].breads())
    BG.extend(LATER)
    def kreads(t): return [T(f"ds_read_b128 {ar(aKF+8*s_+4*hk,4)}, v{vKR+s_} offset:{(t&3)*8192+hk*4096}", ("kf", t)) for s_ in range(4) for hk in range(2)]
    def vreads(t): return [T(f"ds_read_b64_tr_b16 {ar(aVF+4*T8+2*t_,2)}, v{vTV+(T8&3)} offset:{(t&3)*8192+(T8>>2)*4096+t_*2048}", ("vf", t))
                           for T8 in range(8) for t_ in range(2)]
    def qk(x, dst, zero=False):
        return [mfma("v", dst+8*rl+4*hk, "a", aKF+8*s_+4*hk, "v", QFr(2*x+rl, s_), *(((0,) if zero else (NEGM+4*(2*x+rl), "v")) if s_ == 0 else ()))
                for s_ in range(4) for hk in range(2) for rl in ((0, 1) if (hk == 0 or not OPT["ao"]) else (1, 0))]
    def pv(x, p, zero=False):
        return [mfma("v", LQ[2*x+rl], "v", ONES, "v", p+4*rl, 0 if zero else None) for rl in range(2)] + \
               [mfma("a", aO+64*x+16*(T8>>1)+8*rl+4*(T8&1), "a", aVF+4*T8, "v", p+4*rl, 0 if zero else None) for T8 in range(8) for rl in ((0, 1) if (T8 % 2 == 1 or not OPT["ao"]) else (1, 0))]
    def sm_plan(x, s, p, n=32):
        pl = [[] for _ in range(n)]
        for j in range(16): pl[max(0, 2*j-1) if n == 32 else 2*j+1].append(f"v_exp_f32 v{s+j}, v{s+j}")
        for k in range(8): pl[min(31, 4*k+4) if n == 32 else 4*k+6].append(f"v_cvt_pk_bf16_f32 v{p+k}, v{s+2*k}, v{s+2*k+1}")
        return pl
    vSTX = (vST, vRD, vTQ, vTQ + 1)
    def pst(reg, typ, ps, p, tag=None): return T(f"buffer_store_dwordx4 {vr(reg,4)}, v{vSTX[2*typ+ps]}, {sr(sP,4)}, s{stab(p)} offen{'' if (OPT['wb'] and tag == ('sst', 0)) else ' sc1'}", tag)
    def pld(dst, typ, ps, p, tag): return T(f"buffer_load_dwordx4 {dst}, v{vSTX[2*typ+ps]}, {sr(sPR,4)}, {'0' if p < 4 else 's%d' % sROT} offen offset:{(p&3)*1024} sc1", tag)
    def pack(kind, src, tmp):
        o = []; b = tmp if kind == "a" else src
        if kind == "a":
            for r in range(8): o.append(f"v_accvgpr_read_b32 v{b+r}, a{src+r}")
        return o + [f"v_cvt_pk_bf16_f32 v{b+j}, v{b+2*j}, v{b+2*j+1}" for j in range(4)]
    NP = len(PRE)
    KV = deque([dma_v(0) + dma_k(2), dma_v(1) + dma_k(3), dma_v(2)])
    vHW = vD1
    PZ = vDQ
    POI = [pst(PZ, 0, q // 7, 1 + q % 7) for q in range(14)]
    FTB = lambda n: B5 + 16
    STQ = deque(POI[:5])
    for n in range(8): STQ.extend([pst(B2 + 4*n, 1, 0, n), POI[5 + n]])
    STQ.extend(POI[13:])
    FSQ = deque(pst(FTB(n), 1, 1, n) for n in range(8))
    WA8 = vDQ
    def wa8(sh):
        o = [f"s_and_b32 s{sT0}, s{sG}, 3", f"s_lshl_b32 s{sT0}, s{sT0}, 10", f"s_lshl_b32 s{sT1}, s{sW}, {sh}", f"s_add_u32 s{sT0}, s{sT0}, s{sT1}"]
        for j in range(2):
            o.append(f"v_add_u32 v{WA8+4*j}, s{sT0}, v{vB+j}")
            for rg in range(1, 4): o.append(f"v_xor_b32 v{WA8+4*j+rg}, {rg*1024}, v{WA8+4*j}")
        return o
    nq = [OPT["ini"]]
    HP = lambda n: B4 + 4*n
    for i, st in enumerate(PRE):
        post = []
        if nq[0] < NP: d = PRE[nq[0]].dma(); nq[0] += 1
        else: d = KV.popleft() if KV else []
        if nq[0] <= i + NS and nq[0] < NP: post = PRE[nq[0]].dma(); nq[0] += 1
        if OPT["pfpos"] == 2 and i == OPT["pf2"]: post = PFS[1] + PFS[2] + PFS[3]
        if OPT["pfpos"] == 2 and i == OPT["pf1"]: post = PFS[0]
        post = post + PFAT.get(i, [])
        if i == 16:
            flush(); E("s_nop 1")
            post = post + ["s_barrier"]
        if i == 17:
            for j in range(32): BG.append(f"v_cvt_pk_bf16_f32 v{B0+j}, v{B0+2*j}, v{B0+2*j+1}")
            BG.extend([f"s_and_b32 s{sT0}, s{sG}, 1", f"s_lshl_b32 s{sT1}, s{sT0}, 12", f"s_lshl_b32 s{sT0}, s{sT0}, 6"])
            for j in range(2): BG.extend([f"v_xor_b32 v{vBC+j}, s{sT0}, v{vB+j}", f"v_add_u32 v{vBC+j}, s{sT1}, v{vBC+j}"])
            BG.extend([f"s_lshl_b32 s{sT0}, s{sW}, 8", f"s_lshl_b32 s{sT1}, s{sG}, 2", f"s_add_u32 s{sT0}, s{sT0}, s{sT1}",
                       f"v_min_u32 v{vPUB}, 1, v{l}", f"v_lshlrev_b32 v{vPUB}, 30, v{vPUB}", f"v_add_u32 v{vPUB}, s{sT0}, v{vPUB}",
                       f"s_lshl_b32 s{sT0}, s{sW}, 8",
                       f"v_and_b32 v{vPOLL}, 7, v{l}", f"v_lshlrev_b32 v{vPOLL}, 2, v{vPOLL}", f"v_add_u32 v{vPOLL}, s{sT0}, v{vPOLL}",
                       f"v_add_u32 v{vRD}, 8192, v{vST}"])
            for j in range(4): BG.append(f"v_mov_b32 v{ONES+j}, 0x3f803f80")
            BG.extend(LATER2)
        if i == 32: flush()
        if i == 33:
            BG.extend([f"s_lshr_b32 s{sT0}, s{sG}, 2", f"s_lshl_b32 s{sT0}, s{sT0}, 6"])
            for j in range(4): BG.append(f"v_xor_b32 v{vTF+j}, s{sT0}, v{vTF+j}")
            for n in range(8):
                b = ACCH + 8*n
                for r in range(8): BG.append(f"v_max_f32 v{b+r}, 0, v{b+r}")
                for r in range(8): BG.append(f"v_mul_f32 v{b+r}, v{b+r}, v{b+r}")
                for j in range(4): BG.append(f"v_cvt_pk_bf16_f32 v{HP(n)+j}, v{b+2*j}, v{b+2*j+1}")
        if i == 36: post = dma_k(0)
        if i == 38: post = dma_k(1)
        if i == 44: post = [W("vm", ("K", 1)), "s_barrier"]
        if i == 45:
            for x in reversed(kreads(0)): BG.appendleft(x)
        if i == 54: post = ["s_barrier"]
        if i == 56:
            for n in range(8):
                b_ = (B2, B4)[n >> 2] + 8*(n & 3)
                for j in range(4): BG.append(f"v_cvt_pk_bf16_f32 v{B2+4*n+j}, v{b_+2*j}, v{b_+2*j+1}")
        if i == 43: BG.extend(wa8(13))
        if i == 49:
            for x in reversed([f"v_mov_b32 v{PZ+j}, {SENT:#x}" for j in range(4)] + [f"v_add_u32 v{vTQ}, 65536, v{vST}", f"v_add_u32 v{vTQ+1}, 65536, v{vRD}", f"s_mov_b32 s{sROT}, 4096"] +
                              [y for p in range(8) for y in (f"s_xor_b32 s{stab(p)}, s{sG}, {p}", f"s_mul_i32 s{stab(p)}, s{stab(p)}, {PSTR}", f"s_add_u32 s{stab(p)}, s{stab(p)}, {p*1024}")]):
                BG.appendleft(x)
        if i >= 57: post = post + [STQ.popleft()]
        step(st, PRE[48].areads() if i == 47 else PRE[i + 1].reads() if i + 1 < NP else [], d, post=post, gb=(OPT["f2b"] if 48 <= i < 54 else None))
        if i in (15, 47): stamp()
        if i in (3, 7, 11, 15, 19, 23, 27, 31, 35, 39, 43): stamp(3)
        if i == 47:
            flush()
            E(W("lg", ("kf", 0)))
            q0, q1 = qk(0, S0, True), qk(1, S1[0], True)
            cv = [f"v_cvt_pk_bf16_f32 v{B1+j}, v{B1+2*j}, v{B1+2*j+1}" for j in range(32)]
            hw = [T(f"ds_write_b128 v{WA8+n}, {vr(HP(n),4)} offset:{(n>>2)*4096}", "hw") for n in range(8)]
            pl = [[] for _ in range(32)]
            for g in range(2, 13): pl[g] = cv[3*(g-2):3*(g-1)]
            h0 = OPT["hw0"]
            for n in range(8): pl[h0 + 2*n].append(hw[n])
            pl[min(31, h0 + 18)] += [W("lg", "hw"), "s_barrier"] + PRE[48].breads()
            gaps(q0[:8] + q1[:8] + q0[8:] + q1[8:], pl)
            BG.extend(kreads(1))
            for rg in range(4):
                s = (S0, S1[0])[rg >> 1] + 8*(rg & 1); m = vT
                BG.extend([f"v_max3_f32 v{m}, v{s}, v{s+1}, v{s+2}", f"v_max3_f32 v{m}, v{m}, v{s+3}, v{s+4}", f"v_max3_f32 v{m}, v{m}, v{s+5}, v{s+6}",
                           f"v_max_f32 v{m}, v{m}, v{s+7}"] + xred("v_max_f32", m, vT+1))
                BG.extend([[f"s_cmp_lg_u32 s{sFLAG}, 0", "s_cselect_b64 vcc, -1, 0"], "s_nop 0", f"v_cndmask_b32 v{m}, v{m}, v{vM+rg}, vcc"])
                for r in range(4): BG.append(f"v_sub_f32 v{NEGM+4*rg+r}, 0, v{m}")
                for r in range(8): BG.append(f"v_sub_f32 v{s+r}, v{s+r}, v{m}")
            sp0_ = [y for g in sm_plan(0, S0, P0[0]) for y in g]
            BG.extend(sp0_[:-1] + ["s_nop 0"] + sp0_[-1:])
    flush()
    stamp()
    E(W("vm", ("K", 2)), "s_waitcnt lgkmcnt(0)")
    def att_iter(i, x1=(), x2=()):
        if i == 0: E("s_barrier")
        pl = sm_plan(1, S1[i&1], P1)
        x1 = list(x1)
        for g, x in zip((2, 2, 4, 6, 6, 8, 10, 10, 12, 14, 14, 16, 18, 18, 20, 22), vreads(i)): pl[g].append(x)
        if x1:
            pl[22] += x1[:1]; pl[24] += x1[1:2]
            for g, x in zip((26, 28, 30, 31), x1[2:]): pl[g].append(x)
        elif STQ: pl[26].append(STQ.popleft())
        gaps(qk(0, S0) + qk(1, S1[(i+1)&1]), pl)
        pl = sm_plan(0, S0, P0[(i+1)&1], 36)
        pl[1] = [W("lg", ("vf", i))] + pl[1]
        if i + 2 < 16:
            for g, x in zip((2, 2, 4, 4, 6, 8, 8, 10), kreads(i + 2)): pl[g].append(x)
        if i == 14:
            for g, x in zip((2, 2, 4, 4, 6, 8, 8, 10, 12, 12, 14, 16, 16, 18, 20, 20, 22, 24), POST[0].areads() + POST[1].areads()): pl[g].append(x)
        dv = dma_v(i + 3) if i + 3 < 16 else []
        dk = dma_k(i + 5) if i + 5 < 16 else []
        pl[0] += list(x2)
        if STQ: pl[12].append(STQ.popleft())
        if dv: pl[14] += dv[:1]; pl[14] += dv[1:2]; pl[16] += dv[2:3]; pl[20] += dv[3:]
        if dk: pl[22] += dk[:2]; pl[24] += dk[2:3]; pl[28] += dk[3:]
        pl[32] += [W2(W("vm", ("K", i+3)), W("vm", ("V", i+1)), W("lg", ("kf", i+2)))]
        pl[33] = ["s_barrier"] + pl[33]
        mf = pv(0, P0[i&1], zero=(i == 0)) + pv(1, P1, zero=(i == 0))
        gaps(mf[:35], pl[:35])
        flush()
        if FSQ: pl[35].append(FSQ.popleft())
        elif STQ: pl[35].append(STQ.popleft())
        gaps(mf[35:], pl[35:])
    VAL = vT + 3; GATE = vT + 4; POL = vT + 5
    poll = f"buffer_load_dword v{POL}, v{vPOLL}, {sr(sFL,4)}, 0 offen sc1"
    pub = f"buffer_store_dword v{VAL}, v{vPUB}, {sr(sFL,4)}, 0 offen sc1"
    for i in range(15):
        x1 = []; x2 = []
        if i == 0:
            x1 = dma_k(4)
            BG.extend([f"v_lshlrev_b32 v{vT}, 6, v0", f"v_mov_b32 v{vT+1}, 0", f"v_mov_b32 v{VAL}, 1"])
        if i == OPT["wopf"] and not OPT["wo4"]: BG.append([f"s_lshl_b32 s{sT1}, s{sRB}, 14", f"buffer_load_dword v{PFD}, v{vT}, {sr(sWO,4)}, s{sT1} offen"])
        if i == OPT["wop2"]: BG.extend([f"s_xor_b32 s{sT1}, s{sRB}, 16", [f"s_lshl_b32 s{sT1}, s{sT1}, 14", f"buffer_load_dword v{PFD}, v{vT}, {sr(sWO,4)}, s{sT1} offen"]])
        if i < 8: BG.extend(pack("a", 192 + 8*i, FTB(i)))
        gl = f"buffer_load_dword v{GATE}, v{vT+1}, {sr(sDBG,4)}, 0 offen sc1"
        if i == 2: BG.append(T(gl, "gate"))
        if i == 9: BG.extend([W("vm", "gate")] + check_ready("gate", GATE, gl, 1))
        if i == 10: x2 = ["s_waitcnt vmcnt(0)", pub]
        if i == 12: x2 = [T(poll, "fpoll")]
        FLD = [pld(ar(aFL+4*n,4), 1, n >> 3, n & 7, ("fl", n)) for n in range(16)]
        nf1 = 6
        if OPT["fchk"] == 14:
            if i == 14: BG.extend([W("vm", "fpoll")] + check_ready("f", POL, poll, 1) + FLD[:6])
        else:
            nf1 = 16
            if i == 13: BG.extend([W("vm", "fpoll")] + check_ready("f", POL, poll, 1) + FLD[:9])
            if i == 14: BG.extend(FLD[9:])
        wol = [int(x) for x in OPT["wol"].split("_")]
        if i in wol: x1 = POST[wol.index(i)].dma()
        if i >= 3: stamp(4)
        if i < 12: stamp(6)
        if i == 10: assert not STQ and not FSQ, (len(STQ), len(FSQ))
        att_iter(i, x1=x1, x2=x2)
    i = 15
    E(vreads(i))
    WA8 = NEGM
    E(wa8(14))
    pl32 = sm_plan(1, S1[i&1], P1)
    E(pl32[:2])
    mf = pv(0, P0[i&1])
    gaps(mf[:2], [pl32[2] + pl32[3], pl32[4] + pl32[5]])
    E("s_waitcnt lgkmcnt(0)")
    pl = [pl32[6+2*g] + pl32[7+2*g] if g < 13 else [] for g in range(16)]
    pl[0] = ["s_barrier"] + pl[0]
    d6 = POST[6].dma()
    pl[13] = d6[:3]; pl[14] = d6[3:4]; pl[15] = d6[4:5]
    gaps(mf[2:], pl)
    OT = B2
    pl = [d6[5:]] + ([[x] for x in FLD[nf1:]] or [[]] * 6) + [[f"v_rcp_f32 v{LR+2*rg}, v{LQ[rg]}"] for rg in range(4)]
    gaps(pv(1, P1), pl)
    E(f"v_add_f32 v{vT+1}, v{LQ[0]}, v{LQ[1]}", f"v_add_f32 v{vT+2}, v{LQ[2]}, v{LQ[3]}", f"s_mov_b32 s{sT1}, {f32(2.0**OPT['thr'])}", f"v_add_f32 v{vT+1}, v{vT+1}, v{vT+2}",
      f"v_cmp_nge_f32 vcc, s{sT1}, v{vT+1}", f"v_and_b32 v{vT+2}, 3, v{l}", f"v_mul_u32_u24 v{vT+2}, {NS*4096}, v{vT+2}",
      "s_cmp_lg_u64 vcc, 0", f"s_cselect_b32 s{sT1}, 1, 0", f"v_mov_b32 v{vT}, s{sT1}",
      f"s_lshl_b32 s{sT1}, s{sW}, 2", f"s_add_u32 s{sT1}, s{sT1}, {R_BASE}", f"v_add_u32 v{vT+2}, s{sT1}, v{vT+2}", f"v_mov_b32 v{vT+1}, s{sRING}",
      f"ds_write_b32 v{vT+2}, v{vT} offset:{1*4096}")
    E(POST[2].areads(), POST[3].areads())
    stamp()
    for n in range(16):
        x, T32, rl = n >> 3, (n >> 1) & 3, n & 1
        b = OT + 8*(n & 7); rg = 2*x + rl
        for r in range(8): E(f"v_accvgpr_read_b32 v{b+r}, a{aO+8*n+r}")
        for j in range(4): E(f"v_pk_mul_f32 {vr(b+2*j,2)}, {vr(b+2*j,2)}, {vr(LR+2*rg,2)} op_sel_hi:[1,0]")
        for j in range(4): E(f"v_cvt_pk_bf16_f32 v{b+j}, v{b+2*j}, v{b+2*j+1}")
        E(f"ds_write_b128 v{WA8+4*(T32&1)+rg}, {vr(b,4)} offset:{T32*4096}")
    E(W("lg", POST[3].tag), POST[8].dma(), POST[9].dma())
    E("s_waitcnt lgkmcnt(0)", "s_barrier")
    E(T(f"ds_read_b128 {vr(56,4)}, v{vT+1} offset:{1*4096}", "flg"), POST[0].breads())
    E(W("lg", "flg"))
    E(f"v_or3_b32 v{vT}, v56, v57, v58", f"v_or_b32 v{vT}, v{vT}, v59", "s_nop 0", f"v_readfirstlane_b32 s{sT0}, v{vT}",
      "s_nop 0", f"s_andn2_b32 s{sT0}, s{sT0}, s{sFLAG}", "s_cbranch_scc1 L_slow")
    E(POST[7].dma())
    stamp(); stamp(5)
    GV, XO, XR, BRW, TM = 112, vT, 56, 40, 8
    sacc = lambda ps, n: ((B4, B3), (B2, B5))[ps][n >> 2] + 8*(n & 3)
    sepi = lambda ps, n: pack("v", sacc(ps, n), None) + [pst(sacc(ps, n), 0, ps, n, ("sst", ps))] if n else []
    def SLr(ps, p): return B3 + 4*(p - 1) if ps == 0 else (B4 + 4 + 4*p if p < 7 else B3 + 28)
    def sloads(ps): return [pld(vr(SLr(ps, p), 4), 0, ps, p, ("sl", ps, p)) for p in range(1, 8)]
    sst = [int(x) for x in str(OPT["sst"]).split("_")]
    def fmath(pk, part=2):
        o = []; TQ = 18
        for ps in range(2):
            G_ = GV + 8*ps
            for g in range(8):
                n = 8*ps + g
                for j in range(4): o.append(f"v_accvgpr_read_b32 v{TQ+8+j}, a{aFL+4*n+j}")
                d0 = G_ if g == 0 else TQ
                for j in range(4): o += [f"v_lshlrev_b32 v{d0+2*j}, 16, v{TQ+8+j}", f"v_and_b32 v{d0+2*j+1}, s{sC0}, v{TQ+8+j}"]
                if g and pk: o += [f"v_pk_add_f32 {vr(G_+2*j,2)}, {vr(G_+2*j,2)}, {vr(TQ+2*j,2)}" for j in range(4)]
                elif g: o += [f"v_add_f32 v{G_+j}, v{G_+j}, v{TQ+j}" for j in range(8)]
        if part == 0: return o
        if part == 1: o = []
        for ps in range(2):
            G_ = GV + 8*ps
            for j in range(4): o += [f"v_lshlrev_b32 v{TQ+2*j}, 16, v{BRW+4*ps+j}", f"v_and_b32 v{TQ+2*j+1}, s{sC0}, v{BRW+4*ps+j}"]
            for j in range(8): o.append(f"v_fma_f32 v{G_+j}, v{G_+j}, s{sT0}, v{TQ+j}")
            for j in range(8): o.append(f"v_mul_f32 v{TQ+j}, {f32(-math.log2(math.e))}, v{G_+j}")
            for j in range(8): o.append(f"v_exp_f32 v{TQ+j}, v{TQ+j}")
            for j in range(8): o.append(f"v_add_f32 v{TQ+j}, 1.0, v{TQ+j}")
            for j in range(8): o.append(f"v_rcp_f32 v{TQ+j}, v{TQ+j}")
            for j in range(8): o.append(f"v_mul_f32 v{G_+j}, v{G_+j}, v{TQ+j}")
        return o
    nd = [10]; nr = [4]; hold = [int(x) for x in str(OPT['hold2']).split('_') if x]
    for i, st in enumerate(POST[:30]):
        if i == 0:
            BG.extend([f"v_bfe_u32 v{XO+1}, v0, 4, 2", f"v_lshlrev_b32 v{XO+1}, 3, v{XO+1}", f"v_and_b32 v{TM}, 15, v0",
                       f"v_lshl_add_u32 v{XO}, v{TM}, 10, v{XO+1}", f"s_mov_b32 s{sT0}, {f32(1/CS**2)}",
                       f"v_bfe_u32 v{TM}, v0, 4, 1", f"v_mul_u32_u24 v{TM}, 24, v{TM}", f"v_add_u32 v{XO+2}, v{XO}, v{TM}"])
        if i == OPT["fldo"] and i > 1: BG.extend(FLD[6:])
        if i == (0 if OPT["fbg"] else OPT["xbl"]):
            for k in range(4):
                BG.appendleft(T(f"buffer_load_dwordx2 {vr(XR+2*k,2)}, v{XO}, {sr(sX,4)}, s{sVOFF} offen offset:{(k>>1)*128+(k&1)*32}", "xb"))
                BG.appendleft(T(f"buffer_load_dwordx2 {vr(BRW+2*k,2)}, v{XO+1}, {sr(sB2,4)}, 0 offen offset:{(k>>1)*128+(k&1)*32}", "xb"))
        if i == OPT["fs0"]: BG.extend([W("vm", ("fl", 15))] + fmath(False, 0))
        e = [x for n in range(8) if sst[n * len(sst) // 8] == i for x in sepi(0, n)]
        for x in reversed(e): BG.appendleft(x)
        if i == OPT["lda"]:
            for x in reversed(sloads(0)): BG.appendleft(x)
        d = []
        if nd[0] < 32 and nd[0] - NS < nr[0]: d = POST[nd[0]].dma(); nd[0] += 1
        nxt = POST[i + 1].breads() + (POST[31].breads() if i == 29 else [])
        want = 32 if i == 29 else max(i + 2, nr[0] + (0 if i in hold else 1))
        while nr[0] < min(32, want):
            assert nr[0] < nd[0] - (1 if d else 0) and nr[0] <= i + 6
            nxt = nxt + POST[nr[0]].areads(); nr[0] += 1
        for x in nxt:
            if isinstance(x, T): x.tag = POST[i + 1].tag
        step(st, nxt, d, post=([W("vm", ("sst", 0)), "buffer_wbl2 sc1"] if i == OPT["wb"] and i else []))
        if i == 15: stamp()
        if i % 3 == 2: stamp(5)
    REST = list(BG); BG.clear()
    print("f math left for the tail:", len(REST), file=sys.stderr)
    flush()
    stamp()
    stamp(7)
    E(W("lg", POST[30].tag))
    order = [1, 2, 3, 4, 5, 6, 7, 0]
    for k, n in enumerate(order):
        if k == 1: BG.append("s_nop 1")
        if k >= 2: BG.extend(sepi(1, order[k - 2]))
        gaps([POST[j].one(2*(n >> 2) + h, n & 3) for j in (30, 31) for h in range(2)], [], budget=12)
    flush()
    E(sepi(1, 7))
    stamp(); stamp(7)
    SA, ST_, XT, OP = B0, B0+16, B0+24, B0+40
    def fin():
        E(f"s_mov_b64 s[{sT2}:{sT3}], -1", f"s_mov_b32 s{sT1}, 0")
        for j in range(8): E(f"v_lshlrev_b32 v{XT+2*j}, 16, v{XR+j}", f"v_and_b32 v{XT+2*j+1}, s{sC0}, v{XR+j}")
        E("L_sum:")
        for ps in range(2):
            A_ = SA + 8*ps
            for p in range(1, 8):
                E(W("vm", ("sl", ps, p)))
                for j in range(4): E(f"v_lshlrev_b32 v{ST_+2*j}, 16, v{SLr(ps,p)+j}", f"v_and_b32 v{ST_+2*j+1}, s{sC0}, v{SLr(ps,p)+j}")
                for j in range(4): E(f"v_pk_add_f32 {vr(A_+2*j,2)}, {vr((sacc(ps,0) if p == 1 else A_)+2*j,2)}, {vr(ST_+2*j,2)}")
            E(f"v_pk_add_f32 {vr(ST_,2)}, {vr(A_,2)}, {vr(A_+2,2)}", f"v_pk_add_f32 {vr(ST_+2,2)}, {vr(A_+4,2)}, {vr(A_+6,2)}",
              f"v_pk_add_f32 {vr(ST_,2)}, {vr(ST_,2)}, {vr(ST_+2,2)}", f"v_cmp_u_f32 vcc, v{ST_}, v{ST_+1}")
            for j in range(4): E(f"v_pk_fma_f32 {vr(A_+2*j,2)}, {vr(A_+2*j,2)}, {vr(GV+8*ps+2*j,2)}, {vr(XT+8*ps+2*j,2)}")
            E(f"s_and_b64 vcc, vcc, s[{sT2}:{sT3}]", f"s_cbranch_scc1 L_miss{ps}")
            for j in range(4): E(f"v_cvt_pk_bf16_f32 v{OP+4*ps+j}, v{A_+2*j}, v{A_+2*j+1}")
            if OPT["o16"]:
                E("s_nop 0", f"v_permlane16_swap_b32 v{OP+4*ps}, v{OP+4*ps+2}", f"v_permlane16_swap_b32 v{OP+4*ps+1}, v{OP+4*ps+3}",
                  f"buffer_store_dwordx4 {vr(OP+4*ps,4)}, v{XO+2}, {sr(sOUT,4)}, s{sVOFF} offen offset:{ps*128} {OPT['outsc']}")
            else:
                for k in range(2): E(f"buffer_store_dwordx2 {vr(OP+4*ps+2*k,2)}, v{XO}, {sr(sOUT,4)}, s{sVOFF} offen offset:{ps*128+k*32} {OPT['outsc']}")
            if ps == 0: stamp(); E(f"s_mov_b32 s{sT4}, 0xffff", f"s_cmp_lg_u32 s{sT1}, 0", "s_cbranch_scc1 L_missl", "L_sum1:")
    assert not any(ismem(x) for x in REST)
    REST = REST + [W("vm", "xb")] + (fmath(True, 1) if OPT["fs0"] < 30 else fmath(True))
    cut = min(len(REST), OPT["bdel"])
    if OPT["lda"] >= 30:
        E(REST[:cut//2], sloads(0)); stamp(7); E(REST[cut//2:cut], sloads(1)); stamp(7); E(REST[cut:]); stamp(7)
        if OPT["stamps"] == 7:
            E(W("vm", ("sst", 1))); stamp(7); E(W("vm", ("sl", 0, 1))); stamp(7); E(W("vm", ("sl", 0, 7))); stamp(7); E(W("vm", ("sl", 1, 7))); stamp(7)
    else: E(REST[:cut], sloads(1), REST[cut:])
    fin()
    stamp()
    if OPT["stamps"]:
        E("s_waitcnt vmcnt(0)")
        if OPT["stamps"] != 7: stamp(0)
        E(f"s_lshl_b32 s{sT0}, s2, 2", f"s_add_u32 s{sT0}, s{sT0}, s{sW}", f"s_lshl_b32 s{sT0}, s{sT0}, 6", f"s_add_u32 s{sT0}, s{sT0}, {64<<20}")
        srd(sX, 58, sT0, ("imm", 64))
        E(f"v_mov_b32 v{vT}, 0", "s_memrealtime s[70:71]", "s_waitcnt lgkmcnt(0)", f"s_mov_b32 s87, s70")
        for i in list(range(nstamp[0])) + [14, 15]:
            E(f"v_mov_b32 v{vT+1}, s{sST+i}", f"buffer_store_dword v{vT+1}, v{vT}, {sr(sX,4)}, 0 offen offset:{4*i}")
    if OPT["hold"] >= 0:
        E(f"s_cmp_lg_u32 s2, {OPT['hwg']}", "s_cbranch_scc1 L_main_end", "s_mov_b32 s73, 3000", "L_hold:", "s_memrealtime s[70:71]", "s_waitcnt lgkmcnt(0)",
          "s_sub_u32 s70, s70, s72", "s_sub_u32 s73, s73, 1", "s_cbranch_scc1 L_main_end", "s_cmp_lt_u32 s70, 10000", "s_cbranch_scc1 L_hold")
    E("L_main_end:", "s_endpgm")
    for name, vreg, load, val in SPINS:
        E(f"L_spin_{name}:", f"s_mov_b32 s{sCNT}, {OPT['spin']}", f"L_spinl_{name}:", load, "s_waitcnt vmcnt(0)",
          f"v_cmp_le_u32 vcc, {val}, v{vreg}", f"s_sub_u32 s{sCNT}, s{sCNT}, 1", f"s_cbranch_scc1 L_ok_{name}",
          "s_cmp_eq_u64 vcc, -1", f"s_cbranch_scc0 L_spinl_{name}", f"s_branch L_ok_{name}")
    E("L_miss0:", f"s_mov_b32 s{sT1}, 0xfefe", f"s_mov_b32 s{sT4}, 0xff", "s_branch L_miss", "L_miss1:", f"s_mov_b32 s{sT1}, 0xfe00",
      "L_miss:", f"s_mov_b32 s{sT0}, {SENT:#x}", f"s_mov_b32 s{sCNT}, {OPT['spin']}", "L_missl:", "s_waitcnt vmcnt(0)")
    if OPT["slp"]: E(f"s_sleep {OPT['slp']}")
    for ps in range(2):
        for g in range(1, 8):
            r = SLr(ps, g); bit = 8*ps + g
            E(f"s_bitcmp1_b32 s{sT1}, {bit}", f"s_cbranch_scc0 L_have{bit}",
              f"v_cmp_eq_u32 vcc, s{sT0}, v{r}", f"v_cmp_eq_u32 s[{sT2}:{sT3}], s{sT0}, v{r+1}", f"v_cmp_eq_u32 s[70:71], s{sT0}, v{r+2}", f"s_or_b64 s[{sT2}:{sT3}], vcc, s[{sT2}:{sT3}]",
              f"v_cmp_eq_u32 vcc, s{sT0}, v{r+3}", f"s_or_b64 s[70:71], s[70:71], s[{sT2}:{sT3}]", f"s_bitset0_b32 s{sT1}, {bit}",
              f"s_or_b64 s[70:71], s[70:71], vcc", f"s_cbranch_scc0 L_have{bit}", f"s_bitset1_b32 s{sT1}, {bit}", sloads(ps)[g-1], f"L_have{bit}:")
    E(f"s_sub_u32 s{sCNT}, s{sCNT}, 1", "s_cbranch_scc0 L_missc", "s_waitcnt vmcnt(0)", f"s_mov_b32 s{sT1}, 0", "L_missc:",
      f"s_and_b32 s70, s{sT1}, s{sT4}", "s_cbranch_scc1 L_missl",
      f"s_mov_b64 s[{sT2}:{sT3}], 0", f"s_cmp_eq_u32 s{sT4}, 0xff", "s_cbranch_scc1 L_sum", "s_branch L_sum1")
    E("L_slow:")
    E("s_waitcnt vmcnt(0) lgkmcnt(0)", "s_barrier")
    E(f"s_mov_b32 s{sKOFF}, 0", f"s_mov_b32 s{sCNT}, 16", [f"v_mov_b32 v{vM+j}, 0xff800000" for j in range(4)])
    E("L_slow_loop:")
    dk = dma_k(0); E(dk[0], "s_nop 0", dk[2:])
    E("s_waitcnt vmcnt(0)", "s_barrier")
    E(kreads(0))
    E("s_waitcnt lgkmcnt(0)", "s_barrier")
    E(qk(0, S0, True), qk(1, S1[0], True))
    E("s_nop 7", "s_nop 7", f"s_add_u32 s{sKOFF}, s{sKOFF}, 8192")
    for rg in range(4):
        s = S0 + 8*rg
        for j in range(0, 8, 2): E(f"v_max3_f32 v{vM+rg}, v{vM+rg}, v{s+j}, v{s+j+1}")
    E(f"s_sub_u32 s{sCNT}, s{sCNT}, 1", f"s_cmp_lg_u32 s{sCNT}, 0", "s_cbranch_scc1 L_slow_loop")
    for rg in range(4): E(xred("v_max_f32", vM+rg, vT))
    E(f"s_mov_b32 s{sFLAG}, 1", "s_branch L_restart", "L_code_end:")

K = NAME + "_kernel"
hdr = open("cdna_kernels/" + NAME + ".s.ref").read().split("; Override launch")[0]
out = [hdr.rstrip()]
out.append("; @launch grid=(256,1,1) block=(256,1,1) lds=163840")
out.append('.amdgcn_target "amdgcn-amd-amdhsa--gfx950"')
out.append(".text")
main_kernel(K)
if OPT["stubs"]:
    import subprocess, tempfile, os, re
    tmp = tempfile.mkdtemp()
    open(tmp + "/a.s", "w").write("\n".join(out + L + [f"L_pg{i}:" for i in range(4)] + ["s_endpgm"]) + "\n")
    subprocess.run(["clang", "-x", "assembler", "-target", "amdgcn-amd-amdhsa", "-mcpu=gfx950", "-c", tmp + "/a.s", "-o", tmp + "/a.o"], check=True)
    dis = subprocess.run(["llvm-objdump", "-d", "--mcpu=gfx950", tmp + "/a.o"], capture_output=True, text=True).stdout
    addrs = [int(m.group(1), 16) for m in re.finditer(r"// ([0-9A-F]{12}):", dis)]
    idx = [i for i, x in enumerate(L) if x.startswith("    ")]
    assert len(addrs) == len(idx) + 1, (len(addrs), len(idx))
    end = L.index("L_main_end:")
    pos = []; page = OPT["pg0"]
    for a_, i in zip(addrs, idx):
        if i >= end: break
        if a_ + 4*len(pos) >= page * 4096 + OPT["pgo"]: pos.append(i); page += 1
    n = len(pos)
    for k in reversed(range(n)):
        L[pos[k]:pos[k]] = [f"L_pg{k}:", f"    s_cbranch_execz {'L_pg%d' % (k+4) if k + 4 < n else 'L_pgret'}"]
out += L
out.append('.section .rodata,"a"')
out.append(f""".p2align 6
.amdhsa_kernel {K}
  .amdhsa_next_free_vgpr 512
  .amdhsa_next_free_sgpr 102
  .amdhsa_accum_offset 256
  .amdhsa_group_segment_fixed_size 0
  .amdhsa_kernarg_size 104
  .amdhsa_user_sgpr_count 2
  .amdhsa_user_sgpr_kernarg_segment_ptr 1
  .amdhsa_system_sgpr_workgroup_id_x 1
.end_amdhsa_kernel""")
print("\n".join(out))
```

```python
import sys, math, struct
from collections import deque
NAME = "recurrent_scan__sliding_block_cached__dense_activation_squared_relu__prompt"
OPT = dict(stamps=0, rt=0, codepf=1, budget=8, thr=40, memc=4, dmac=8, hg=2, rot=8, outsc="", skip="", spin=200000, pfpos=9, pfs="w2@-1_k@20_v@20", pf2=28,
           sst="19_20_21_22_23_24_25", dropoob=1, lda=99, npre=12, sp0=4, hw0=12, gb=8, pf1=12, stubs=1, fbg=0, bdel=60, xbl=27, kvrot=0, pg0=2, pgo=0, f2b=12, hold=-1, hwg=100, hold2="24", wol="7_8_9_11_12_13", wopf=5, fldo=1, wo4=0, slp=0, fs0=5, pad=4352, spn=1, pfk=12, fchk=13, mo=2, ao=0, ini=6, wb=0, wop2=11, o16=1, lean=0, qsw=1)
for a in sys.argv[1:]:
    k, v = a.split("="); OPT[k] = int(v) if v.lstrip("-").isdigit() else v

def vr(b, n=1): return f"v{b}" if n == 1 else f"v[{b}:{b+n-1}]"
def ar(b, n=1): return f"a{b}" if n == 1 else f"a[{b}:{b+n-1}]"
def R(kind, b, n=1): return vr(b, n) if kind == "v" else ar(b, n)
def sr(b, n=1): return f"s{b}" if n == 1 else f"s[{b}:{b+n-1}]"
def f32(x): return "0x%08x" % struct.unpack("<I", struct.pack("<f", x))[0]

class W:
    def __init__(s, cnt, tag): s.cnt, s.tag = cnt, tag
class W2:
    def __init__(s, *ws): s.ws = ws
class T:
    def __init__(s, text, tag): s.text, s.tag = text, tag
L = []; VM = []; LG = []
def E(*xs):
    for x in xs:
        if isinstance(x, (list, tuple)): E(*x); continue
        if isinstance(x, W2):
            n0 = len(L)
            for w_ in x.ws: E(w_)
            parts = {}
            for ln in L[n0:]:
                p_ = ln.split()[1]; parts[p_[:2]] = p_
            del L[n0:]
            if parts: L.append("    s_waitcnt " + " ".join(parts[k] for k in ("vm", "lg") if k in parts))
            continue
        if isinstance(x, W):
            q = VM if x.cnt == "vm" else LG
            idx = [i for i, t in enumerate(q) if t == x.tag]
            if not idx: continue
            n = len(q) - 1 - idx[-1]
            n = min(n, 63 if x.cnt == "vm" else 15)
            del q[:len(q) - n]
            L.append(f"    s_waitcnt {'vmcnt' if x.cnt == 'vm' else 'lgkmcnt'}({n})"); continue
        tag = None
        if isinstance(x, T): x, tag = x.text, x.tag
        op = x.split()[0]
        if op.startswith("buffer_") or op.startswith("global_"): VM.append(tag)
        if op.startswith("ds_"): LG.append(tag)
        if op == "s_waitcnt":
            for w in x.split()[1:]:
                n = int(w[w.index("(")+1:-1]); q = VM if w.startswith("vm") else LG
                if len(q) > n: del q[:len(q) - n]
        L.append("    " + x if not x.endswith(":") and not x.startswith(".") else x)
def opof(x):
    if isinstance(x, (list, tuple)): return opof(x[0])
    if isinstance(x, (W, W2)): return "s_waitcnt"
    return (x.text if isinstance(x, T) else x).split()[0]
def ismem(x):
    if isinstance(x, (list, tuple)): return any(ismem(y) for y in x)
    return opof(x).split("_")[0] in ("ds", "buffer", "global")
def isvalu(x): return opof(x).startswith("v_")
def cost(x):
    if isinstance(x, (list, tuple)): return sum(cost(y) for y in x)
    if isinstance(x, (W, W2)): return 4
    t = x.text if isinstance(x, T) else x
    op = t.split()[0]
    assert not op.startswith("v_pk_"), t
    if t.endswith(":"): return 0
    if op in ("v_exp_f32", "v_rcp_f32", "v_sqrt_f32"): return 8
    if op.startswith("buffer_store_dwordx4"): return 24
    if op.startswith("buffer_") or op.startswith("global_"): return OPT["dmac"]
    if op == "s_nop": return 4 * (int(t.split()[1]) + 1)
    if op == "ds_write_b128": return 20
    return 4
BG = deque()
def gaps(mf, plan, budget=None, wr_from=0):
    budget = OPT["budget"] if budget is None else budget
    for g, m in enumerate(mf):
        E(m)
        items = plan[g] if g < len(plan) else []
        endi = [x[1:] for x in items if isinstance(x, tuple) and x[0] == "end"]
        items = [x for x in items if not (isinstance(x, tuple) and x[0] == "end")]
        c = sum(cost(x) for x in items) + sum(cost(x) for x in endi)
        E([x for x in items if not isvalu(x)])
        while True:
            while BG and ismem(BG[0]) and len(PM) < 3: PM.append(BG.popleft())
            if PM and opof(PM[0]).startswith("ds_write") and g < wr_from: break
            if PM and (c + cost(PM[0]) <= budget or c <= OPT["memc"]):
                x = PM.popleft(); E(x); c += cost(x)
            else: break
        E([x for x in items if isvalu(x)])
        while BG:
            if ismem(BG[0]):
                if len(PM) < 3: PM.append(BG.popleft()); continue
                break
            if opof(BG[0]) in ("s_waitcnt", "s_barrier") and PM: break
            if c + cost(BG[0]) > budget: break
            x = BG.popleft(); E(x); c += cost(x)
        E(endi)
PM = deque()
def flush():
    print("flush", len(PM), len(BG), "at line", len(L), file=sys.stderr)
    while PM: E(PM.popleft())
    while BG: E(BG.popleft())
def spread(items, n, per):
    return [items[g*per:(g+1)*per] for g in range(n)]


CS = 128**-0.5 * math.log2(math.e)
X_BASE, R_BASE, NS = 0, 65536, 6
KR_BASE = 32768
FLAG_OFF = 48 << 20
OOB = 0x40000000
PSTR = 131072 + OPT['pad']
SENT = 0xff81ff81
sX, sK, sV, sWQ, sWO, sW1, sW2, sB1, sP = 4, 8, 12, 16, 20, 24, 28, 32, 36
sW, sG, sRB, sRING, sOFF, sCNT, sT0, sT1, sKOFF, sVOFF, sVL, sC0, sT2, sT3, sFLAG, sT4, sROT, sJJ = range(40, 58)
sFL, sDBG, sPR, sB2, sOUT = 60, 64, 88, 92, 96
sST = 72
sTAB = 16
def stab(p): return sTAB + p if p < 4 else 24 + (p - 4)
vLANE, vTF, vB, vBC, vPUB, vPOLL, vTQ, vDO, vKR, vTV, vDK, vDV, vST, vRD, vM, vL = 1, 2, 6, 8, 10, 11, 12, 14, 18, 22, 26, 28, 30, 31, 32, 36
vDQ, vD1, PFD = 40, 44, 49
vT = 50
B0, B1, B2, B3, B4, B5 = 64, 96, 128, 160, 192, 224
S0, S1, P0, P1, NEGM = B3, (B3+16, B4), (56, B4+16), B4+24, B5
LR = B5 + 16
aO, aVF, aKF, aFL = 0, 128, 160, 192
ONES = vL
LQ = (44, B5+24, B5+28, vM)
def QFr(rg, s_): return B0 + 16*s_ + 4*rg
BIAS = B2 + 16

nstamp = [0]
hcnt = [0]
def stamp(lvl=1):
    if OPT["hold"] >= 0 and lvl in (0, 1):
        if hcnt[0] == OPT["hold"]: E("s_memrealtime s[70:71]", "s_waitcnt lgkmcnt(0)", "s_mov_b32 s72, s70")
        hcnt[0] += 1
    if not OPT["stamps"]: return
    if OPT["stamps"] != lvl and lvl != 0: return
    i = nstamp[0]; nstamp[0] += 1
    assert i < 14
    E("s_memrealtime s[70:71]" if OPT["rt"] else "s_memtime s[70:71]", "s_waitcnt lgkmcnt(0)", f"s_mov_b32 s{sST+i}, s70")

def mfma(dk, d, ak, a, bk, b, c=None, ck=None):
    cs = R(dk, d, 4) if c is None else (str(c) if ck is None else R(ck, c, 4))
    return f"v_mfma_f32_16x16x32_bf16 {R(dk,d,4)}, {R(ak,a,4)}, {R(bk,b,4)}, {cs}"
def kvoff(t):
    return f"s_xor_b32 s{sKOFF}, s{sJJ}, {t*8192}" if OPT["kvrot"] else f"s_mov_b32 s{sKOFF}, {t*8192}"
def dma_k(t):
    return [f"s_add_u32 m0, s{sVL}, {KR_BASE+(t&3)*8192}", kvoff(t),
            T(f"buffer_load_dwordx4 v{vDK}, {sr(sK,4)}, s{sKOFF} offen lds", ("K", t)),
            T(f"buffer_load_dwordx4 v{vDK+1}, {sr(sK,4)}, s{sKOFF} offen offset:1024 lds", ("K", t))]
def dma_v(t):
    return [f"s_add_u32 m0, s{sVL}, {X_BASE+(t&3)*8192}", kvoff(t),
            T(f"buffer_load_dwordx4 v{vDV}, {sr(sV,4)}, s{sKOFF} offen lds", ("V", t)),
            T(f"buffer_load_dwordx4 v{vDV+1}, {sr(sV,4)}, s{sKOFF} offen offset:1024 lds", ("V", t))]

class Stage:
    def __init__(s, idx, mat, j, ps, acc, areg, readb, vb):
        s.idx, s.mat, s.j, s.ps, s.acc, s.areg, s.readb, s.vb = idx, mat, j, ps, acc, areg, readb, vb
        s.slot = idx % NS; s.tag = (mat, ps, j); s.breg = ("a", 16*j)
    def dma(s):
        srd_, vd, stride = {"w1": (sW1, vD1, 3584), "wq": (sWQ, vDQ, 8192), "w2": (sW2, vDO, 1024), "wo": (sWO, vDO, 1024)}[s.mat]
        o = [f"s_add_u32 m0, s{sRING}, {s.slot*4096}", f"s_mov_b32 s{sOFF}, {s.j*32*stride + s.ps*128}"]
        if OPT["rot"] and s.mat == "wq":
            o[1] = [f"s_add_u32 s{sOFF}, s{sROT}, {s.j*32*8192 + s.ps*128}", f"s_and_b32 s{sOFF}, s{sOFF}, {(512*8192-1) & ~256}"]
        if OPT["rot"] and s.mat == "w1":
            o[1] = [f"s_add_u32 s{sOFF}, s{sROT}, {s.j*32*8192}", f"s_bfe_u32 s{sOFF}, s{sOFF}, {(9<<16)|13}", f"s_mul_i32 s{sOFF}, s{sOFF}, 3584"]
        return o + [T(f"buffer_load_dwordx4 v{vd+p}, {sr(srd_,4)}, s{sOFF} offen offset:{p*1024} lds", s.tag) for p in range(4)]
    def areads(s):
        ak, a = s.areg; o = [W("vm", s.tag)]
        for Tt in range(4):
            for t in range(2):
                va, off = (vTQ + (Tt >> 1), 8*(Tt & 1)) if s.mat == "wq" else (vTF + Tt, 0)
                o.append(T(f"ds_read_b64_tr_b16 {R(ak, a+4*Tt+2*t, 2)}, v{va} offset:{s.slot*4096+t*2048+off}", s.tag))
        return o
    def breads(s):
        if not s.readb: return []
        bk, b = s.breg
        return [T(f"ds_read_b128 {R(bk, b+4*rg, 4)}, v{s.vb+(s.j&1)} offset:{s.j*4096+rg*1024}", s.tag) for rg in range(4)]
    def reads(s): return s.breads() + s.areads()
    def one(s, Tt, rg):
        ak, a = s.areg; dk, d = s.acc(Tt, rg)
        c = () if s.j else ((BIAS + 4*Tt, "v") if s.mat == "w1" else (0,))
        return mfma(dk, d, ak, a+4*Tt, s.breg[0], s.breg[1]+4*rg, *c)
    def mf(s):
        if OPT["mo"] == 1: return [s.one(Tt, rg) for rg in range(4) for Tt in range(4)]
        if OPT["mo"] == 2: return [s.one(Tt, rg if Tt % 2 == 0 else 3 - rg) for Tt in range(4) for rg in range(4)]
        return [s.one(Tt, rg) for Tt in range(4) for rg in range(4)]
def step(st, nxt_reads, dma, post=(), gb=None):
    E(W("lg", st.tag))
    plan = [[] for _ in range(16)]
    q = list(nxt_reads)
    dg = {}
    if dma:
        dg = {0: dma[:2], 3: dma[2:3], 7: dma[3:4]}
        if len(dma) == 6: dg.update({11: dma[4:5], 15: dma[5:6]})
        elif len(dma) == 8: dg.update({9: dma[4:6], 11: dma[6:7], 15: dma[7:8]})
    per = 1 if len(q) <= (16 - len(dg) - 2) else 2
    for g in range(16):
        if g in dg: plan[g] += dg[g]
        else: plan[g] += q[:per]; q = q[per:]
    assert not q
    plan[15] += list(post)
    gaps(st.mf(), plan, budget=gb or OPT["gb"])

def srd(d, ptr, off, size):
    E(f"s_add_u32 s{d}, s{ptr}, s{off}", f"s_addc_u32 s{d+1}, s{ptr+1}, 0")
    if size[0] == "rest": E(f"s_sub_u32 s{d+2}, {size[1]}, s{off}")
    else: E(f"s_mov_b32 s{d+2}, {size[1]}")
    E(f"s_mov_b32 s{d+3}, 0x00020000")

SPINS = []
def check_ready(name, vreg, load, val):
    SPINS.append((name, vreg, load, val))
    return [f"v_cmp_le_u32 vcc, {val}, v{vreg}", ["s_cmp_eq_u64 vcc, -1", f"s_cbranch_scc0 L_spin_{name}", f"L_ok_{name}:"]]
def blk(kind, lo, hi): return lambda Tt, rg: (kind, (lo, hi)[Tt >> 1] + 8*rg + 4*(Tt & 1))
def xred(op, a, b):
    return [f"v_mov_b32 v{b}, v{a}", "s_nop 1", f"v_permlane32_swap_b32 v{a}, v{b}", "s_nop 0", f"{op} v{a}, v{a}, v{b}",
            f"v_mov_b32 v{b}, v{a}", "s_nop 1", f"v_permlane16_swap_b32 v{a}, v{b}", "s_nop 0", f"{op} v{a}, v{a}, v{b}"]

def main_kernel(K):
    PRE = []
    def add(lst, mat, n, ps, acc, aregs, readb, vb):
        for j in range(n): lst.append(Stage(len(lst), mat, j, ps, acc, aregs(len(lst)), readb, vb))
    av = lambda i: ("v", B3 + 16*(i & 1)); aa = lambda i: ("a", 112 + 16*(i & 1))
    add(PRE, "wq", 16, 0, blk("v", B0, B1), av, True, vB)
    add(PRE, "w1", 16, 0, blk("v", B4, B5), av, False, vB)
    add(PRE, "wq", 16, 1, blk("v", B1, B2), av, False, vB)
    add(PRE, "w2", 7, 0, blk("v", B2, B4), aa, True, vBC)
    add(PRE, "w2", 7, 1, blk("a", 192, 224), aa, False, vBC)
    POST = []
    SETS = [("a", aKF), ("a", aKF+16), ("a", aVF), ("a", aVF+16), ("v", B0), ("v", B0+16), ("v", B0+32)]
    ao = lambda i: SETS[i % 7]
    add(POST, "wo", 16, 0, blk("v", B4, B3), ao, True, vB)
    add(POST, "wo", 16, 1, blk("v", B2, B5), ao, False, vB)
    for st in POST:
        if st.j >= 8:
            st.readb = True
            st.breg = ("v", B2 + 16*(st.j & 1)) if st.ps == 0 else ("a", 16*(st.j - 8))

    E(".p2align 12", ".p2align 8", f".globl {K}", f".type {K},@function", f"{K}:")
    E("s_cmp_ge_u32 s2, 256", "s_cbranch_scc1 L_main_end")
    E(f"s_mov_b32 s{sFLAG}, 0", [f"v_mov_b32 v{vM+j}, 0" for j in range(4)])
    E("L_restart:")
    if OPT["stamps"]: E("s_memrealtime s[86:87]")
    stamp(0)
    E("s_load_dwordx8 s[60:67], s[0:1], 0", "s_load_dwordx2 s[68:69], s[0:1], 32", "s_load_dwordx4 s[88:91], s[0:1], 48",
      "s_load_dwordx8 s[92:99], s[0:1], 64", "s_load_dwordx2 s[58:59], s[0:1], 96")
    if OPT["codepf"]:
        E("s_getpc_b64 s[100:101]", "L_pc:", f"s_sub_u32 s100, s100, L_pc-{K}", "s_subb_u32 s101, s101, 0")
        E(f"s_bfe_u32 s{sT0}, s2, 0x30003", f"s_lshl_b32 s{sT0}, s{sT0}, 14", f"v_lshlrev_b32 v{vT}, 6, v0", f"v_add_u32 v{vT}, s{sT0}, v{vT}",
          f"v_min_u32 v{vT}, L_code_end-{K}-4, v{vT}")
        E(f"v_mov_b32 v{vT+1}, s101", f"v_add_co_u32 v{vT}, vcc, s100, v{vT}", "s_nop 1", f"v_addc_co_u32 v{vT+1}, vcc, 0, v{vT+1}, vcc",
          f"global_load_dword v{PFD}, {vr(vT,2)}, off")
    l = vLANE
    pt = 128
    row, c7, t0, t1, t2, t3, t4, cl, zr, bo = range(pt, pt + 10)
    xo = pt + 12
    wa, pw = 58, 60
    def cap(fn):
        global L
        keep = L; L = []; fn(); got = [x.strip() for x in L]; L = keep
        return got
    def srdl(d, ptr, off, size):
        c = cap(lambda: srd(d, ptr, off, size)); return [c[:2], c[2], c[3]]
    E(f"v_lshrrev_b32 v{t0}, 6, v0", f"v_and_b32 v{l}, 63, v0")
    HG = OPT["hg"]; lh = HG.bit_length() - 1
    E(f"s_and_b32 s{sG}, s2, {8//HG-1}", f"s_lshl_b32 s{sG}, s{sG}, {lh}", f"s_bfe_u32 s{sT0}, s2, {(lh<<16)|3}", f"s_or_b32 s{sG}, s{sG}, s{sT0}",
      f"s_lshr_b32 s{sJJ}, s2, {3+lh}", f"s_bfe_u32 s{sRB}, s2, {(lh<<16)|(3-lh)}", f"s_lshl_b32 s{sRB}, s{sRB}, {5-lh}", f"s_or_b32 s{sRB}, s{sRB}, s{sJJ}")
    E(f"v_readfirstlane_b32 s{sW}, v{t0}")
    E(f"v_bfe_u32 v{row}, v0, 3, 3", f"v_lshl_add_u32 v{t1}, v{t0}, 4, v{row}",
      f"v_and_b32 v{c7}, 7, v0", f"v_lshlrev_b32 v{xo}, 4, v{c7}", f"v_lshl_add_u32 v{xo}, v{t1}, 10, v{xo}", f"v_add_u32 v{xo+1}, 8192, v{xo}")
    XS = 8
    if OPT["rot"]:
        if OPT["rot"] == 16: E(f"s_and_b32 s{sROT}, s{sJJ}, 15", f"s_lshr_b32 s{XS}, s{sROT}, 1", f"s_lshl_b32 s{XS}, s{XS}, 7", f"s_and_b32 s{sCNT}, s{sROT}, 1")
        else: E(f"s_and_b32 s{sROT}, s{sJJ}, {OPT['rot']-1}", f"s_mul_i32 s{sROT}, s{sROT}, {8//OPT['rot']}", f"s_lshl_b32 s{XS}, s{sROT}, 7")
        for i in range(1, 8): E(f"s_add_u32 s{XS+i}, s{XS}, {128*i}", f"s_and_b32 s{XS+i}, s{XS+i}, 1023")
        E(f"s_lshl_b32 s{sROT}, s{sROT}, {18 if OPT['rot'] == 16 else 19}")
    if OPT["qsw"]:
        E(f"s_bfe_u32 s{sT0}, s{sRB}, 0x10004", f"s_lshl_b32 s{sT0}, s{sT0}, 7", f"s_add_u32 s{sROT}, s{sROT}, s{sT0}")
    E(f"s_and_b32 s{sJJ}, s{sJJ}, {OPT['kvrot']}", f"s_lshl_b32 s{sJJ}, s{sJJ}, 13")
    natp = lambda p, stride: (16*(p & 1) + 4*(p >> 1)) * stride - p*1024
    def early():
        E(f"s_or_b32 s{sT0}, s{sG}, s{sW}", f"s_or_b32 s{sT0}, s{sT0}, s{sFLAG}", f"s_cmp_eq_u32 s{sT0}, 0", f"s_cselect_b32 s{sT2}, 0, {OOB}",
          f"v_lshlrev_b32 v{cl}, 8, v{row}", f"v_lshl_add_u32 v{cl}, v{c7}, 2, v{cl}", f"v_add_u32 v{cl}, s{sT2}, v{cl}",
          f"v_mov_b32 v{zr}, 0", f"v_mov_b32 v{vL}, s{sT2}", f"v_mov_b32 v{vL+1}, 1")
        E(f"s_mul_i32 s{sRING}, s{sW}, {NS*4096}", f"s_add_u32 s{sRING}, s{sRING}, {R_BASE}", f"s_lshl_b32 s{sVL}, s{sW}, 11", f"s_mov_b32 s{sC0}, 0xffff0000")
        E(f"v_lshrrev_b32 v{t2}, 4, v{l}", f"v_lshlrev_b32 v{t2}, 1, v{t2}", f"v_xor_b32 v{t3}, v{c7}, v{t2}", f"v_lshlrev_b32 v{t1}, 4, v{t3}",
          f"v_lshrrev_b32 v{t0}, 5, v{l}", f"v_and_b32 v{t2}, 3, v{row}", f"v_lshl_add_u32 v{t0}, v{t0}, 3, v{t2}",
          f"v_mul_u32_u24 v{t2}, 3584, v{t0}", f"s_lshl_b32 s{sT4}, s{sW}, 7", f"v_add3_u32 v{vD1}, v{t2}, v{t1}, s{sT4}",
          f"v_lshl_add_u32 v{vDV}, v{row}, 8, v{t1}",
          f"s_lshl_b32 s{sT0}, s{sW}, 8", f"v_add_u32 v{t1}, s{sT0}, v{t1}",
          f"v_lshl_add_u32 v{vDQ}, v{t0}, 13, v{t1}", f"v_lshl_add_u32 v{vDO}, v{row}, 10, v{t1}")
        if OPT["dropoob"]:
            E(f"s_and_b32 s{sT0}, s{sG}, 1", f"s_xor_b32 s{sT0}, s{sT0}, 1", f"s_mul_i32 s{sT0}, s{sT0}, 7", f"s_lshl_b32 s{sT3}, s{sW}, 1",
              f"v_lshrrev_b32 v{t3}, 2, v{t3}", f"v_or_b32 v{t3}, s{sT3}, v{t3}", f"v_cmp_eq_u32 vcc, s{sT0}, v{t3}", f"v_mov_b32 v{t2}, {OOB}", "s_nop 0",
              f"v_cndmask_b32 v{vD1}, v{vD1}, v{t2}, vcc")
        for p in range(1, 4): E(f"v_add_u32 v{vDQ+p}, {natp(p, 8192)}, v{vDQ}")
        E(f"v_xor_b32 v{t0}, v{row}, v{c7}", f"v_and_b32 v{t1}, 3, v{c7}", f"v_lshl_add_u32 v{t0}, v{t1}, 4, v{t0}", f"v_lshlrev_b32 v{t0}, 4, v{t0}",
          f"v_lshrrev_b32 v{t1}, 2, v{c7}", f"v_lshl_add_u32 v{t0}, v{t1}, 12, v{t0}", f"s_lshl_b32 s{sT0}, s{sW}, 10", f"v_add_u32 v{wa}, s{sT0}, v{t0}")
        if OPT["rot"] == 16:
            E(f"s_lshl_b32 s{sT0}, s{sCNT}, 6", f"v_xor_b32 v{wa}, s{sT0}, v{wa}", f"s_lshl_b32 s{sT0}, s{sCNT}, 12", f"s_sub_u32 s{sT0}, 8192, s{sT0}",
              f"v_add_u32 v{wa}, s{sT0}, v{wa}", f"v_add_u32 v{wa+1}, {65536-8192}, v{wa}", f"v_and_b32 v{wa+1}, 0xffff, v{wa+1}")
        E(f"s_lshl_b32 s{sT0}, s{sRB}, 16", f"s_lshl_b32 s{sT1}, s{sRB}, 12", f"s_add_u32 s{sT1}, s{sT1}, {FLAG_OFF}")
        E(f"s_lshr_b32 s{sT3}, s{sG}, 1", f"s_mul_i32 s{sT3}, s{sT3}, 896", f"s_and_b32 s{sT2}, s{sG}, 1", f"s_mul_i32 s{sT2}, s{sT2}, 384",
          f"s_add_u32 s{sT3}, s{sT3}, s{sT2}")
    EARLY = []
    if OPT["lean"]:
        EARLY = cap(early); E(f"s_lshl_b32 s{sT0}, s{sRB}, 16")
    else: early()
    E("s_waitcnt lgkmcnt(0)")
    srd(sX, 60, sT0, ("imm", 65536))
    RAW = 64; ACCH = B4
    U1 = EARLY + srdl(sB1, 90, sT3, ("rest", 3584)) + srdl(sP, 58, sT1, ("imm", 1024)) + \
         [T(f"buffer_store_dword v{zr}, v{cl}, {sr(sP,4)}, 0 offen sc1", "clr")] + srdl(sW1, 88, sT3, ("rest", 1835008))
    def trs():
        E(f"v_lshrrev_b32 v{t0}, 2, v{l}", f"v_lshlrev_b32 v{t0}, 7, v{t0}", f"v_bfe_u32 v{t1}, v{l}, 3, 2", f"v_and_b32 v{t2}, 3, v{l}",
          f"v_lshl_add_u32 v{t3}, v{t2}, 3, v{t0}")
        for Tt in range(4):
            E(f"v_xor_b32 v{t4}, {Tt}, v{t1}", f"v_lshl_add_u32 v{vTV+Tt}, v{t4}, 5, v{t3}", f"v_add_u32 v{vTF+Tt}, s{sRING}, v{vTV+Tt}")
        E(f"v_and_b32 v{t3}, 1, v{l}", f"v_lshl_add_u32 v{t3}, v{t3}, 4, v{t0}", f"v_add_u32 v{t3}, s{sRING}, v{t3}", f"v_lshrrev_b32 v{t2}, 1, v{t2}",
          f"v_xor_b32 v{t2}, v{t2}, v{t1}")
        for t32 in range(2): E(f"v_xor_b32 v{t4}, {2*t32}, v{t2}", f"v_lshl_add_u32 v{vTQ+t32}, v{t4}, 5, v{t3}")
        E(f"v_lshrrev_b32 v{t1}, 4, v{l}", f"v_xor_b32 v{t1}, v{t1}, v{l}", f"v_lshlrev_b32 v{vB}, 4, v{t1}", f"v_xor_b32 v{vB+1}, 64, v{vB}")
    U1 += cap(trs)
    U1 += [f"v_lshrrev_b32 v{t3}, 4, v0", f"v_and_b32 v{t4}, 15, v0", f"v_lshlrev_b32 v{pw}, 6, v{t4}", f"v_lshl_add_u32 v{pw}, v{t3}, 13, v{pw}",
           f"v_lshlrev_b32 v{pw+2}, 4, v0", f"v_lshlrev_b32 v{pw+3}, 5, v0", f"v_mul_u32_u24 v{t3}, 3584, v{t3}", f"v_lshl_add_u32 v{pw+1}, v{t4}, 5, v{t3}"]
    U1 += [f"s_lshl_b32 s{sT0}, s{sG}, 10"] + srdl(sWQ, 66, sT0, ("rest", 4194304))
    U1 += [f"s_lshl_b32 s{sT0}, s{sG}, 19"] + srdl(sWO, 68, sT0, ("rest", 4194304))
    U1 += [f"s_mul_i32 s{sT2}, s{sG}, {224*1024}"] + srdl(sW2, 92, sT2, ("rest", 1835008))
    U1 += [x for p in range(1, 4) for x in (f"v_add_u32 v{vD1+p}, {natp(p, 3584)}, v{vD1}", f"v_add_u32 v{vDO+p}, {p*(8*1024-1024)}, v{vDO}")]
    U1 = deque(U1); per = (len(U1) + 15) // 16
    for i in range(8):
        for p in range(2):
            if OPT["rot"]: E(T(f"buffer_load_dwordx4 {vr(RAW+32*p+4*i,4)}, v{xo+p}, {sr(sX,4)}, s{XS+i} offen", ("x", p, i)))
            else: E(T(f"buffer_load_dwordx4 {vr(RAW+32*p+4*i,4)}, v{xo+p}, {sr(sX,4)}, 0 offen offset:{i*128}", ("x", p, i)))
            for _ in range(per):
                if U1: E(U1.popleft())
    stamp(2)
    E(f"s_add_u32 s{sT0}, s{sT0}, {1536*256}"); srd(sK, 62, sT0, ("imm", 131072)); srd(sV, 64, sT0, ("imm", 131072))
    srd(sFL, 58, sT1, ("imm", 1024))
    E(f"s_lshl_b32 s{sT0}, s{sRB}, 2"); srd(sDBG, 98, sT0, ("imm", 4))
    if OPT["stubs"]:
        E("s_mov_b64 exec, 0")
        for w_ in range(3): E(f"s_cmp_eq_u32 s{sW}, {w_}", f"s_cbranch_scc1 L_pg{w_}")
        E("s_branch L_pg3", "L_pgret:", "s_mov_b64 exec, -1")
    def later():
        E(f"s_and_b32 s{sT0}, s{sW}, 1", f"s_lshl_b32 s{sT0}, s{sT0}, 12", f"s_lshr_b32 s{sT1}, s{sW}, 1", f"s_lshl_b32 s{sT1}, s{sT1}, 7",
          f"s_add_u32 s{sT0}, s{sT0}, s{sT1}", f"v_add_u32 v{vDV}, s{sT0}, v{vDV}", f"v_add_u32 v{vDV+1}, 1024, v{vDV}")
        E(f"v_lshrrev_b32 v{t0}, 4, v{l}")
        for p in range(2):
            E(f"s_lshl_b32 s{sT0}, s{sW}, 3", f"s_add_u32 s{sT0}, s{sT0}, {4*p}", f"v_add_u32 v{t2}, s{sT0}, v{t0}",
              f"v_xor_b32 v{t3}, v{t2}, v{l}", f"v_and_b32 v{t3}, 15, v{t3}", f"v_lshlrev_b32 v{t3}, 4, v{t3}",
              f"v_lshl_add_u32 v{vDK+p}, v{t2}, 8, v{t3}")
            if p: E(f"v_subrev_u32 v{vDK+p}, 1024, v{vDK+p}")
        E(f"v_and_b32 v{t1}, 15, v{l}", f"v_lshlrev_b32 v{t2}, 8, v{t1}", f"v_add_u32 v{t2}, {KR_BASE}, v{t2}", f"v_xor_b32 v{t1}, v{t1}, v{t0}")
        E(f"s_bfe_u32 s{sT0}, s{sROT}, 0x10007", f"s_lshl_b32 s{sT0}, s{sT0}, 3", f"v_xor_b32 v{t1}, s{sT0}, v{t1}")
        for s_ in range(4): E(f"v_xor_b32 v{t3}, {4*s_}, v{t1}", f"v_lshl_add_u32 v{vKR+s_}, v{t3}, 4, v{t2}")
        E(f"s_lshl_b32 s{sT0}, s{sW}, 14", f"v_lshlrev_b32 v{vST}, 4, v{l}", f"v_add_u32 v{vST}, s{sT0}, v{vST}")
    LATER = cap(later)
    LATER += [f"s_mul_i32 s{sT0}, s{sRB}, {8*PSTR}"] + srdl(sP, 58, sT0, ("imm", 8*PSTR))
    LATER += [f"s_mul_i32 s{sT1}, s{sG}, {PSTR}", f"s_add_u32 s{sT0}, s{sT0}, s{sT1}"] + srdl(sPR, 58, sT0, ("imm", 131072))
    LATER += [f"s_lshr_b32 s{sT1}, s{sG}, 2", f"s_lshl_b32 s{sT1}, s{sT1}, 6", f"s_lshl_b32 s{sT0}, s{sW}, 8", f"s_add_u32 s{sT1}, s{sT1}, s{sT0}"] + srdl(sB2, 94, sT1, ("rest", 1024))
    LATER += [f"s_and_b32 s{sT0}, s{sG}, 3", f"s_lshl_b32 s{sT0}, s{sT0}, 14", f"s_add_u32 s{sVOFF}, s{sT0}, s{sT1}"]
    LATER += [f"s_lshl_b32 s{sT0}, s{sRB}, 16"] + srdl(sOUT, 96, sT0, ("imm", 65536))
    LATER2 = LATER[41:]
    BRW1 = 50
    LATER = [f"v_lshrrev_b32 v{bo}, 4, v{l}", f"v_lshlrev_b32 v{bo}, 3, v{bo}", f"s_lshl_b32 s{sT2}, s{sW}, 7"] + \
            [T(f"buffer_load_dwordx2 {vr(BRW1+2*q,2)}, v{bo}, {sr(sB1,4)}, s{sT2} offen offset:{q*32}", "bias") for q in range(4)] + LATER[:41]
    LATER.append(W("vm", "bias"))
    for r in range(16):
        LATER.append((f"v_lshlrev_b32 v%d, 16, v{BRW1+r//2}" if r % 2 == 0 else f"v_and_b32 v%d, s{sC0}, v{BRW1+r//2}") % (BIAS+r))
        LATER.append(f"v_mul_f32 v{BIAS+r}, {f32(CS)}, v{BIAS+r}")
    PFS = [[f"s_lshl_b32 s{sT3}, s{sRB}, 17", f"buffer_load_dword v{PFD}, v{pw}, {sr(sWQ,4)}, s{sT3} offen"],
           [f"s_mul_i32 s{sT3}, s{sRB}, 7168", f"buffer_load_dword v{PFD}, v{pw+3}, {sr(sW2,4)}, s{sT3} offen"],
           [f"s_lshl_b32 s{sT3}, s{sRB}, 12", f"buffer_load_dword v{PFD}, v{pw+2}, {sr(sK,4)}, s{sT3} offen"],
           [f"buffer_load_dword v{PFD}, v{pw+2}, {sr(sV,4)}, s{sT3} offen"]]
    SP = deque()
    for s_ in range(OPT["ini"]):
        d = PRE[s_].dma(); SP.append(d[:3]); SP.extend(d[3:])
    if OPT["pfpos"] == 1: SP.extend(PFS)
    if OPT["pfpos"] == 2: SP.append([f"s_mul_i32 s{sT3}, s{sRB}, {16*3584}", f"buffer_load_dword v{PFD}, v{pw+1}, {sr(sW1,4)}, s{sT3} offen"])
    if OPT["pfpos"] == 3: SP.append([f"s_mul_i32 s{sT3}, s{sRB}, {16*3584}", f"buffer_load_dword v{PFD}, v{pw+1}, {sr(sW1,4)}, s{sT3} offen"]); SP.append(PFS[1])
    if OPT["pfpos"] == 4: SP.append(PFS[1])
    PFN = {"q": PFS[0], "w2": PFS[1], "k": PFS[2], "v": [f"s_lshl_b32 s{sT3}, s{sRB}, 12"] + PFS[3],
           "w1": [f"s_mul_i32 s{sT3}, s{sRB}, {16*3584}", f"buffer_load_dword v{PFD}, v{pw+1}, {sr(sW1,4)}, s{sT3} offen"]}
    PFAT = {}
    for it_ in str(OPT["pfs"]).split("_"):
        if it_:
            nm, at = it_.split("@"); PFAT.setdefault(int(at), []).extend(PFN[nm])
    if -1 in PFAT: SP.append(PFAT[-1])
    if -3 in PFAT:
        l_ = list(SP); x_ = PFAT[-3]; SP.clear(); SP.extend(l_[:OPT["pfk"]] + [x_[k:k+2] for k in range(0, len(x_), 2)] + l_[OPT["pfk"]:])
    if -2 in PFAT: SP.appendleft(PFAT[-2])
    nsp = [0]
    def sp(n=1, force=False):
        for _ in range(n):
            if SP and (force or nsp[0] < OPT["npre"]): E(SP.popleft()); nsp[0] += 1
    SUM, SQ = 50, 54
    for i in range(8):
        for p in range(2):
            E(W("vm", ("x", p, i)))
            r = RAW + 32*p + 4*i; u = B2 + 32*p + 4*i; m = SUM + 2*p; q = SQ + 2*p
            for j in range(4): E(f"v_lshlrev_b32 v{u+j}, 16, v{r+j}", f"v_and_b32 v{r+j}, s{sC0}, v{r+j}")
            for k, b_ in enumerate((u, r, u+2, r+2)):
                if i == 0 and k == 0: E(f"v_pk_add_f32 {vr(m,2)}, {vr(u,2)}, {vr(r,2)}", f"v_pk_mul_f32 {vr(q,2)}, {vr(u,2)}, {vr(u,2)}")
                elif i == 0 and k == 1: E(f"v_pk_fma_f32 {vr(q,2)}, {vr(b_,2)}, {vr(b_,2)}, {vr(q,2)}")
                else: E(f"v_pk_add_f32 {vr(m,2)}, {vr(m,2)}, {vr(b_,2)}", f"v_pk_fma_f32 {vr(q,2)}, {vr(b_,2)}, {vr(b_,2)}, {vr(q,2)}")
            if 2*i + p >= OPT["sp0"]: sp(OPT["spn"])
    stamp(2)
    E(W("vm", "clr"), f"buffer_store_dword v{vL+1}, v{vL}, {sr(sDBG,4)}, 0 offen sc1")
    R4 = [SUM, SUM+2, SQ, SQ+2]
    for v in R4: E(f"v_add_f32 v{v}, v{v}, v{v+1}")
    for md in ("quad_perm:[1,0,3,2]", "quad_perm:[2,3,0,1]", "row_half_mirror"):
        for v in R4: E(f"v_add_f32_dpp v{v}, v{v}, v{v} {md} row_mask:0xf bank_mask:0xf")
    def both(fmt): E([fmt.format(m=SUM+2*p, q=SQ+2*p) for p in range(2)])
    both(f"v_mul_f32 v{{m}}, {f32(1/512)}, v{{m}}"); both(f"v_mul_f32 v{{q}}, {f32(1/512)}, v{{q}}")
    both("v_fma_f32 v{q}, -v{m}, v{m}, v{q}"); both("v_max_f32 v{q}, 0, v{q}")
    both("v_cvt_pk_bf16_f32 v{q}, v{q}, v{m}")
    both(f"v_and_b32 v{{m}}, s{sC0}, v{{q}}"); both("v_lshlrev_b32 v{q}, 16, v{q}")
    both(f"v_add_f32 v{{q}}, {f32(1e-5)}, v{{q}}"); both("v_cvt_pk_bf16_f32 v{q}, v{q}, v{q}"); both("v_lshlrev_b32 v{q}, 16, v{q}")
    both("v_sqrt_f32 v{q}, v{q}"); E("s_nop 0"); both("v_cvt_pk_bf16_f32 v{q}, v{q}, v{q}"); both("v_lshlrev_b32 v{q}, 16, v{q}")
    both("v_rcp_f32 v{q}, v{q}"); E("s_nop 0"); both(f"v_mul_f32 v{{q}}, {f32(CS)}, v{{q}}"); both("v_mul_f32 v{m}, v{m}, v{q}")
    stamp(2)
    for i in range(8):
        for p in range(2):
            r = RAW + 32*p + 4*i; u = B2 + 32*p + 4*i
            for b_ in (u, r, u+2, r+2):
                E(f"v_pk_fma_f32 {vr(b_,2)}, {vr(b_,2)}, {vr(SQ+2*p,2)}, {vr(SUM+2*p,2)} op_sel_hi:[1,0,0] neg_lo:[0,0,1] neg_hi:[0,0,1]")
            for j in range(4): E(f"v_cvt_pk_bf16_f32 v{r+j}, v{u+j}, v{r+j}")
            if OPT["rot"] == 16: E(f"ds_write_b128 v{wa+1 if i == 0 else wa}, {vr(r,4)} offset:{max(0, i-1)*8192+p*128}")
            else: E(f"ds_write_b128 v{wa}, {vr(r,4)} offset:{i*8192+p*128}")
    stamp(2)
    sp(99, force=True)
    E(PRE[0].areads())
    E("s_waitcnt lgkmcnt(8)", "s_barrier")
    if OPT["stamps"] < 4: stamp(0)
    E(PRE[0].breads())
    BG.extend(LATER)
    def kreads(t): return [T(f"ds_read_b128 {ar(aKF+8*s_+4*hk,4)}, v{vKR+s_} offset:{(t&3)*8192+hk*4096}", ("kf", t)) for s_ in range(4) for hk in range(2)]
    def vreads(t): return [T(f"ds_read_b64_tr_b16 {ar(aVF+4*T8+2*t_,2)}, v{vTV+(T8&3)} offset:{(t&3)*8192+(T8>>2)*4096+t_*2048}", ("vf", t))
                           for T8 in range(8) for t_ in range(2)]
    def qk(x, dst, zero=False):
        return [mfma("v", dst+8*rl+4*hk, "a", aKF+8*s_+4*hk, "v", QFr(2*x+rl, s_), *(((0,) if zero else (NEGM+4*(2*x+rl), "v")) if s_ == 0 else ()))
                for s_ in range(4) for hk in range(2) for rl in ((0, 1) if (hk == 0 or not OPT["ao"]) else (1, 0))]
    def pv(x, p, zero=False):
        return [mfma("v", LQ[2*x+rl], "v", ONES, "v", p+4*rl, 0 if zero else None) for rl in range(2)] + \
               [mfma("a", aO+64*x+16*(T8>>1)+8*rl+4*(T8&1), "a", aVF+4*T8, "v", p+4*rl, 0 if zero else None) for T8 in range(8) for rl in ((0, 1) if (T8 % 2 == 1 or not OPT["ao"]) else (1, 0))]
    def sm_plan(x, s, p, n=32):
        pl = [[] for _ in range(n)]
        for j in range(16): pl[max(0, 2*j-1) if n == 32 else 2*j+1].append(f"v_exp_f32 v{s+j}, v{s+j}")
        for k in range(8): pl[min(31, 4*k+4) if n == 32 else 4*k+6].append(f"v_cvt_pk_bf16_f32 v{p+k}, v{s+2*k}, v{s+2*k+1}")
        return pl
    vSTX = (vST, vRD, vTQ, vTQ + 1)
    def pst(reg, typ, ps, p, tag=None): return T(f"buffer_store_dwordx4 {vr(reg,4)}, v{vSTX[2*typ+ps]}, {sr(sP,4)}, s{stab(p)} offen{'' if (OPT['wb'] and tag == ('sst', 0)) else ' sc1'}", tag)
    def pld(dst, typ, ps, p, tag): return T(f"buffer_load_dwordx4 {dst}, v{vSTX[2*typ+ps]}, {sr(sPR,4)}, {'0' if p < 4 else 's%d' % sROT} offen offset:{(p&3)*1024} sc1", tag)
    def pack(kind, src, tmp):
        o = []; b = tmp if kind == "a" else src
        if kind == "a":
            for r in range(8): o.append(f"v_accvgpr_read_b32 v{b+r}, a{src+r}")
        return o + [f"v_cvt_pk_bf16_f32 v{b+j}, v{b+2*j}, v{b+2*j+1}" for j in range(4)]
    NP = len(PRE)
    KV = deque([dma_v(0) + dma_k(2), dma_v(1) + dma_k(3), dma_v(2)])
    vHW = vD1
    PZ = vDQ
    POI = [pst(PZ, 0, q // 7, 1 + q % 7) for q in range(14)]
    FTB = lambda n: B5 + 16
    STQ = deque(POI[:5])
    for n in range(8): STQ.extend([pst(B2 + 4*n, 1, 0, n), POI[5 + n]])
    STQ.extend(POI[13:])
    FSQ = deque(pst(FTB(n), 1, 1, n) for n in range(8))
    WA8 = vDQ
    def wa8(sh):
        o = [f"s_and_b32 s{sT0}, s{sG}, 3", f"s_lshl_b32 s{sT0}, s{sT0}, 10", f"s_lshl_b32 s{sT1}, s{sW}, {sh}", f"s_add_u32 s{sT0}, s{sT0}, s{sT1}"]
        for j in range(2):
            o.append(f"v_add_u32 v{WA8+4*j}, s{sT0}, v{vB+j}")
            for rg in range(1, 4): o.append(f"v_xor_b32 v{WA8+4*j+rg}, {rg*1024}, v{WA8+4*j}")
        return o
    nq = [OPT["ini"]]
    HP = lambda n: B4 + 4*n
    for i, st in enumerate(PRE):
        post = []
        if nq[0] < NP: d = PRE[nq[0]].dma(); nq[0] += 1
        else: d = KV.popleft() if KV else []
        if nq[0] <= i + NS and nq[0] < NP: post = PRE[nq[0]].dma(); nq[0] += 1
        if OPT["pfpos"] == 2 and i == OPT["pf2"]: post = PFS[1] + PFS[2] + PFS[3]
        if OPT["pfpos"] == 2 and i == OPT["pf1"]: post = PFS[0]
        post = post + PFAT.get(i, [])
        if i == 16:
            flush(); E("s_nop 1")
            post = post + ["s_barrier"]
        if i == 17:
            for j in range(32): BG.append(f"v_cvt_pk_bf16_f32 v{B0+j}, v{B0+2*j}, v{B0+2*j+1}")
            BG.extend([f"s_and_b32 s{sT0}, s{sG}, 1", f"s_lshl_b32 s{sT1}, s{sT0}, 12", f"s_lshl_b32 s{sT0}, s{sT0}, 6"])
            for j in range(2): BG.extend([f"v_xor_b32 v{vBC+j}, s{sT0}, v{vB+j}", f"v_add_u32 v{vBC+j}, s{sT1}, v{vBC+j}"])
            BG.extend([f"s_lshl_b32 s{sT0}, s{sW}, 8", f"s_lshl_b32 s{sT1}, s{sG}, 2", f"s_add_u32 s{sT0}, s{sT0}, s{sT1}",
                       f"v_min_u32 v{vPUB}, 1, v{l}", f"v_lshlrev_b32 v{vPUB}, 30, v{vPUB}", f"v_add_u32 v{vPUB}, s{sT0}, v{vPUB}",
                       f"s_lshl_b32 s{sT0}, s{sW}, 8",
                       f"v_and_b32 v{vPOLL}, 7, v{l}", f"v_lshlrev_b32 v{vPOLL}, 2, v{vPOLL}", f"v_add_u32 v{vPOLL}, s{sT0}, v{vPOLL}",
                       f"v_add_u32 v{vRD}, 8192, v{vST}"])
            for j in range(4): BG.append(f"v_mov_b32 v{ONES+j}, 0x3f803f80")
            BG.extend(LATER2)
        if i == 32: flush()
        if i == 33:
            BG.extend([f"s_lshr_b32 s{sT0}, s{sG}, 2", f"s_lshl_b32 s{sT0}, s{sT0}, 6"])
            for j in range(4): BG.append(f"v_xor_b32 v{vTF+j}, s{sT0}, v{vTF+j}")
            for n in range(8):
                b = ACCH + 8*n
                for r in range(8): BG.append(f"v_max_f32 v{b+r}, 0, v{b+r}")
                for r in range(8): BG.append(f"v_mul_f32 v{b+r}, v{b+r}, v{b+r}")
                for j in range(4): BG.append(f"v_cvt_pk_bf16_f32 v{HP(n)+j}, v{b+2*j}, v{b+2*j+1}")
        if i == 36: post = dma_k(0)
        if i == 38: post = dma_k(1)
        if i == 44: post = [W("vm", ("K", 1)), "s_barrier"]
        if i == 45:
            for x in reversed(kreads(0)): BG.appendleft(x)
        if i == 54: post = ["s_barrier"]
        if i == 56:
            for n in range(8):
                b_ = (B2, B4)[n >> 2] + 8*(n & 3)
                for j in range(4): BG.append(f"v_cvt_pk_bf16_f32 v{B2+4*n+j}, v{b_+2*j}, v{b_+2*j+1}")
        if i == 43: BG.extend(wa8(13))
        if i == 49:
            for x in reversed([f"v_mov_b32 v{PZ+j}, {SENT:#x}" for j in range(4)] + [f"v_add_u32 v{vTQ}, 65536, v{vST}", f"v_add_u32 v{vTQ+1}, 65536, v{vRD}", f"s_mov_b32 s{sROT}, 4096"] +
                              [y for p in range(8) for y in (f"s_xor_b32 s{stab(p)}, s{sG}, {p}", f"s_mul_i32 s{stab(p)}, s{stab(p)}, {PSTR}", f"s_add_u32 s{stab(p)}, s{stab(p)}, {p*1024}")]):
                BG.appendleft(x)
        if i >= 57: post = post + [STQ.popleft()]
        step(st, PRE[48].areads() if i == 47 else PRE[i + 1].reads() if i + 1 < NP else [], d, post=post, gb=(OPT["f2b"] if 48 <= i < 54 else None))
        if i in (15, 47): stamp()
        if i in (3, 7, 11, 15, 19, 23, 27, 31, 35, 39, 43): stamp(3)
        if i == 47:
            flush()
            E(W("lg", ("kf", 0)))
            q0, q1 = qk(0, S0, True), qk(1, S1[0], True)
            cv = [f"v_cvt_pk_bf16_f32 v{B1+j}, v{B1+2*j}, v{B1+2*j+1}" for j in range(32)]
            hw = [T(f"ds_write_b128 v{WA8+n}, {vr(HP(n),4)} offset:{(n>>2)*4096}", "hw") for n in range(8)]
            pl = [[] for _ in range(32)]
            for g in range(2, 13): pl[g] = cv[3*(g-2):3*(g-1)]
            h0 = OPT["hw0"]
            for n in range(8): pl[h0 + 2*n].append(hw[n])
            pl[min(31, h0 + 18)] += [W("lg", "hw"), "s_barrier"] + PRE[48].breads()
            gaps(q0[:8] + q1[:8] + q0[8:] + q1[8:], pl)
            BG.extend(kreads(1))
            for rg in range(4):
                s = (S0, S1[0])[rg >> 1] + 8*(rg & 1); m = vT
                BG.extend([f"v_max3_f32 v{m}, v{s}, v{s+1}, v{s+2}", f"v_max3_f32 v{m}, v{m}, v{s+3}, v{s+4}", f"v_max3_f32 v{m}, v{m}, v{s+5}, v{s+6}",
                           f"v_max_f32 v{m}, v{m}, v{s+7}"] + xred("v_max_f32", m, vT+1))
                BG.extend([[f"s_cmp_lg_u32 s{sFLAG}, 0", "s_cselect_b64 vcc, -1, 0"], "s_nop 0", f"v_cndmask_b32 v{m}, v{m}, v{vM+rg}, vcc"])
                for r in range(4): BG.append(f"v_sub_f32 v{NEGM+4*rg+r}, 0, v{m}")
                for r in range(8): BG.append(f"v_sub_f32 v{s+r}, v{s+r}, v{m}")
            sp0_ = [y for g in sm_plan(0, S0, P0[0]) for y in g]
            BG.extend(sp0_[:-1] + ["s_nop 0"] + sp0_[-1:])
    flush()
    stamp()
    E(W("vm", ("K", 2)), "s_waitcnt lgkmcnt(0)")
    def att_iter(i, x1=(), x2=()):
        if i == 0: E("s_barrier")
        pl = sm_plan(1, S1[i&1], P1)
        x1 = list(x1)
        for g, x in zip((2, 2, 4, 6, 6, 8, 10, 10, 12, 14, 14, 16, 18, 18, 20, 22), vreads(i)): pl[g].append(x)
        if x1:
            pl[22] += x1[:1]; pl[24] += x1[1:2]
            for g, x in zip((26, 28, 30, 31), x1[2:]): pl[g].append(x)
        elif STQ: pl[26].append(STQ.popleft())
        gaps(qk(0, S0) + qk(1, S1[(i+1)&1]), pl)
        pl = sm_plan(0, S0, P0[(i+1)&1], 36)
        pl[1] = [W("lg", ("vf", i))] + pl[1]
        if i + 2 < 16:
            for g, x in zip((2, 2, 4, 4, 6, 8, 8, 10), kreads(i + 2)): pl[g].append(x)
        if i == 14:
            for g, x in zip((2, 2, 4, 4, 6, 8, 8, 10, 12, 12, 14, 16, 16, 18, 20, 20, 22, 24), POST[0].areads() + POST[1].areads()): pl[g].append(x)
        dv = dma_v(i + 3) if i + 3 < 16 else []
        dk = dma_k(i + 5) if i + 5 < 16 else []
        pl[0] += list(x2)
        if STQ: pl[12].append(STQ.popleft())
        if dv: pl[14] += dv[:1]; pl[14] += dv[1:2]; pl[16] += dv[2:3]; pl[20] += dv[3:]
        if dk: pl[22] += dk[:2]; pl[24] += dk[2:3]; pl[28] += dk[3:]
        pl[32] += [W2(W("vm", ("K", i+3)), W("vm", ("V", i+1)), W("lg", ("kf", i+2)))]
        pl[33] = ["s_barrier"] + pl[33]
        mf = pv(0, P0[i&1], zero=(i == 0)) + pv(1, P1, zero=(i == 0))
        gaps(mf[:35], pl[:35])
        flush()
        if FSQ: pl[35].append(FSQ.popleft())
        elif STQ: pl[35].append(STQ.popleft())
        gaps(mf[35:], pl[35:])
    VAL = vT + 3; GATE = vT + 4; POL = vT + 5
    poll = f"buffer_load_dword v{POL}, v{vPOLL}, {sr(sFL,4)}, 0 offen sc1"
    pub = f"buffer_store_dword v{VAL}, v{vPUB}, {sr(sFL,4)}, 0 offen sc1"
    for i in range(15):
        x1 = []; x2 = []
        if i == 0:
            x1 = dma_k(4)
            BG.extend([f"v_lshlrev_b32 v{vT}, 6, v0", f"v_mov_b32 v{vT+1}, 0", f"v_mov_b32 v{VAL}, 1"])
        if i == OPT["wopf"] and not OPT["wo4"]: BG.append([f"s_lshl_b32 s{sT1}, s{sRB}, 14", f"buffer_load_dword v{PFD}, v{vT}, {sr(sWO,4)}, s{sT1} offen"])
        if i == OPT["wop2"]: BG.extend([f"s_xor_b32 s{sT1}, s{sRB}, 16", [f"s_lshl_b32 s{sT1}, s{sT1}, 14", f"buffer_load_dword v{PFD}, v{vT}, {sr(sWO,4)}, s{sT1} offen"]])
        if i < 8: BG.extend(pack("a", 192 + 8*i, FTB(i)))
        gl = f"buffer_load_dword v{GATE}, v{vT+1}, {sr(sDBG,4)}, 0 offen sc1"
        if i == 2: BG.append(T(gl, "gate"))
        if i == 9: BG.extend([W("vm", "gate")] + check_ready("gate", GATE, gl, 1))
        if i == 10: x2 = ["s_waitcnt vmcnt(0)", pub]
        if i == 12: x2 = [T(poll, "fpoll")]
        FLD = [pld(ar(aFL+4*n,4), 1, n >> 3, n & 7, ("fl", n)) for n in range(16)]
        nf1 = 6
        if OPT["fchk"] == 14:
            if i == 14: BG.extend([W("vm", "fpoll")] + check_ready("f", POL, poll, 1) + FLD[:6])
        else:
            nf1 = 16
            if i == 13: BG.extend([W("vm", "fpoll")] + check_ready("f", POL, poll, 1) + FLD[:9])
            if i == 14: BG.extend(FLD[9:])
        wol = [int(x) for x in OPT["wol"].split("_")]
        if i in wol: x1 = POST[wol.index(i)].dma()
        if i >= 3: stamp(4)
        if i < 12: stamp(6)
        if i == 10: assert not STQ and not FSQ, (len(STQ), len(FSQ))
        att_iter(i, x1=x1, x2=x2)
    i = 15
    E(vreads(i))
    WA8 = NEGM
    E(wa8(14))
    pl32 = sm_plan(1, S1[i&1], P1)
    E(pl32[:2])
    mf = pv(0, P0[i&1])
    gaps(mf[:2], [pl32[2] + pl32[3], pl32[4] + pl32[5]])
    E("s_waitcnt lgkmcnt(0)")
    pl = [pl32[6+2*g] + pl32[7+2*g] if g < 13 else [] for g in range(16)]
    pl[0] = ["s_barrier"] + pl[0]
    d6 = POST[6].dma()
    pl[13] = d6[:3]; pl[14] = d6[3:4]; pl[15] = d6[4:5]
    gaps(mf[2:], pl)
    OT = B2
    pl = [d6[5:]] + ([[x] for x in FLD[nf1:]] or [[]] * 6) + [[f"v_rcp_f32 v{LR+2*rg}, v{LQ[rg]}"] for rg in range(4)]
    gaps(pv(1, P1), pl)
    E(f"v_add_f32 v{vT+1}, v{LQ[0]}, v{LQ[1]}", f"v_add_f32 v{vT+2}, v{LQ[2]}, v{LQ[3]}", f"s_mov_b32 s{sT1}, {f32(2.0**OPT['thr'])}", f"v_add_f32 v{vT+1}, v{vT+1}, v{vT+2}",
      f"v_cmp_nge_f32 vcc, s{sT1}, v{vT+1}", f"v_and_b32 v{vT+2}, 3, v{l}", f"v_mul_u32_u24 v{vT+2}, {NS*4096}, v{vT+2}",
      "s_cmp_lg_u64 vcc, 0", f"s_cselect_b32 s{sT1}, 1, 0", f"v_mov_b32 v{vT}, s{sT1}",
      f"s_lshl_b32 s{sT1}, s{sW}, 2", f"s_add_u32 s{sT1}, s{sT1}, {R_BASE}", f"v_add_u32 v{vT+2}, s{sT1}, v{vT+2}", f"v_mov_b32 v{vT+1}, s{sRING}",
      f"ds_write_b32 v{vT+2}, v{vT} offset:{1*4096}")
    E(POST[2].areads(), POST[3].areads())
    stamp()
    for n in range(16):
        x, T32, rl = n >> 3, (n >> 1) & 3, n & 1
        b = OT + 8*(n & 7); rg = 2*x + rl
        for r in range(8): E(f"v_accvgpr_read_b32 v{b+r}, a{aO+8*n+r}")
        for j in range(4): E(f"v_pk_mul_f32 {vr(b+2*j,2)}, {vr(b+2*j,2)}, {vr(LR+2*rg,2)} op_sel_hi:[1,0]")
        for j in range(4): E(f"v_cvt_pk_bf16_f32 v{b+j}, v{b+2*j}, v{b+2*j+1}")
        E(f"ds_write_b128 v{WA8+4*(T32&1)+rg}, {vr(b,4)} offset:{T32*4096}")
    E(W("lg", POST[3].tag), POST[8].dma(), POST[9].dma())
    E("s_waitcnt lgkmcnt(0)", "s_barrier")
    E(T(f"ds_read_b128 {vr(56,4)}, v{vT+1} offset:{1*4096}", "flg"), POST[0].breads())
    E(W("lg", "flg"))
    E(f"v_or3_b32 v{vT}, v56, v57, v58", f"v_or_b32 v{vT}, v{vT}, v59", "s_nop 0", f"v_readfirstlane_b32 s{sT0}, v{vT}",
      "s_nop 0", f"s_andn2_b32 s{sT0}, s{sT0}, s{sFLAG}", "s_cbranch_scc1 L_slow")
    E(POST[7].dma())
    stamp(); stamp(5)
    GV, XO, XR, BRW, TM = 112, vT, 56, 40, 8
    sacc = lambda ps, n: ((B4, B3), (B2, B5))[ps][n >> 2] + 8*(n & 3)
    sepi = lambda ps, n: pack("v", sacc(ps, n), None) + [pst(sacc(ps, n), 0, ps, n, ("sst", ps))] if n else []
    def SLr(ps, p): return B3 + 4*(p - 1) if ps == 0 else (B4 + 4 + 4*p if p < 7 else B3 + 28)
    def sloads(ps): return [pld(vr(SLr(ps, p), 4), 0, ps, p, ("sl", ps, p)) for p in range(1, 8)]
    sst = [int(x) for x in str(OPT["sst"]).split("_")]
    def fmath(pk, part=2):
        o = []; TQ = 18
        for ps in range(2):
            G_ = GV + 8*ps
            for g in range(8):
                n = 8*ps + g
                for j in range(4): o.append(f"v_accvgpr_read_b32 v{TQ+8+j}, a{aFL+4*n+j}")
                d0 = G_ if g == 0 else TQ
                for j in range(4): o += [f"v_lshlrev_b32 v{d0+2*j}, 16, v{TQ+8+j}", f"v_and_b32 v{d0+2*j+1}, s{sC0}, v{TQ+8+j}"]
                if g and pk: o += [f"v_pk_add_f32 {vr(G_+2*j,2)}, {vr(G_+2*j,2)}, {vr(TQ+2*j,2)}" for j in range(4)]
                elif g: o += [f"v_add_f32 v{G_+j}, v{G_+j}, v{TQ+j}" for j in range(8)]
        if part == 0: return o
        if part == 1: o = []
        for ps in range(2):
            G_ = GV + 8*ps
            for j in range(4): o += [f"v_lshlrev_b32 v{TQ+2*j}, 16, v{BRW+4*ps+j}", f"v_and_b32 v{TQ+2*j+1}, s{sC0}, v{BRW+4*ps+j}"]
            for j in range(8): o.append(f"v_fma_f32 v{G_+j}, v{G_+j}, s{sT0}, v{TQ+j}")
            for j in range(8): o.append(f"v_mul_f32 v{TQ+j}, {f32(-math.log2(math.e))}, v{G_+j}")
            for j in range(8): o.append(f"v_exp_f32 v{TQ+j}, v{TQ+j}")
            for j in range(8): o.append(f"v_add_f32 v{TQ+j}, 1.0, v{TQ+j}")
            for j in range(8): o.append(f"v_rcp_f32 v{TQ+j}, v{TQ+j}")
            for j in range(8): o.append(f"v_mul_f32 v{G_+j}, v{G_+j}, v{TQ+j}")
        return o
    nd = [10]; nr = [4]; hold = [int(x) for x in str(OPT['hold2']).split('_') if x]
    for i, st in enumerate(POST[:30]):
        if i == 0:
            BG.extend([f"v_bfe_u32 v{XO+1}, v0, 4, 2", f"v_lshlrev_b32 v{XO+1}, 3, v{XO+1}", f"v_and_b32 v{TM}, 15, v0",
                       f"v_lshl_add_u32 v{XO}, v{TM}, 10, v{XO+1}", f"s_mov_b32 s{sT0}, {f32(1/CS**2)}",
                       f"v_bfe_u32 v{TM}, v0, 4, 1", f"v_mul_u32_u24 v{TM}, 24, v{TM}", f"v_add_u32 v{XO+2}, v{XO}, v{TM}"])
        if i == OPT["fldo"] and i > 1: BG.extend(FLD[6:])
        if i == (0 if OPT["fbg"] else OPT["xbl"]):
            for k in range(4):
                BG.appendleft(T(f"buffer_load_dwordx2 {vr(XR+2*k,2)}, v{XO}, {sr(sX,4)}, s{sVOFF} offen offset:{(k>>1)*128+(k&1)*32}", "xb"))
                BG.appendleft(T(f"buffer_load_dwordx2 {vr(BRW+2*k,2)}, v{XO+1}, {sr(sB2,4)}, 0 offen offset:{(k>>1)*128+(k&1)*32}", "xb"))
        if i == OPT["fs0"]: BG.extend([W("vm", ("fl", 15))] + fmath(False, 0))
        e = [x for n in range(8) if sst[n * len(sst) // 8] == i for x in sepi(0, n)]
        for x in reversed(e): BG.appendleft(x)
        if i == OPT["lda"]:
            for x in reversed(sloads(0)): BG.appendleft(x)
        d = []
        if nd[0] < 32 and nd[0] - NS < nr[0]: d = POST[nd[0]].dma(); nd[0] += 1
        nxt = POST[i + 1].breads() + (POST[31].breads() if i == 29 else [])
        want = 32 if i == 29 else max(i + 2, nr[0] + (0 if i in hold else 1))
        while nr[0] < min(32, want):
            assert nr[0] < nd[0] - (1 if d else 0) and nr[0] <= i + 6
            nxt = nxt + POST[nr[0]].areads(); nr[0] += 1
        for x in nxt:
            if isinstance(x, T): x.tag = POST[i + 1].tag
        step(st, nxt, d, post=([W("vm", ("sst", 0)), "buffer_wbl2 sc1"] if i == OPT["wb"] and i else []))
        if i == 15: stamp()
        if i % 3 == 2: stamp(5)
    REST = list(BG); BG.clear()
    print("f math left for the tail:", len(REST), file=sys.stderr)
    flush()
    stamp()
    stamp(7)
    E(W("lg", POST[30].tag))
    order = [1, 2, 3, 4, 5, 6, 7, 0]
    for k, n in enumerate(order):
        if k == 1: BG.append("s_nop 1")
        if k >= 2: BG.extend(sepi(1, order[k - 2]))
        gaps([POST[j].one(2*(n >> 2) + h, n & 3) for j in (30, 31) for h in range(2)], [], budget=12)
    flush()
    E(sepi(1, 7))
    stamp(); stamp(7)
    SA, ST_, XT, OP = B0, B0+16, B0+24, B0+40
    def fin():
        E(f"s_mov_b64 s[{sT2}:{sT3}], -1", f"s_mov_b32 s{sT1}, 0")
        for j in range(8): E(f"v_lshlrev_b32 v{XT+2*j}, 16, v{XR+j}", f"v_and_b32 v{XT+2*j+1}, s{sC0}, v{XR+j}")
        E("L_sum:")
        for ps in range(2):
            A_ = SA + 8*ps
            for p in range(1, 8):
                E(W("vm", ("sl", ps, p)))
                for j in range(4): E(f"v_lshlrev_b32 v{ST_+2*j}, 16, v{SLr(ps,p)+j}", f"v_and_b32 v{ST_+2*j+1}, s{sC0}, v{SLr(ps,p)+j}")
                for j in range(4): E(f"v_pk_add_f32 {vr(A_+2*j,2)}, {vr((sacc(ps,0) if p == 1 else A_)+2*j,2)}, {vr(ST_+2*j,2)}")
            E(f"v_pk_add_f32 {vr(ST_,2)}, {vr(A_,2)}, {vr(A_+2,2)}", f"v_pk_add_f32 {vr(ST_+2,2)}, {vr(A_+4,2)}, {vr(A_+6,2)}",
              f"v_pk_add_f32 {vr(ST_,2)}, {vr(ST_,2)}, {vr(ST_+2,2)}", f"v_cmp_u_f32 vcc, v{ST_}, v{ST_+1}")
            for j in range(4): E(f"v_pk_fma_f32 {vr(A_+2*j,2)}, {vr(A_+2*j,2)}, {vr(GV+8*ps+2*j,2)}, {vr(XT+8*ps+2*j,2)}")
            E(f"s_and_b64 vcc, vcc, s[{sT2}:{sT3}]", f"s_cbranch_scc1 L_miss{ps}")
            for j in range(4): E(f"v_cvt_pk_bf16_f32 v{OP+4*ps+j}, v{A_+2*j}, v{A_+2*j+1}")
            if OPT["o16"]:
                E("s_nop 0", f"v_permlane16_swap_b32 v{OP+4*ps}, v{OP+4*ps+2}", f"v_permlane16_swap_b32 v{OP+4*ps+1}, v{OP+4*ps+3}",
                  f"buffer_store_dwordx4 {vr(OP+4*ps,4)}, v{XO+2}, {sr(sOUT,4)}, s{sVOFF} offen offset:{ps*128} {OPT['outsc']}")
            else:
                for k in range(2): E(f"buffer_store_dwordx2 {vr(OP+4*ps+2*k,2)}, v{XO}, {sr(sOUT,4)}, s{sVOFF} offen offset:{ps*128+k*32} {OPT['outsc']}")
            if ps == 0: stamp(); E(f"s_mov_b32 s{sT4}, 0xffff", f"s_cmp_lg_u32 s{sT1}, 0", "s_cbranch_scc1 L_missl", "L_sum1:")
    assert not any(ismem(x) for x in REST)
    REST = REST + [W("vm", "xb")] + (fmath(True, 1) if OPT["fs0"] < 30 else fmath(True))
    cut = min(len(REST), OPT["bdel"])
    if OPT["lda"] >= 30:
        E(REST[:cut//2], sloads(0)); stamp(7); E(REST[cut//2:cut], sloads(1)); stamp(7); E(REST[cut:]); stamp(7)
        if OPT["stamps"] == 7:
            E(W("vm", ("sst", 1))); stamp(7); E(W("vm", ("sl", 0, 1))); stamp(7); E(W("vm", ("sl", 0, 7))); stamp(7); E(W("vm", ("sl", 1, 7))); stamp(7)
    else: E(REST[:cut], sloads(1), REST[cut:])
    fin()
    stamp()
    if OPT["stamps"]:
        E("s_waitcnt vmcnt(0)")
        if OPT["stamps"] != 7: stamp(0)
        E(f"s_lshl_b32 s{sT0}, s2, 2", f"s_add_u32 s{sT0}, s{sT0}, s{sW}", f"s_lshl_b32 s{sT0}, s{sT0}, 6", f"s_add_u32 s{sT0}, s{sT0}, {64<<20}")
        srd(sX, 58, sT0, ("imm", 64))
        E(f"v_mov_b32 v{vT}, 0", "s_memrealtime s[70:71]", "s_waitcnt lgkmcnt(0)", f"s_mov_b32 s87, s70")
        for i in list(range(nstamp[0])) + [14, 15]:
            E(f"v_mov_b32 v{vT+1}, s{sST+i}", f"buffer_store_dword v{vT+1}, v{vT}, {sr(sX,4)}, 0 offen offset:{4*i}")
    if OPT["hold"] >= 0:
        E(f"s_cmp_lg_u32 s2, {OPT['hwg']}", "s_cbranch_scc1 L_main_end", "s_mov_b32 s73, 3000", "L_hold:", "s_memrealtime s[70:71]", "s_waitcnt lgkmcnt(0)",
          "s_sub_u32 s70, s70, s72", "s_sub_u32 s73, s73, 1", "s_cbranch_scc1 L_main_end", "s_cmp_lt_u32 s70, 10000", "s_cbranch_scc1 L_hold")
    E("L_main_end:", "s_endpgm")
    for name, vreg, load, val in SPINS:
        E(f"L_spin_{name}:", f"s_mov_b32 s{sCNT}, {OPT['spin']}", f"L_spinl_{name}:", load, "s_waitcnt vmcnt(0)",
          f"v_cmp_le_u32 vcc, {val}, v{vreg}", f"s_sub_u32 s{sCNT}, s{sCNT}, 1", f"s_cbranch_scc1 L_ok_{name}",
          "s_cmp_eq_u64 vcc, -1", f"s_cbranch_scc0 L_spinl_{name}", f"s_branch L_ok_{name}")
    E("L_miss0:", f"s_mov_b32 s{sT1}, 0xfefe", f"s_mov_b32 s{sT4}, 0xff", "s_branch L_miss", "L_miss1:", f"s_mov_b32 s{sT1}, 0xfe00",
      "L_miss:", f"s_mov_b32 s{sT0}, {SENT:#x}", f"s_mov_b32 s{sCNT}, {OPT['spin']}", "L_missl:", "s_waitcnt vmcnt(0)")
    if OPT["slp"]: E(f"s_sleep {OPT['slp']}")
    for ps in range(2):
        for g in range(1, 8):
            r = SLr(ps, g); bit = 8*ps + g
            E(f"s_bitcmp1_b32 s{sT1}, {bit}", f"s_cbranch_scc0 L_have{bit}",
              f"v_cmp_eq_u32 vcc, s{sT0}, v{r}", f"v_cmp_eq_u32 s[{sT2}:{sT3}], s{sT0}, v{r+1}", f"v_cmp_eq_u32 s[70:71], s{sT0}, v{r+2}", f"s_or_b64 s[{sT2}:{sT3}], vcc, s[{sT2}:{sT3}]",
              f"v_cmp_eq_u32 vcc, s{sT0}, v{r+3}", f"s_or_b64 s[70:71], s[70:71], s[{sT2}:{sT3}]", f"s_bitset0_b32 s{sT1}, {bit}",
              f"s_or_b64 s[70:71], s[70:71], vcc", f"s_cbranch_scc0 L_have{bit}", f"s_bitset1_b32 s{sT1}, {bit}", sloads(ps)[g-1], f"L_have{bit}:")
    E(f"s_sub_u32 s{sCNT}, s{sCNT}, 1", "s_cbranch_scc0 L_missc", "s_waitcnt vmcnt(0)", f"s_mov_b32 s{sT1}, 0", "L_missc:",
      f"s_and_b32 s70, s{sT1}, s{sT4}", "s_cbranch_scc1 L_missl",
      f"s_mov_b64 s[{sT2}:{sT3}], 0", f"s_cmp_eq_u32 s{sT4}, 0xff", "s_cbranch_scc1 L_sum", "s_branch L_sum1")
    E("L_slow:")
    E("s_waitcnt vmcnt(0) lgkmcnt(0)", "s_barrier")
    E(f"s_mov_b32 s{sKOFF}, 0", f"s_mov_b32 s{sCNT}, 16", [f"v_mov_b32 v{vM+j}, 0xff800000" for j in range(4)])
    E("L_slow_loop:")
    dk = dma_k(0); E(dk[0], "s_nop 0", dk[2:])
    E("s_waitcnt vmcnt(0)", "s_barrier")
    E(kreads(0))
    E("s_waitcnt lgkmcnt(0)", "s_barrier")
    E(qk(0, S0, True), qk(1, S1[0], True))
    E("s_nop 7", "s_nop 7", f"s_add_u32 s{sKOFF}, s{sKOFF}, 8192")
    for rg in range(4):
        s = S0 + 8*rg
        for j in range(0, 8, 2): E(f"v_max3_f32 v{vM+rg}, v{vM+rg}, v{s+j}, v{s+j+1}")
    E(f"s_sub_u32 s{sCNT}, s{sCNT}, 1", f"s_cmp_lg_u32 s{sCNT}, 0", "s_cbranch_scc1 L_slow_loop")
    for rg in range(4): E(xred("v_max_f32", vM+rg, vT))
    E(f"s_mov_b32 s{sFLAG}, 1", "s_branch L_restart", "L_code_end:")

K = NAME + "_kernel"
hdr = open("cdna_kernels/" + NAME + ".s.ref").read().split("; Override launch")[0]
out = [hdr.rstrip()]
out.append("; @launch grid=(256,1,1) block=(256,1,1) lds=163840")
out.append('.amdgcn_target "amdgcn-amd-amdhsa--gfx950"')
out.append(".text")
main_kernel(K)
if OPT["stubs"]:
    import subprocess, tempfile, os, re
    tmp = tempfile.mkdtemp()
    open(tmp + "/a.s", "w").write("\n".join(out + L + [f"L_pg{i}:" for i in range(4)] + ["s_endpgm"]) + "\n")
    subprocess.run(["clang", "-x", "assembler", "-target", "amdgcn-amd-amdhsa", "-mcpu=gfx950", "-c", tmp + "/a.s", "-o", tmp + "/a.o"], check=True)
    dis = subprocess.run(["llvm-objdump", "-d", "--mcpu=gfx950", tmp + "/a.o"], capture_output=True, text=True).stdout
    addrs = [int(m.group(1), 16) for m in re.finditer(r"// ([0-9A-F]{12}):", dis)]
    idx = [i for i, x in enumerate(L) if x.startswith("    ")]
    assert len(addrs) == len(idx) + 1, (len(addrs), len(idx))
    end = L.index("L_main_end:")
    pos = []; page = OPT["pg0"]
    for a_, i in zip(addrs, idx):
        if i >= end: break
        if a_ + 4*len(pos) >= page * 4096 + OPT["pgo"]: pos.append(i); page += 1
    n = len(pos)
    for k in reversed(range(n)):
        L[pos[k]:pos[k]] = [f"L_pg{k}:", f"    s_cbranch_execz {'L_pg%d' % (k+4) if k + 4 < n else 'L_pgret'}"]
out += L
out.append('.section .rodata,"a"')
out.append(f""".p2align 6
.amdhsa_kernel {K}
  .amdhsa_next_free_vgpr 512
  .amdhsa_next_free_sgpr 102
  .amdhsa_accum_offset 256
  .amdhsa_group_segment_fixed_size 0
  .amdhsa_kernarg_size 104
  .amdhsa_user_sgpr_count 2
  .amdhsa_user_sgpr_kernarg_segment_ptr 1
  .amdhsa_system_sgpr_workgroup_id_x 1
.end_amdhsa_kernel""")
print("\n".join(out))
```

```python
import sys, math, struct
from collections import deque
NAME = "recurrent_scan__sliding_block_cached__dense_activation_squared_relu__prompt"
OPT = dict(stamps=0, rt=0, codepf=1, budget=8, thr=40, memc=4, dmac=8, hg=2, rot=8, outsc="", skip="", spin=200000, pfpos=9, pfs="w2@-1_k@20_v@20", pf2=28,
           sst="19_20_21_22_23_24_25", dropoob=1, lda=99, npre=12, sp0=4, hw0=12, gb=8, pf1=12, stubs=1, fbg=0, bdel=60, xbl=27, kvrot=0, pg0=2, pgo=0, f2b=12, hold=-1, hwg=100, hold2="24", wol="7_8_9_11_12_13", wopf=5, fldo=1, wo4=0, slp=0, fs0=5, pad=4352, spn=1, pfk=12, fchk=13, mo=2, ao=0, ini=6, wb=0, wop2=11, o16=1, lean=0, qsw=1, eq0=4)
for a in sys.argv[1:]:
    k, v = a.split("="); OPT[k] = int(v) if v.lstrip("-").isdigit() else v

def vr(b, n=1): return f"v{b}" if n == 1 else f"v[{b}:{b+n-1}]"
def ar(b, n=1): return f"a{b}" if n == 1 else f"a[{b}:{b+n-1}]"
def R(kind, b, n=1): return vr(b, n) if kind == "v" else ar(b, n)
def sr(b, n=1): return f"s{b}" if n == 1 else f"s[{b}:{b+n-1}]"
def f32(x): return "0x%08x" % struct.unpack("<I", struct.pack("<f", x))[0]

class W:
    def __init__(s, cnt, tag): s.cnt, s.tag = cnt, tag
class W2:
    def __init__(s, *ws): s.ws = ws
class T:
    def __init__(s, text, tag): s.text, s.tag = text, tag
L = []; VM = []; LG = []
def E(*xs):
    for x in xs:
        if isinstance(x, (list, tuple)): E(*x); continue
        if isinstance(x, W2):
            n0 = len(L)
            for w_ in x.ws: E(w_)
            parts = {}
            for ln in L[n0:]:
                p_ = ln.split()[1]; parts[p_[:2]] = p_
            del L[n0:]
            if parts: L.append("    s_waitcnt " + " ".join(parts[k] for k in ("vm", "lg") if k in parts))
            continue
        if isinstance(x, W):
            q = VM if x.cnt == "vm" else LG
            idx = [i for i, t in enumerate(q) if t == x.tag]
            if not idx: continue
            n = len(q) - 1 - idx[-1]
            n = min(n, 63 if x.cnt == "vm" else 15)
            del q[:len(q) - n]
            L.append(f"    s_waitcnt {'vmcnt' if x.cnt == 'vm' else 'lgkmcnt'}({n})"); continue
        tag = None
        if isinstance(x, T): x, tag = x.text, x.tag
        op = x.split()[0]
        if op.startswith("buffer_") or op.startswith("global_"): VM.append(tag)
        if op.startswith("ds_"): LG.append(tag)
        if op == "s_waitcnt":
            for w in x.split()[1:]:
                n = int(w[w.index("(")+1:-1]); q = VM if w.startswith("vm") else LG
                if len(q) > n: del q[:len(q) - n]
        L.append("    " + x if not x.endswith(":") and not x.startswith(".") else x)
def opof(x):
    if isinstance(x, (list, tuple)): return opof(x[0])
    if isinstance(x, (W, W2)): return "s_waitcnt"
    return (x.text if isinstance(x, T) else x).split()[0]
def ismem(x):
    if isinstance(x, (list, tuple)): return any(ismem(y) for y in x)
    return opof(x).split("_")[0] in ("ds", "buffer", "global")
def isvalu(x): return opof(x).startswith("v_")
def cost(x):
    if isinstance(x, (list, tuple)): return sum(cost(y) for y in x)
    if isinstance(x, (W, W2)): return 4
    t = x.text if isinstance(x, T) else x
    op = t.split()[0]
    assert not op.startswith("v_pk_"), t
    if t.endswith(":"): return 0
    if op in ("v_exp_f32", "v_rcp_f32", "v_sqrt_f32"): return 8
    if op.startswith("buffer_store_dwordx4"): return 24
    if op.startswith("buffer_") or op.startswith("global_"): return OPT["dmac"]
    if op == "s_nop": return 4 * (int(t.split()[1]) + 1)
    if op == "ds_write_b128": return 20
    return 4
BG = deque()
def gaps(mf, plan, budget=None, wr_from=0):
    budget = OPT["budget"] if budget is None else budget
    for g, m in enumerate(mf):
        E(m)
        items = plan[g] if g < len(plan) else []
        endi = [x[1:] for x in items if isinstance(x, tuple) and x[0] == "end"]
        items = [x for x in items if not (isinstance(x, tuple) and x[0] == "end")]
        c = sum(cost(x) for x in items) + sum(cost(x) for x in endi)
        E([x for x in items if not isvalu(x)])
        while True:
            while BG and ismem(BG[0]) and len(PM) < 3: PM.append(BG.popleft())
            if PM and opof(PM[0]).startswith("ds_write") and g < wr_from: break
            if PM and (c + cost(PM[0]) <= budget or c <= OPT["memc"]):
                x = PM.popleft(); E(x); c += cost(x)
            else: break
        E([x for x in items if isvalu(x)])
        while BG:
            if ismem(BG[0]):
                if len(PM) < 3: PM.append(BG.popleft()); continue
                break
            if opof(BG[0]) in ("s_waitcnt", "s_barrier") and PM: break
            if c + cost(BG[0]) > budget: break
            x = BG.popleft(); E(x); c += cost(x)
        E(endi)
PM = deque()
def flush():
    print("flush", len(PM), len(BG), "at line", len(L), file=sys.stderr)
    while PM: E(PM.popleft())
    while BG: E(BG.popleft())
def spread(items, n, per):
    return [items[g*per:(g+1)*per] for g in range(n)]


CS = 128**-0.5 * math.log2(math.e)
X_BASE, R_BASE, NS = 0, 65536, 6
KR_BASE = 32768
FLAG_OFF = 48 << 20
OOB = 0x40000000
PSTR = 131072 + OPT['pad']
SENT = 0xff81ff81
sX, sK, sV, sWQ, sWO, sW1, sW2, sB1, sP = 4, 8, 12, 16, 20, 24, 28, 32, 36
sW, sG, sRB, sRING, sOFF, sCNT, sT0, sT1, sKOFF, sVOFF, sVL, sC0, sT2, sT3, sFLAG, sT4, sROT, sJJ = range(40, 58)
sFL, sDBG, sPR, sB2, sOUT = 60, 64, 88, 92, 96
sST = 72
sTAB = 16
def stab(p): return sTAB + p if p < 4 else 24 + (p - 4)
vLANE, vTF, vB, vBC, vPUB, vPOLL, vTQ, vDO, vKR, vTV, vDK, vDV, vST, vRD, vM, vL = 1, 2, 6, 8, 10, 11, 12, 14, 18, 22, 26, 28, 30, 31, 32, 36
vDQ, vD1, PFD = 40, 44, 49
vT = 50
B0, B1, B2, B3, B4, B5 = 64, 96, 128, 160, 192, 224
S0, S1, P0, P1, NEGM = B3, (B3+16, B4), (56, B4+16), B4+24, B5
LR = B5 + 16
aO, aVF, aKF, aFL = 0, 128, 160, 192
ONES = vL
LQ = (44, B5+24, B5+28, vM)
def QFr(rg, s_): return B0 + 16*s_ + 4*rg
BIAS = B2 + 16

nstamp = [0]
hcnt = [0]
def stamp(lvl=1):
    if OPT["hold"] >= 0 and lvl in (0, 1):
        if hcnt[0] == OPT["hold"]: E("s_memrealtime s[70:71]", "s_waitcnt lgkmcnt(0)", "s_mov_b32 s72, s70")
        hcnt[0] += 1
    if not OPT["stamps"]: return
    if OPT["stamps"] != lvl and lvl != 0: return
    i = nstamp[0]; nstamp[0] += 1
    assert i < 14
    E("s_memrealtime s[70:71]" if OPT["rt"] else "s_memtime s[70:71]", "s_waitcnt lgkmcnt(0)", f"s_mov_b32 s{sST+i}, s70")

def mfma(dk, d, ak, a, bk, b, c=None, ck=None):
    cs = R(dk, d, 4) if c is None else (str(c) if ck is None else R(ck, c, 4))
    return f"v_mfma_f32_16x16x32_bf16 {R(dk,d,4)}, {R(ak,a,4)}, {R(bk,b,4)}, {cs}"
def kvoff(t):
    return f"s_xor_b32 s{sKOFF}, s{sJJ}, {t*8192}" if OPT["kvrot"] else f"s_mov_b32 s{sKOFF}, {t*8192}"
def dma_k(t):
    return [f"s_add_u32 m0, s{sVL}, {KR_BASE+(t&3)*8192}", kvoff(t),
            T(f"buffer_load_dwordx4 v{vDK}, {sr(sK,4)}, s{sKOFF} offen lds", ("K", t)),
            T(f"buffer_load_dwordx4 v{vDK+1}, {sr(sK,4)}, s{sKOFF} offen offset:1024 lds", ("K", t))]
def dma_v(t):
    return [f"s_add_u32 m0, s{sVL}, {X_BASE+(t&3)*8192}", kvoff(t),
            T(f"buffer_load_dwordx4 v{vDV}, {sr(sV,4)}, s{sKOFF} offen lds", ("V", t)),
            T(f"buffer_load_dwordx4 v{vDV+1}, {sr(sV,4)}, s{sKOFF} offen offset:1024 lds", ("V", t))]

class Stage:
    def __init__(s, idx, mat, j, ps, acc, areg, readb, vb):
        s.idx, s.mat, s.j, s.ps, s.acc, s.areg, s.readb, s.vb = idx, mat, j, ps, acc, areg, readb, vb
        s.slot = idx % NS; s.tag = (mat, ps, j); s.breg = ("a", 16*j)
    def dma(s):
        srd_, vd, stride = {"w1": (sW1, vD1, 3584), "wq": (sWQ, vDQ, 8192), "w2": (sW2, vDO, 1024), "wo": (sWO, vDO, 1024)}[s.mat]
        o = [f"s_add_u32 m0, s{sRING}, {s.slot*4096}", f"s_mov_b32 s{sOFF}, {s.j*32*stride + s.ps*128}"]
        if OPT["rot"] and s.mat == "wq":
            o[1] = [f"s_add_u32 s{sOFF}, s{sROT}, {s.j*32*8192 + s.ps*128}", f"s_and_b32 s{sOFF}, s{sOFF}, {(512*8192-1) & ~256}"]
        if OPT["rot"] and s.mat == "w1":
            o[1] = [f"s_add_u32 s{sOFF}, s{sROT}, {s.j*32*8192}", f"s_bfe_u32 s{sOFF}, s{sOFF}, {(9<<16)|13}", f"s_mul_i32 s{sOFF}, s{sOFF}, 3584"]
        return o + [T(f"buffer_load_dwordx4 v{vd+p}, {sr(srd_,4)}, s{sOFF} offen offset:{p*1024} lds", s.tag) for p in range(4)]
    def areads(s):
        ak, a = s.areg; o = [W("vm", s.tag)]
        for Tt in range(4):
            for t in range(2):
                va, off = (vTQ + (Tt >> 1), 8*(Tt & 1)) if s.mat == "wq" else (vTF + Tt, 0)
                o.append(T(f"ds_read_b64_tr_b16 {R(ak, a+4*Tt+2*t, 2)}, v{va} offset:{s.slot*4096+t*2048+off}", s.tag))
        return o
    def breads(s):
        if not s.readb: return []
        bk, b = s.breg
        return [T(f"ds_read_b128 {R(bk, b+4*rg, 4)}, v{s.vb+(s.j&1)} offset:{s.j*4096+rg*1024}", s.tag) for rg in range(4)]
    def reads(s): return s.breads() + s.areads()
    def one(s, Tt, rg):
        ak, a = s.areg; dk, d = s.acc(Tt, rg)
        c = () if s.j else ((BIAS + 4*Tt, "v") if s.mat == "w1" else (0,))
        return mfma(dk, d, ak, a+4*Tt, s.breg[0], s.breg[1]+4*rg, *c)
    def mf(s):
        if OPT["mo"] == 1: return [s.one(Tt, rg) for rg in range(4) for Tt in range(4)]
        if OPT["mo"] == 2: return [s.one(Tt, rg if Tt % 2 == 0 else 3 - rg) for Tt in range(4) for rg in range(4)]
        return [s.one(Tt, rg) for Tt in range(4) for rg in range(4)]
def step(st, nxt_reads, dma, post=(), gb=None):
    E(W("lg", st.tag))
    plan = [[] for _ in range(16)]
    q = list(nxt_reads)
    dg = {}
    if dma:
        dg = {0: dma[:2], 3: dma[2:3], 7: dma[3:4]}
        if len(dma) == 6: dg.update({11: dma[4:5], 15: dma[5:6]})
        elif len(dma) == 8: dg.update({9: dma[4:6], 11: dma[6:7], 15: dma[7:8]})
    per = 1 if len(q) <= (16 - len(dg) - 2) else 2
    for g in range(16):
        if g in dg: plan[g] += dg[g]
        else: plan[g] += q[:per]; q = q[per:]
    assert not q
    plan[15] += list(post)
    gaps(st.mf(), plan, budget=gb or OPT["gb"])

def srd(d, ptr, off, size):
    E(f"s_add_u32 s{d}, s{ptr}, s{off}", f"s_addc_u32 s{d+1}, s{ptr+1}, 0")
    if size[0] == "rest": E(f"s_sub_u32 s{d+2}, {size[1]}, s{off}")
    else: E(f"s_mov_b32 s{d+2}, {size[1]}")
    E(f"s_mov_b32 s{d+3}, 0x00020000")

SPINS = []
def check_ready(name, vreg, load, val):
    SPINS.append((name, vreg, load, val))
    return [f"v_cmp_le_u32 vcc, {val}, v{vreg}", ["s_cmp_eq_u64 vcc, -1", f"s_cbranch_scc0 L_spin_{name}", f"L_ok_{name}:"]]
def blk(kind, lo, hi): return lambda Tt, rg: (kind, (lo, hi)[Tt >> 1] + 8*rg + 4*(Tt & 1))
def xred(op, a, b):
    return [f"v_mov_b32 v{b}, v{a}", "s_nop 1", f"v_permlane32_swap_b32 v{a}, v{b}", "s_nop 0", f"{op} v{a}, v{a}, v{b}",
            f"v_mov_b32 v{b}, v{a}", "s_nop 1", f"v_permlane16_swap_b32 v{a}, v{b}", "s_nop 0", f"{op} v{a}, v{a}, v{b}"]

def main_kernel(K):
    PRE = []
    def add(lst, mat, n, ps, acc, aregs, readb, vb):
        for j in range(n): lst.append(Stage(len(lst), mat, j, ps, acc, aregs(len(lst)), readb, vb))
    av = lambda i: ("v", B3 + 16*(i & 1)); aa = lambda i: ("a", 112 + 16*(i & 1))
    add(PRE, "wq", 16, 0, blk("v", B0, B1), av, True, vB)
    add(PRE, "w1", 16, 0, blk("v", B4, B5), av, False, vB)
    add(PRE, "wq", 16, 1, blk("v", B1, B2), av, False, vB)
    add(PRE, "w2", 7, 0, blk("v", B2, B4), aa, True, vBC)
    add(PRE, "w2", 7, 1, blk("a", 192, 224), aa, False, vBC)
    POST = []
    SETS = [("a", aKF), ("a", aKF+16), ("v", B0), ("v", B0+16), ("v", B0+32), ("a", aVF), ("a", aVF+16)]
    ao = lambda i: SETS[i % 7]
    add(POST, "wo", 16, 0, blk("v", B4, B3), ao, True, vB)
    add(POST, "wo", 16, 1, blk("v", B2, B5), ao, False, vB)
    for st in POST:
        if st.idx >= 7: st.slot = (2, 3, 4, 5, 1, 0)[(st.idx - 7) % 6]
    prev = lambda s_: {7: 2, 8: 3, 9: 4, 10: 5, 11: -1}.get(s_, s_ - 6)
    for st in POST:
        if st.j >= 8:
            st.readb = True
            st.breg = ("v", B2 + 16*(st.j & 1)) if st.ps == 0 else ("a", 16*(st.j - 8))

    E(".p2align 12", ".p2align 8", f".globl {K}", f".type {K},@function", f"{K}:")
    E("s_cmp_ge_u32 s2, 256", "s_cbranch_scc1 L_main_end")
    E(f"s_mov_b32 s{sFLAG}, 0", [f"v_mov_b32 v{vM+j}, 0" for j in range(4)])
    E("L_restart:")
    if OPT["stamps"]: E("s_memrealtime s[86:87]")
    stamp(0)
    E("s_load_dwordx8 s[60:67], s[0:1], 0", "s_load_dwordx2 s[68:69], s[0:1], 32", "s_load_dwordx4 s[88:91], s[0:1], 48",
      "s_load_dwordx8 s[92:99], s[0:1], 64", "s_load_dwordx2 s[58:59], s[0:1], 96")
    if OPT["codepf"]:
        E("s_getpc_b64 s[100:101]", "L_pc:", f"s_sub_u32 s100, s100, L_pc-{K}", "s_subb_u32 s101, s101, 0")
        E(f"s_bfe_u32 s{sT0}, s2, 0x30003", f"s_lshl_b32 s{sT0}, s{sT0}, 14", f"v_lshlrev_b32 v{vT}, 6, v0", f"v_add_u32 v{vT}, s{sT0}, v{vT}",
          f"v_min_u32 v{vT}, L_code_end-{K}-4, v{vT}")
        E(f"v_mov_b32 v{vT+1}, s101", f"v_add_co_u32 v{vT}, vcc, s100, v{vT}", "s_nop 1", f"v_addc_co_u32 v{vT+1}, vcc, 0, v{vT+1}, vcc",
          f"global_load_dword v{PFD}, {vr(vT,2)}, off")
    l = vLANE
    pt = 128
    row, c7, t0, t1, t2, t3, t4, cl, zr, bo = range(pt, pt + 10)
    xo = pt + 12
    wa, pw = 58, 60
    def cap(fn):
        global L
        keep = L; L = []; fn(); got = [x.strip() for x in L]; L = keep
        return got
    def srdl(d, ptr, off, size):
        c = cap(lambda: srd(d, ptr, off, size)); return [c[:2], c[2], c[3]]
    E(f"v_lshrrev_b32 v{t0}, 6, v0", f"v_and_b32 v{l}, 63, v0")
    HG = OPT["hg"]; lh = HG.bit_length() - 1
    E(f"s_and_b32 s{sG}, s2, {8//HG-1}", f"s_lshl_b32 s{sG}, s{sG}, {lh}", f"s_bfe_u32 s{sT0}, s2, {(lh<<16)|3}", f"s_or_b32 s{sG}, s{sG}, s{sT0}",
      f"s_lshr_b32 s{sJJ}, s2, {3+lh}", f"s_bfe_u32 s{sRB}, s2, {(lh<<16)|(3-lh)}", f"s_lshl_b32 s{sRB}, s{sRB}, {5-lh}", f"s_or_b32 s{sRB}, s{sRB}, s{sJJ}")
    E(f"v_readfirstlane_b32 s{sW}, v{t0}")
    E(f"v_bfe_u32 v{row}, v0, 3, 3", f"v_lshl_add_u32 v{t1}, v{t0}, 4, v{row}",
      f"v_and_b32 v{c7}, 7, v0", f"v_lshlrev_b32 v{xo}, 4, v{c7}", f"v_lshl_add_u32 v{xo}, v{t1}, 10, v{xo}", f"v_add_u32 v{xo+1}, 8192, v{xo}")
    XS = 8
    if OPT["rot"]:
        if OPT["rot"] == 16: E(f"s_and_b32 s{sROT}, s{sJJ}, 15", f"s_lshr_b32 s{XS}, s{sROT}, 1", f"s_lshl_b32 s{XS}, s{XS}, 7", f"s_and_b32 s{sCNT}, s{sROT}, 1")
        else: E(f"s_and_b32 s{sROT}, s{sJJ}, {OPT['rot']-1}", f"s_mul_i32 s{sROT}, s{sROT}, {8//OPT['rot']}", f"s_lshl_b32 s{XS}, s{sROT}, 7")
        for i in range(1, 8): E(f"s_add_u32 s{XS+i}, s{XS}, {128*i}", f"s_and_b32 s{XS+i}, s{XS+i}, 1023")
        E(f"s_lshl_b32 s{sROT}, s{sROT}, {18 if OPT['rot'] == 16 else 19}")
    if OPT["qsw"]:
        E(f"s_bfe_u32 s{sT0}, s{sRB}, 0x10004", f"s_lshl_b32 s{sT0}, s{sT0}, 7", f"s_add_u32 s{sROT}, s{sROT}, s{sT0}")
    E(f"s_and_b32 s{sJJ}, s{sJJ}, {OPT['kvrot']}", f"s_lshl_b32 s{sJJ}, s{sJJ}, 13")
    natp = lambda p, stride: (16*(p & 1) + 4*(p >> 1)) * stride - p*1024
    def early():
        E(f"s_or_b32 s{sT0}, s{sG}, s{sW}", f"s_or_b32 s{sT0}, s{sT0}, s{sFLAG}", f"s_cmp_eq_u32 s{sT0}, 0", f"s_cselect_b32 s{sT2}, 0, {OOB}",
          f"v_lshlrev_b32 v{cl}, 8, v{row}", f"v_lshl_add_u32 v{cl}, v{c7}, 2, v{cl}", f"v_add_u32 v{cl}, s{sT2}, v{cl}",
          f"v_mov_b32 v{zr}, 0", f"v_mov_b32 v{vL}, s{sT2}", f"v_mov_b32 v{vL+1}, 1")
        E(f"s_mul_i32 s{sRING}, s{sW}, {NS*4096}", f"s_add_u32 s{sRING}, s{sRING}, {R_BASE}", f"s_lshl_b32 s{sVL}, s{sW}, 11", f"s_mov_b32 s{sC0}, 0xffff0000")
        E(f"v_lshrrev_b32 v{t2}, 4, v{l}", f"v_lshlrev_b32 v{t2}, 1, v{t2}", f"v_xor_b32 v{t3}, v{c7}, v{t2}", f"v_lshlrev_b32 v{t1}, 4, v{t3}",
          f"v_lshrrev_b32 v{t0}, 5, v{l}", f"v_and_b32 v{t2}, 3, v{row}", f"v_lshl_add_u32 v{t0}, v{t0}, 3, v{t2}",
          f"v_mul_u32_u24 v{t2}, 3584, v{t0}", f"s_lshl_b32 s{sT4}, s{sW}, 7", f"v_add3_u32 v{vD1}, v{t2}, v{t1}, s{sT4}",
          f"v_lshl_add_u32 v{vDV}, v{row}, 8, v{t1}",
          f"s_lshl_b32 s{sT0}, s{sW}, 8", f"v_add_u32 v{t1}, s{sT0}, v{t1}",
          f"v_lshl_add_u32 v{vDQ}, v{t0}, 13, v{t1}", f"v_lshl_add_u32 v{vDO}, v{row}, 10, v{t1}")
        if OPT["dropoob"]:
            E(f"s_and_b32 s{sT0}, s{sG}, 1", f"s_xor_b32 s{sT0}, s{sT0}, 1", f"s_mul_i32 s{sT0}, s{sT0}, 7", f"s_lshl_b32 s{sT3}, s{sW}, 1",
              f"v_lshrrev_b32 v{t3}, 2, v{t3}", f"v_or_b32 v{t3}, s{sT3}, v{t3}", f"v_cmp_eq_u32 vcc, s{sT0}, v{t3}", f"v_mov_b32 v{t2}, {OOB}", "s_nop 0",
              f"v_cndmask_b32 v{vD1}, v{vD1}, v{t2}, vcc")
        for p in range(1, 4): E(f"v_add_u32 v{vDQ+p}, {natp(p, 8192)}, v{vDQ}")
        E(f"v_xor_b32 v{t0}, v{row}, v{c7}", f"v_and_b32 v{t1}, 3, v{c7}", f"v_lshl_add_u32 v{t0}, v{t1}, 4, v{t0}", f"v_lshlrev_b32 v{t0}, 4, v{t0}",
          f"v_lshrrev_b32 v{t1}, 2, v{c7}", f"v_lshl_add_u32 v{t0}, v{t1}, 12, v{t0}", f"s_lshl_b32 s{sT0}, s{sW}, 10", f"v_add_u32 v{wa}, s{sT0}, v{t0}")
        if OPT["rot"] == 16:
            E(f"s_lshl_b32 s{sT0}, s{sCNT}, 6", f"v_xor_b32 v{wa}, s{sT0}, v{wa}", f"s_lshl_b32 s{sT0}, s{sCNT}, 12", f"s_sub_u32 s{sT0}, 8192, s{sT0}",
              f"v_add_u32 v{wa}, s{sT0}, v{wa}", f"v_add_u32 v{wa+1}, {65536-8192}, v{wa}", f"v_and_b32 v{wa+1}, 0xffff, v{wa+1}")
        E(f"s_lshl_b32 s{sT0}, s{sRB}, 16", f"s_lshl_b32 s{sT1}, s{sRB}, 12", f"s_add_u32 s{sT1}, s{sT1}, {FLAG_OFF}")
        E(f"s_lshr_b32 s{sT3}, s{sG}, 1", f"s_mul_i32 s{sT3}, s{sT3}, 896", f"s_and_b32 s{sT2}, s{sG}, 1", f"s_mul_i32 s{sT2}, s{sT2}, 384",
          f"s_add_u32 s{sT3}, s{sT3}, s{sT2}")
    EARLY = []
    if OPT["lean"]:
        EARLY = cap(early); E(f"s_lshl_b32 s{sT0}, s{sRB}, 16")
    else: early()
    E("s_waitcnt lgkmcnt(0)")
    srd(sX, 60, sT0, ("imm", 65536))
    RAW = 64; ACCH = B4
    U1 = EARLY + srdl(sB1, 90, sT3, ("rest", 3584)) + srdl(sP, 58, sT1, ("imm", 1024)) + \
         [T(f"buffer_store_dword v{zr}, v{cl}, {sr(sP,4)}, 0 offen sc1", "clr")] + srdl(sW1, 88, sT3, ("rest", 1835008))
    def trs():
        E(f"v_lshrrev_b32 v{t0}, 2, v{l}", f"v_lshlrev_b32 v{t0}, 7, v{t0}", f"v_bfe_u32 v{t1}, v{l}, 3, 2", f"v_and_b32 v{t2}, 3, v{l}",
          f"v_lshl_add_u32 v{t3}, v{t2}, 3, v{t0}")
        for Tt in range(4):
            E(f"v_xor_b32 v{t4}, {Tt}, v{t1}", f"v_lshl_add_u32 v{vTV+Tt}, v{t4}, 5, v{t3}", f"v_add_u32 v{vTF+Tt}, s{sRING}, v{vTV+Tt}")
        E(f"v_and_b32 v{t3}, 1, v{l}", f"v_lshl_add_u32 v{t3}, v{t3}, 4, v{t0}", f"v_add_u32 v{t3}, s{sRING}, v{t3}", f"v_lshrrev_b32 v{t2}, 1, v{t2}",
          f"v_xor_b32 v{t2}, v{t2}, v{t1}")
        for t32 in range(2): E(f"v_xor_b32 v{t4}, {2*t32}, v{t2}", f"v_lshl_add_u32 v{vTQ+t32}, v{t4}, 5, v{t3}")
        E(f"v_lshrrev_b32 v{t1}, 4, v{l}", f"v_xor_b32 v{t1}, v{t1}, v{l}", f"v_lshlrev_b32 v{vB}, 4, v{t1}", f"v_xor_b32 v{vB+1}, 64, v{vB}")
    U1 += cap(trs)
    U1 += [f"v_lshrrev_b32 v{t3}, 4, v0", f"v_and_b32 v{t4}, 15, v0", f"v_lshlrev_b32 v{pw}, 6, v{t4}", f"v_lshl_add_u32 v{pw}, v{t3}, 13, v{pw}",
           f"v_lshlrev_b32 v{pw+2}, 4, v0", f"v_lshlrev_b32 v{pw+3}, 5, v0", f"v_mul_u32_u24 v{t3}, 3584, v{t3}", f"v_lshl_add_u32 v{pw+1}, v{t4}, 5, v{t3}"]
    U1 += [f"s_lshl_b32 s{sT0}, s{sG}, 10"] + srdl(sWQ, 66, sT0, ("rest", 4194304))
    U1 += [f"s_lshl_b32 s{sT0}, s{sG}, 19"] + srdl(sWO, 68, sT0, ("rest", 4194304))
    U1 += [f"s_mul_i32 s{sT2}, s{sG}, {224*1024}"] + srdl(sW2, 92, sT2, ("rest", 1835008))
    U1 += [x for p in range(1, 4) for x in (f"v_add_u32 v{vD1+p}, {natp(p, 3584)}, v{vD1}", f"v_add_u32 v{vDO+p}, {p*(8*1024-1024)}, v{vDO}")]
    U1 = deque(U1); per = (len(U1) + 15) // 16
    for i in range(8):
        for p in range(2):
            if OPT["rot"]: E(T(f"buffer_load_dwordx4 {vr(RAW+32*p+4*i,4)}, v{xo+p}, {sr(sX,4)}, s{XS+i} offen", ("x", p, i)))
            else: E(T(f"buffer_load_dwordx4 {vr(RAW+32*p+4*i,4)}, v{xo+p}, {sr(sX,4)}, 0 offen offset:{i*128}", ("x", p, i)))
            for _ in range(per):
                if U1: E(U1.popleft())
    stamp(2)
    E(f"s_add_u32 s{sT0}, s{sT0}, {1536*256}"); srd(sK, 62, sT0, ("imm", 131072)); srd(sV, 64, sT0, ("imm", 131072))
    srd(sFL, 58, sT1, ("imm", 1024))
    E(f"s_lshl_b32 s{sT0}, s{sRB}, 2"); srd(sDBG, 98, sT0, ("imm", 4))
    if OPT["stubs"]:
        E("s_mov_b64 exec, 0")
        for w_ in range(3): E(f"s_cmp_eq_u32 s{sW}, {w_}", f"s_cbranch_scc1 L_pg{w_}")
        E("s_branch L_pg3", "L_pgret:", "s_mov_b64 exec, -1")
    def later():
        E(f"s_and_b32 s{sT0}, s{sW}, 1", f"s_lshl_b32 s{sT0}, s{sT0}, 12", f"s_lshr_b32 s{sT1}, s{sW}, 1", f"s_lshl_b32 s{sT1}, s{sT1}, 7",
          f"s_add_u32 s{sT0}, s{sT0}, s{sT1}", f"v_add_u32 v{vDV}, s{sT0}, v{vDV}", f"v_add_u32 v{vDV+1}, 1024, v{vDV}")
        E(f"v_lshrrev_b32 v{t0}, 4, v{l}")
        for p in range(2):
            E(f"s_lshl_b32 s{sT0}, s{sW}, 3", f"s_add_u32 s{sT0}, s{sT0}, {4*p}", f"v_add_u32 v{t2}, s{sT0}, v{t0}",
              f"v_xor_b32 v{t3}, v{t2}, v{l}", f"v_and_b32 v{t3}, 15, v{t3}", f"v_lshlrev_b32 v{t3}, 4, v{t3}",
              f"v_lshl_add_u32 v{vDK+p}, v{t2}, 8, v{t3}")
            if p: E(f"v_subrev_u32 v{vDK+p}, 1024, v{vDK+p}")
        E(f"v_and_b32 v{t1}, 15, v{l}", f"v_lshlrev_b32 v{t2}, 8, v{t1}", f"v_add_u32 v{t2}, {KR_BASE}, v{t2}", f"v_xor_b32 v{t1}, v{t1}, v{t0}")
        E(f"s_bfe_u32 s{sT0}, s{sROT}, 0x10007", f"s_lshl_b32 s{sT0}, s{sT0}, 3", f"v_xor_b32 v{t1}, s{sT0}, v{t1}")
        for s_ in range(4): E(f"v_xor_b32 v{t3}, {4*s_}, v{t1}", f"v_lshl_add_u32 v{vKR+s_}, v{t3}, 4, v{t2}")
        E(f"s_lshl_b32 s{sT0}, s{sW}, 14", f"v_lshlrev_b32 v{vST}, 4, v{l}", f"v_add_u32 v{vST}, s{sT0}, v{vST}")
    LATER = cap(later)
    LATER += [f"s_mul_i32 s{sT0}, s{sRB}, {8*PSTR}"] + srdl(sP, 58, sT0, ("imm", 8*PSTR))
    LATER += [f"s_mul_i32 s{sT1}, s{sG}, {PSTR}", f"s_add_u32 s{sT0}, s{sT0}, s{sT1}"] + srdl(sPR, 58, sT0, ("imm", 131072))
    LATER += [f"s_lshr_b32 s{sT1}, s{sG}, 2", f"s_lshl_b32 s{sT1}, s{sT1}, 6", f"s_lshl_b32 s{sT0}, s{sW}, 8", f"s_add_u32 s{sT1}, s{sT1}, s{sT0}"] + srdl(sB2, 94, sT1, ("rest", 1024))
    LATER += [f"s_and_b32 s{sT0}, s{sG}, 3", f"s_lshl_b32 s{sT0}, s{sT0}, 14", f"s_add_u32 s{sVOFF}, s{sT0}, s{sT1}"]
    LATER += [f"s_lshl_b32 s{sT0}, s{sRB}, 16"] + srdl(sOUT, 96, sT0, ("imm", 65536))
    LATER2 = LATER[41:]
    BRW1 = 50
    LATER = [f"v_lshrrev_b32 v{bo}, 4, v{l}", f"v_lshlrev_b32 v{bo}, 3, v{bo}", f"s_lshl_b32 s{sT2}, s{sW}, 7"] + \
            [T(f"buffer_load_dwordx2 {vr(BRW1+2*q,2)}, v{bo}, {sr(sB1,4)}, s{sT2} offen offset:{q*32}", "bias") for q in range(4)] + LATER[:41]
    LATER.append(W("vm", "bias"))
    for r in range(16):
        LATER.append((f"v_lshlrev_b32 v%d, 16, v{BRW1+r//2}" if r % 2 == 0 else f"v_and_b32 v%d, s{sC0}, v{BRW1+r//2}") % (BIAS+r))
        LATER.append(f"v_mul_f32 v{BIAS+r}, {f32(CS)}, v{BIAS+r}")
    PFS = [[f"s_lshl_b32 s{sT3}, s{sRB}, 17", f"buffer_load_dword v{PFD}, v{pw}, {sr(sWQ,4)}, s{sT3} offen"],
           [f"s_mul_i32 s{sT3}, s{sRB}, 7168", f"buffer_load_dword v{PFD}, v{pw+3}, {sr(sW2,4)}, s{sT3} offen"],
           [f"s_lshl_b32 s{sT3}, s{sRB}, 12", f"buffer_load_dword v{PFD}, v{pw+2}, {sr(sK,4)}, s{sT3} offen"],
           [f"buffer_load_dword v{PFD}, v{pw+2}, {sr(sV,4)}, s{sT3} offen"]]
    SP = deque()
    for s_ in range(OPT["ini"]):
        d = PRE[s_].dma(); SP.append(d[:3]); SP.extend(d[3:])
    if OPT["pfpos"] == 1: SP.extend(PFS)
    if OPT["pfpos"] == 2: SP.append([f"s_mul_i32 s{sT3}, s{sRB}, {16*3584}", f"buffer_load_dword v{PFD}, v{pw+1}, {sr(sW1,4)}, s{sT3} offen"])
    if OPT["pfpos"] == 3: SP.append([f"s_mul_i32 s{sT3}, s{sRB}, {16*3584}", f"buffer_load_dword v{PFD}, v{pw+1}, {sr(sW1,4)}, s{sT3} offen"]); SP.append(PFS[1])
    if OPT["pfpos"] == 4: SP.append(PFS[1])
    PFN = {"q": PFS[0], "w2": PFS[1], "k": PFS[2], "v": [f"s_lshl_b32 s{sT3}, s{sRB}, 12"] + PFS[3],
           "w1": [f"s_mul_i32 s{sT3}, s{sRB}, {16*3584}", f"buffer_load_dword v{PFD}, v{pw+1}, {sr(sW1,4)}, s{sT3} offen"]}
    PFAT = {}
    for it_ in str(OPT["pfs"]).split("_"):
        if it_:
            nm, at = it_.split("@"); PFAT.setdefault(int(at), []).extend(PFN[nm])
    if -1 in PFAT: SP.append(PFAT[-1])
    if -3 in PFAT:
        l_ = list(SP); x_ = PFAT[-3]; SP.clear(); SP.extend(l_[:OPT["pfk"]] + [x_[k:k+2] for k in range(0, len(x_), 2)] + l_[OPT["pfk"]:])
    if -2 in PFAT: SP.appendleft(PFAT[-2])
    nsp = [0]
    def sp(n=1, force=False):
        for _ in range(n):
            if SP and (force or nsp[0] < OPT["npre"]): E(SP.popleft()); nsp[0] += 1
    SUM, SQ = 50, 54
    for i in range(8):
        for p in range(2):
            E(W("vm", ("x", p, i)))
            r = RAW + 32*p + 4*i; u = B2 + 32*p + 4*i; m = SUM + 2*p; q = SQ + 2*p
            for j in range(4): E(f"v_lshlrev_b32 v{u+j}, 16, v{r+j}", f"v_and_b32 v{r+j}, s{sC0}, v{r+j}")
            for k, b_ in enumerate((u, r, u+2, r+2)):
                if i == 0 and k == 0: E(f"v_pk_add_f32 {vr(m,2)}, {vr(u,2)}, {vr(r,2)}", f"v_pk_mul_f32 {vr(q,2)}, {vr(u,2)}, {vr(u,2)}")
                elif i == 0 and k == 1: E(f"v_pk_fma_f32 {vr(q,2)}, {vr(b_,2)}, {vr(b_,2)}, {vr(q,2)}")
                else: E(f"v_pk_add_f32 {vr(m,2)}, {vr(m,2)}, {vr(b_,2)}", f"v_pk_fma_f32 {vr(q,2)}, {vr(b_,2)}, {vr(b_,2)}, {vr(q,2)}")
            if 2*i + p >= OPT["sp0"]: sp(OPT["spn"])
    stamp(2)
    E(W("vm", "clr"), f"buffer_store_dword v{vL+1}, v{vL}, {sr(sDBG,4)}, 0 offen sc1")
    R4 = [SUM, SUM+2, SQ, SQ+2]
    for v in R4: E(f"v_add_f32 v{v}, v{v}, v{v+1}")
    for md in ("quad_perm:[1,0,3,2]", "quad_perm:[2,3,0,1]", "row_half_mirror"):
        for v in R4: E(f"v_add_f32_dpp v{v}, v{v}, v{v} {md} row_mask:0xf bank_mask:0xf")
    def both(fmt): E([fmt.format(m=SUM+2*p, q=SQ+2*p) for p in range(2)])
    both(f"v_mul_f32 v{{m}}, {f32(1/512)}, v{{m}}"); both(f"v_mul_f32 v{{q}}, {f32(1/512)}, v{{q}}")
    both("v_fma_f32 v{q}, -v{m}, v{m}, v{q}"); both("v_max_f32 v{q}, 0, v{q}")
    both("v_cvt_pk_bf16_f32 v{q}, v{q}, v{m}")
    both(f"v_and_b32 v{{m}}, s{sC0}, v{{q}}"); both("v_lshlrev_b32 v{q}, 16, v{q}")
    both(f"v_add_f32 v{{q}}, {f32(1e-5)}, v{{q}}"); both("v_cvt_pk_bf16_f32 v{q}, v{q}, v{q}"); both("v_lshlrev_b32 v{q}, 16, v{q}")
    both("v_sqrt_f32 v{q}, v{q}"); E("s_nop 0"); both("v_cvt_pk_bf16_f32 v{q}, v{q}, v{q}"); both("v_lshlrev_b32 v{q}, 16, v{q}")
    both("v_rcp_f32 v{q}, v{q}"); E("s_nop 0"); both(f"v_mul_f32 v{{q}}, {f32(CS)}, v{{q}}"); both("v_mul_f32 v{m}, v{m}, v{q}")
    stamp(2)
    for i in range(8):
        for p in range(2):
            r = RAW + 32*p + 4*i; u = B2 + 32*p + 4*i
            for b_ in (u, r, u+2, r+2):
                E(f"v_pk_fma_f32 {vr(b_,2)}, {vr(b_,2)}, {vr(SQ+2*p,2)}, {vr(SUM+2*p,2)} op_sel_hi:[1,0,0] neg_lo:[0,0,1] neg_hi:[0,0,1]")
            for j in range(4): E(f"v_cvt_pk_bf16_f32 v{r+j}, v{u+j}, v{r+j}")
            if OPT["rot"] == 16: E(f"ds_write_b128 v{wa+1 if i == 0 else wa}, {vr(r,4)} offset:{max(0, i-1)*8192+p*128}")
            else: E(f"ds_write_b128 v{wa}, {vr(r,4)} offset:{i*8192+p*128}")
    stamp(2)
    sp(99, force=True)
    E(PRE[0].areads())
    E("s_waitcnt lgkmcnt(8)", "s_barrier")
    if OPT["stamps"] < 4: stamp(0)
    E(PRE[0].breads())
    BG.extend(LATER)
    def kreads(t): return [T(f"ds_read_b128 {ar(aKF+8*s_+4*hk,4)}, v{vKR+s_} offset:{(t&3)*8192+hk*4096}", ("kf", t)) for s_ in range(4) for hk in range(2)]
    def vreads(t): return [T(f"ds_read_b64_tr_b16 {ar(aVF+4*T8+2*t_,2)}, v{vTV+(T8&3)} offset:{(t&3)*8192+(T8>>2)*4096+t_*2048}", ("vf", t))
                           for T8 in range(8) for t_ in range(2)]
    def qk(x, dst, zero=False):
        return [mfma("v", dst+8*rl+4*hk, "a", aKF+8*s_+4*hk, "v", QFr(2*x+rl, s_), *(((0,) if zero else (NEGM+4*(2*x+rl), "v")) if s_ == 0 else ()))
                for s_ in range(4) for hk in range(2) for rl in ((0, 1) if (hk == 0 or not OPT["ao"]) else (1, 0))]
    def pv(x, p, zero=False):
        return [mfma("v", LQ[2*x+rl], "v", ONES, "v", p+4*rl, 0 if zero else None) for rl in range(2)] + \
               [mfma("a", aO+64*x+16*(T8>>1)+8*rl+4*(T8&1), "a", aVF+4*T8, "v", p+4*rl, 0 if zero else None) for T8 in range(8) for rl in ((0, 1) if (T8 % 2 == 1 or not OPT["ao"]) else (1, 0))]
    def sm_plan(x, s, p, n=32):
        pl = [[] for _ in range(n)]
        for j in range(16): pl[max(0, 2*j-1) if n == 32 else 2*j+1].append(f"v_exp_f32 v{s+j}, v{s+j}")
        for k in range(8): pl[min(31, 4*k+4) if n == 32 else 4*k+6].append(f"v_cvt_pk_bf16_f32 v{p+k}, v{s+2*k}, v{s+2*k+1}")
        return pl
    vSTX = (vST, vRD, vTQ, vTQ + 1)
    def pst(reg, typ, ps, p, tag=None): return T(f"buffer_store_dwordx4 {vr(reg,4)}, v{vSTX[2*typ+ps]}, {sr(sP,4)}, s{stab(p)} offen{'' if (OPT['wb'] and tag == ('sst', 0)) else ' sc1'}", tag)
    def pld(dst, typ, ps, p, tag): return T(f"buffer_load_dwordx4 {dst}, v{vSTX[2*typ+ps]}, {sr(sPR,4)}, {'0' if p < 4 else 's%d' % sROT} offen offset:{(p&3)*1024} sc1", tag)
    def pack(kind, src, tmp):
        o = []; b = tmp if kind == "a" else src
        if kind == "a":
            for r in range(8): o.append(f"v_accvgpr_read_b32 v{b+r}, a{src+r}")
        return o + [f"v_cvt_pk_bf16_f32 v{b+j}, v{b+2*j}, v{b+2*j+1}" for j in range(4)]
    NP = len(PRE)
    KV = deque([dma_v(0) + dma_k(2), dma_v(1) + dma_k(3), dma_v(2)])
    vHW = vD1
    PZ = vDQ
    POI = [pst(PZ, 0, q // 7, 1 + q % 7) for q in range(14)]
    FTB = lambda n: B5 + 16
    STQ = deque(POI[:5])
    for n in range(8): STQ.extend([pst(B2 + 4*n, 1, 0, n), POI[5 + n]])
    STQ.extend(POI[13:])
    FSQ = deque(pst(FTB(n), 1, 1, n) for n in range(8))
    WA8 = vDQ
    def wa8(sh):
        o = [f"s_and_b32 s{sT0}, s{sG}, 3", f"s_lshl_b32 s{sT0}, s{sT0}, 10", f"s_lshl_b32 s{sT1}, s{sW}, {sh}", f"s_add_u32 s{sT0}, s{sT0}, s{sT1}"]
        for j in range(2):
            o.append(f"v_add_u32 v{WA8+4*j}, s{sT0}, v{vB+j}")
            for rg in range(1, 4): o.append(f"v_xor_b32 v{WA8+4*j+rg}, {rg*1024}, v{WA8+4*j}")
        return o
    nq = [OPT["ini"]]
    HP = lambda n: B4 + 4*n
    for i, st in enumerate(PRE):
        post = []
        if nq[0] < NP: d = PRE[nq[0]].dma(); nq[0] += 1
        else: d = KV.popleft() if KV else []
        if nq[0] <= i + NS and nq[0] < NP: post = PRE[nq[0]].dma(); nq[0] += 1
        if OPT["pfpos"] == 2 and i == OPT["pf2"]: post = PFS[1] + PFS[2] + PFS[3]
        if OPT["pfpos"] == 2 and i == OPT["pf1"]: post = PFS[0]
        post = post + PFAT.get(i, [])
        if i == 16:
            flush(); E("s_nop 1")
            post = post + ["s_barrier"]
        if i == 17:
            for j in range(32): BG.append(f"v_cvt_pk_bf16_f32 v{B0+j}, v{B0+2*j}, v{B0+2*j+1}")
            BG.extend([f"s_and_b32 s{sT0}, s{sG}, 1", f"s_lshl_b32 s{sT1}, s{sT0}, 12", f"s_lshl_b32 s{sT0}, s{sT0}, 6"])
            for j in range(2): BG.extend([f"v_xor_b32 v{vBC+j}, s{sT0}, v{vB+j}", f"v_add_u32 v{vBC+j}, s{sT1}, v{vBC+j}"])
            BG.extend([f"s_lshl_b32 s{sT0}, s{sW}, 8", f"s_lshl_b32 s{sT1}, s{sG}, 2", f"s_add_u32 s{sT0}, s{sT0}, s{sT1}",
                       f"v_min_u32 v{vPUB}, 1, v{l}", f"v_lshlrev_b32 v{vPUB}, 30, v{vPUB}", f"v_add_u32 v{vPUB}, s{sT0}, v{vPUB}",
                       f"s_lshl_b32 s{sT0}, s{sW}, 8",
                       f"v_and_b32 v{vPOLL}, 7, v{l}", f"v_lshlrev_b32 v{vPOLL}, 2, v{vPOLL}", f"v_add_u32 v{vPOLL}, s{sT0}, v{vPOLL}",
                       f"v_add_u32 v{vRD}, 8192, v{vST}"])
            for j in range(4): BG.append(f"v_mov_b32 v{ONES+j}, 0x3f803f80")
            BG.extend(LATER2)
        if i == 32: flush()
        if i == 33:
            BG.extend([f"s_lshr_b32 s{sT0}, s{sG}, 2", f"s_lshl_b32 s{sT0}, s{sT0}, 6"])
            for j in range(4): BG.append(f"v_xor_b32 v{vTF+j}, s{sT0}, v{vTF+j}")
            for n in range(8):
                b = ACCH + 8*n
                for r in range(8): BG.append(f"v_max_f32 v{b+r}, 0, v{b+r}")
                for r in range(8): BG.append(f"v_mul_f32 v{b+r}, v{b+r}, v{b+r}")
                for j in range(4): BG.append(f"v_cvt_pk_bf16_f32 v{HP(n)+j}, v{b+2*j}, v{b+2*j+1}")
        if i == 36: post = dma_k(0)
        if i == 38: post = dma_k(1)
        if i == 44: post = [W("vm", ("K", 1)), "s_barrier"]
        if i == 45:
            for x in reversed(kreads(0)): BG.appendleft(x)
        if i == 54: post = ["s_barrier"]
        if i == 56:
            for n in range(8):
                b_ = (B2, B4)[n >> 2] + 8*(n & 3)
                for j in range(4): BG.append(f"v_cvt_pk_bf16_f32 v{B2+4*n+j}, v{b_+2*j}, v{b_+2*j+1}")
        if i == 43: BG.extend(wa8(13))
        if i == 49:
            for x in reversed([f"v_mov_b32 v{PZ+j}, {SENT:#x}" for j in range(4)] + [f"v_add_u32 v{vTQ}, 65536, v{vST}", f"v_add_u32 v{vTQ+1}, 65536, v{vRD}", f"s_mov_b32 s{sROT}, 4096"] +
                              [y for p in range(8) for y in (f"s_xor_b32 s{stab(p)}, s{sG}, {p}", f"s_mul_i32 s{stab(p)}, s{stab(p)}, {PSTR}", f"s_add_u32 s{stab(p)}, s{stab(p)}, {p*1024}")]):
                BG.appendleft(x)
        if i >= 57: post = post + [STQ.popleft()]
        step(st, PRE[48].areads() if i == 47 else PRE[i + 1].reads() if i + 1 < NP else [], d, post=post, gb=(OPT["f2b"] if 48 <= i < 54 else None))
        if i in (15, 47): stamp()
        if i in (3, 7, 11, 15, 19, 23, 27, 31, 35, 39, 43): stamp(3)
        if i == 47:
            flush()
            E(W("lg", ("kf", 0)))
            q0, q1 = qk(0, S0, True), qk(1, S1[0], True)
            cv = [f"v_cvt_pk_bf16_f32 v{B1+j}, v{B1+2*j}, v{B1+2*j+1}" for j in range(32)]
            hw = [T(f"ds_write_b128 v{WA8+n}, {vr(HP(n),4)} offset:{(n>>2)*4096}", "hw") for n in range(8)]
            pl = [[] for _ in range(32)]
            for g in range(2, 13): pl[g] = cv[3*(g-2):3*(g-1)]
            h0 = OPT["hw0"]
            for n in range(8): pl[h0 + 2*n].append(hw[n])
            pl[min(31, h0 + 18)] += [W("lg", "hw"), "s_barrier"] + PRE[48].breads()
            gaps(q0[:8] + q1[:8] + q0[8:] + q1[8:], pl)
            E(f"s_cmp_lg_u32 s{sFLAG}, 0", "s_cbranch_scc1 L_maxpass", "L_maxret:")
            BG.extend(kreads(1))
            for rg in range(4):
                s = (S0, S1[0])[rg >> 1] + 8*(rg & 1); m = vT
                BG.extend([f"v_max3_f32 v{m}, v{s}, v{s+1}, v{s+2}", f"v_max3_f32 v{m}, v{m}, v{s+3}, v{s+4}", f"v_max3_f32 v{m}, v{m}, v{s+5}, v{s+6}",
                           f"v_max_f32 v{m}, v{m}, v{s+7}"] + xred("v_max_f32", m, vT+1))
                BG.extend([[f"s_cmp_lg_u32 s{sFLAG}, 0", "s_cselect_b64 vcc, -1, 0"], "s_nop 0", f"v_cndmask_b32 v{m}, v{m}, v{vM+rg}, vcc"])
                for r in range(4): BG.append(f"v_sub_f32 v{NEGM+4*rg+r}, 0, v{m}")
                for r in range(8): BG.append(f"v_sub_f32 v{s+r}, v{s+r}, v{m}")
            sp0_ = [y for g in sm_plan(0, S0, P0[0]) for y in g]
            BG.extend(sp0_[:-1] + ["s_nop 0"] + sp0_[-1:])
    flush()
    stamp()
    E(W("vm", ("K", 2)), "s_waitcnt lgkmcnt(0)")
    def att_iter(i, x1=(), x2=()):
        if i == 0: E("s_barrier")
        pl = sm_plan(1, S1[i&1], P1)
        x1 = list(x1)
        for g, x in zip((2, 2, 4, 6, 6, 8, 10, 10, 12, 14, 14, 16, 18, 18, 20, 22), vreads(i)): pl[g].append(x)
        if x1:
            pl[22] += x1[:1]; pl[24] += x1[1:2]
            for g, x in zip((26, 28, 30, 31), x1[2:]): pl[g].append(x)
        elif STQ: pl[26].append(STQ.popleft())
        gaps(qk(0, S0) + qk(1, S1[(i+1)&1]), pl)
        pl = sm_plan(0, S0, P0[(i+1)&1], 36)
        pl[1] = [W("lg", ("vf", i))] + pl[1]
        if i + 2 < 16:
            for g, x in zip((2, 2, 4, 4, 6, 8, 8, 10), kreads(i + 2)): pl[g].append(x)
        if i == 14:
            for g, x in zip((2, 2, 4, 4, 6, 8, 8, 10, 12, 12, 14, 16, 16, 18, 20, 20, 22, 24, 24, 24, 26, 28, 28, 30, 32, 34, 35),
                            POST[0].areads() + POST[1].areads() + POST[2].areads()): pl[g].append(x)
        dv = dma_v(i + 3) if i + 3 < 16 else []
        dk = dma_k(i + 5) if i + 5 < 16 else []
        pl[0] += list(x2)
        if STQ: pl[12].append(STQ.popleft())
        if dv: pl[14] += dv[:1]; pl[14] += dv[1:2]; pl[16] += dv[2:3]; pl[20] += dv[3:]
        if dk: pl[22] += dk[:2]; pl[24] += dk[2:3]; pl[28] += dk[3:]
        pl[32] += [W2(W("vm", ("K", i+3)), W("vm", ("V", i+1)), W("lg", ("kf", i+2)))]
        pl[33] = ["s_barrier"] + pl[33]
        mf = pv(0, P0[i&1], zero=(i == 0)) + pv(1, P1, zero=(i == 0))
        gaps(mf[:35], pl[:35])
        flush()
        if FSQ: pl[35].append(FSQ.popleft())
        elif STQ: pl[35].append(STQ.popleft())
        gaps(mf[35:], pl[35:])
    VAL = vT + 3; GATE = vT + 4; POL = vT + 5
    poll = f"buffer_load_dword v{POL}, v{vPOLL}, {sr(sFL,4)}, 0 offen sc1"
    pub = f"buffer_store_dword v{VAL}, v{vPUB}, {sr(sFL,4)}, 0 offen sc1"
    for i in range(15):
        x1 = []; x2 = []
        if i == 0:
            x1 = dma_k(4)
            BG.extend([f"v_lshlrev_b32 v{vT}, 6, v0", f"v_mov_b32 v{vT+1}, 0", f"v_mov_b32 v{VAL}, 1"])
        if i == OPT["wopf"] and not OPT["wo4"]: BG.append([f"s_lshl_b32 s{sT1}, s{sRB}, 14", f"buffer_load_dword v{PFD}, v{vT}, {sr(sWO,4)}, s{sT1} offen"])
        if i == OPT["wop2"]: BG.extend([f"s_xor_b32 s{sT1}, s{sRB}, 16", [f"s_lshl_b32 s{sT1}, s{sT1}, 14", f"buffer_load_dword v{PFD}, v{vT}, {sr(sWO,4)}, s{sT1} offen"]])
        if i < 8: BG.extend(pack("a", 192 + 8*i, FTB(i)))
        gl = f"buffer_load_dword v{GATE}, v{vT+1}, {sr(sDBG,4)}, 0 offen sc1"
        if i == 2: BG.append(T(gl, "gate"))
        if i == 9: BG.extend([W("vm", "gate")] + check_ready("gate", GATE, gl, 1))
        if i == 10: x2 = ["s_waitcnt vmcnt(0)", pub]
        if i == 12: x2 = [T(poll, "fpoll")]
        FLD = [pld(ar(aFL+4*n,4), 1, n >> 3, n & 7, ("fl", n)) for n in range(16)]
        nf1 = 6
        if OPT["fchk"] == 14:
            if i == 14: BG.extend([W("vm", "fpoll")] + check_ready("f", POL, poll, 1) + FLD[:6])
        else:
            nf1 = 16
            if i == 13: BG.extend([W("vm", "fpoll")] + check_ready("f", POL, poll, 1) + FLD[:9])
            if i == 14: BG.extend(FLD[9:])
        wol = [int(x) for x in OPT["wol"].split("_")]
        if i in wol: x1 = POST[wol.index(i)].dma()
        if i >= 3: stamp(4)
        if i < 12: stamp(6)
        if i == 10: assert not STQ and not FSQ, (len(STQ), len(FSQ))
        att_iter(i, x1=x1, x2=x2)
    i = 15
    E(vreads(i))
    WA8 = NEGM
    E(wa8(14))
    pl32 = sm_plan(1, S1[i&1], P1)
    E(pl32[:2])
    mf = pv(0, P0[i&1])
    gaps(mf[:2], [pl32[2] + pl32[3], pl32[4] + pl32[5]])
    E("s_waitcnt lgkmcnt(0)")
    pl = [pl32[6+2*g] + pl32[7+2*g] if g < 13 else [] for g in range(16)]
    pl[0] = ["s_barrier"] + pl[0]
    d6 = POST[6].dma(); d7 = POST[7].dma()
    pl[12] = d6[:2] + pl[12]; pl[13] = d6[2:3]; pl[14] = d6[3:4]; pl[15] = d6[4:5]
    gaps(mf[2:], pl)
    OT = B2
    assert nf1 == 16
    r34 = POST[3].areads()[1:] + POST[4].areads()[1:]
    pl = [d6[5:], [W("vm", POST[4].tag)] + r34[:1]] + [r34[1+2*g:3+2*g] for g in range(8)] + [d7[:2]] + [[x] for x in d7[2:]]
    pl += [[f"v_rcp_f32 v{LR+2*rg}, v{LQ[rg]}"] for rg in range(3)]
    gaps(pv(1, P1), pl)
    E(f"v_rcp_f32 v{LR+6}, v{LQ[3]}")
    E(f"v_add_f32 v{vT+1}, v{LQ[0]}, v{LQ[1]}", f"v_add_f32 v{vT+2}, v{LQ[2]}, v{LQ[3]}", f"s_mov_b32 s{sT1}, {f32(2.0**OPT['thr'])}", f"v_add_f32 v{vT+1}, v{vT+1}, v{vT+2}",
      f"v_cmp_nge_f32 vcc, s{sT1}, v{vT+1}", f"v_and_b32 v{vT+2}, 3, v{l}", f"v_mul_u32_u24 v{vT+2}, {NS*4096}, v{vT+2}",
      "s_cmp_lg_u64 vcc, 0", f"s_cselect_b32 s{sT1}, 1, 0", f"v_mov_b32 v{vT}, s{sT1}",
      f"s_lshl_b32 s{sT1}, s{sW}, 2", f"s_add_u32 s{sT1}, s{sT1}, {R_BASE}", f"v_add_u32 v{vT+2}, s{sT1}, v{vT+2}", f"v_mov_b32 v{vT+1}, s{sRING}",
      f"ds_write_b32 v{vT+2}, v{vT} offset:{1*4096}")
    E(POST[5].areads())
    stamp()
    EQ = deque()
    for st_, w_ in ((8, 4), (9, 4), (10, 5)):
        d_ = POST[st_].dma(); EQ.append([W("lg", POST[w_].tag)] + d_[:3]); EQ.extend(d_[3:])
    for n in range(16):
        x, T32, rl = n >> 3, (n >> 1) & 3, n & 1
        b = OT + 8*(n & 7); rg = 2*x + rl
        for r in range(8): E(f"v_accvgpr_read_b32 v{b+r}, a{aO+8*n+r}")
        for j in range(4): E(f"v_pk_mul_f32 {vr(b+2*j,2)}, {vr(b+2*j,2)}, {vr(LR+2*rg,2)} op_sel_hi:[1,0]")
        for j in range(4): E(f"v_cvt_pk_bf16_f32 v{b+j}, v{b+2*j}, v{b+2*j+1}")
        E(f"ds_write_b128 v{WA8+4*(T32&1)+rg}, {vr(b,4)} offset:{T32*4096}")
        if n >= OPT["eq0"] and EQ: E(EQ.popleft())
    while EQ: E(EQ.popleft())
    E(POST[6].areads())
    E("s_waitcnt lgkmcnt(0)", "s_barrier")
    E(T(f"ds_read_b128 {vr(56,4)}, v{vT+1} offset:{1*4096}", "flg"), POST[0].breads())
    E(W("lg", "flg"))
    E(f"v_or3_b32 v{vT}, v56, v57, v58", f"v_or_b32 v{vT}, v{vT}, v59", "s_nop 0", f"v_readfirstlane_b32 s{sT0}, v{vT}",
      "s_nop 0", f"s_andn2_b32 s{sT0}, s{sT0}, s{sFLAG}", "s_cbranch_scc1 L_slow")
    E(POST[11].dma())
    stamp(); stamp(5)
    GV, XO, XR, BRW, TM = 112, vT, 56, 40, 8
    sacc = lambda ps, n: ((B4, B3), (B2, B5))[ps][n >> 2] + 8*(n & 3)
    sepi = lambda ps, n: pack("v", sacc(ps, n), None) + [pst(sacc(ps, n), 0, ps, n, ("sst", ps))] if n else []
    def SLr(ps, p): return B3 + 4*(p - 1) if ps == 0 else (B4 + 4 + 4*p if p < 7 else B3 + 28)
    def sloads(ps): return [pld(vr(SLr(ps, p), 4), 0, ps, p, ("sl", ps, p)) for p in range(1, 8)]
    sst = [int(x) for x in str(OPT["sst"]).split("_")]
    def fmath(pk, part=2):
        o = []; TQ = 18
        for ps in range(2):
            G_ = GV + 8*ps
            for g in range(8):
                n = 8*ps + g
                for j in range(4): o.append(f"v_accvgpr_read_b32 v{TQ+8+j}, a{aFL+4*n+j}")
                d0 = G_ if g == 0 else TQ
                for j in range(4): o += [f"v_lshlrev_b32 v{d0+2*j}, 16, v{TQ+8+j}", f"v_and_b32 v{d0+2*j+1}, s{sC0}, v{TQ+8+j}"]
                if g and pk: o += [f"v_pk_add_f32 {vr(G_+2*j,2)}, {vr(G_+2*j,2)}, {vr(TQ+2*j,2)}" for j in range(4)]
                elif g: o += [f"v_add_f32 v{G_+j}, v{G_+j}, v{TQ+j}" for j in range(8)]
        if part == 0: return o
        if part == 1: o = []
        for ps in range(2):
            G_ = GV + 8*ps
            for j in range(4): o += [f"v_lshlrev_b32 v{TQ+2*j}, 16, v{BRW+4*ps+j}", f"v_and_b32 v{TQ+2*j+1}, s{sC0}, v{BRW+4*ps+j}"]
            for j in range(8): o.append(f"v_fma_f32 v{G_+j}, v{G_+j}, s{sT0}, v{TQ+j}")
            for j in range(8): o.append(f"v_mul_f32 v{TQ+j}, {f32(-math.log2(math.e))}, v{G_+j}")
            for j in range(8): o.append(f"v_exp_f32 v{TQ+j}, v{TQ+j}")
            for j in range(8): o.append(f"v_add_f32 v{TQ+j}, 1.0, v{TQ+j}")
            for j in range(8): o.append(f"v_rcp_f32 v{TQ+j}, v{TQ+j}")
            for j in range(8): o.append(f"v_mul_f32 v{G_+j}, v{G_+j}, v{TQ+j}")
        return o
    nd = [12]; nr = [7]; hold = [int(x) for x in str(OPT['hold2']).split('_') if x]
    for i, st in enumerate(POST[:30]):
        if i == 0:
            BG.extend([f"v_bfe_u32 v{XO+1}, v0, 4, 2", f"v_lshlrev_b32 v{XO+1}, 3, v{XO+1}", f"v_and_b32 v{TM}, 15, v0",
                       f"v_lshl_add_u32 v{XO}, v{TM}, 10, v{XO+1}", f"s_mov_b32 s{sT0}, {f32(1/CS**2)}",
                       f"v_bfe_u32 v{TM}, v0, 4, 1", f"v_mul_u32_u24 v{TM}, 24, v{TM}", f"v_add_u32 v{XO+2}, v{XO}, v{TM}"])
        if i == OPT["fldo"] and i > 1: BG.extend(FLD[6:])
        if i == (0 if OPT["fbg"] else OPT["xbl"]):
            for k in range(4):
                BG.appendleft(T(f"buffer_load_dwordx2 {vr(XR+2*k,2)}, v{XO}, {sr(sX,4)}, s{sVOFF} offen offset:{(k>>1)*128+(k&1)*32}", "xb"))
                BG.appendleft(T(f"buffer_load_dwordx2 {vr(BRW+2*k,2)}, v{XO+1}, {sr(sB2,4)}, 0 offen offset:{(k>>1)*128+(k&1)*32}", "xb"))
        if i == OPT["fs0"]: BG.extend([W("vm", ("fl", 15))] + fmath(False, 0))
        e = [x for n in range(8) if sst[n * len(sst) // 8] == i for x in sepi(0, n)]
        for x in reversed(e): BG.appendleft(x)
        if i == OPT["lda"]:
            for x in reversed(sloads(0)): BG.appendleft(x)
        d = []
        if nd[0] < 32 and prev(nd[0]) < nr[0]: d = POST[nd[0]].dma(); nd[0] += 1
        nxt = POST[i + 1].breads() + (POST[31].breads() if i == 29 else [])
        want = 32 if i == 29 else min(i + 7, max(i + 2, nr[0] + (0 if i in hold else 1)))
        while nr[0] < min(32, want):
            assert nr[0] < nd[0] - (1 if d else 0) and nr[0] <= i + 6
            nxt = nxt + POST[nr[0]].areads(); nr[0] += 1
        for x in nxt:
            if isinstance(x, T): x.tag = POST[i + 1].tag
        step(st, nxt, d, post=([W("vm", ("sst", 0)), "buffer_wbl2 sc1"] if i == OPT["wb"] and i else []))
        if i == 15: stamp()
        if i % 3 == 2: stamp(5)
    REST = list(BG); BG.clear()
    print("f math left for the tail:", len(REST), file=sys.stderr)
    flush()
    stamp()
    stamp(7)
    E(W("lg", POST[30].tag))
    order = [1, 2, 3, 4, 5, 6, 7, 0]
    for k, n in enumerate(order):
        if k == 1: BG.append("s_nop 1")
        if k >= 2: BG.extend(sepi(1, order[k - 2]))
        gaps([POST[j].one(2*(n >> 2) + h, n & 3) for j in (30, 31) for h in range(2)], [], budget=12)
    flush()
    E(sepi(1, 7))
    stamp(); stamp(7)
    SA, ST_, XT, OP = B0, B0+16, B0+24, B0+40
    def fin():
        E(f"s_mov_b64 s[{sT2}:{sT3}], -1", f"s_mov_b32 s{sT1}, 0")
        for j in range(8): E(f"v_lshlrev_b32 v{XT+2*j}, 16, v{XR+j}", f"v_and_b32 v{XT+2*j+1}, s{sC0}, v{XR+j}")
        E("L_sum:")
        for ps in range(2):
            A_ = SA + 8*ps
            for p in range(1, 8):
                E(W("vm", ("sl", ps, p)))
                for j in range(4): E(f"v_lshlrev_b32 v{ST_+2*j}, 16, v{SLr(ps,p)+j}", f"v_and_b32 v{ST_+2*j+1}, s{sC0}, v{SLr(ps,p)+j}")
                for j in range(4): E(f"v_pk_add_f32 {vr(A_+2*j,2)}, {vr((sacc(ps,0) if p == 1 else A_)+2*j,2)}, {vr(ST_+2*j,2)}")
            E(f"v_pk_add_f32 {vr(ST_,2)}, {vr(A_,2)}, {vr(A_+2,2)}", f"v_pk_add_f32 {vr(ST_+2,2)}, {vr(A_+4,2)}, {vr(A_+6,2)}",
              f"v_pk_add_f32 {vr(ST_,2)}, {vr(ST_,2)}, {vr(ST_+2,2)}", f"v_cmp_u_f32 vcc, v{ST_}, v{ST_+1}")
            for j in range(4): E(f"v_pk_fma_f32 {vr(A_+2*j,2)}, {vr(A_+2*j,2)}, {vr(GV+8*ps+2*j,2)}, {vr(XT+8*ps+2*j,2)}")
            E(f"s_and_b64 vcc, vcc, s[{sT2}:{sT3}]", f"s_cbranch_scc1 L_miss{ps}")
            for j in range(4): E(f"v_cvt_pk_bf16_f32 v{OP+4*ps+j}, v{A_+2*j}, v{A_+2*j+1}")
            if OPT["o16"]:
                E("s_nop 0", f"v_permlane16_swap_b32 v{OP+4*ps}, v{OP+4*ps+2}", f"v_permlane16_swap_b32 v{OP+4*ps+1}, v{OP+4*ps+3}",
                  f"buffer_store_dwordx4 {vr(OP+4*ps,4)}, v{XO+2}, {sr(sOUT,4)}, s{sVOFF} offen offset:{ps*128} {OPT['outsc']}")
            else:
                for k in range(2): E(f"buffer_store_dwordx2 {vr(OP+4*ps+2*k,2)}, v{XO}, {sr(sOUT,4)}, s{sVOFF} offen offset:{ps*128+k*32} {OPT['outsc']}")
            if ps == 0: stamp(); E(f"s_mov_b32 s{sT4}, 0xffff", f"s_cmp_lg_u32 s{sT1}, 0", "s_cbranch_scc1 L_missl", "L_sum1:")
    assert not any(ismem(x) for x in REST)
    REST = REST + [W("vm", "xb")] + (fmath(True, 1) if OPT["fs0"] < 30 else fmath(True))
    cut = min(len(REST), OPT["bdel"])
    if OPT["lda"] >= 30:
        E(REST[:cut//2], sloads(0)); stamp(7); E(REST[cut//2:cut], sloads(1)); stamp(7); E(REST[cut:]); stamp(7)
        if OPT["stamps"] == 7:
            E(W("vm", ("sst", 1))); stamp(7); E(W("vm", ("sl", 0, 1))); stamp(7); E(W("vm", ("sl", 0, 7))); stamp(7); E(W("vm", ("sl", 1, 7))); stamp(7)
    else: E(REST[:cut], sloads(1), REST[cut:])
    fin()
    stamp()
    if OPT["stamps"]:
        E("s_waitcnt vmcnt(0)")
        if OPT["stamps"] != 7: stamp(0)
        E(f"s_lshl_b32 s{sT0}, s2, 2", f"s_add_u32 s{sT0}, s{sT0}, s{sW}", f"s_lshl_b32 s{sT0}, s{sT0}, 6", f"s_add_u32 s{sT0}, s{sT0}, {64<<20}")
        srd(sX, 58, sT0, ("imm", 64))
        E(f"v_mov_b32 v{vT}, 0", "s_memrealtime s[70:71]", "s_waitcnt lgkmcnt(0)", f"s_mov_b32 s87, s70")
        for i in list(range(nstamp[0])) + [14, 15]:
            E(f"v_mov_b32 v{vT+1}, s{sST+i}", f"buffer_store_dword v{vT+1}, v{vT}, {sr(sX,4)}, 0 offen offset:{4*i}")
    if OPT["hold"] >= 0:
        E(f"s_cmp_lg_u32 s2, {OPT['hwg']}", "s_cbranch_scc1 L_main_end", "s_mov_b32 s73, 3000", "L_hold:", "s_memrealtime s[70:71]", "s_waitcnt lgkmcnt(0)",
          "s_sub_u32 s70, s70, s72", "s_sub_u32 s73, s73, 1", "s_cbranch_scc1 L_main_end", "s_cmp_lt_u32 s70, 10000", "s_cbranch_scc1 L_hold")
    E("L_main_end:", "s_endpgm")
    for name, vreg, load, val in SPINS:
        E(f"L_spin_{name}:", f"s_mov_b32 s{sCNT}, {OPT['spin']}", f"L_spinl_{name}:", load, "s_waitcnt vmcnt(0)",
          f"v_cmp_le_u32 vcc, {val}, v{vreg}", f"s_sub_u32 s{sCNT}, s{sCNT}, 1", f"s_cbranch_scc1 L_ok_{name}",
          "s_cmp_eq_u64 vcc, -1", f"s_cbranch_scc0 L_spinl_{name}", f"s_branch L_ok_{name}")
    E("L_miss0:", f"s_mov_b32 s{sT1}, 0xfefe", f"s_mov_b32 s{sT4}, 0xff", "s_branch L_miss", "L_miss1:", f"s_mov_b32 s{sT1}, 0xfe00",
      "L_miss:", f"s_mov_b32 s{sT0}, {SENT:#x}", f"s_mov_b32 s{sCNT}, {OPT['spin']}", "L_missl:", "s_waitcnt vmcnt(0)")
    if OPT["slp"]: E(f"s_sleep {OPT['slp']}")
    for ps in range(2):
        for g in range(1, 8):
            r = SLr(ps, g); bit = 8*ps + g
            E(f"s_bitcmp1_b32 s{sT1}, {bit}", f"s_cbranch_scc0 L_have{bit}",
              f"v_cmp_eq_u32 vcc, s{sT0}, v{r}", f"v_cmp_eq_u32 s[{sT2}:{sT3}], s{sT0}, v{r+1}", f"v_cmp_eq_u32 s[70:71], s{sT0}, v{r+2}", f"s_or_b64 s[{sT2}:{sT3}], vcc, s[{sT2}:{sT3}]",
              f"v_cmp_eq_u32 vcc, s{sT0}, v{r+3}", f"s_or_b64 s[70:71], s[70:71], s[{sT2}:{sT3}]", f"s_bitset0_b32 s{sT1}, {bit}",
              f"s_or_b64 s[70:71], s[70:71], vcc", f"s_cbranch_scc0 L_have{bit}", f"s_bitset1_b32 s{sT1}, {bit}", sloads(ps)[g-1], f"L_have{bit}:")
    E(f"s_sub_u32 s{sCNT}, s{sCNT}, 1", "s_cbranch_scc0 L_missc", "s_waitcnt vmcnt(0)", f"s_mov_b32 s{sT1}, 0", "L_missc:",
      f"s_and_b32 s70, s{sT1}, s{sT4}", "s_cbranch_scc1 L_missl",
      f"s_mov_b64 s[{sT2}:{sT3}], 0", f"s_cmp_eq_u32 s{sT4}, 0xff", "s_cbranch_scc1 L_sum", "s_branch L_sum1")
    E("L_slow:")
    E("s_waitcnt vmcnt(0) lgkmcnt(0)", "s_barrier", f"s_mov_b32 s{sFLAG}, 1", "s_branch L_restart")
    E("L_maxpass:")
    E(f"s_mov_b32 s{sKOFF}, 0", f"s_mov_b32 s{sCNT}, 16", [f"v_mov_b32 v{vM+j}, 0xff800000" for j in range(4)])
    E("L_slow_loop:")
    dk = dma_k(2); E(dk[0], "s_nop 0", dk[2:])
    E("s_waitcnt vmcnt(0)", "s_barrier")
    E(kreads(2))
    E("s_waitcnt lgkmcnt(0)", "s_barrier")
    E(qk(0, B5, True), qk(1, B5 + 16, True))
    E("s_nop 7", "s_nop 7", f"s_add_u32 s{sKOFF}, s{sKOFF}, 8192")
    for rg in range(4):
        s = B5 + 8*rg
        for j in range(0, 8, 2): E(f"v_max3_f32 v{vM+rg}, v{vM+rg}, v{s+j}, v{s+j+1}")
    E(f"s_sub_u32 s{sCNT}, s{sCNT}, 1", f"s_cmp_lg_u32 s{sCNT}, 0", "s_cbranch_scc1 L_slow_loop")
    for rg in range(4): E(xred("v_max_f32", vM+rg, vT))
    E("s_branch L_maxret", "L_code_end:")

K = NAME + "_kernel"
hdr = open("cdna_kernels/" + NAME + ".s.ref").read().split("; Override launch")[0]
out = [hdr.rstrip()]
out.append("; @launch grid=(256,1,1) block=(256,1,1) lds=163840")
out.append('.amdgcn_target "amdgcn-amd-amdhsa--gfx950"')
out.append(".text")
main_kernel(K)
if OPT["stubs"]:
    import subprocess, tempfile, os, re
    tmp = tempfile.mkdtemp()
    open(tmp + "/a.s", "w").write("\n".join(out + L + [f"L_pg{i}:" for i in range(4)] + ["s_endpgm"]) + "\n")
    subprocess.run(["clang", "-x", "assembler", "-target", "amdgcn-amd-amdhsa", "-mcpu=gfx950", "-c", tmp + "/a.s", "-o", tmp + "/a.o"], check=True)
    dis = subprocess.run(["llvm-objdump", "-d", "--mcpu=gfx950", tmp + "/a.o"], capture_output=True, text=True).stdout
    addrs = [int(m.group(1), 16) for m in re.finditer(r"// ([0-9A-F]{12}):", dis)]
    idx = [i for i, x in enumerate(L) if x.startswith("    ")]
    assert len(addrs) == len(idx) + 1, (len(addrs), len(idx))
    end = L.index("L_main_end:")
    pos = []; page = OPT["pg0"]
    for a_, i in zip(addrs, idx):
        if i >= end: break
        if a_ + 4*len(pos) >= page * 4096 + OPT["pgo"]: pos.append(i); page += 1
    n = len(pos)
    for k in reversed(range(n)):
        L[pos[k]:pos[k]] = [f"L_pg{k}:", f"    s_cbranch_execz {'L_pg%d' % (k+4) if k + 4 < n else 'L_pgret'}"]
out += L
out.append('.section .rodata,"a"')
out.append(f""".p2align 6
.amdhsa_kernel {K}
  .amdhsa_next_free_vgpr 512
  .amdhsa_next_free_sgpr 102
  .amdhsa_accum_offset 256
  .amdhsa_group_segment_fixed_size 0
  .amdhsa_kernarg_size 104
  .amdhsa_user_sgpr_count 2
  .amdhsa_user_sgpr_kernarg_segment_ptr 1
  .amdhsa_system_sgpr_workgroup_id_x 1
.end_amdhsa_kernel""")
print("\n".join(out))
```

```python
import sys, math, struct
from collections import deque
NAME = "recurrent_scan__sliding_block_cached__dense_activation_squared_relu__prompt"
OPT = dict(stamps=0, rt=0, codepf=1, budget=8, thr=40, memc=4, dmac=8, hg=2, rot=8, outsc="", skip="", spin=200000, pfpos=9, pfs="w2@-1_k@20_v@20", pf2=28,
           sst="19_20_21_22_23_24_25", dropoob=1, lda=99, npre=12, sp0=4, hw0=12, gb=8, pf1=12, stubs=1, fbg=0, bdel=60, xbl=27, kvrot=0, pg0=2, pgo=0, f2b=12, hold=-1, hwg=100, hold2="24", wol="7_8_9_11_12_13", wopf=5, fldo=1, wo4=0, slp=0, fs0=5, pad=4352, spn=1, pfk=12, fchk=13, mo=2, ao=0, ini=6, wb=0, wop2=11, o16=1, lean=0, qsw=1, eq0=4)
for a in sys.argv[1:]:
    k, v = a.split("="); OPT[k] = int(v) if v.lstrip("-").isdigit() else v

def vr(b, n=1): return f"v{b}" if n == 1 else f"v[{b}:{b+n-1}]"
def ar(b, n=1): return f"a{b}" if n == 1 else f"a[{b}:{b+n-1}]"
def R(kind, b, n=1): return vr(b, n) if kind == "v" else ar(b, n)
def sr(b, n=1): return f"s{b}" if n == 1 else f"s[{b}:{b+n-1}]"
def f32(x): return "0x%08x" % struct.unpack("<I", struct.pack("<f", x))[0]

class W:
    def __init__(s, cnt, tag): s.cnt, s.tag = cnt, tag
class W2:
    def __init__(s, *ws): s.ws = ws
class T:
    def __init__(s, text, tag): s.text, s.tag = text, tag
L = []; VM = []; LG = []
def E(*xs):
    for x in xs:
        if isinstance(x, (list, tuple)): E(*x); continue
        if isinstance(x, W2):
            n0 = len(L)
            for w_ in x.ws: E(w_)
            parts = {}
            for ln in L[n0:]:
                p_ = ln.split()[1]; parts[p_[:2]] = p_
            del L[n0:]
            if parts: L.append("    s_waitcnt " + " ".join(parts[k] for k in ("vm", "lg") if k in parts))
            continue
        if isinstance(x, W):
            q = VM if x.cnt == "vm" else LG
            idx = [i for i, t in enumerate(q) if t == x.tag]
            if not idx: continue
            n = len(q) - 1 - idx[-1]
            n = min(n, 63 if x.cnt == "vm" else 15)
            del q[:len(q) - n]
            L.append(f"    s_waitcnt {'vmcnt' if x.cnt == 'vm' else 'lgkmcnt'}({n})"); continue
        tag = None
        if isinstance(x, T): x, tag = x.text, x.tag
        op = x.split()[0]
        if op.startswith("buffer_") or op.startswith("global_"): VM.append(tag)
        if op.startswith("ds_"): LG.append(tag)
        if op == "s_waitcnt":
            for w in x.split()[1:]:
                n = int(w[w.index("(")+1:-1]); q = VM if w.startswith("vm") else LG
                if len(q) > n: del q[:len(q) - n]
        L.append("    " + x if not x.endswith(":") and not x.startswith(".") else x)
def opof(x):
    if isinstance(x, (list, tuple)): return opof(x[0])
    if isinstance(x, (W, W2)): return "s_waitcnt"
    return (x.text if isinstance(x, T) else x).split()[0]
def ismem(x):
    if isinstance(x, (list, tuple)): return any(ismem(y) for y in x)
    return opof(x).split("_")[0] in ("ds", "buffer", "global")
def isvalu(x): return opof(x).startswith("v_")
def cost(x):
    if isinstance(x, (list, tuple)): return sum(cost(y) for y in x)
    if isinstance(x, (W, W2)): return 4
    t = x.text if isinstance(x, T) else x
    op = t.split()[0]
    assert not op.startswith("v_pk_"), t
    if t.endswith(":"): return 0
    if op in ("v_exp_f32", "v_rcp_f32", "v_sqrt_f32"): return 8
    if op.startswith("buffer_store_dwordx4"): return 24
    if op.startswith("buffer_") or op.startswith("global_"): return OPT["dmac"]
    if op == "s_nop": return 4 * (int(t.split()[1]) + 1)
    if op == "ds_write_b128": return 20
    return 4
BG = deque()
def gaps(mf, plan, budget=None, wr_from=0):
    budget = OPT["budget"] if budget is None else budget
    for g, m in enumerate(mf):
        E(m)
        items = plan[g] if g < len(plan) else []
        endi = [x[1:] for x in items if isinstance(x, tuple) and x[0] == "end"]
        items = [x for x in items if not (isinstance(x, tuple) and x[0] == "end")]
        c = sum(cost(x) for x in items) + sum(cost(x) for x in endi)
        E([x for x in items if not isvalu(x)])
        while True:
            while BG and ismem(BG[0]) and len(PM) < 3: PM.append(BG.popleft())
            if PM and opof(PM[0]).startswith("ds_write") and g < wr_from: break
            if PM and (c + cost(PM[0]) <= budget or c <= OPT["memc"]):
                x = PM.popleft(); E(x); c += cost(x)
            else: break
        E([x for x in items if isvalu(x)])
        while BG:
            if ismem(BG[0]):
                if len(PM) < 3: PM.append(BG.popleft()); continue
                break
            if opof(BG[0]) in ("s_waitcnt", "s_barrier") and PM: break
            if c + cost(BG[0]) > budget: break
            x = BG.popleft(); E(x); c += cost(x)
        E(endi)
PM = deque()
def flush():
    print("flush", len(PM), len(BG), "at line", len(L), file=sys.stderr)
    while PM: E(PM.popleft())
    while BG: E(BG.popleft())
def spread(items, n, per):
    return [items[g*per:(g+1)*per] for g in range(n)]


CS = 128**-0.5 * math.log2(math.e)
X_BASE, R_BASE, NS = 0, 65536, 6
KR_BASE = 32768
FLAG_OFF = 48 << 20
OOB = 0x40000000
PSTR = 131072 + OPT['pad']
SENT = 0xff81ff81
sX, sK, sV, sWQ, sWO, sW1, sW2, sB1, sP = 4, 8, 12, 16, 20, 24, 28, 32, 36
sW, sG, sRB, sRING, sOFF, sCNT, sT0, sT1, sKOFF, sVOFF, sVL, sC0, sT2, sT3, sFLAG, sT4, sROT, sJJ = range(40, 58)
sFL, sDBG, sPR, sB2, sOUT = 60, 64, 88, 92, 96
sST = 72
sTAB = 16
def stab(p): return sTAB + p if p < 4 else 24 + (p - 4)
vLANE, vTF, vB, vBC, vPUB, vPOLL, vTQ, vDO, vKR, vTV, vDK, vDV, vST, vRD, vM, vL = 1, 2, 6, 8, 10, 11, 12, 14, 18, 22, 26, 28, 30, 31, 32, 36
vDQ, vD1, PFD = 40, 44, 49
vT = 50
B0, B1, B2, B3, B4, B5 = 64, 96, 128, 160, 192, 224
S0, S1, P0, P1, NEGM = B3, (B3+16, B4), (56, B4+16), B4+24, B5
LR = B5 + 16
aO, aVF, aKF, aFL = 0, 128, 160, 192
ONES = vL
LQ = (44, B5+24, B5+28, vM)
def QFr(rg, s_): return B0 + 16*s_ + 4*rg
BIAS = B2 + 16

nstamp = [0]
hcnt = [0]
def stamp(lvl=1):
    if OPT["hold"] >= 0 and lvl in (0, 1):
        if hcnt[0] == OPT["hold"]: E("s_memrealtime s[70:71]", "s_waitcnt lgkmcnt(0)", "s_mov_b32 s72, s70")
        hcnt[0] += 1
    if not OPT["stamps"]: return
    if OPT["stamps"] != lvl and lvl != 0: return
    i = nstamp[0]; nstamp[0] += 1
    assert i < 14
    E("s_memrealtime s[70:71]" if OPT["rt"] else "s_memtime s[70:71]", "s_waitcnt lgkmcnt(0)", f"s_mov_b32 s{sST+i}, s70")

def mfma(dk, d, ak, a, bk, b, c=None, ck=None):
    cs = R(dk, d, 4) if c is None else (str(c) if ck is None else R(ck, c, 4))
    return f"v_mfma_f32_16x16x32_bf16 {R(dk,d,4)}, {R(ak,a,4)}, {R(bk,b,4)}, {cs}"
def kvoff(t):
    return f"s_xor_b32 s{sKOFF}, s{sJJ}, {t*8192}" if OPT["kvrot"] else f"s_mov_b32 s{sKOFF}, {t*8192}"
def dma_k(t):
    return [f"s_add_u32 m0, s{sVL}, {KR_BASE+(t&3)*8192}", kvoff(t),
            T(f"buffer_load_dwordx4 v{vDK}, {sr(sK,4)}, s{sKOFF} offen lds", ("K", t)),
            T(f"buffer_load_dwordx4 v{vDK+1}, {sr(sK,4)}, s{sKOFF} offen offset:1024 lds", ("K", t))]
def dma_v(t):
    return [f"s_add_u32 m0, s{sVL}, {X_BASE+(t&3)*8192}", kvoff(t),
            T(f"buffer_load_dwordx4 v{vDV}, {sr(sV,4)}, s{sKOFF} offen lds", ("V", t)),
            T(f"buffer_load_dwordx4 v{vDV+1}, {sr(sV,4)}, s{sKOFF} offen offset:1024 lds", ("V", t))]

class Stage:
    def __init__(s, idx, mat, j, ps, acc, areg, readb, vb):
        s.idx, s.mat, s.j, s.ps, s.acc, s.areg, s.readb, s.vb = idx, mat, j, ps, acc, areg, readb, vb
        s.slot = idx % NS; s.tag = (mat, ps, j); s.breg = ("a", 16*j)
    def dma(s):
        srd_, vd, stride = {"w1": (sW1, vD1, 3584), "wq": (sWQ, vDQ, 8192), "w2": (sW2, vDO, 1024), "wo": (sWO, vDO, 1024)}[s.mat]
        o = [f"s_add_u32 m0, s{sRING}, {s.slot*4096}", f"s_mov_b32 s{sOFF}, {s.j*32*stride + s.ps*128}"]
        if OPT["rot"] and s.mat == "wq":
            o[1] = [f"s_add_u32 s{sOFF}, s{sROT}, {s.j*32*8192 + s.ps*128}", f"s_and_b32 s{sOFF}, s{sOFF}, {(512*8192-1) & ~256}"]
        if OPT["rot"] and s.mat == "w1":
            o[1] = [f"s_add_u32 s{sOFF}, s{sROT}, {s.j*32*8192}", f"s_bfe_u32 s{sOFF}, s{sOFF}, {(9<<16)|13}", f"s_mul_i32 s{sOFF}, s{sOFF}, 3584"]
        return o + [T(f"buffer_load_dwordx4 v{vd+p}, {sr(srd_,4)}, s{sOFF} offen offset:{p*1024} lds", s.tag) for p in range(4)]
    def areads(s):
        ak, a = s.areg; o = [W("vm", s.tag)]
        for Tt in range(4):
            for t in range(2):
                va, off = (vTQ + (Tt >> 1), 8*(Tt & 1)) if s.mat == "wq" else (vTF + Tt, 0)
                o.append(T(f"ds_read_b64_tr_b16 {R(ak, a+4*Tt+2*t, 2)}, v{va} offset:{s.slot*4096+t*2048+off}", s.tag))
        return o
    def breads(s):
        if not s.readb: return []
        bk, b = s.breg
        return [T(f"ds_read_b128 {R(bk, b+4*rg, 4)}, v{s.vb+(s.j&1)} offset:{s.j*4096+rg*1024}", s.tag) for rg in range(4)]
    def reads(s): return s.breads() + s.areads()
    def one(s, Tt, rg):
        ak, a = s.areg; dk, d = s.acc(Tt, rg)
        c = () if s.j else ((BIAS + 4*Tt, "v") if s.mat == "w1" else (0,))
        return mfma(dk, d, ak, a+4*Tt, s.breg[0], s.breg[1]+4*rg, *c)
    def mf(s):
        if OPT["mo"] == 1: return [s.one(Tt, rg) for rg in range(4) for Tt in range(4)]
        if OPT["mo"] == 2: return [s.one(Tt, rg if Tt % 2 == 0 else 3 - rg) for Tt in range(4) for rg in range(4)]
        return [s.one(Tt, rg) for Tt in range(4) for rg in range(4)]
def step(st, nxt_reads, dma, post=(), gb=None):
    E(W("lg", st.tag))
    plan = [[] for _ in range(16)]
    q = list(nxt_reads)
    dg = {}
    if dma:
        dg = {0: dma[:2], 3: dma[2:3], 7: dma[3:4]}
        if len(dma) == 6: dg.update({11: dma[4:5], 15: dma[5:6]})
        elif len(dma) == 8: dg.update({9: dma[4:6], 11: dma[6:7], 15: dma[7:8]})
    per = 1 if len(q) <= (16 - len(dg) - 2) else 2
    for g in range(16):
        if g in dg: plan[g] += dg[g]
        else: plan[g] += q[:per]; q = q[per:]
    assert not q
    plan[15] += list(post)
    gaps(st.mf(), plan, budget=gb or OPT["gb"])

def srd(d, ptr, off, size):
    E(f"s_add_u32 s{d}, s{ptr}, s{off}", f"s_addc_u32 s{d+1}, s{ptr+1}, 0")
    if size[0] == "rest": E(f"s_sub_u32 s{d+2}, {size[1]}, s{off}")
    else: E(f"s_mov_b32 s{d+2}, {size[1]}")
    E(f"s_mov_b32 s{d+3}, 0x00020000")

SPINS = []
def check_ready(name, vreg, load, val):
    SPINS.append((name, vreg, load, val))
    return [f"v_cmp_le_u32 vcc, {val}, v{vreg}", ["s_cmp_eq_u64 vcc, -1", f"s_cbranch_scc0 L_spin_{name}", f"L_ok_{name}:"]]
def blk(kind, lo, hi): return lambda Tt, rg: (kind, (lo, hi)[Tt >> 1] + 8*rg + 4*(Tt & 1))
def xred(op, a, b):
    return [f"v_mov_b32 v{b}, v{a}", "s_nop 1", f"v_permlane32_swap_b32 v{a}, v{b}", "s_nop 0", f"{op} v{a}, v{a}, v{b}",
            f"v_mov_b32 v{b}, v{a}", "s_nop 1", f"v_permlane16_swap_b32 v{a}, v{b}", "s_nop 0", f"{op} v{a}, v{a}, v{b}"]

def main_kernel(K):
    PRE = []
    def add(lst, mat, n, ps, acc, aregs, readb, vb):
        for j in range(n): lst.append(Stage(len(lst), mat, j, ps, acc, aregs(len(lst)), readb, vb))
    av = lambda i: ("v", B3 + 16*(i & 1)); aa = lambda i: ("a", 112 + 16*(i & 1))
    add(PRE, "wq", 16, 0, blk("v", B0, B1), av, True, vB)
    add(PRE, "w1", 16, 0, blk("v", B4, B5), av, False, vB)
    add(PRE, "wq", 16, 1, blk("v", B1, B2), av, False, vB)
    add(PRE, "w2", 7, 0, blk("v", B2, B4), aa, True, vBC)
    add(PRE, "w2", 7, 1, blk("a", 192, 224), aa, False, vBC)
    POST = []
    SETS = [("a", aKF), ("a", aKF+16), ("v", B0), ("v", B0+16), ("v", B0+32), ("a", aVF), ("a", aVF+16)]
    ao = lambda i: SETS[i % 7]
    add(POST, "wo", 16, 0, blk("v", B4, B3), ao, True, vB)
    add(POST, "wo", 16, 1, blk("v", B2, B5), ao, False, vB)
    for st in POST:
        if st.idx >= 7: st.slot = (2, 3, 4, 5, 1, 0)[(st.idx - 7) % 6]
    prev = lambda s_: {7: 2, 8: 3, 9: 4, 10: 5, 11: -1}.get(s_, s_ - 6)
    for st in POST:
        if st.j >= 8:
            st.readb = True
            st.breg = ("v", B2 + 16*(st.j & 1)) if st.ps == 0 else ("a", 16*(st.j - 8))

    E(".p2align 12", ".p2align 8", f".globl {K}", f".type {K},@function", f"{K}:")
    E("s_cmp_ge_u32 s2, 256", "s_cbranch_scc1 L_main_end")
    E(f"s_mov_b32 s{sFLAG}, 0", [f"v_mov_b32 v{vM+j}, 0" for j in range(4)])
    E("L_restart:")
    if OPT["stamps"]: E("s_memrealtime s[86:87]")
    stamp(0)
    E("s_load_dwordx8 s[60:67], s[0:1], 0", "s_load_dwordx2 s[68:69], s[0:1], 32", "s_load_dwordx4 s[88:91], s[0:1], 48",
      "s_load_dwordx8 s[92:99], s[0:1], 64", "s_load_dwordx2 s[58:59], s[0:1], 96")
    if OPT["codepf"]:
        E("s_getpc_b64 s[100:101]", "L_pc:", f"s_sub_u32 s100, s100, L_pc-{K}", "s_subb_u32 s101, s101, 0")
        E(f"s_bfe_u32 s{sT0}, s2, 0x30003", f"s_lshl_b32 s{sT0}, s{sT0}, 14", f"v_lshlrev_b32 v{vT}, 6, v0", f"v_add_u32 v{vT}, s{sT0}, v{vT}",
          f"v_min_u32 v{vT}, L_code_end-{K}-4, v{vT}")
        E(f"v_mov_b32 v{vT+1}, s101", f"v_add_co_u32 v{vT}, vcc, s100, v{vT}", "s_nop 1", f"v_addc_co_u32 v{vT+1}, vcc, 0, v{vT+1}, vcc",
          f"global_load_dword v{PFD}, {vr(vT,2)}, off")
    l = vLANE
    pt = 128
    row, c7, t0, t1, t2, t3, t4, cl, zr, bo = range(pt, pt + 10)
    xo = pt + 12
    wa, pw = 58, 60
    def cap(fn):
        global L
        keep = L; L = []; fn(); got = [x.strip() for x in L]; L = keep
        return got
    def srdl(d, ptr, off, size):
        c = cap(lambda: srd(d, ptr, off, size)); return [c[:2], c[2], c[3]]
    E(f"v_lshrrev_b32 v{t0}, 6, v0", f"v_and_b32 v{l}, 63, v0")
    HG = OPT["hg"]; lh = HG.bit_length() - 1
    E(f"s_and_b32 s{sG}, s2, {8//HG-1}", f"s_lshl_b32 s{sG}, s{sG}, {lh}", f"s_bfe_u32 s{sT0}, s2, {(lh<<16)|3}", f"s_or_b32 s{sG}, s{sG}, s{sT0}",
      f"s_lshr_b32 s{sJJ}, s2, {3+lh}", f"s_bfe_u32 s{sRB}, s2, {(lh<<16)|(3-lh)}", f"s_lshl_b32 s{sRB}, s{sRB}, {5-lh}", f"s_or_b32 s{sRB}, s{sRB}, s{sJJ}")
    E(f"v_readfirstlane_b32 s{sW}, v{t0}")
    E(f"v_bfe_u32 v{row}, v0, 3, 3", f"v_lshl_add_u32 v{t1}, v{t0}, 4, v{row}",
      f"v_and_b32 v{c7}, 7, v0", f"v_lshlrev_b32 v{xo}, 4, v{c7}", f"v_lshl_add_u32 v{xo}, v{t1}, 10, v{xo}", f"v_add_u32 v{xo+1}, 8192, v{xo}")
    XS = 8
    if OPT["rot"]:
        if OPT["rot"] == 16: E(f"s_and_b32 s{sROT}, s{sJJ}, 15", f"s_lshr_b32 s{XS}, s{sROT}, 1", f"s_lshl_b32 s{XS}, s{XS}, 7", f"s_and_b32 s{sCNT}, s{sROT}, 1")
        else: E(f"s_and_b32 s{sROT}, s{sJJ}, {OPT['rot']-1}", f"s_mul_i32 s{sROT}, s{sROT}, {8//OPT['rot']}", f"s_lshl_b32 s{XS}, s{sROT}, 7")
        for i in range(1, 8): E(f"s_add_u32 s{XS+i}, s{XS}, {128*i}", f"s_and_b32 s{XS+i}, s{XS+i}, 1023")
        E(f"s_lshl_b32 s{sROT}, s{sROT}, {18 if OPT['rot'] == 16 else 19}")
    if OPT["qsw"]:
        E(f"s_bfe_u32 s{sT0}, s{sRB}, 0x10004", f"s_lshl_b32 s{sT0}, s{sT0}, 7", f"s_add_u32 s{sROT}, s{sROT}, s{sT0}")
    E(f"s_and_b32 s{sJJ}, s{sJJ}, {OPT['kvrot']}", f"s_lshl_b32 s{sJJ}, s{sJJ}, 13")
    natp = lambda p, stride: (16*(p & 1) + 4*(p >> 1)) * stride - p*1024
    def early():
        E(f"s_or_b32 s{sT0}, s{sG}, s{sW}", f"s_or_b32 s{sT0}, s{sT0}, s{sFLAG}", f"s_cmp_eq_u32 s{sT0}, 0", f"s_cselect_b32 s{sT2}, 0, {OOB}",
          f"v_lshlrev_b32 v{cl}, 8, v{row}", f"v_lshl_add_u32 v{cl}, v{c7}, 2, v{cl}", f"v_add_u32 v{cl}, s{sT2}, v{cl}",
          f"v_mov_b32 v{zr}, 0", f"v_mov_b32 v{vL}, s{sT2}", f"v_mov_b32 v{vL+1}, 1")
        E(f"s_mul_i32 s{sRING}, s{sW}, {NS*4096}", f"s_add_u32 s{sRING}, s{sRING}, {R_BASE}", f"s_lshl_b32 s{sVL}, s{sW}, 11", f"s_mov_b32 s{sC0}, 0xffff0000")
        E(f"v_lshrrev_b32 v{t2}, 4, v{l}", f"v_lshlrev_b32 v{t2}, 1, v{t2}", f"v_xor_b32 v{t3}, v{c7}, v{t2}", f"v_lshlrev_b32 v{t1}, 4, v{t3}",
          f"v_lshrrev_b32 v{t0}, 5, v{l}", f"v_and_b32 v{t2}, 3, v{row}", f"v_lshl_add_u32 v{t0}, v{t0}, 3, v{t2}",
          f"v_mul_u32_u24 v{t2}, 3584, v{t0}", f"s_lshl_b32 s{sT4}, s{sW}, 7", f"v_add3_u32 v{vD1}, v{t2}, v{t1}, s{sT4}",
          f"v_lshl_add_u32 v{vDV}, v{row}, 8, v{t1}",
          f"s_lshl_b32 s{sT0}, s{sW}, 8", f"v_add_u32 v{t1}, s{sT0}, v{t1}",
          f"v_lshl_add_u32 v{vDQ}, v{t0}, 13, v{t1}", f"v_lshl_add_u32 v{vDO}, v{row}, 10, v{t1}")
        if OPT["dropoob"]:
            E(f"s_and_b32 s{sT0}, s{sG}, 1", f"s_xor_b32 s{sT0}, s{sT0}, 1", f"s_mul_i32 s{sT0}, s{sT0}, 7", f"s_lshl_b32 s{sT3}, s{sW}, 1",
              f"v_lshrrev_b32 v{t3}, 2, v{t3}", f"v_or_b32 v{t3}, s{sT3}, v{t3}", f"v_cmp_eq_u32 vcc, s{sT0}, v{t3}", f"v_mov_b32 v{t2}, {OOB}", "s_nop 0",
              f"v_cndmask_b32 v{vD1}, v{vD1}, v{t2}, vcc")
        for p in range(1, 4): E(f"v_add_u32 v{vDQ+p}, {natp(p, 8192)}, v{vDQ}")
        E(f"v_xor_b32 v{t0}, v{row}, v{c7}", f"v_and_b32 v{t1}, 3, v{c7}", f"v_lshl_add_u32 v{t0}, v{t1}, 4, v{t0}", f"v_lshlrev_b32 v{t0}, 4, v{t0}",
          f"v_lshrrev_b32 v{t1}, 2, v{c7}", f"v_lshl_add_u32 v{t0}, v{t1}, 12, v{t0}", f"s_lshl_b32 s{sT0}, s{sW}, 10", f"v_add_u32 v{wa}, s{sT0}, v{t0}")
        if OPT["rot"] == 16:
            E(f"s_lshl_b32 s{sT0}, s{sCNT}, 6", f"v_xor_b32 v{wa}, s{sT0}, v{wa}", f"s_lshl_b32 s{sT0}, s{sCNT}, 12", f"s_sub_u32 s{sT0}, 8192, s{sT0}",
              f"v_add_u32 v{wa}, s{sT0}, v{wa}", f"v_add_u32 v{wa+1}, {65536-8192}, v{wa}", f"v_and_b32 v{wa+1}, 0xffff, v{wa+1}")
        E(f"s_lshl_b32 s{sT0}, s{sRB}, 16", f"s_lshl_b32 s{sT1}, s{sRB}, 12", f"s_add_u32 s{sT1}, s{sT1}, {FLAG_OFF}")
        E(f"s_lshr_b32 s{sT3}, s{sG}, 1", f"s_mul_i32 s{sT3}, s{sT3}, 896", f"s_and_b32 s{sT2}, s{sG}, 1", f"s_mul_i32 s{sT2}, s{sT2}, 384",
          f"s_add_u32 s{sT3}, s{sT3}, s{sT2}")
    EARLY = []
    if OPT["lean"]:
        EARLY = cap(early); E(f"s_lshl_b32 s{sT0}, s{sRB}, 16")
    else: early()
    E("s_waitcnt lgkmcnt(0)")
    srd(sX, 60, sT0, ("imm", 65536))
    RAW = 64; ACCH = B4
    U1 = EARLY + srdl(sB1, 90, sT3, ("rest", 3584)) + srdl(sP, 58, sT1, ("imm", 1024)) + \
         [T(f"buffer_store_dword v{zr}, v{cl}, {sr(sP,4)}, 0 offen sc1", "clr")] + srdl(sW1, 88, sT3, ("rest", 1835008))
    def trs():
        E(f"v_lshrrev_b32 v{t0}, 2, v{l}", f"v_lshlrev_b32 v{t0}, 7, v{t0}", f"v_bfe_u32 v{t1}, v{l}, 3, 2", f"v_and_b32 v{t2}, 3, v{l}",
          f"v_lshl_add_u32 v{t3}, v{t2}, 3, v{t0}")
        for Tt in range(4):
            E(f"v_xor_b32 v{t4}, {Tt}, v{t1}", f"v_lshl_add_u32 v{vTV+Tt}, v{t4}, 5, v{t3}", f"v_add_u32 v{vTF+Tt}, s{sRING}, v{vTV+Tt}")
        E(f"v_and_b32 v{t3}, 1, v{l}", f"v_lshl_add_u32 v{t3}, v{t3}, 4, v{t0}", f"v_add_u32 v{t3}, s{sRING}, v{t3}", f"v_lshrrev_b32 v{t2}, 1, v{t2}",
          f"v_xor_b32 v{t2}, v{t2}, v{t1}")
        for t32 in range(2): E(f"v_xor_b32 v{t4}, {2*t32}, v{t2}", f"v_lshl_add_u32 v{vTQ+t32}, v{t4}, 5, v{t3}")
        E(f"v_lshrrev_b32 v{t1}, 4, v{l}", f"v_xor_b32 v{t1}, v{t1}, v{l}", f"v_lshlrev_b32 v{vB}, 4, v{t1}", f"v_xor_b32 v{vB+1}, 64, v{vB}")
    U1 += cap(trs)
    U1 += [f"v_lshrrev_b32 v{t3}, 4, v0", f"v_and_b32 v{t4}, 15, v0", f"v_lshlrev_b32 v{pw}, 6, v{t4}", f"v_lshl_add_u32 v{pw}, v{t3}, 13, v{pw}",
           f"v_lshlrev_b32 v{pw+2}, 4, v0", f"v_lshlrev_b32 v{pw+3}, 5, v0", f"v_mul_u32_u24 v{t3}, 3584, v{t3}", f"v_lshl_add_u32 v{pw+1}, v{t4}, 5, v{t3}"]
    U1 += [f"s_lshl_b32 s{sT0}, s{sG}, 10"] + srdl(sWQ, 66, sT0, ("rest", 4194304))
    U1 += [f"s_lshl_b32 s{sT0}, s{sG}, 19"] + srdl(sWO, 68, sT0, ("rest", 4194304))
    U1 += [f"s_mul_i32 s{sT2}, s{sG}, {224*1024}"] + srdl(sW2, 92, sT2, ("rest", 1835008))
    U1 += [x for p in range(1, 4) for x in (f"v_add_u32 v{vD1+p}, {natp(p, 3584)}, v{vD1}", f"v_add_u32 v{vDO+p}, {p*(8*1024-1024)}, v{vDO}")]
    U1 = deque(U1); per = (len(U1) + 15) // 16
    for i in range(8):
        for p in range(2):
            if OPT["rot"]: E(T(f"buffer_load_dwordx4 {vr(RAW+32*p+4*i,4)}, v{xo+p}, {sr(sX,4)}, s{XS+i} offen", ("x", p, i)))
            else: E(T(f"buffer_load_dwordx4 {vr(RAW+32*p+4*i,4)}, v{xo+p}, {sr(sX,4)}, 0 offen offset:{i*128}", ("x", p, i)))
            for _ in range(per):
                if U1: E(U1.popleft())
    stamp(2)
    E(f"s_add_u32 s{sT0}, s{sT0}, {1536*256}"); srd(sK, 62, sT0, ("imm", 131072)); srd(sV, 64, sT0, ("imm", 131072))
    srd(sFL, 58, sT1, ("imm", 1024))
    E(f"s_lshl_b32 s{sT0}, s{sRB}, 2"); srd(sDBG, 98, sT0, ("imm", 4))
    if OPT["stubs"]:
        E("s_mov_b64 exec, 0")
        for w_ in range(3): E(f"s_cmp_eq_u32 s{sW}, {w_}", f"s_cbranch_scc1 L_pg{w_}")
        E("s_branch L_pg3", "L_pgret:", "s_mov_b64 exec, -1")
    def later():
        E(f"s_and_b32 s{sT0}, s{sW}, 1", f"s_lshl_b32 s{sT0}, s{sT0}, 12", f"s_lshr_b32 s{sT1}, s{sW}, 1", f"s_lshl_b32 s{sT1}, s{sT1}, 7",
          f"s_add_u32 s{sT0}, s{sT0}, s{sT1}", f"v_add_u32 v{vDV}, s{sT0}, v{vDV}", f"v_add_u32 v{vDV+1}, 1024, v{vDV}")
        E(f"v_lshrrev_b32 v{t0}, 4, v{l}")
        for p in range(2):
            E(f"s_lshl_b32 s{sT0}, s{sW}, 3", f"s_add_u32 s{sT0}, s{sT0}, {4*p}", f"v_add_u32 v{t2}, s{sT0}, v{t0}",
              f"v_xor_b32 v{t3}, v{t2}, v{l}", f"v_and_b32 v{t3}, 15, v{t3}", f"v_lshlrev_b32 v{t3}, 4, v{t3}",
              f"v_lshl_add_u32 v{vDK+p}, v{t2}, 8, v{t3}")
            if p: E(f"v_subrev_u32 v{vDK+p}, 1024, v{vDK+p}")
        E(f"v_and_b32 v{t1}, 15, v{l}", f"v_lshlrev_b32 v{t2}, 8, v{t1}", f"v_add_u32 v{t2}, {KR_BASE}, v{t2}", f"v_xor_b32 v{t1}, v{t1}, v{t0}")
        E(f"s_bfe_u32 s{sT0}, s{sROT}, 0x10007", f"s_lshl_b32 s{sT0}, s{sT0}, 3", f"v_xor_b32 v{t1}, s{sT0}, v{t1}")
        for s_ in range(4): E(f"v_xor_b32 v{t3}, {4*s_}, v{t1}", f"v_lshl_add_u32 v{vKR+s_}, v{t3}, 4, v{t2}")
        E(f"s_lshl_b32 s{sT0}, s{sW}, 14", f"v_lshlrev_b32 v{vST}, 4, v{l}", f"v_add_u32 v{vST}, s{sT0}, v{vST}")
    LATER = cap(later)
    LATER += [f"s_mul_i32 s{sT0}, s{sRB}, {8*PSTR}"] + srdl(sP, 58, sT0, ("imm", 8*PSTR))
    LATER += [f"s_mul_i32 s{sT1}, s{sG}, {PSTR}", f"s_add_u32 s{sT0}, s{sT0}, s{sT1}"] + srdl(sPR, 58, sT0, ("imm", 131072))
    LATER += [f"s_lshr_b32 s{sT1}, s{sG}, 2", f"s_lshl_b32 s{sT1}, s{sT1}, 6", f"s_lshl_b32 s{sT0}, s{sW}, 8", f"s_add_u32 s{sT1}, s{sT1}, s{sT0}"] + srdl(sB2, 94, sT1, ("rest", 1024))
    LATER += [f"s_and_b32 s{sT0}, s{sG}, 3", f"s_lshl_b32 s{sT0}, s{sT0}, 14", f"s_add_u32 s{sVOFF}, s{sT0}, s{sT1}"]
    LATER += [f"s_lshl_b32 s{sT0}, s{sRB}, 16"] + srdl(sOUT, 96, sT0, ("imm", 65536))
    LATER2 = LATER[41:]
    BRW1 = 50
    LATER = [f"v_lshrrev_b32 v{bo}, 4, v{l}", f"v_lshlrev_b32 v{bo}, 3, v{bo}", f"s_lshl_b32 s{sT2}, s{sW}, 7"] + \
            [T(f"buffer_load_dwordx2 {vr(BRW1+2*q,2)}, v{bo}, {sr(sB1,4)}, s{sT2} offen offset:{q*32}", "bias") for q in range(4)] + LATER[:41]
    LATER.append(W("vm", "bias"))
    for r in range(16):
        LATER.append((f"v_lshlrev_b32 v%d, 16, v{BRW1+r//2}" if r % 2 == 0 else f"v_and_b32 v%d, s{sC0}, v{BRW1+r//2}") % (BIAS+r))
        LATER.append(f"v_mul_f32 v{BIAS+r}, {f32(CS)}, v{BIAS+r}")
    PFS = [[f"s_lshl_b32 s{sT3}, s{sRB}, 17", f"buffer_load_dword v{PFD}, v{pw}, {sr(sWQ,4)}, s{sT3} offen"],
           [f"s_mul_i32 s{sT3}, s{sRB}, 7168", f"buffer_load_dword v{PFD}, v{pw+3}, {sr(sW2,4)}, s{sT3} offen"],
           [f"s_lshl_b32 s{sT3}, s{sRB}, 12", f"buffer_load_dword v{PFD}, v{pw+2}, {sr(sK,4)}, s{sT3} offen"],
           [f"buffer_load_dword v{PFD}, v{pw+2}, {sr(sV,4)}, s{sT3} offen"]]
    SP = deque()
    for s_ in range(OPT["ini"]):
        d = PRE[s_].dma(); SP.append(d[:3]); SP.extend(d[3:])
    if OPT["pfpos"] == 1: SP.extend(PFS)
    if OPT["pfpos"] == 2: SP.append([f"s_mul_i32 s{sT3}, s{sRB}, {16*3584}", f"buffer_load_dword v{PFD}, v{pw+1}, {sr(sW1,4)}, s{sT3} offen"])
    if OPT["pfpos"] == 3: SP.append([f"s_mul_i32 s{sT3}, s{sRB}, {16*3584}", f"buffer_load_dword v{PFD}, v{pw+1}, {sr(sW1,4)}, s{sT3} offen"]); SP.append(PFS[1])
    if OPT["pfpos"] == 4: SP.append(PFS[1])
    PFN = {"q": PFS[0], "w2": PFS[1], "k": PFS[2], "v": [f"s_lshl_b32 s{sT3}, s{sRB}, 12"] + PFS[3],
           "w1": [f"s_mul_i32 s{sT3}, s{sRB}, {16*3584}", f"buffer_load_dword v{PFD}, v{pw+1}, {sr(sW1,4)}, s{sT3} offen"]}
    PFAT = {}
    for it_ in str(OPT["pfs"]).split("_"):
        if it_:
            nm, at = it_.split("@"); PFAT.setdefault(int(at), []).extend(PFN[nm])
    if -1 in PFAT: SP.append(PFAT[-1])
    if -3 in PFAT:
        l_ = list(SP); x_ = PFAT[-3]; SP.clear(); SP.extend(l_[:OPT["pfk"]] + [x_[k:k+2] for k in range(0, len(x_), 2)] + l_[OPT["pfk"]:])
    if -2 in PFAT: SP.appendleft(PFAT[-2])
    nsp = [0]
    def sp(n=1, force=False):
        for _ in range(n):
            if SP and (force or nsp[0] < OPT["npre"]): E(SP.popleft()); nsp[0] += 1
    SUM, SQ = 50, 54
    for i in range(8):
        for p in range(2):
            E(W("vm", ("x", p, i)))
            r = RAW + 32*p + 4*i; u = B2 + 32*p + 4*i; m = SUM + 2*p; q = SQ + 2*p
            for j in range(4): E(f"v_lshlrev_b32 v{u+j}, 16, v{r+j}", f"v_and_b32 v{r+j}, s{sC0}, v{r+j}")
            for k, b_ in enumerate((u, r, u+2, r+2)):
                if i == 0 and k == 0: E(f"v_pk_add_f32 {vr(m,2)}, {vr(u,2)}, {vr(r,2)}", f"v_pk_mul_f32 {vr(q,2)}, {vr(u,2)}, {vr(u,2)}")
                elif i == 0 and k == 1: E(f"v_pk_fma_f32 {vr(q,2)}, {vr(b_,2)}, {vr(b_,2)}, {vr(q,2)}")
                else: E(f"v_pk_add_f32 {vr(m,2)}, {vr(m,2)}, {vr(b_,2)}", f"v_pk_fma_f32 {vr(q,2)}, {vr(b_,2)}, {vr(b_,2)}, {vr(q,2)}")
            if 2*i + p >= OPT["sp0"]: sp(OPT["spn"])
    stamp(2)
    E(W("vm", "clr"), f"buffer_store_dword v{vL+1}, v{vL}, {sr(sDBG,4)}, 0 offen sc1")
    R4 = [SUM, SUM+2, SQ, SQ+2]
    for v in R4: E(f"v_add_f32 v{v}, v{v}, v{v+1}")
    for md in ("quad_perm:[1,0,3,2]", "quad_perm:[2,3,0,1]", "row_half_mirror"):
        for v in R4: E(f"v_add_f32_dpp v{v}, v{v}, v{v} {md} row_mask:0xf bank_mask:0xf")
    def both(fmt): E([fmt.format(m=SUM+2*p, q=SQ+2*p) for p in range(2)])
    both(f"v_mul_f32 v{{m}}, {f32(1/512)}, v{{m}}"); both(f"v_mul_f32 v{{q}}, {f32(1/512)}, v{{q}}")
    both("v_fma_f32 v{q}, -v{m}, v{m}, v{q}"); both("v_max_f32 v{q}, 0, v{q}")
    both("v_cvt_pk_bf16_f32 v{q}, v{q}, v{m}")
    both(f"v_and_b32 v{{m}}, s{sC0}, v{{q}}"); both("v_lshlrev_b32 v{q}, 16, v{q}")
    both(f"v_add_f32 v{{q}}, {f32(1e-5)}, v{{q}}"); both("v_cvt_pk_bf16_f32 v{q}, v{q}, v{q}"); both("v_lshlrev_b32 v{q}, 16, v{q}")
    both("v_sqrt_f32 v{q}, v{q}"); E("s_nop 0"); both("v_cvt_pk_bf16_f32 v{q}, v{q}, v{q}"); both("v_lshlrev_b32 v{q}, 16, v{q}")
    both("v_rcp_f32 v{q}, v{q}"); E("s_nop 0"); both(f"v_mul_f32 v{{q}}, {f32(CS)}, v{{q}}"); both("v_mul_f32 v{m}, v{m}, v{q}")
    stamp(2)
    for i in range(8):
        for p in range(2):
            r = RAW + 32*p + 4*i; u = B2 + 32*p + 4*i
            for b_ in (u, r, u+2, r+2):
                E(f"v_pk_fma_f32 {vr(b_,2)}, {vr(b_,2)}, {vr(SQ+2*p,2)}, {vr(SUM+2*p,2)} op_sel_hi:[1,0,0] neg_lo:[0,0,1] neg_hi:[0,0,1]")
            for j in range(4): E(f"v_cvt_pk_bf16_f32 v{r+j}, v{u+j}, v{r+j}")
            if OPT["rot"] == 16: E(f"ds_write_b128 v{wa+1 if i == 0 else wa}, {vr(r,4)} offset:{max(0, i-1)*8192+p*128}")
            else: E(f"ds_write_b128 v{wa}, {vr(r,4)} offset:{i*8192+p*128}")
    stamp(2)
    sp(99, force=True)
    E(PRE[0].areads())
    E("s_waitcnt lgkmcnt(8)", "s_barrier")
    if OPT["stamps"] < 4: stamp(0)
    E(PRE[0].breads())
    BG.extend(LATER)
    def kreads(t): return [T(f"ds_read_b128 {ar(aKF+8*s_+4*hk,4)}, v{vKR+s_} offset:{(t&3)*8192+hk*4096}", ("kf", t)) for s_ in range(4) for hk in range(2)]
    def vreads(t): return [T(f"ds_read_b64_tr_b16 {ar(aVF+4*T8+2*t_,2)}, v{vTV+(T8&3)} offset:{(t&3)*8192+(T8>>2)*4096+t_*2048}", ("vf", t))
                           for T8 in range(8) for t_ in range(2)]
    def qk(x, dst, zero=False):
        return [mfma("v", dst+8*rl+4*hk, "a", aKF+8*s_+4*hk, "v", QFr(2*x+rl, s_), *(((0,) if zero else (NEGM+4*(2*x+rl), "v")) if s_ == 0 else ()))
                for s_ in range(4) for hk in range(2) for rl in ((0, 1) if (hk == 0 or not OPT["ao"]) else (1, 0))]
    def pv(x, p, zero=False):
        return [mfma("v", LQ[2*x+rl], "v", ONES, "v", p+4*rl, 0 if zero else None) for rl in range(2)] + \
               [mfma("a", aO+64*x+16*(T8>>1)+8*rl+4*(T8&1), "a", aVF+4*T8, "v", p+4*rl, 0 if zero else None) for T8 in range(8) for rl in ((0, 1) if (T8 % 2 == 1 or not OPT["ao"]) else (1, 0))]
    def sm_plan(x, s, p, n=32):
        pl = [[] for _ in range(n)]
        for j in range(16): pl[max(0, 2*j-1) if n == 32 else 2*j+1].append(f"v_exp_f32 v{s+j}, v{s+j}")
        for k in range(8): pl[min(31, 4*k+4) if n == 32 else 4*k+6].append(f"v_cvt_pk_bf16_f32 v{p+k}, v{s+2*k}, v{s+2*k+1}")
        return pl
    vSTX = (vST, vRD, vTQ, vTQ + 1)
    def pst(reg, typ, ps, p, tag=None): return T(f"buffer_store_dwordx4 {vr(reg,4)}, v{vSTX[2*typ+ps]}, {sr(sP,4)}, s{stab(p)} offen{'' if (OPT['wb'] and tag == ('sst', 0)) else ' sc1'}", tag)
    def pld(dst, typ, ps, p, tag): return T(f"buffer_load_dwordx4 {dst}, v{vSTX[2*typ+ps]}, {sr(sPR,4)}, {'0' if p < 4 else 's%d' % sROT} offen offset:{(p&3)*1024} sc1", tag)
    def pack(kind, src, tmp):
        o = []; b = tmp if kind == "a" else src
        if kind == "a":
            for r in range(8): o.append(f"v_accvgpr_read_b32 v{b+r}, a{src+r}")
        return o + [f"v_cvt_pk_bf16_f32 v{b+j}, v{b+2*j}, v{b+2*j+1}" for j in range(4)]
    NP = len(PRE)
    KV = deque([dma_v(0) + dma_k(2), dma_v(1) + dma_k(3), dma_v(2)])
    vHW = vD1
    PZ = vDQ
    POI = [pst(PZ, 0, q // 7, 1 + q % 7) for q in range(14)]
    FTB = lambda n: B5 + 16
    STQ = deque(POI[:5])
    for n in range(8): STQ.extend([pst(B2 + 4*n, 1, 0, n), POI[5 + n]])
    STQ.extend(POI[13:])
    FSQ = deque(pst(FTB(n), 1, 1, n) for n in range(8))
    WA8 = vDQ
    def wa8(sh):
        o = [f"s_and_b32 s{sT0}, s{sG}, 3", f"s_lshl_b32 s{sT0}, s{sT0}, 10", f"s_lshl_b32 s{sT1}, s{sW}, {sh}", f"s_add_u32 s{sT0}, s{sT0}, s{sT1}"]
        for j in range(2):
            o.append(f"v_add_u32 v{WA8+4*j}, s{sT0}, v{vB+j}")
            for rg in range(1, 4): o.append(f"v_xor_b32 v{WA8+4*j+rg}, {rg*1024}, v{WA8+4*j}")
        return o
    nq = [OPT["ini"]]
    HP = lambda n: B4 + 4*n
    for i, st in enumerate(PRE):
        post = []
        if nq[0] < NP: d = PRE[nq[0]].dma(); nq[0] += 1
        else: d = KV.popleft() if KV else []
        if nq[0] <= i + NS and nq[0] < NP: post = PRE[nq[0]].dma(); nq[0] += 1
        if OPT["pfpos"] == 2 and i == OPT["pf2"]: post = PFS[1] + PFS[2] + PFS[3]
        if OPT["pfpos"] == 2 and i == OPT["pf1"]: post = PFS[0]
        post = post + PFAT.get(i, [])
        if i == 16:
            flush(); E("s_nop 1")
            post = post + ["s_barrier"]
        if i == 17:
            for j in range(32): BG.append(f"v_cvt_pk_bf16_f32 v{B0+j}, v{B0+2*j}, v{B0+2*j+1}")
            BG.extend([f"s_and_b32 s{sT0}, s{sG}, 1", f"s_lshl_b32 s{sT1}, s{sT0}, 12", f"s_lshl_b32 s{sT0}, s{sT0}, 6"])
            for j in range(2): BG.extend([f"v_xor_b32 v{vBC+j}, s{sT0}, v{vB+j}", f"v_add_u32 v{vBC+j}, s{sT1}, v{vBC+j}"])
            BG.extend([f"s_lshl_b32 s{sT0}, s{sW}, 8", f"s_lshl_b32 s{sT1}, s{sG}, 2", f"s_add_u32 s{sT0}, s{sT0}, s{sT1}",
                       f"v_min_u32 v{vPUB}, 1, v{l}", f"v_lshlrev_b32 v{vPUB}, 30, v{vPUB}", f"v_add_u32 v{vPUB}, s{sT0}, v{vPUB}",
                       f"s_lshl_b32 s{sT0}, s{sW}, 8",
                       f"v_and_b32 v{vPOLL}, 7, v{l}", f"v_lshlrev_b32 v{vPOLL}, 2, v{vPOLL}", f"v_add_u32 v{vPOLL}, s{sT0}, v{vPOLL}",
                       f"v_add_u32 v{vRD}, 8192, v{vST}"])
            for j in range(4): BG.append(f"v_mov_b32 v{ONES+j}, 0x3f803f80")
            BG.extend(LATER2)
        if i == 32: flush()
        if i == 33:
            BG.extend([f"s_lshr_b32 s{sT0}, s{sG}, 2", f"s_lshl_b32 s{sT0}, s{sT0}, 6"])
            for j in range(4): BG.append(f"v_xor_b32 v{vTF+j}, s{sT0}, v{vTF+j}")
            for n in range(8):
                b = ACCH + 8*n
                for r in range(8): BG.append(f"v_max_f32 v{b+r}, 0, v{b+r}")
                for r in range(8): BG.append(f"v_mul_f32 v{b+r}, v{b+r}, v{b+r}")
                for j in range(4): BG.append(f"v_cvt_pk_bf16_f32 v{HP(n)+j}, v{b+2*j}, v{b+2*j+1}")
        if i == 36: post = dma_k(0)
        if i == 38: post = dma_k(1)
        if i == 44: post = [W("vm", ("K", 1)), "s_barrier"]
        if i == 45:
            for x in reversed(kreads(0)): BG.appendleft(x)
        if i == 54: post = ["s_barrier"]
        if i == 56:
            for n in range(8):
                b_ = (B2, B4)[n >> 2] + 8*(n & 3)
                for j in range(4): BG.append(f"v_cvt_pk_bf16_f32 v{B2+4*n+j}, v{b_+2*j}, v{b_+2*j+1}")
        if i == 43: BG.extend(wa8(13))
        if i == 49:
            for x in reversed([f"v_mov_b32 v{PZ+j}, {SENT:#x}" for j in range(4)] + [f"v_add_u32 v{vTQ}, 65536, v{vST}", f"v_add_u32 v{vTQ+1}, 65536, v{vRD}", f"s_mov_b32 s{sROT}, 4096"] +
                              [y for p in range(8) for y in (f"s_xor_b32 s{stab(p)}, s{sG}, {p}", f"s_mul_i32 s{stab(p)}, s{stab(p)}, {PSTR}", f"s_add_u32 s{stab(p)}, s{stab(p)}, {p*1024}")]):
                BG.appendleft(x)
        if i >= 57: post = post + [STQ.popleft()]
        step(st, PRE[48].areads() if i == 47 else PRE[i + 1].reads() if i + 1 < NP else [], d, post=post, gb=(OPT["f2b"] if 48 <= i < 54 else None))
        if i in (15, 47): stamp()
        if i in (3, 7, 11, 15, 19, 23, 27, 31, 35, 39, 43): stamp(3)
        if i == 47:
            flush()
            E(W("lg", ("kf", 0)))
            q0, q1 = qk(0, S0, True), qk(1, S1[0], True)
            cv = [f"v_cvt_pk_bf16_f32 v{B1+j}, v{B1+2*j}, v{B1+2*j+1}" for j in range(32)]
            hw = [T(f"ds_write_b128 v{WA8+n}, {vr(HP(n),4)} offset:{(n>>2)*4096}", "hw") for n in range(8)]
            pl = [[] for _ in range(32)]
            for g in range(2, 13): pl[g] = cv[3*(g-2):3*(g-1)]
            h0 = OPT["hw0"]
            for n in range(8): pl[h0 + 2*n].append(hw[n])
            pl[min(31, h0 + 18)] += [W("lg", "hw"), "s_barrier"] + PRE[48].breads()
            gaps(q0[:8] + q1[:8] + q0[8:] + q1[8:], pl)
            E(f"s_cmp_lg_u32 s{sFLAG}, 0", "s_cbranch_scc1 L_maxpass", "L_maxret:")
            BG.extend(kreads(1))
            for rg in range(4):
                s = (S0, S1[0])[rg >> 1] + 8*(rg & 1); m = vT
                BG.extend([f"v_max3_f32 v{m}, v{s}, v{s+1}, v{s+2}", f"v_max3_f32 v{m}, v{m}, v{s+3}, v{s+4}", f"v_max3_f32 v{m}, v{m}, v{s+5}, v{s+6}",
                           f"v_max_f32 v{m}, v{m}, v{s+7}"] + xred("v_max_f32", m, vT+1))
                BG.extend([[f"s_cmp_lg_u32 s{sFLAG}, 0", "s_cselect_b64 vcc, -1, 0"], "s_nop 0", f"v_cndmask_b32 v{m}, v{m}, v{vM+rg}, vcc"])
                for r in range(4): BG.append(f"v_sub_f32 v{NEGM+4*rg+r}, 0, v{m}")
                for r in range(8): BG.append(f"v_sub_f32 v{s+r}, v{s+r}, v{m}")
            sp0_ = [y for g in sm_plan(0, S0, P0[0]) for y in g]
            BG.extend(sp0_[:-1] + ["s_nop 0"] + sp0_[-1:])
    flush()
    stamp()
    E(W("vm", ("K", 2)), "s_waitcnt lgkmcnt(0)")
    def att_iter(i, x1=(), x2=()):
        if i == 0: E("s_barrier")
        pl = sm_plan(1, S1[i&1], P1)
        x1 = list(x1)
        for g, x in zip((2, 2, 4, 6, 6, 8, 10, 10, 12, 14, 14, 16, 18, 18, 20, 22), vreads(i)): pl[g].append(x)
        if x1:
            pl[22] += x1[:1]; pl[24] += x1[1:2]
            for g, x in zip((26, 28, 30, 31), x1[2:]): pl[g].append(x)
        elif STQ: pl[26].append(STQ.popleft())
        gaps(qk(0, S0) + qk(1, S1[(i+1)&1]), pl)
        pl = sm_plan(0, S0, P0[(i+1)&1], 36)
        pl[1] = [W("lg", ("vf", i))] + pl[1]
        if i + 2 < 16:
            for g, x in zip((2, 2, 4, 4, 6, 8, 8, 10), kreads(i + 2)): pl[g].append(x)
        if i == 14:
            for g, x in zip((2, 2, 4, 4, 6, 8, 8, 10, 12, 12, 14, 16, 16, 18, 20, 20, 22, 24, 24, 24, 26, 28, 28, 30, 32, 34, 35),
                            POST[0].areads() + POST[1].areads() + POST[2].areads()): pl[g].append(x)
        dv = dma_v(i + 3) if i + 3 < 16 else []
        dk = dma_k(i + 5) if i + 5 < 16 else []
        pl[0] += list(x2)
        if STQ: pl[12].append(STQ.popleft())
        if dv: pl[14] += dv[:1]; pl[14] += dv[1:2]; pl[16] += dv[2:3]; pl[20] += dv[3:]
        if dk: pl[22] += dk[:2]; pl[24] += dk[2:3]; pl[28] += dk[3:]
        pl[32] += [W2(W("vm", ("K", i+3)), W("vm", ("V", i+1)), W("lg", ("kf", i+2)))]
        pl[33] = ["s_barrier"] + pl[33]
        mf = pv(0, P0[i&1], zero=(i == 0)) + pv(1, P1, zero=(i == 0))
        gaps(mf[:35], pl[:35])
        flush()
        if FSQ: pl[35].append(FSQ.popleft())
        elif STQ: pl[35].append(STQ.popleft())
        gaps(mf[35:], pl[35:])
    VAL = vT + 3; GATE = vT + 4; POL = vT + 5
    poll = f"buffer_load_dword v{POL}, v{vPOLL}, {sr(sFL,4)}, 0 offen sc1"
    pub = f"buffer_store_dword v{VAL}, v{vPUB}, {sr(sFL,4)}, 0 offen sc1"
    for i in range(15):
        x1 = []; x2 = []
        if i == 0:
            x1 = dma_k(4)
            BG.extend([f"v_lshlrev_b32 v{vT}, 6, v0", f"v_mov_b32 v{vT+1}, 0", f"v_mov_b32 v{VAL}, 1"])
        if i == OPT["wopf"] and not OPT["wo4"]: BG.append([f"s_lshl_b32 s{sT1}, s{sRB}, 14", f"buffer_load_dword v{PFD}, v{vT}, {sr(sWO,4)}, s{sT1} offen"])
        if i == OPT["wop2"]: BG.extend([f"s_xor_b32 s{sT1}, s{sRB}, 16", [f"s_lshl_b32 s{sT1}, s{sT1}, 14", f"buffer_load_dword v{PFD}, v{vT}, {sr(sWO,4)}, s{sT1} offen"]])
        if i < 8: BG.extend(pack("a", 192 + 8*i, FTB(i)))
        gl = f"buffer_load_dword v{GATE}, v{vT+1}, {sr(sDBG,4)}, 0 offen sc1"
        if i == 2: BG.append(T(gl, "gate"))
        if i == 9: BG.extend([W("vm", "gate")] + check_ready("gate", GATE, gl, 1))
        if i == 10: x2 = ["s_waitcnt vmcnt(0)", pub]
        if i == 12: x2 = [T(poll, "fpoll")]
        FLD = [pld(ar(aFL+4*n,4), 1, n >> 3, n & 7, ("fl", n)) for n in range(16)]
        nf1 = 6
        if OPT["fchk"] == 14:
            if i == 14: BG.extend([W("vm", "fpoll")] + check_ready("f", POL, poll, 1) + FLD[:6])
        else:
            nf1 = 16
            if i == 13: BG.extend([W("vm", "fpoll")] + check_ready("f", POL, poll, 1) + FLD[:9])
            if i == 14: BG.extend(FLD[9:])
        wol = [int(x) for x in OPT["wol"].split("_")]
        if i in wol: x1 = POST[wol.index(i)].dma()
        if i >= 3: stamp(4)
        if i < 12: stamp(6)
        if i == 10: assert not STQ and not FSQ, (len(STQ), len(FSQ))
        att_iter(i, x1=x1, x2=x2)
    i = 15
    E(vreads(i))
    WA8 = NEGM
    E(wa8(14))
    pl32 = sm_plan(1, S1[i&1], P1)
    E(pl32[:2])
    mf = pv(0, P0[i&1])
    gaps(mf[:2], [pl32[2] + pl32[3], pl32[4] + pl32[5]])
    E("s_waitcnt lgkmcnt(0)")
    pl = [pl32[6+2*g] + pl32[7+2*g] if g < 13 else [] for g in range(16)]
    pl[0] = ["s_barrier"] + pl[0]
    d6 = POST[6].dma(); d7 = POST[7].dma()
    pl[12] = d6[:2] + pl[12]; pl[13] = d6[2:3]; pl[14] = d6[3:4]; pl[15] = d6[4:5]
    gaps(mf[2:], pl)
    OT = B2
    assert nf1 == 16
    r34 = POST[3].areads()[1:] + POST[4].areads()[1:]
    pl = [d6[5:], [W("vm", POST[4].tag)] + r34[:1]] + [r34[1+2*g:3+2*g] for g in range(8)] + [d7[:2]] + [[x] for x in d7[2:]]
    pl += [[f"v_rcp_f32 v{LR+2*rg}, v{LQ[rg]}"] for rg in range(3)]
    gaps(pv(1, P1), pl)
    E(f"v_rcp_f32 v{LR+6}, v{LQ[3]}")
    E(f"v_add_f32 v{vT+1}, v{LQ[0]}, v{LQ[1]}", f"v_add_f32 v{vT+2}, v{LQ[2]}, v{LQ[3]}", f"s_mov_b32 s{sT1}, {f32(2.0**OPT['thr'])}", f"v_add_f32 v{vT+1}, v{vT+1}, v{vT+2}",
      f"v_cmp_nge_f32 vcc, s{sT1}, v{vT+1}", f"v_and_b32 v{vT+2}, 3, v{l}", f"v_mul_u32_u24 v{vT+2}, {NS*4096}, v{vT+2}",
      "s_cmp_lg_u64 vcc, 0", f"s_cselect_b32 s{sT1}, 1, 0", f"v_mov_b32 v{vT}, s{sT1}",
      f"s_lshl_b32 s{sT1}, s{sW}, 2", f"s_add_u32 s{sT1}, s{sT1}, {R_BASE}", f"v_add_u32 v{vT+2}, s{sT1}, v{vT+2}", f"v_mov_b32 v{vT+1}, s{sRING}",
      f"ds_write_b32 v{vT+2}, v{vT} offset:{1*4096}")
    E(POST[5].areads())
    stamp()
    EQ = deque()
    for st_, w_ in ((8, 4), (9, 4), (10, 5)):
        d_ = POST[st_].dma(); EQ.append([W("lg", POST[w_].tag)] + d_[:3]); EQ.extend(d_[3:])
    for n in range(16):
        x, T32, rl = n >> 3, (n >> 1) & 3, n & 1
        b = OT + 8*(n & 7); rg = 2*x + rl
        for r in range(8): E(f"v_accvgpr_read_b32 v{b+r}, a{aO+8*n+r}")
        for j in range(4): E(f"v_pk_mul_f32 {vr(b+2*j,2)}, {vr(b+2*j,2)}, {vr(LR+2*rg,2)} op_sel_hi:[1,0]")
        for j in range(4): E(f"v_cvt_pk_bf16_f32 v{b+j}, v{b+2*j}, v{b+2*j+1}")
        E(f"ds_write_b128 v{WA8+4*(T32&1)+rg}, {vr(b,4)} offset:{T32*4096}")
        if n >= OPT["eq0"] and EQ: E(EQ.popleft())
    while EQ: E(EQ.popleft())
    E(POST[6].areads())
    E("s_waitcnt lgkmcnt(0)", "s_barrier")
    E(T(f"ds_read_b128 {vr(56,4)}, v{vT+1} offset:{1*4096}", "flg"), POST[0].breads())
    E(W("lg", "flg"))
    E(f"v_or3_b32 v{vT}, v56, v57, v58", f"v_or_b32 v{vT}, v{vT}, v59", "s_nop 0", f"v_readfirstlane_b32 s{sT0}, v{vT}",
      "s_nop 0", f"s_andn2_b32 s{sT0}, s{sT0}, s{sFLAG}", "s_cbranch_scc1 L_slow")
    E(POST[11].dma())
    stamp(); stamp(5)
    GV, XO, XR, BRW, TM = 112, vT, 56, 40, 8
    sacc = lambda ps, n: ((B4, B3), (B2, B5))[ps][n >> 2] + 8*(n & 3)
    sepi = lambda ps, n: pack("v", sacc(ps, n), None) + [pst(sacc(ps, n), 0, ps, n, ("sst", ps))] if n else []
    def SLr(ps, p): return B3 + 4*(p - 1) if ps == 0 else (B4 + 4 + 4*p if p < 7 else B3 + 28)
    def sloads(ps): return [pld(vr(SLr(ps, p), 4), 0, ps, p, ("sl", ps, p)) for p in range(1, 8)]
    sst = [int(x) for x in str(OPT["sst"]).split("_")]
    def fmath(pk, part=2):
        o = []; TQ = 18
        for ps in range(2):
            G_ = GV + 8*ps
            for g in range(8):
                n = 8*ps + g
                for j in range(4): o.append(f"v_accvgpr_read_b32 v{TQ+8+j}, a{aFL+4*n+j}")
                d0 = G_ if g == 0 else TQ
                for j in range(4): o += [f"v_lshlrev_b32 v{d0+2*j}, 16, v{TQ+8+j}", f"v_and_b32 v{d0+2*j+1}, s{sC0}, v{TQ+8+j}"]
                if g and pk: o += [f"v_pk_add_f32 {vr(G_+2*j,2)}, {vr(G_+2*j,2)}, {vr(TQ+2*j,2)}" for j in range(4)]
                elif g: o += [f"v_add_f32 v{G_+j}, v{G_+j}, v{TQ+j}" for j in range(8)]
        if part == 0: return o
        if part == 1: o = []
        for ps in range(2):
            G_ = GV + 8*ps
            for j in range(4): o += [f"v_lshlrev_b32 v{TQ+2*j}, 16, v{BRW+4*ps+j}", f"v_and_b32 v{TQ+2*j+1}, s{sC0}, v{BRW+4*ps+j}"]
            for j in range(8): o.append(f"v_fma_f32 v{G_+j}, v{G_+j}, s{sT0}, v{TQ+j}")
            for j in range(8): o.append(f"v_mul_f32 v{TQ+j}, {f32(-math.log2(math.e))}, v{G_+j}")
            for j in range(8): o.append(f"v_exp_f32 v{TQ+j}, v{TQ+j}")
            for j in range(8): o.append(f"v_add_f32 v{TQ+j}, 1.0, v{TQ+j}")
            for j in range(8): o.append(f"v_rcp_f32 v{TQ+j}, v{TQ+j}")
            for j in range(8): o.append(f"v_mul_f32 v{G_+j}, v{G_+j}, v{TQ+j}")
        return o
    nd = [12]; nr = [7]; hold = [int(x) for x in str(OPT['hold2']).split('_') if x]
    for i, st in enumerate(POST[:30]):
        if i == 0:
            BG.extend([f"v_bfe_u32 v{XO+1}, v0, 4, 2", f"v_lshlrev_b32 v{XO+1}, 3, v{XO+1}", f"v_and_b32 v{TM}, 15, v0",
                       f"v_lshl_add_u32 v{XO}, v{TM}, 10, v{XO+1}", f"s_mov_b32 s{sT0}, {f32(1/CS**2)}",
                       f"v_bfe_u32 v{TM}, v0, 4, 1", f"v_mul_u32_u24 v{TM}, 24, v{TM}", f"v_add_u32 v{XO+2}, v{XO}, v{TM}"])
        if i == OPT["fldo"] and i > 1: BG.extend(FLD[6:])
        if i == (0 if OPT["fbg"] else OPT["xbl"]):
            for k in range(4):
                BG.appendleft(T(f"buffer_load_dwordx2 {vr(XR+2*k,2)}, v{XO}, {sr(sX,4)}, s{sVOFF} offen offset:{(k>>1)*128+(k&1)*32}", "xb"))
                BG.appendleft(T(f"buffer_load_dwordx2 {vr(BRW+2*k,2)}, v{XO+1}, {sr(sB2,4)}, 0 offen offset:{(k>>1)*128+(k&1)*32}", "xb"))
        if i == OPT["fs0"]: BG.extend([W("vm", ("fl", 15))] + fmath(False, 0))
        e = [x for n in range(8) if sst[n * len(sst) // 8] == i for x in sepi(0, n)]
        for x in reversed(e): BG.appendleft(x)
        if i == OPT["lda"]:
            for x in reversed(sloads(0)): BG.appendleft(x)
        d = []
        if nd[0] < 32 and prev(nd[0]) < nr[0]: d = POST[nd[0]].dma(); nd[0] += 1
        nxt = POST[i + 1].breads() + (POST[31].breads() if i == 29 else [])
        want = 32 if i == 29 else min(i + 7, max(i + 2, nr[0] + (0 if i in hold else 1)))
        while nr[0] < min(32, want):
            assert nr[0] < nd[0] - (1 if d else 0) and nr[0] <= i + 6
            nxt = nxt + POST[nr[0]].areads(); nr[0] += 1
        for x in nxt:
            if isinstance(x, T): x.tag = POST[i + 1].tag
        step(st, nxt, d, post=([W("vm", ("sst", 0)), "buffer_wbl2 sc1"] if i == OPT["wb"] and i else []))
        if i == 15: stamp()
        if i % 3 == 2: stamp(5)
    REST = list(BG); BG.clear()
    print("f math left for the tail:", len(REST), file=sys.stderr)
    flush()
    stamp()
    stamp(7)
    E(W("lg", POST[30].tag))
    order = [1, 2, 3, 4, 5, 6, 7, 0]
    for k, n in enumerate(order):
        if k == 1: BG.append("s_nop 1")
        if k >= 2: BG.extend(sepi(1, order[k - 2]))
        gaps([POST[j].one(2*(n >> 2) + h, n & 3) for j in (30, 31) for h in range(2)], [], budget=12)
    flush()
    E(sepi(1, 7))
    stamp(); stamp(7)
    SA, ST_, XT, OP = B0, B0+16, B0+24, B0+40
    def fin():
        E(f"s_mov_b64 s[{sT2}:{sT3}], -1", f"s_mov_b32 s{sT1}, 0")
        for j in range(8): E(f"v_lshlrev_b32 v{XT+2*j}, 16, v{XR+j}", f"v_and_b32 v{XT+2*j+1}, s{sC0}, v{XR+j}")
        E("L_sum:")
        for ps in range(2):
            A_ = SA + 8*ps
            for p in range(1, 8):
                E(W("vm", ("sl", ps, p)))
                for j in range(4): E(f"v_lshlrev_b32 v{ST_+2*j}, 16, v{SLr(ps,p)+j}", f"v_and_b32 v{ST_+2*j+1}, s{sC0}, v{SLr(ps,p)+j}")
                for j in range(4): E(f"v_pk_add_f32 {vr(A_+2*j,2)}, {vr((sacc(ps,0) if p == 1 else A_)+2*j,2)}, {vr(ST_+2*j,2)}")
            E(f"v_pk_add_f32 {vr(ST_,2)}, {vr(A_,2)}, {vr(A_+2,2)}", f"v_pk_add_f32 {vr(ST_+2,2)}, {vr(A_+4,2)}, {vr(A_+6,2)}",
              f"v_pk_add_f32 {vr(ST_,2)}, {vr(ST_,2)}, {vr(ST_+2,2)}", f"v_cmp_u_f32 vcc, v{ST_}, v{ST_+1}")
            for j in range(4): E(f"v_pk_fma_f32 {vr(A_+2*j,2)}, {vr(A_+2*j,2)}, {vr(GV+8*ps+2*j,2)}, {vr(XT+8*ps+2*j,2)}")
            E(f"s_and_b64 vcc, vcc, s[{sT2}:{sT3}]", f"s_cbranch_scc1 L_miss{ps}")
            for j in range(4): E(f"v_cvt_pk_bf16_f32 v{OP+4*ps+j}, v{A_+2*j}, v{A_+2*j+1}")
            if OPT["o16"]:
                E("s_nop 0", f"v_permlane16_swap_b32 v{OP+4*ps}, v{OP+4*ps+2}", f"v_permlane16_swap_b32 v{OP+4*ps+1}, v{OP+4*ps+3}",
                  f"buffer_store_dwordx4 {vr(OP+4*ps,4)}, v{XO+2}, {sr(sOUT,4)}, s{sVOFF} offen offset:{ps*128} {OPT['outsc']}")
            else:
                for k in range(2): E(f"buffer_store_dwordx2 {vr(OP+4*ps+2*k,2)}, v{XO}, {sr(sOUT,4)}, s{sVOFF} offen offset:{ps*128+k*32} {OPT['outsc']}")
            if ps == 0: stamp(); E(f"s_mov_b32 s{sT4}, 0xffff", f"s_cmp_lg_u32 s{sT1}, 0", "s_cbranch_scc1 L_missl", "L_sum1:")
    assert not any(ismem(x) for x in REST)
    REST = REST + [W("vm", "xb")] + (fmath(True, 1) if OPT["fs0"] < 30 else fmath(True))
    cut = min(len(REST), OPT["bdel"])
    if OPT["lda"] >= 30:
        E(REST[:cut//2], sloads(0)); stamp(7); E(REST[cut//2:cut], sloads(1)); stamp(7); E(REST[cut:]); stamp(7)
        if OPT["stamps"] == 7:
            E(W("vm", ("sst", 1))); stamp(7); E(W("vm", ("sl", 0, 1))); stamp(7); E(W("vm", ("sl", 0, 7))); stamp(7); E(W("vm", ("sl", 1, 7))); stamp(7)
    else: E(REST[:cut], sloads(1), REST[cut:])
    fin()
    stamp()
    if OPT["stamps"]:
        E("s_waitcnt vmcnt(0)")
        if OPT["stamps"] != 7: stamp(0)
        E(f"s_lshl_b32 s{sT0}, s2, 2", f"s_add_u32 s{sT0}, s{sT0}, s{sW}", f"s_lshl_b32 s{sT0}, s{sT0}, 6", f"s_add_u32 s{sT0}, s{sT0}, {64<<20}")
        srd(sX, 58, sT0, ("imm", 64))
        E(f"v_mov_b32 v{vT}, 0", "s_memrealtime s[70:71]", "s_waitcnt lgkmcnt(0)", f"s_mov_b32 s87, s70")
        for i in list(range(nstamp[0])) + [14, 15]:
            E(f"v_mov_b32 v{vT+1}, s{sST+i}", f"buffer_store_dword v{vT+1}, v{vT}, {sr(sX,4)}, 0 offen offset:{4*i}")
    if OPT["hold"] >= 0:
        E(f"s_cmp_lg_u32 s2, {OPT['hwg']}", "s_cbranch_scc1 L_main_end", "s_mov_b32 s73, 3000", "L_hold:", "s_memrealtime s[70:71]", "s_waitcnt lgkmcnt(0)",
          "s_sub_u32 s70, s70, s72", "s_sub_u32 s73, s73, 1", "s_cbranch_scc1 L_main_end", "s_cmp_lt_u32 s70, 10000", "s_cbranch_scc1 L_hold")
    E("L_main_end:", "s_endpgm")
    for name, vreg, load, val in SPINS:
        E(f"L_spin_{name}:", f"s_mov_b32 s{sCNT}, {OPT['spin']}", f"L_spinl_{name}:", load, "s_waitcnt vmcnt(0)",
          f"v_cmp_le_u32 vcc, {val}, v{vreg}", f"s_sub_u32 s{sCNT}, s{sCNT}, 1", f"s_cbranch_scc1 L_ok_{name}",
          "s_cmp_eq_u64 vcc, -1", f"s_cbranch_scc0 L_spinl_{name}", f"s_branch L_ok_{name}")
    E("L_miss0:", f"s_mov_b32 s{sT1}, 0xfefe", f"s_mov_b32 s{sT4}, 0xff", "s_branch L_miss", "L_miss1:", f"s_mov_b32 s{sT1}, 0xfe00",
      "L_miss:", f"s_mov_b32 s{sT0}, {SENT:#x}", f"s_mov_b32 s{sCNT}, {OPT['spin']}", "L_missl:", "s_waitcnt vmcnt(0)")
    if OPT["slp"]: E(f"s_sleep {OPT['slp']}")
    for ps in range(2):
        for g in range(1, 8):
            r = SLr(ps, g); bit = 8*ps + g
            E(f"s_bitcmp1_b32 s{sT1}, {bit}", f"s_cbranch_scc0 L_have{bit}",
              f"v_cmp_eq_u32 vcc, s{sT0}, v{r}", f"v_cmp_eq_u32 s[{sT2}:{sT3}], s{sT0}, v{r+1}", f"v_cmp_eq_u32 s[70:71], s{sT0}, v{r+2}", f"s_or_b64 s[{sT2}:{sT3}], vcc, s[{sT2}:{sT3}]",
              f"v_cmp_eq_u32 vcc, s{sT0}, v{r+3}", f"s_or_b64 s[70:71], s[70:71], s[{sT2}:{sT3}]", f"s_bitset0_b32 s{sT1}, {bit}",
              f"s_or_b64 s[70:71], s[70:71], vcc", f"s_cbranch_scc0 L_have{bit}", f"s_bitset1_b32 s{sT1}, {bit}", sloads(ps)[g-1], f"L_have{bit}:")
    E(f"s_sub_u32 s{sCNT}, s{sCNT}, 1", "s_cbranch_scc0 L_missc", "s_waitcnt vmcnt(0)", f"s_mov_b32 s{sT1}, 0", "L_missc:",
      f"s_and_b32 s70, s{sT1}, s{sT4}", "s_cbranch_scc1 L_missl",
      f"s_mov_b64 s[{sT2}:{sT3}], 0", f"s_cmp_eq_u32 s{sT4}, 0xff", "s_cbranch_scc1 L_sum", "s_branch L_sum1")
    E("L_slow:")
    E("s_waitcnt vmcnt(0) lgkmcnt(0)", "s_barrier", f"s_mov_b32 s{sFLAG}, 1", "s_branch L_restart")
    E("L_maxpass:")
    E(f"s_mov_b32 s{sKOFF}, 0", f"s_mov_b32 s{sCNT}, 16", [f"v_mov_b32 v{vM+j}, 0xff800000" for j in range(4)])
    E("L_slow_loop:")
    dk = dma_k(2); E(dk[0], "s_nop 0", dk[2:])
    E("s_waitcnt vmcnt(0)", "s_barrier")
    E(kreads(2))
    E("s_waitcnt lgkmcnt(0)", "s_barrier")
    E(qk(0, B5, True), qk(1, B5 + 16, True))
    E("s_nop 7", "s_nop 7", f"s_add_u32 s{sKOFF}, s{sKOFF}, 8192")
    for rg in range(4):
        s = B5 + 8*rg
        for j in range(0, 8, 2): E(f"v_max3_f32 v{vM+rg}, v{vM+rg}, v{s+j}, v{s+j+1}")
    E(f"s_sub_u32 s{sCNT}, s{sCNT}, 1", f"s_cmp_lg_u32 s{sCNT}, 0", "s_cbranch_scc1 L_slow_loop")
    for rg in range(4): E(xred("v_max_f32", vM+rg, vT))
    E("s_branch L_maxret", "L_code_end:")


DOC = """; ---------------------------------------------------------------------------------------------------------------
; Workgroup (rb, g): 64 rows x KV head g (4 q heads, one per wave) + 224 FFN columns.  4 waves x 512 registers.
;   All products are computed transposed (weights = A operand through LDS-DMA + transposing LDS reads, rows on lanes).
;   (l <= 2^40, NaN included); a workgroup that fails restarts and first computes the true row max over all keys.
;   stores, coherent loads); unit p of every wave belongs to workgroup g^p of the same row block, which finishes
; ---------------------------------------------------------------------------------------------------------------"""
K = NAME + "_kernel"
hdr = open("cdna_kernels/" + NAME + ".s.ref").read().split("; Override launch")[0]
out = [hdr.rstrip()]
out.append("; @launch grid=(256,1,1) block=(256,1,1) lds=163840")
out.append('.amdgcn_target "amdgcn-amd-amdhsa--gfx950"')
out.append(".text")
out.append(DOC)
main_kernel(K)
if OPT["stubs"]:
    import subprocess, tempfile, os, re
    tmp = tempfile.mkdtemp()
    open(tmp + "/a.s", "w").write("\n".join(out + L + [f"L_pg{i}:" for i in range(4)] + ["s_endpgm"]) + "\n")
    subprocess.run(["clang", "-x", "assembler", "-target", "amdgcn-amd-amdhsa", "-mcpu=gfx950", "-c", tmp + "/a.s", "-o", tmp + "/a.o"], check=True)
    dis = subprocess.run(["llvm-objdump", "-d", "--mcpu=gfx950", tmp + "/a.o"], capture_output=True, text=True).stdout
    addrs = [int(m.group(1), 16) for m in re.finditer(r"// ([0-9A-F]{12}):", dis)]
    idx = [i for i, x in enumerate(L) if x.startswith("    ")]
    assert len(addrs) == len(idx) + 1, (len(addrs), len(idx))
    end = L.index("L_main_end:")
    pos = []; page = OPT["pg0"]
    for a_, i in zip(addrs, idx):
        if i >= end: break
        if a_ + 4*len(pos) >= page * 4096 + OPT["pgo"]: pos.append(i); page += 1
    n = len(pos)
    for k in reversed(range(n)):
        L[pos[k]:pos[k]] = [f"L_pg{k}:", f"    s_cbranch_execz {'L_pg%d' % (k+4) if k + 4 < n else 'L_pgret'}"]
out += L
out.append('.section .rodata,"a"')
out.append(f""".p2align 6
.amdhsa_kernel {K}
  .amdhsa_next_free_vgpr 512
  .amdhsa_next_free_sgpr 102
  .amdhsa_accum_offset 256
  .amdhsa_group_segment_fixed_size 0
  .amdhsa_kernarg_size 104
  .amdhsa_user_sgpr_count 2
  .amdhsa_user_sgpr_kernarg_segment_ptr 1
  .amdhsa_system_sgpr_workgroup_id_x 1
.end_amdhsa_kernel""")
print("\n".join(out))
```

```python
import sys, math, struct
from collections import deque
NAME = "recurrent_scan__sliding_block_cached__dense_activation_squared_relu__prompt"
OPT = dict(stamps=0, rt=0, codepf=1, budget=8, thr=40, memc=4, dmac=8, hg=2, rot=8, outsc="", skip="", spin=200000, pfpos=9, pfs="w2@20_k@20_v@20", pf2=28,
           sst="19_20_21_22_23_24_25", dropoob=1, lda=99, npre=12, sp0=4, hw0=12, gb=8, pf1=12, stubs=1, fbg=0, bdel=60, xbl=27, kvrot=0, pg0=2, pgo=0, f2b=12, hold=-1, hwg=100, hold2="24", wol="7_8_9_11_12_13", wopf=5, fldo=1, wo4=0, slp=0, fs0=5, pad=4352, spn=1, pfk=12, fchk=13, mo=2, ao=0, ini=6, wb=0, wop2=11, o16=1, lean=0, qsw=1, eq0=4, pre0=0, mid0=0, bearly=2)
for a in sys.argv[1:]:
    k, v = a.split("="); OPT[k] = int(v) if v.lstrip("-").isdigit() else v

def vr(b, n=1): return f"v{b}" if n == 1 else f"v[{b}:{b+n-1}]"
def ar(b, n=1): return f"a{b}" if n == 1 else f"a[{b}:{b+n-1}]"
def R(kind, b, n=1): return vr(b, n) if kind == "v" else ar(b, n)
def sr(b, n=1): return f"s{b}" if n == 1 else f"s[{b}:{b+n-1}]"
def f32(x): return "0x%08x" % struct.unpack("<I", struct.pack("<f", x))[0]

class W:
    def __init__(s, cnt, tag): s.cnt, s.tag = cnt, tag
class W2:
    def __init__(s, *ws): s.ws = ws
class T:
    def __init__(s, text, tag): s.text, s.tag = text, tag
L = []; VM = []; LG = []
def E(*xs):
    for x in xs:
        if isinstance(x, (list, tuple)): E(*x); continue
        if isinstance(x, W2):
            n0 = len(L)
            for w_ in x.ws: E(w_)
            parts = {}
            for ln in L[n0:]:
                p_ = ln.split()[1]; parts[p_[:2]] = p_
            del L[n0:]
            if parts: L.append("    s_waitcnt " + " ".join(parts[k] for k in ("vm", "lg") if k in parts))
            continue
        if isinstance(x, W):
            q = VM if x.cnt == "vm" else LG
            idx = [i for i, t in enumerate(q) if t == x.tag]
            if not idx: continue
            n = len(q) - 1 - idx[-1]
            n = min(n, 63 if x.cnt == "vm" else 15)
            del q[:len(q) - n]
            L.append(f"    s_waitcnt {'vmcnt' if x.cnt == 'vm' else 'lgkmcnt'}({n})"); continue
        tag = None
        if isinstance(x, T): x, tag = x.text, x.tag
        op = x.split()[0]
        if op.startswith("buffer_") or op.startswith("global_"): VM.append(tag)
        if op.startswith("ds_"): LG.append(tag)
        if op == "s_waitcnt":
            for w in x.split()[1:]:
                n = int(w[w.index("(")+1:-1]); q = VM if w.startswith("vm") else LG
                if len(q) > n: del q[:len(q) - n]
        L.append("    " + x if not x.endswith(":") and not x.startswith(".") else x)
def opof(x):
    if isinstance(x, (list, tuple)): return opof(x[0])
    if isinstance(x, (W, W2)): return "s_waitcnt"
    return (x.text if isinstance(x, T) else x).split()[0]
def ismem(x):
    if isinstance(x, (list, tuple)): return any(ismem(y) for y in x)
    return opof(x).split("_")[0] in ("ds", "buffer", "global")
def isvalu(x): return opof(x).startswith("v_")
def cost(x):
    if isinstance(x, (list, tuple)): return sum(cost(y) for y in x)
    if isinstance(x, (W, W2)): return 4
    t = x.text if isinstance(x, T) else x
    op = t.split()[0]
    assert not op.startswith("v_pk_"), t
    if t.endswith(":"): return 0
    if op in ("v_exp_f32", "v_rcp_f32", "v_sqrt_f32"): return 8
    if op.startswith("buffer_store_dwordx4"): return 24
    if op.startswith("buffer_") or op.startswith("global_"): return OPT["dmac"]
    if op == "s_nop": return 4 * (int(t.split()[1]) + 1)
    if op == "ds_write_b128": return 20
    return 4
BG = deque()
def gaps(mf, plan, budget=None, wr_from=0):
    budget = OPT["budget"] if budget is None else budget
    for g, m in enumerate(mf):
        E(m)
        items = plan[g] if g < len(plan) else []
        endi = [x[1:] for x in items if isinstance(x, tuple) and x[0] == "end"]
        items = [x for x in items if not (isinstance(x, tuple) and x[0] == "end")]
        c = sum(cost(x) for x in items) + sum(cost(x) for x in endi)
        E([x for x in items if not isvalu(x)])
        while True:
            while BG and ismem(BG[0]) and len(PM) < 3: PM.append(BG.popleft())
            if PM and opof(PM[0]).startswith("ds_write") and g < wr_from: break
            if PM and (c + cost(PM[0]) <= budget or c <= OPT["memc"]):
                x = PM.popleft(); E(x); c += cost(x)
            else: break
        E([x for x in items if isvalu(x)])
        while BG:
            if ismem(BG[0]):
                if len(PM) < 3: PM.append(BG.popleft()); continue
                break
            if opof(BG[0]) in ("s_waitcnt", "s_barrier") and PM: break
            if c + cost(BG[0]) > budget: break
            x = BG.popleft(); E(x); c += cost(x)
        E(endi)
PM = deque()
def flush():
    print("flush", len(PM), len(BG), "at line", len(L), file=sys.stderr)
    while PM: E(PM.popleft())
    while BG: E(BG.popleft())
def spread(items, n, per):
    return [items[g*per:(g+1)*per] for g in range(n)]


CS = 128**-0.5 * math.log2(math.e)
X_BASE, R_BASE, NS = 0, 65536, 6
KR_BASE = 32768
FLAG_OFF = 48 << 20
OOB = 0x40000000
PSTR = 131072 + OPT['pad']
SENT = 0xff81ff81
sX, sK, sV, sWQ, sWO, sW1, sW2, sB1, sP = 4, 8, 12, 16, 20, 24, 28, 32, 36
sW, sG, sRB, sRING, sOFF, sCNT, sT0, sT1, sKOFF, sVOFF, sVL, sC0, sT2, sT3, sFLAG, sT4, sROT, sJJ = range(40, 58)
sFL, sDBG, sPR, sB2, sOUT = 60, 64, 88, 92, 96
sST = 72
sTAB = 16
def stab(p): return sTAB + p if p < 4 else 24 + (p - 4)
vLANE, vTF, vB, vBC, vPUB, vPOLL, vTQ, vDO, vKR, vTV, vDK, vDV, vST, vRD, vM, vL = 1, 2, 6, 8, 10, 11, 12, 14, 18, 22, 26, 28, 30, 31, 32, 36
vDQ, vD1, PFD = 40, 44, 49
vT = 50
B0, B1, B2, B3, B4, B5 = 64, 96, 128, 160, 192, 224
S0, S1, P0, P1, NEGM = B3, (B3+16, B4), (56, B4+16), B4+24, B5
LR = B5 + 16
aO, aVF, aKF, aFL = 0, 128, 160, 192
ONES = vL
LQ = (44, B5+24, B5+28, vM)
def QFr(rg, s_): return B0 + 16*s_ + 4*rg
BIAS = B2 + 16

nstamp = [0]
hcnt = [0]
def stamp(lvl=1):
    if OPT["hold"] >= 0 and lvl in (0, 1):
        if hcnt[0] == OPT["hold"]: E("s_memrealtime s[70:71]", "s_waitcnt lgkmcnt(0)", "s_mov_b32 s72, s70")
        hcnt[0] += 1
    if not OPT["stamps"]: return
    if OPT["stamps"] != lvl and lvl != 0: return
    i = nstamp[0]; nstamp[0] += 1
    assert i < 14
    E("s_memrealtime s[70:71]" if OPT["rt"] else "s_memtime s[70:71]", "s_waitcnt lgkmcnt(0)", f"s_mov_b32 s{sST+i}, s70")

def mfma(dk, d, ak, a, bk, b, c=None, ck=None):
    cs = R(dk, d, 4) if c is None else (str(c) if ck is None else R(ck, c, 4))
    return f"v_mfma_f32_16x16x32_bf16 {R(dk,d,4)}, {R(ak,a,4)}, {R(bk,b,4)}, {cs}"
def kvoff(t):
    return f"s_xor_b32 s{sKOFF}, s{sJJ}, {t*8192}" if OPT["kvrot"] else f"s_mov_b32 s{sKOFF}, {t*8192}"
def dma_k(t):
    return [f"s_add_u32 m0, s{sVL}, {KR_BASE+(t&3)*8192}", kvoff(t),
            T(f"buffer_load_dwordx4 v{vDK}, {sr(sK,4)}, s{sKOFF} offen lds", ("K", t)),
            T(f"buffer_load_dwordx4 v{vDK+1}, {sr(sK,4)}, s{sKOFF} offen offset:1024 lds", ("K", t))]
def dma_v(t):
    return [f"s_add_u32 m0, s{sVL}, {X_BASE+(t&3)*8192}", kvoff(t),
            T(f"buffer_load_dwordx4 v{vDV}, {sr(sV,4)}, s{sKOFF} offen lds", ("V", t)),
            T(f"buffer_load_dwordx4 v{vDV+1}, {sr(sV,4)}, s{sKOFF} offen offset:1024 lds", ("V", t))]

class Stage:
    def __init__(s, idx, mat, j, ps, acc, areg, readb, vb):
        s.idx, s.mat, s.j, s.ps, s.acc, s.areg, s.readb, s.vb = idx, mat, j, ps, acc, areg, readb, vb
        s.slot = idx % NS; s.tag = (mat, ps, j); s.breg = ("a", 16*j)
    def dma(s):
        srd_, vd, stride = {"w1": (sW1, vD1, 3584), "wq": (sWQ, vDQ, 8192), "w2": (sW2, vDO, 1024), "wo": (sWO, vDO, 1024)}[s.mat]
        o = [f"s_add_u32 m0, s{sRING}, {s.slot*4096}", f"s_mov_b32 s{sOFF}, {s.j*32*stride + s.ps*128}"]
        if OPT["rot"] and s.mat == "wq":
            o[1] = [f"s_add_u32 s{sOFF}, s{sROT}, {s.j*32*8192 + s.ps*128}", f"s_and_b32 s{sOFF}, s{sOFF}, {(512*8192-1) & ~256}"]
        if OPT["rot"] and s.mat == "w1":
            o[1] = [f"s_add_u32 s{sOFF}, s{sROT}, {s.j*32*8192}", f"s_bfe_u32 s{sOFF}, s{sOFF}, {(9<<16)|13}", f"s_mul_i32 s{sOFF}, s{sOFF}, 3584"]
        return o + [T(f"buffer_load_dwordx4 v{vd+p}, {sr(srd_,4)}, s{sOFF} offen offset:{p*1024} lds", s.tag) for p in range(4)]
    def areads(s):
        ak, a = s.areg; o = [W("vm", s.tag)]
        for Tt in range(4):
            for t in range(2):
                va, off = (vTQ + (Tt >> 1), 8*(Tt & 1)) if s.mat == "wq" else (vTF + Tt, 0)
                o.append(T(f"ds_read_b64_tr_b16 {R(ak, a+4*Tt+2*t, 2)}, v{va} offset:{s.slot*4096+t*2048+off}", s.tag))
        return o
    def breads(s):
        if not s.readb: return []
        bk, b = s.breg
        return [T(f"ds_read_b128 {R(bk, b+4*rg, 4)}, v{s.vb+(s.j&1)} offset:{s.j*4096+rg*1024}", s.tag) for rg in range(4)]
    def reads(s): return s.breads() + s.areads()
    def one(s, Tt, rg):
        ak, a = s.areg; dk, d = s.acc(Tt, rg)
        c = () if s.j else ((BIAS + 4*Tt, "v") if s.mat == "w1" else (0,))
        return mfma(dk, d, ak, a+4*Tt, s.breg[0], s.breg[1]+4*rg, *c)
    def mf(s):
        if OPT["mo"] == 1: return [s.one(Tt, rg) for rg in range(4) for Tt in range(4)]
        if OPT["mo"] == 2: return [s.one(Tt, rg if Tt % 2 == 0 else 3 - rg) for Tt in range(4) for rg in range(4)]
        return [s.one(Tt, rg) for Tt in range(4) for rg in range(4)]
def step(st, nxt_reads, dma, post=(), gb=None):
    E(W("lg", st.tag))
    plan = [[] for _ in range(16)]
    q = list(nxt_reads)
    dg = {}
    if dma:
        dg = {0: dma[:2], 3: dma[2:3], 7: dma[3:4]}
        if len(dma) == 6: dg.update({11: dma[4:5], 15: dma[5:6]})
        elif len(dma) == 8: dg.update({9: dma[4:6], 11: dma[6:7], 15: dma[7:8]})
    per = 1 if len(q) <= (16 - len(dg) - 2) else 2
    for g in range(16):
        if g in dg: plan[g] += dg[g]
        else: plan[g] += q[:per]; q = q[per:]
    assert not q
    plan[15] += list(post)
    gaps(st.mf(), plan, budget=gb or OPT["gb"])

def srd(d, ptr, off, size):
    E(f"s_add_u32 s{d}, s{ptr}, s{off}", f"s_addc_u32 s{d+1}, s{ptr+1}, 0")
    if size[0] == "rest": E(f"s_sub_u32 s{d+2}, {size[1]}, s{off}")
    else: E(f"s_mov_b32 s{d+2}, {size[1]}")
    E(f"s_mov_b32 s{d+3}, 0x00020000")

SPINS = []
def check_ready(name, vreg, load, val):
    SPINS.append((name, vreg, load, val))
    return [f"v_cmp_le_u32 vcc, {val}, v{vreg}", ["s_cmp_eq_u64 vcc, -1", f"s_cbranch_scc0 L_spin_{name}", f"L_ok_{name}:"]]
def blk(kind, lo, hi): return lambda Tt, rg: (kind, (lo, hi)[Tt >> 1] + 8*rg + 4*(Tt & 1))
def xred(op, a, b):
    return [f"v_mov_b32 v{b}, v{a}", "s_nop 1", f"v_permlane32_swap_b32 v{a}, v{b}", "s_nop 0", f"{op} v{a}, v{a}, v{b}",
            f"v_mov_b32 v{b}, v{a}", "s_nop 1", f"v_permlane16_swap_b32 v{a}, v{b}", "s_nop 0", f"{op} v{a}, v{a}, v{b}"]

def main_kernel(K):
    PRE = []
    def add(lst, mat, n, ps, acc, aregs, readb, vb):
        for j in range(n): lst.append(Stage(len(lst), mat, j, ps, acc, aregs(len(lst)), readb, vb))
    av = lambda i: ("v", B3 + 16*(i & 1)); aa = lambda i: ("a", 112 + 16*(i & 1))
    add(PRE, "wq", 16, 0, blk("v", B0, B1), av, True, vB)
    add(PRE, "w1", 16, 0, blk("v", B4, B5), av, False, vB)
    add(PRE, "wq", 16, 1, blk("v", B1, B2), av, False, vB)
    add(PRE, "w2", 7, 0, blk("v", B2, B4), aa, True, vBC)
    add(PRE, "w2", 7, 1, blk("a", 192, 224), aa, False, vBC)
    POST = []
    SETS = [("a", aKF), ("a", aKF+16), ("v", B0), ("v", B0+16), ("v", B0+32), ("a", aVF), ("a", aVF+16)]
    ao = lambda i: SETS[i % 7]
    add(POST, "wo", 16, 0, blk("v", B4, B3), ao, True, vB)
    add(POST, "wo", 16, 1, blk("v", B2, B5), ao, False, vB)
    for st in POST:
        if st.idx >= 7: st.slot = (2, 3, 4, 5, 1, 0)[(st.idx - 7) % 6]
    prev = lambda s_: {7: 2, 8: 3, 9: 4, 10: 5, 11: -1}.get(s_, s_ - 6)
    for st in POST:
        if st.j >= 8:
            st.readb = True
            st.breg = ("v", B2 + 16*(st.j & 1)) if st.ps == 0 else ("a", 16*(st.j - 8))

    E(".p2align 12", ".p2align 8", f".globl {K}", f".type {K},@function", f"{K}:")
    E("s_cmp_ge_u32 s2, 256", "s_cbranch_scc1 L_main_end")
    E(f"s_mov_b32 s{sFLAG}, 0", [f"v_mov_b32 v{vM+j}, 0" for j in range(4)])
    E("L_restart:")
    if OPT["stamps"]: E("s_memrealtime s[86:87]")
    stamp(0)
    E("s_load_dwordx8 s[60:67], s[0:1], 0", "s_load_dwordx2 s[68:69], s[0:1], 32", "s_load_dwordx4 s[88:91], s[0:1], 48",
      "s_load_dwordx8 s[92:99], s[0:1], 64", "s_load_dwordx2 s[58:59], s[0:1], 96")
    if OPT["codepf"]:
        E("s_getpc_b64 s[100:101]", "L_pc:", f"s_sub_u32 s100, s100, L_pc-{K}", "s_subb_u32 s101, s101, 0")
        E(f"s_bfe_u32 s{sT0}, s2, 0x30003", f"s_lshl_b32 s{sT0}, s{sT0}, 14", f"v_lshlrev_b32 v{vT}, 6, v0", f"v_add_u32 v{vT}, s{sT0}, v{vT}",
          f"v_min_u32 v{vT}, L_code_end-{K}-4, v{vT}")
        E(f"v_mov_b32 v{vT+1}, s101", f"v_add_co_u32 v{vT}, vcc, s100, v{vT}", "s_nop 1", f"v_addc_co_u32 v{vT+1}, vcc, 0, v{vT+1}, vcc",
          f"global_load_dword v{PFD}, {vr(vT,2)}, off")
    l = vLANE
    pt = 128
    row, c7, t0, t1, t2, t3, t4, cl, zr, bo = range(pt, pt + 10)
    xo = pt + 12
    wa, pw = 58, 60
    def cap(fn):
        global L
        keep = L; L = []; fn(); got = [x.strip() for x in L]; L = keep
        return got
    def srdl(d, ptr, off, size):
        c = cap(lambda: srd(d, ptr, off, size)); return [c[:2], c[2], c[3]]
    E(f"v_lshrrev_b32 v{t0}, 6, v0", f"v_and_b32 v{l}, 63, v0")
    HG = OPT["hg"]; lh = HG.bit_length() - 1
    E(f"s_and_b32 s{sG}, s2, {8//HG-1}", f"s_lshl_b32 s{sG}, s{sG}, {lh}", f"s_bfe_u32 s{sT0}, s2, {(lh<<16)|3}", f"s_or_b32 s{sG}, s{sG}, s{sT0}",
      f"s_lshr_b32 s{sJJ}, s2, {3+lh}", f"s_bfe_u32 s{sRB}, s2, {(lh<<16)|(3-lh)}", f"s_lshl_b32 s{sRB}, s{sRB}, {5-lh}", f"s_or_b32 s{sRB}, s{sRB}, s{sJJ}")
    E(f"v_readfirstlane_b32 s{sW}, v{t0}")
    E(f"v_bfe_u32 v{row}, v0, 3, 3", f"v_lshl_add_u32 v{t1}, v{t0}, 4, v{row}",
      f"v_and_b32 v{c7}, 7, v0", f"v_lshlrev_b32 v{xo}, 4, v{c7}", f"v_lshl_add_u32 v{xo}, v{t1}, 10, v{xo}", f"v_add_u32 v{xo+1}, 8192, v{xo}")
    XS = 8
    if OPT["rot"]:
        if OPT["rot"] == 16: E(f"s_and_b32 s{sROT}, s{sJJ}, 15", f"s_lshr_b32 s{XS}, s{sROT}, 1", f"s_lshl_b32 s{XS}, s{XS}, 7", f"s_and_b32 s{sCNT}, s{sROT}, 1")
        else: E(f"s_and_b32 s{sROT}, s{sJJ}, {OPT['rot']-1}", f"s_mul_i32 s{sROT}, s{sROT}, {8//OPT['rot']}", f"s_lshl_b32 s{XS}, s{sROT}, 7")
        for i in range(1, 8): E(f"s_add_u32 s{XS+i}, s{XS}, {128*i}", f"s_and_b32 s{XS+i}, s{XS+i}, 1023")
        E(f"s_lshl_b32 s{sROT}, s{sROT}, {18 if OPT['rot'] == 16 else 19}")
    if OPT["qsw"]:
        E(f"s_bfe_u32 s{sT0}, s{sRB}, 0x10004", f"s_lshl_b32 s{sT0}, s{sT0}, 7", f"s_add_u32 s{sROT}, s{sROT}, s{sT0}")
    E(f"s_and_b32 s{sJJ}, s{sJJ}, {OPT['kvrot']}", f"s_lshl_b32 s{sJJ}, s{sJJ}, 13")
    natp = lambda p, stride: (16*(p & 1) + 4*(p >> 1)) * stride - p*1024
    def early():
        E(f"s_or_b32 s{sT0}, s{sG}, s{sW}", f"s_or_b32 s{sT0}, s{sT0}, s{sFLAG}", f"s_cmp_eq_u32 s{sT0}, 0", f"s_cselect_b32 s{sT2}, 0, {OOB}",
          f"v_lshlrev_b32 v{cl}, 8, v{row}", f"v_lshl_add_u32 v{cl}, v{c7}, 2, v{cl}", f"v_add_u32 v{cl}, s{sT2}, v{cl}",
          f"v_mov_b32 v{zr}, 0", f"v_mov_b32 v{vL}, s{sT2}", f"v_mov_b32 v{vL+1}, 1")
        E(f"s_mul_i32 s{sRING}, s{sW}, {NS*4096}", f"s_add_u32 s{sRING}, s{sRING}, {R_BASE}", f"s_lshl_b32 s{sVL}, s{sW}, 11", f"s_mov_b32 s{sC0}, 0xffff0000")
        E(f"v_lshrrev_b32 v{t2}, 4, v{l}", f"v_lshlrev_b32 v{t2}, 1, v{t2}", f"v_xor_b32 v{t3}, v{c7}, v{t2}", f"v_lshlrev_b32 v{t1}, 4, v{t3}",
          f"v_lshrrev_b32 v{t0}, 5, v{l}", f"v_and_b32 v{t2}, 3, v{row}", f"v_lshl_add_u32 v{t0}, v{t0}, 3, v{t2}",
          f"v_mul_u32_u24 v{t2}, 3584, v{t0}", f"s_lshl_b32 s{sT4}, s{sW}, 7", f"v_add3_u32 v{vD1}, v{t2}, v{t1}, s{sT4}",
          f"v_lshl_add_u32 v{vDV}, v{row}, 8, v{t1}",
          f"s_lshl_b32 s{sT0}, s{sW}, 8", f"v_add_u32 v{t1}, s{sT0}, v{t1}",
          f"v_lshl_add_u32 v{vDQ}, v{t0}, 13, v{t1}", f"v_lshl_add_u32 v{vDO}, v{row}, 10, v{t1}")
        if OPT["dropoob"]:
            E(f"s_and_b32 s{sT0}, s{sG}, 1", f"s_xor_b32 s{sT0}, s{sT0}, 1", f"s_mul_i32 s{sT0}, s{sT0}, 7", f"s_lshl_b32 s{sT3}, s{sW}, 1",
              f"v_lshrrev_b32 v{t3}, 2, v{t3}", f"v_or_b32 v{t3}, s{sT3}, v{t3}", f"v_cmp_eq_u32 vcc, s{sT0}, v{t3}", f"v_mov_b32 v{t2}, {OOB}", "s_nop 0",
              f"v_cndmask_b32 v{vD1}, v{vD1}, v{t2}, vcc")
        for p in range(1, 4): E(f"v_add_u32 v{vDQ+p}, {natp(p, 8192)}, v{vDQ}")
        E(f"v_xor_b32 v{t0}, v{row}, v{c7}", f"v_and_b32 v{t1}, 3, v{c7}", f"v_lshl_add_u32 v{t0}, v{t1}, 4, v{t0}", f"v_lshlrev_b32 v{t0}, 4, v{t0}",
          f"v_lshrrev_b32 v{t1}, 2, v{c7}", f"v_lshl_add_u32 v{t0}, v{t1}, 12, v{t0}", f"s_lshl_b32 s{sT0}, s{sW}, 10", f"v_add_u32 v{wa}, s{sT0}, v{t0}")
        if OPT["rot"] == 16:
            E(f"s_lshl_b32 s{sT0}, s{sCNT}, 6", f"v_xor_b32 v{wa}, s{sT0}, v{wa}", f"s_lshl_b32 s{sT0}, s{sCNT}, 12", f"s_sub_u32 s{sT0}, 8192, s{sT0}",
              f"v_add_u32 v{wa}, s{sT0}, v{wa}", f"v_add_u32 v{wa+1}, {65536-8192}, v{wa}", f"v_and_b32 v{wa+1}, 0xffff, v{wa+1}")
        E(f"s_lshl_b32 s{sT0}, s{sRB}, 16", f"s_lshl_b32 s{sT1}, s{sRB}, 12", f"s_add_u32 s{sT1}, s{sT1}, {FLAG_OFF}")
        E(f"s_lshr_b32 s{sT3}, s{sG}, 1", f"s_mul_i32 s{sT3}, s{sT3}, 896", f"s_and_b32 s{sT2}, s{sG}, 1", f"s_mul_i32 s{sT2}, s{sT2}, 384",
          f"s_add_u32 s{sT3}, s{sT3}, s{sT2}")
    EARLY = []
    if OPT["lean"]:
        EARLY = cap(early); E(f"s_lshl_b32 s{sT0}, s{sRB}, 16")
    else: early()
    E("s_waitcnt lgkmcnt(0)")
    srd(sX, 60, sT0, ("imm", 65536))
    RAW = 64; ACCH = B4
    BRW1 = B4
    BLD = [f"v_lshrrev_b32 v{bo}, 4, v{l}", f"v_lshlrev_b32 v{bo}, 3, v{bo}", f"s_lshl_b32 s{sCNT}, s{sW}, 7"] + \
          [T(f"buffer_load_dwordx2 {vr(BRW1+2*q,2)}, v{bo}, {sr(sB1,4)}, s{sCNT} offen offset:{q*32}", "bias") for q in range(4)]
    U1 = EARLY + srdl(sB1, 90, sT3, ("rest", 3584)) + (BLD if OPT["bearly"] == 1 else []) + srdl(sP, 58, sT1, ("imm", 1024)) + \
         [T(f"buffer_store_dword v{zr}, v{cl}, {sr(sP,4)}, 0 offen sc1", "clr")] + srdl(sW1, 88, sT3, ("rest", 1835008))
    def trs():
        E(f"v_lshrrev_b32 v{t0}, 2, v{l}", f"v_lshlrev_b32 v{t0}, 7, v{t0}", f"v_bfe_u32 v{t1}, v{l}, 3, 2", f"v_and_b32 v{t2}, 3, v{l}",
          f"v_lshl_add_u32 v{t3}, v{t2}, 3, v{t0}")
        for Tt in range(4):
            E(f"v_xor_b32 v{t4}, {Tt}, v{t1}", f"v_lshl_add_u32 v{vTV+Tt}, v{t4}, 5, v{t3}", f"v_add_u32 v{vTF+Tt}, s{sRING}, v{vTV+Tt}")
        E(f"v_and_b32 v{t3}, 1, v{l}", f"v_lshl_add_u32 v{t3}, v{t3}, 4, v{t0}", f"v_add_u32 v{t3}, s{sRING}, v{t3}", f"v_lshrrev_b32 v{t2}, 1, v{t2}",
          f"v_xor_b32 v{t2}, v{t2}, v{t1}")
        for t32 in range(2): E(f"v_xor_b32 v{t4}, {2*t32}, v{t2}", f"v_lshl_add_u32 v{vTQ+t32}, v{t4}, 5, v{t3}")
        E(f"v_lshrrev_b32 v{t1}, 4, v{l}", f"v_xor_b32 v{t1}, v{t1}, v{l}", f"v_lshlrev_b32 v{vB}, 4, v{t1}", f"v_xor_b32 v{vB+1}, 64, v{vB}")
    U1 += cap(trs)
    U1 += [f"v_lshrrev_b32 v{t3}, 4, v0", f"v_and_b32 v{t4}, 15, v0", f"v_lshlrev_b32 v{pw}, 6, v{t4}", f"v_lshl_add_u32 v{pw}, v{t3}, 13, v{pw}",
           f"v_lshlrev_b32 v{pw+2}, 4, v0", f"v_lshlrev_b32 v{pw+3}, 5, v0", f"v_mul_u32_u24 v{t3}, 3584, v{t3}", f"v_lshl_add_u32 v{pw+1}, v{t4}, 5, v{t3}"]
    WQS = [f"s_lshl_b32 s{sT0}, s{sG}, 10"] + srdl(sWQ, 66, sT0, ("rest", 4194304))
    SP = deque()
    for s_ in range(OPT["ini"]):
        d = PRE[s_].dma(); SP.append(d[:3]); SP.extend(d[3:])
    if OPT["pre0"] or OPT["mid0"]:
        E(WQS)
        for _ in range(OPT["pre0"]): E(SP.popleft())
    else: U1 += WQS
    U1 += [f"s_lshl_b32 s{sT0}, s{sG}, 19"] + srdl(sWO, 68, sT0, ("rest", 4194304))
    U1 += [f"s_mul_i32 s{sT2}, s{sG}, {224*1024}"] + srdl(sW2, 92, sT2, ("rest", 1835008))
    U1 += [x for p in range(1, 4) for x in (f"v_add_u32 v{vD1+p}, {natp(p, 3584)}, v{vD1}", f"v_add_u32 v{vDO+p}, {p*(8*1024-1024)}, v{vDO}")]
    U1 = deque(U1); per = (len(U1) + 15) // 16
    for i in range(8):
        for p in range(2):
            if OPT["rot"]: E(T(f"buffer_load_dwordx4 {vr(RAW+32*p+4*i,4)}, v{xo+p}, {sr(sX,4)}, s{XS+i} offen", ("x", p, i)))
            else: E(T(f"buffer_load_dwordx4 {vr(RAW+32*p+4*i,4)}, v{xo+p}, {sr(sX,4)}, 0 offen offset:{i*128}", ("x", p, i)))
            for _ in range(per):
                if U1: E(U1.popleft())
            if 2*i + p >= 16 - OPT["mid0"]: E(SP.popleft())
    if OPT["bearly"] == 2: E(BLD)
    stamp(2)
    E(f"s_add_u32 s{sT0}, s{sT0}, {1536*256}"); srd(sK, 62, sT0, ("imm", 131072)); srd(sV, 64, sT0, ("imm", 131072))
    srd(sFL, 58, sT1, ("imm", 1024))
    E(f"s_lshl_b32 s{sT0}, s{sRB}, 2"); srd(sDBG, 98, sT0, ("imm", 4))
    if OPT["stubs"]:
        E("s_mov_b64 exec, 0")
        for w_ in range(3): E(f"s_cmp_eq_u32 s{sW}, {w_}", f"s_cbranch_scc1 L_pg{w_}")
        E("s_branch L_pg3", "L_pgret:", "s_mov_b64 exec, -1")
    def later():
        E(f"s_and_b32 s{sT0}, s{sW}, 1", f"s_lshl_b32 s{sT0}, s{sT0}, 12", f"s_lshr_b32 s{sT1}, s{sW}, 1", f"s_lshl_b32 s{sT1}, s{sT1}, 7",
          f"s_add_u32 s{sT0}, s{sT0}, s{sT1}", f"v_add_u32 v{vDV}, s{sT0}, v{vDV}", f"v_add_u32 v{vDV+1}, 1024, v{vDV}")
        E(f"v_lshrrev_b32 v{t0}, 4, v{l}")
        for p in range(2):
            E(f"s_lshl_b32 s{sT0}, s{sW}, 3", f"s_add_u32 s{sT0}, s{sT0}, {4*p}", f"v_add_u32 v{t2}, s{sT0}, v{t0}",
              f"v_xor_b32 v{t3}, v{t2}, v{l}", f"v_and_b32 v{t3}, 15, v{t3}", f"v_lshlrev_b32 v{t3}, 4, v{t3}",
              f"v_lshl_add_u32 v{vDK+p}, v{t2}, 8, v{t3}")
            if p: E(f"v_subrev_u32 v{vDK+p}, 1024, v{vDK+p}")
        E(f"v_and_b32 v{t1}, 15, v{l}", f"v_lshlrev_b32 v{t2}, 8, v{t1}", f"v_add_u32 v{t2}, {KR_BASE}, v{t2}", f"v_xor_b32 v{t1}, v{t1}, v{t0}")
        E(f"s_bfe_u32 s{sT0}, s{sROT}, 0x10007", f"s_lshl_b32 s{sT0}, s{sT0}, 3", f"v_xor_b32 v{t1}, s{sT0}, v{t1}")
        for s_ in range(4): E(f"v_xor_b32 v{t3}, {4*s_}, v{t1}", f"v_lshl_add_u32 v{vKR+s_}, v{t3}, 4, v{t2}")
        E(f"s_lshl_b32 s{sT0}, s{sW}, 14", f"v_lshlrev_b32 v{vST}, 4, v{l}", f"v_add_u32 v{vST}, s{sT0}, v{vST}")
    LATER = cap(later)
    LATER += [f"s_mul_i32 s{sT0}, s{sRB}, {8*PSTR}"] + srdl(sP, 58, sT0, ("imm", 8*PSTR))
    LATER += [f"s_mul_i32 s{sT1}, s{sG}, {PSTR}", f"s_add_u32 s{sT0}, s{sT0}, s{sT1}"] + srdl(sPR, 58, sT0, ("imm", 131072))
    LATER += [f"s_lshr_b32 s{sT1}, s{sG}, 2", f"s_lshl_b32 s{sT1}, s{sT1}, 6", f"s_lshl_b32 s{sT0}, s{sW}, 8", f"s_add_u32 s{sT1}, s{sT1}, s{sT0}"] + srdl(sB2, 94, sT1, ("rest", 1024))
    LATER += [f"s_and_b32 s{sT0}, s{sG}, 3", f"s_lshl_b32 s{sT0}, s{sT0}, 14", f"s_add_u32 s{sVOFF}, s{sT0}, s{sT1}"]
    LATER += [f"s_lshl_b32 s{sT0}, s{sRB}, 16"] + srdl(sOUT, 96, sT0, ("imm", 65536))
    LATER2 = LATER[41:]
    LATER = ([] if OPT["bearly"] else BLD) + LATER[:41]
    LATER.append(W("vm", "bias"))
    for r in range(16):
        LATER.append((f"v_lshlrev_b32 v%d, 16, v{BRW1+r//2}" if r % 2 == 0 else f"v_and_b32 v%d, s{sC0}, v{BRW1+r//2}") % (BIAS+r))
        LATER.append(f"v_mul_f32 v{BIAS+r}, {f32(CS)}, v{BIAS+r}")
    PFS = [[f"s_lshl_b32 s{sT3}, s{sRB}, 17", f"buffer_load_dword v{PFD}, v{pw}, {sr(sWQ,4)}, s{sT3} offen"],
           [f"s_mul_i32 s{sT3}, s{sRB}, 7168", f"buffer_load_dword v{PFD}, v{pw+3}, {sr(sW2,4)}, s{sT3} offen"],
           [f"s_lshl_b32 s{sT3}, s{sRB}, 12", f"buffer_load_dword v{PFD}, v{pw+2}, {sr(sK,4)}, s{sT3} offen"],
           [f"buffer_load_dword v{PFD}, v{pw+2}, {sr(sV,4)}, s{sT3} offen"]]
    if OPT["pfpos"] == 1: SP.extend(PFS)
    if OPT["pfpos"] == 2: SP.append([f"s_mul_i32 s{sT3}, s{sRB}, {16*3584}", f"buffer_load_dword v{PFD}, v{pw+1}, {sr(sW1,4)}, s{sT3} offen"])
    if OPT["pfpos"] == 3: SP.append([f"s_mul_i32 s{sT3}, s{sRB}, {16*3584}", f"buffer_load_dword v{PFD}, v{pw+1}, {sr(sW1,4)}, s{sT3} offen"]); SP.append(PFS[1])
    if OPT["pfpos"] == 4: SP.append(PFS[1])
    PFN = {"q": PFS[0], "w2": PFS[1], "k": PFS[2], "v": [f"s_lshl_b32 s{sT3}, s{sRB}, 12"] + PFS[3],
           "w1": [f"s_mul_i32 s{sT3}, s{sRB}, {16*3584}", f"buffer_load_dword v{PFD}, v{pw+1}, {sr(sW1,4)}, s{sT3} offen"]}
    PFAT = {}
    for it_ in str(OPT["pfs"]).split("_"):
        if it_:
            nm, at = it_.split("@"); PFAT.setdefault(int(at), []).extend(PFN[nm])
    if -1 in PFAT: SP.append(PFAT[-1])
    if -3 in PFAT:
        l_ = list(SP); x_ = PFAT[-3]; SP.clear(); SP.extend(l_[:OPT["pfk"]] + [x_[k:k+2] for k in range(0, len(x_), 2)] + l_[OPT["pfk"]:])
    if -2 in PFAT: SP.appendleft(PFAT[-2])
    nsp = [0]
    def sp(n=1, force=False):
        for _ in range(n):
            if SP and (force or nsp[0] < OPT["npre"]): E(SP.popleft()); nsp[0] += 1
    SUM, SQ = 50, 54
    for i in range(8):
        for p in range(2):
            E(W("vm", ("x", p, i)))
            r = RAW + 32*p + 4*i; u = B2 + 32*p + 4*i; m = SUM + 2*p; q = SQ + 2*p
            for j in range(4): E(f"v_lshlrev_b32 v{u+j}, 16, v{r+j}", f"v_and_b32 v{r+j}, s{sC0}, v{r+j}")
            for k, b_ in enumerate((u, r, u+2, r+2)):
                if i == 0 and k == 0: E(f"v_pk_add_f32 {vr(m,2)}, {vr(u,2)}, {vr(r,2)}", f"v_pk_mul_f32 {vr(q,2)}, {vr(u,2)}, {vr(u,2)}")
                elif i == 0 and k == 1: E(f"v_pk_fma_f32 {vr(q,2)}, {vr(b_,2)}, {vr(b_,2)}, {vr(q,2)}")
                else: E(f"v_pk_add_f32 {vr(m,2)}, {vr(m,2)}, {vr(b_,2)}", f"v_pk_fma_f32 {vr(q,2)}, {vr(b_,2)}, {vr(b_,2)}, {vr(q,2)}")
            if 2*i + p >= OPT["sp0"]: sp(OPT["spn"])
    stamp(2)
    E(W("vm", "clr"), f"buffer_store_dword v{vL+1}, v{vL}, {sr(sDBG,4)}, 0 offen sc1")
    R4 = [SUM, SUM+2, SQ, SQ+2]
    for v in R4: E(f"v_add_f32 v{v}, v{v}, v{v+1}")
    for md in ("quad_perm:[1,0,3,2]", "quad_perm:[2,3,0,1]", "row_half_mirror"):
        for v in R4: E(f"v_add_f32_dpp v{v}, v{v}, v{v} {md} row_mask:0xf bank_mask:0xf")
    def both(fmt): E([fmt.format(m=SUM+2*p, q=SQ+2*p) for p in range(2)])
    both(f"v_mul_f32 v{{m}}, {f32(1/512)}, v{{m}}"); both(f"v_mul_f32 v{{q}}, {f32(1/512)}, v{{q}}")
    both("v_fma_f32 v{q}, -v{m}, v{m}, v{q}"); both("v_max_f32 v{q}, 0, v{q}")
    both("v_cvt_pk_bf16_f32 v{q}, v{q}, v{m}")
    both(f"v_and_b32 v{{m}}, s{sC0}, v{{q}}"); both("v_lshlrev_b32 v{q}, 16, v{q}")
    both(f"v_add_f32 v{{q}}, {f32(1e-5)}, v{{q}}"); both("v_cvt_pk_bf16_f32 v{q}, v{q}, v{q}"); both("v_lshlrev_b32 v{q}, 16, v{q}")
    both("v_sqrt_f32 v{q}, v{q}"); E("s_nop 0"); both("v_cvt_pk_bf16_f32 v{q}, v{q}, v{q}"); both("v_lshlrev_b32 v{q}, 16, v{q}")
    both("v_rcp_f32 v{q}, v{q}"); E("s_nop 0"); both(f"v_mul_f32 v{{q}}, {f32(CS)}, v{{q}}"); both("v_mul_f32 v{m}, v{m}, v{q}")
    stamp(2)
    for i in range(8):
        for p in range(2):
            r = RAW + 32*p + 4*i; u = B2 + 32*p + 4*i
            for b_ in (u, r, u+2, r+2):
                E(f"v_pk_fma_f32 {vr(b_,2)}, {vr(b_,2)}, {vr(SQ+2*p,2)}, {vr(SUM+2*p,2)} op_sel_hi:[1,0,0] neg_lo:[0,0,1] neg_hi:[0,0,1]")
            for j in range(4): E(f"v_cvt_pk_bf16_f32 v{r+j}, v{u+j}, v{r+j}")
            if OPT["rot"] == 16: E(f"ds_write_b128 v{wa+1 if i == 0 else wa}, {vr(r,4)} offset:{max(0, i-1)*8192+p*128}")
            else: E(f"ds_write_b128 v{wa}, {vr(r,4)} offset:{i*8192+p*128}")
    stamp(2)
    sp(99, force=True)
    E(PRE[0].areads())
    E("s_waitcnt lgkmcnt(8)", "s_barrier")
    if OPT["stamps"] < 4: stamp(0)
    E(PRE[0].breads())
    BG.extend(LATER)
    def kreads(t): return [T(f"ds_read_b128 {ar(aKF+8*s_+4*hk,4)}, v{vKR+s_} offset:{(t&3)*8192+hk*4096}", ("kf", t)) for s_ in range(4) for hk in range(2)]
    def vreads(t): return [T(f"ds_read_b64_tr_b16 {ar(aVF+4*T8+2*t_,2)}, v{vTV+(T8&3)} offset:{(t&3)*8192+(T8>>2)*4096+t_*2048}", ("vf", t))
                           for T8 in range(8) for t_ in range(2)]
    def qk(x, dst, zero=False):
        return [mfma("v", dst+8*rl+4*hk, "a", aKF+8*s_+4*hk, "v", QFr(2*x+rl, s_), *(((0,) if zero else (NEGM+4*(2*x+rl), "v")) if s_ == 0 else ()))
                for s_ in range(4) for hk in range(2) for rl in ((0, 1) if (hk == 0 or not OPT["ao"]) else (1, 0))]
    def pv(x, p, zero=False):
        return [mfma("v", LQ[2*x+rl], "v", ONES, "v", p+4*rl, 0 if zero else None) for rl in range(2)] + \
               [mfma("a", aO+64*x+16*(T8>>1)+8*rl+4*(T8&1), "a", aVF+4*T8, "v", p+4*rl, 0 if zero else None) for T8 in range(8) for rl in ((0, 1) if (T8 % 2 == 1 or not OPT["ao"]) else (1, 0))]
    def sm_plan(x, s, p, n=32):
        pl = [[] for _ in range(n)]
        for j in range(16): pl[max(0, 2*j-1) if n == 32 else 2*j+1].append(f"v_exp_f32 v{s+j}, v{s+j}")
        for k in range(8): pl[min(31, 4*k+4) if n == 32 else 4*k+6].append(f"v_cvt_pk_bf16_f32 v{p+k}, v{s+2*k}, v{s+2*k+1}")
        return pl
    vSTX = (vST, vRD, vTQ, vTQ + 1)
    def pst(reg, typ, ps, p, tag=None): return T(f"buffer_store_dwordx4 {vr(reg,4)}, v{vSTX[2*typ+ps]}, {sr(sP,4)}, s{stab(p)} offen{'' if (OPT['wb'] and tag == ('sst', 0)) else ' sc1'}", tag)
    def pld(dst, typ, ps, p, tag): return T(f"buffer_load_dwordx4 {dst}, v{vSTX[2*typ+ps]}, {sr(sPR,4)}, {'0' if p < 4 else 's%d' % sROT} offen offset:{(p&3)*1024} sc1", tag)
    def pack(kind, src, tmp):
        o = []; b = tmp if kind == "a" else src
        if kind == "a":
            for r in range(8): o.append(f"v_accvgpr_read_b32 v{b+r}, a{src+r}")
        return o + [f"v_cvt_pk_bf16_f32 v{b+j}, v{b+2*j}, v{b+2*j+1}" for j in range(4)]
    NP = len(PRE)
    KV = deque([dma_v(0) + dma_k(2), dma_v(1) + dma_k(3), dma_v(2)])
    vHW = vD1
    PZ = vDQ
    POI = [pst(PZ, 0, q // 7, 1 + q % 7) for q in range(14)]
    FTB = lambda n: B5 + 16
    STQ = deque(POI[:5])
    for n in range(8): STQ.extend([pst(B2 + 4*n, 1, 0, n), POI[5 + n]])
    STQ.extend(POI[13:])
    FSQ = deque(pst(FTB(n), 1, 1, n) for n in range(8))
    WA8 = vDQ
    def wa8(sh):
        o = [f"s_and_b32 s{sT0}, s{sG}, 3", f"s_lshl_b32 s{sT0}, s{sT0}, 10", f"s_lshl_b32 s{sT1}, s{sW}, {sh}", f"s_add_u32 s{sT0}, s{sT0}, s{sT1}"]
        for j in range(2):
            o.append(f"v_add_u32 v{WA8+4*j}, s{sT0}, v{vB+j}")
            for rg in range(1, 4): o.append(f"v_xor_b32 v{WA8+4*j+rg}, {rg*1024}, v{WA8+4*j}")
        return o
    nq = [OPT["ini"]]
    HP = lambda n: B4 + 4*n
    for i, st in enumerate(PRE):
        post = []
        if nq[0] < NP: d = PRE[nq[0]].dma(); nq[0] += 1
        else: d = KV.popleft() if KV else []
        if nq[0] <= i + NS and nq[0] < NP: post = PRE[nq[0]].dma(); nq[0] += 1
        if OPT["pfpos"] == 2 and i == OPT["pf2"]: post = PFS[1] + PFS[2] + PFS[3]
        if OPT["pfpos"] == 2 and i == OPT["pf1"]: post = PFS[0]
        post = post + PFAT.get(i, [])
        if i == 16:
            flush(); E("s_nop 1")
            post = post + ["s_barrier"]
        if i == 17:
            for j in range(32): BG.append(f"v_cvt_pk_bf16_f32 v{B0+j}, v{B0+2*j}, v{B0+2*j+1}")
            BG.extend([f"s_and_b32 s{sT0}, s{sG}, 1", f"s_lshl_b32 s{sT1}, s{sT0}, 12", f"s_lshl_b32 s{sT0}, s{sT0}, 6"])
            for j in range(2): BG.extend([f"v_xor_b32 v{vBC+j}, s{sT0}, v{vB+j}", f"v_add_u32 v{vBC+j}, s{sT1}, v{vBC+j}"])
            BG.extend([f"s_lshl_b32 s{sT0}, s{sW}, 8", f"s_lshl_b32 s{sT1}, s{sG}, 2", f"s_add_u32 s{sT0}, s{sT0}, s{sT1}",
                       f"v_min_u32 v{vPUB}, 1, v{l}", f"v_lshlrev_b32 v{vPUB}, 30, v{vPUB}", f"v_add_u32 v{vPUB}, s{sT0}, v{vPUB}",
                       f"s_lshl_b32 s{sT0}, s{sW}, 8",
                       f"v_and_b32 v{vPOLL}, 7, v{l}", f"v_lshlrev_b32 v{vPOLL}, 2, v{vPOLL}", f"v_add_u32 v{vPOLL}, s{sT0}, v{vPOLL}",
                       f"v_add_u32 v{vRD}, 8192, v{vST}"])
            for j in range(4): BG.append(f"v_mov_b32 v{ONES+j}, 0x3f803f80")
            BG.extend(LATER2)
        if i == 32: flush()
        if i == 33:
            BG.extend([f"s_lshr_b32 s{sT0}, s{sG}, 2", f"s_lshl_b32 s{sT0}, s{sT0}, 6"])
            for j in range(4): BG.append(f"v_xor_b32 v{vTF+j}, s{sT0}, v{vTF+j}")
            for n in range(8):
                b = ACCH + 8*n
                for r in range(8): BG.append(f"v_max_f32 v{b+r}, 0, v{b+r}")
                for r in range(8): BG.append(f"v_mul_f32 v{b+r}, v{b+r}, v{b+r}")
                for j in range(4): BG.append(f"v_cvt_pk_bf16_f32 v{HP(n)+j}, v{b+2*j}, v{b+2*j+1}")
        if i == 36: post = dma_k(0)
        if i == 38: post = dma_k(1)
        if i == 44: post = [W("vm", ("K", 1)), "s_barrier"]
        if i == 45:
            for x in reversed(kreads(0)): BG.appendleft(x)
        if i == 54: post = ["s_barrier"]
        if i == 56:
            for n in range(8):
                b_ = (B2, B4)[n >> 2] + 8*(n & 3)
                for j in range(4): BG.append(f"v_cvt_pk_bf16_f32 v{B2+4*n+j}, v{b_+2*j}, v{b_+2*j+1}")
        if i == 43: BG.extend(wa8(13))
        if i == 49:
            for x in reversed([f"v_mov_b32 v{PZ+j}, {SENT:#x}" for j in range(4)] + [f"v_add_u32 v{vTQ}, 65536, v{vST}", f"v_add_u32 v{vTQ+1}, 65536, v{vRD}", f"s_mov_b32 s{sROT}, 4096"] +
                              [y for p in range(8) for y in (f"s_xor_b32 s{stab(p)}, s{sG}, {p}", f"s_mul_i32 s{stab(p)}, s{stab(p)}, {PSTR}", f"s_add_u32 s{stab(p)}, s{stab(p)}, {p*1024}")]):
                BG.appendleft(x)
        if i >= 57: post = post + [STQ.popleft()]
        step(st, PRE[48].areads() if i == 47 else PRE[i + 1].reads() if i + 1 < NP else [], d, post=post, gb=(OPT["f2b"] if 48 <= i < 54 else None))
        if i in (15, 47): stamp()
        if i in (3, 7, 11, 15, 19, 23, 27, 31, 35, 39, 43): stamp(3)
        if i == 47:
            flush()
            E(W("lg", ("kf", 0)))
            q0, q1 = qk(0, S0, True), qk(1, S1[0], True)
            cv = [f"v_cvt_pk_bf16_f32 v{B1+j}, v{B1+2*j}, v{B1+2*j+1}" for j in range(32)]
            hw = [T(f"ds_write_b128 v{WA8+n}, {vr(HP(n),4)} offset:{(n>>2)*4096}", "hw") for n in range(8)]
            pl = [[] for _ in range(32)]
            for g in range(2, 13): pl[g] = cv[3*(g-2):3*(g-1)]
            h0 = OPT["hw0"]
            for n in range(8): pl[h0 + 2*n].append(hw[n])
            pl[min(31, h0 + 18)] += [W("lg", "hw"), "s_barrier"] + PRE[48].breads()
            gaps(q0[:8] + q1[:8] + q0[8:] + q1[8:], pl)
            E(f"s_cmp_lg_u32 s{sFLAG}, 0", "s_cbranch_scc1 L_maxpass", "L_maxret:")
            BG.extend(kreads(1))
            for rg in range(4):
                s = (S0, S1[0])[rg >> 1] + 8*(rg & 1); m = vT
                BG.extend([f"v_max3_f32 v{m}, v{s}, v{s+1}, v{s+2}", f"v_max3_f32 v{m}, v{m}, v{s+3}, v{s+4}", f"v_max3_f32 v{m}, v{m}, v{s+5}, v{s+6}",
                           f"v_max_f32 v{m}, v{m}, v{s+7}"] + xred("v_max_f32", m, vT+1))
                BG.extend([[f"s_cmp_lg_u32 s{sFLAG}, 0", "s_cselect_b64 vcc, -1, 0"], "s_nop 0", f"v_cndmask_b32 v{m}, v{m}, v{vM+rg}, vcc"])
                for r in range(4): BG.append(f"v_sub_f32 v{NEGM+4*rg+r}, 0, v{m}")
                for r in range(8): BG.append(f"v_sub_f32 v{s+r}, v{s+r}, v{m}")
            sp0_ = [y for g in sm_plan(0, S0, P0[0]) for y in g]
            BG.extend(sp0_[:-1] + ["s_nop 0"] + sp0_[-1:])
    flush()
    stamp()
    E(W("vm", ("K", 2)), "s_waitcnt lgkmcnt(0)")
    def att_iter(i, x1=(), x2=()):
        if i == 0: E("s_barrier")
        pl = sm_plan(1, S1[i&1], P1)
        x1 = list(x1)
        for g, x in zip((2, 2, 4, 6, 6, 8, 10, 10, 12, 14, 14, 16, 18, 18, 20, 22), vreads(i)): pl[g].append(x)
        if x1:
            pl[22] += x1[:1]; pl[24] += x1[1:2]
            for g, x in zip((26, 28, 30, 31), x1[2:]): pl[g].append(x)
        elif STQ: pl[26].append(STQ.popleft())
        gaps(qk(0, S0) + qk(1, S1[(i+1)&1]), pl)
        pl = sm_plan(0, S0, P0[(i+1)&1], 36)
        pl[1] = [W("lg", ("vf", i))] + pl[1]
        if i + 2 < 16:
            for g, x in zip((2, 2, 4, 4, 6, 8, 8, 10), kreads(i + 2)): pl[g].append(x)
        if i == 14:
            for g, x in zip((2, 2, 4, 4, 6, 8, 8, 10, 12, 12, 14, 16, 16, 18, 20, 20, 22, 24, 24, 24, 26, 28, 28, 30, 32, 34, 35),
                            POST[0].areads() + POST[1].areads() + POST[2].areads()): pl[g].append(x)
        dv = dma_v(i + 3) if i + 3 < 16 else []
        dk = dma_k(i + 5) if i + 5 < 16 else []
        pl[0] += list(x2)
        if STQ: pl[12].append(STQ.popleft())
        if dv: pl[14] += dv[:1]; pl[14] += dv[1:2]; pl[16] += dv[2:3]; pl[20] += dv[3:]
        if dk: pl[22] += dk[:2]; pl[24] += dk[2:3]; pl[28] += dk[3:]
        pl[32] += [W2(W("vm", ("K", i+3)), W("vm", ("V", i+1)), W("lg", ("kf", i+2)))]
        pl[33] = ["s_barrier"] + pl[33]
        mf = pv(0, P0[i&1], zero=(i == 0)) + pv(1, P1, zero=(i == 0))
        gaps(mf[:35], pl[:35])
        flush()
        if FSQ: pl[35].append(FSQ.popleft())
        elif STQ: pl[35].append(STQ.popleft())
        gaps(mf[35:], pl[35:])
    VAL = vT + 3; GATE = vT + 4; POL = vT + 5
    poll = f"buffer_load_dword v{POL}, v{vPOLL}, {sr(sFL,4)}, 0 offen sc1"
    pub = f"buffer_store_dword v{VAL}, v{vPUB}, {sr(sFL,4)}, 0 offen sc1"
    for i in range(15):
        x1 = []; x2 = []
        if i == 0:
            x1 = dma_k(4)
            BG.extend([f"v_lshlrev_b32 v{vT}, 6, v0", f"v_mov_b32 v{vT+1}, 0", f"v_mov_b32 v{VAL}, 1"])
        if i == OPT["wopf"] and not OPT["wo4"]: BG.append([f"s_lshl_b32 s{sT1}, s{sRB}, 14", f"buffer_load_dword v{PFD}, v{vT}, {sr(sWO,4)}, s{sT1} offen"])
        if i == OPT["wop2"]: BG.extend([f"s_xor_b32 s{sT1}, s{sRB}, 16", [f"s_lshl_b32 s{sT1}, s{sT1}, 14", f"buffer_load_dword v{PFD}, v{vT}, {sr(sWO,4)}, s{sT1} offen"]])
        if i < 8: BG.extend(pack("a", 192 + 8*i, FTB(i)))
        gl = f"buffer_load_dword v{GATE}, v{vT+1}, {sr(sDBG,4)}, 0 offen sc1"
        if i == 2: BG.append(T(gl, "gate"))
        if i == 9: BG.extend([W("vm", "gate")] + check_ready("gate", GATE, gl, 1))
        if i == 10: x2 = ["s_waitcnt vmcnt(0)", pub]
        if i == 12: x2 = [T(poll, "fpoll")]
        FLD = [pld(ar(aFL+4*n,4), 1, n >> 3, n & 7, ("fl", n)) for n in range(16)]
        nf1 = 6
        if OPT["fchk"] == 14:
            if i == 14: BG.extend([W("vm", "fpoll")] + check_ready("f", POL, poll, 1) + FLD[:6])
        else:
            nf1 = 16
            if i == 13: BG.extend([W("vm", "fpoll")] + check_ready("f", POL, poll, 1) + FLD[:9])
            if i == 14: BG.extend(FLD[9:])
        wol = [int(x) for x in OPT["wol"].split("_")]
        if i in wol: x1 = POST[wol.index(i)].dma()
        if i >= 3: stamp(4)
        if i < 12: stamp(6)
        if i == 10: assert not STQ and not FSQ, (len(STQ), len(FSQ))
        att_iter(i, x1=x1, x2=x2)
    i = 15
    E(vreads(i))
    WA8 = NEGM
    E(wa8(14))
    pl32 = sm_plan(1, S1[i&1], P1)
    E(pl32[:2])
    mf = pv(0, P0[i&1])
    gaps(mf[:2], [pl32[2] + pl32[3], pl32[4] + pl32[5]])
    E("s_waitcnt lgkmcnt(0)")
    pl = [pl32[6+2*g] + pl32[7+2*g] if g < 13 else [] for g in range(16)]
    pl[0] = ["s_barrier"] + pl[0]
    d6 = POST[6].dma(); d7 = POST[7].dma()
    pl[12] = d6[:2] + pl[12]; pl[13] = d6[2:3]; pl[14] = d6[3:4]; pl[15] = d6[4:5]
    gaps(mf[2:], pl)
    OT = B2
    assert nf1 == 16
    r34 = POST[3].areads()[1:] + POST[4].areads()[1:]
    pl = [d6[5:], [W("vm", POST[4].tag)] + r34[:1]] + [r34[1+2*g:3+2*g] for g in range(8)] + [d7[:2]] + [[x] for x in d7[2:]]
    pl += [[f"v_rcp_f32 v{LR+2*rg}, v{LQ[rg]}"] for rg in range(3)]
    gaps(pv(1, P1), pl)
    E(f"v_rcp_f32 v{LR+6}, v{LQ[3]}")
    E(f"v_add_f32 v{vT+1}, v{LQ[0]}, v{LQ[1]}", f"v_add_f32 v{vT+2}, v{LQ[2]}, v{LQ[3]}", f"s_mov_b32 s{sT1}, {f32(2.0**OPT['thr'])}", f"v_add_f32 v{vT+1}, v{vT+1}, v{vT+2}",
      f"v_cmp_nge_f32 vcc, s{sT1}, v{vT+1}", f"v_and_b32 v{vT+2}, 3, v{l}", f"v_mul_u32_u24 v{vT+2}, {NS*4096}, v{vT+2}",
      "s_cmp_lg_u64 vcc, 0", f"s_cselect_b32 s{sT1}, 1, 0", f"v_mov_b32 v{vT}, s{sT1}",
      f"s_lshl_b32 s{sT1}, s{sW}, 2", f"s_add_u32 s{sT1}, s{sT1}, {R_BASE}", f"v_add_u32 v{vT+2}, s{sT1}, v{vT+2}", f"v_mov_b32 v{vT+1}, s{sRING}",
      f"ds_write_b32 v{vT+2}, v{vT} offset:{1*4096}")
    E(POST[5].areads())
    stamp()
    EQ = deque()
    for st_, w_ in ((8, 4), (9, 4), (10, 5)):
        d_ = POST[st_].dma(); EQ.append([W("lg", POST[w_].tag)] + d_[:3]); EQ.extend(d_[3:])
    for n in range(16):
        x, T32, rl = n >> 3, (n >> 1) & 3, n & 1
        b = OT + 8*(n & 7); rg = 2*x + rl
        for r in range(8): E(f"v_accvgpr_read_b32 v{b+r}, a{aO+8*n+r}")
        for j in range(4): E(f"v_pk_mul_f32 {vr(b+2*j,2)}, {vr(b+2*j,2)}, {vr(LR+2*rg,2)} op_sel_hi:[1,0]")
        for j in range(4): E(f"v_cvt_pk_bf16_f32 v{b+j}, v{b+2*j}, v{b+2*j+1}")
        E(f"ds_write_b128 v{WA8+4*(T32&1)+rg}, {vr(b,4)} offset:{T32*4096}")
        if n >= OPT["eq0"] and EQ: E(EQ.popleft())
    while EQ: E(EQ.popleft())
    E(POST[6].areads())
    E("s_waitcnt lgkmcnt(0)", "s_barrier")
    E(T(f"ds_read_b128 {vr(56,4)}, v{vT+1} offset:{1*4096}", "flg"), POST[0].breads())
    E(W("lg", "flg"))
    E(f"v_or3_b32 v{vT}, v56, v57, v58", f"v_or_b32 v{vT}, v{vT}, v59", "s_nop 0", f"v_readfirstlane_b32 s{sT0}, v{vT}",
      "s_nop 0", f"s_andn2_b32 s{sT0}, s{sT0}, s{sFLAG}", "s_cbranch_scc1 L_slow")
    E(POST[11].dma())
    stamp(); stamp(5)
    GV, XO, XR, BRW, TM = 112, vT, 56, 40, 8
    sacc = lambda ps, n: ((B4, B3), (B2, B5))[ps][n >> 2] + 8*(n & 3)
    sepi = lambda ps, n: pack("v", sacc(ps, n), None) + [pst(sacc(ps, n), 0, ps, n, ("sst", ps))] if n else []
    def SLr(ps, p): return B3 + 4*(p - 1) if ps == 0 else (B4 + 4 + 4*p if p < 7 else B3 + 28)
    def sloads(ps): return [pld(vr(SLr(ps, p), 4), 0, ps, p, ("sl", ps, p)) for p in range(1, 8)]
    sst = [int(x) for x in str(OPT["sst"]).split("_")]
    def fmath(pk, part=2):
        o = []; TQ = 18
        for ps in range(2):
            G_ = GV + 8*ps
            for g in range(8):
                n = 8*ps + g
                for j in range(4): o.append(f"v_accvgpr_read_b32 v{TQ+8+j}, a{aFL+4*n+j}")
                d0 = G_ if g == 0 else TQ
                for j in range(4): o += [f"v_lshlrev_b32 v{d0+2*j}, 16, v{TQ+8+j}", f"v_and_b32 v{d0+2*j+1}, s{sC0}, v{TQ+8+j}"]
                if g and pk: o += [f"v_pk_add_f32 {vr(G_+2*j,2)}, {vr(G_+2*j,2)}, {vr(TQ+2*j,2)}" for j in range(4)]
                elif g: o += [f"v_add_f32 v{G_+j}, v{G_+j}, v{TQ+j}" for j in range(8)]
        if part == 0: return o
        if part == 1: o = []
        for ps in range(2):
            G_ = GV + 8*ps
            for j in range(4): o += [f"v_lshlrev_b32 v{TQ+2*j}, 16, v{BRW+4*ps+j}", f"v_and_b32 v{TQ+2*j+1}, s{sC0}, v{BRW+4*ps+j}"]
            for j in range(8): o.append(f"v_fma_f32 v{G_+j}, v{G_+j}, s{sT0}, v{TQ+j}")
            for j in range(8): o.append(f"v_mul_f32 v{TQ+j}, {f32(-math.log2(math.e))}, v{G_+j}")
            for j in range(8): o.append(f"v_exp_f32 v{TQ+j}, v{TQ+j}")
            for j in range(8): o.append(f"v_add_f32 v{TQ+j}, 1.0, v{TQ+j}")
            for j in range(8): o.append(f"v_rcp_f32 v{TQ+j}, v{TQ+j}")
            for j in range(8): o.append(f"v_mul_f32 v{G_+j}, v{G_+j}, v{TQ+j}")
        return o
    nd = [12]; nr = [7]; hold = [int(x) for x in str(OPT['hold2']).split('_') if x]
    for i, st in enumerate(POST[:30]):
        if i == 0:
            BG.extend([f"v_bfe_u32 v{XO+1}, v0, 4, 2", f"v_lshlrev_b32 v{XO+1}, 3, v{XO+1}", f"v_and_b32 v{TM}, 15, v0",
                       f"v_lshl_add_u32 v{XO}, v{TM}, 10, v{XO+1}", f"s_mov_b32 s{sT0}, {f32(1/CS**2)}",
                       f"v_bfe_u32 v{TM}, v0, 4, 1", f"v_mul_u32_u24 v{TM}, 24, v{TM}", f"v_add_u32 v{XO+2}, v{XO}, v{TM}"])
        if i == OPT["fldo"] and i > 1: BG.extend(FLD[6:])
        if i == (0 if OPT["fbg"] else OPT["xbl"]):
            for k in range(4):
                BG.appendleft(T(f"buffer_load_dwordx2 {vr(XR+2*k,2)}, v{XO}, {sr(sX,4)}, s{sVOFF} offen offset:{(k>>1)*128+(k&1)*32}", "xb"))
                BG.appendleft(T(f"buffer_load_dwordx2 {vr(BRW+2*k,2)}, v{XO+1}, {sr(sB2,4)}, 0 offen offset:{(k>>1)*128+(k&1)*32}", "xb"))
        if i == OPT["fs0"]: BG.extend([W("vm", ("fl", 15))] + fmath(False, 0))
        e = [x for n in range(8) if sst[n * len(sst) // 8] == i for x in sepi(0, n)]
        for x in reversed(e): BG.appendleft(x)
        if i == OPT["lda"]:
            for x in reversed(sloads(0)): BG.appendleft(x)
        d = []
        if nd[0] < 32 and prev(nd[0]) < nr[0]: d = POST[nd[0]].dma(); nd[0] += 1
        nxt = POST[i + 1].breads() + (POST[31].breads() if i == 29 else [])
        want = 32 if i == 29 else min(i + 7, max(i + 2, nr[0] + (0 if i in hold else 1)))
        while nr[0] < min(32, want):
            assert nr[0] < nd[0] - (1 if d else 0) and nr[0] <= i + 6
            nxt = nxt + POST[nr[0]].areads(); nr[0] += 1
        for x in nxt:
            if isinstance(x, T): x.tag = POST[i + 1].tag
        step(st, nxt, d, post=([W("vm", ("sst", 0)), "buffer_wbl2 sc1"] if i == OPT["wb"] and i else []))
        if i == 15: stamp()
        if i % 3 == 2: stamp(5)
    REST = list(BG); BG.clear()
    print("f math left for the tail:", len(REST), file=sys.stderr)
    flush()
    stamp()
    stamp(7)
    E(W("lg", POST[30].tag))
    order = [1, 2, 3, 4, 5, 6, 7, 0]
    for k, n in enumerate(order):
        if k == 1: BG.append("s_nop 1")
        if k >= 2: BG.extend(sepi(1, order[k - 2]))
        gaps([POST[j].one(2*(n >> 2) + h, n & 3) for j in (30, 31) for h in range(2)], [], budget=12)
    flush()
    E(sepi(1, 7))
    stamp(); stamp(7)
    SA, ST_, XT, OP = B0, B0+16, B0+24, B0+40
    def fin():
        E(f"s_mov_b64 s[{sT2}:{sT3}], -1", f"s_mov_b32 s{sT1}, 0")
        for j in range(8): E(f"v_lshlrev_b32 v{XT+2*j}, 16, v{XR+j}", f"v_and_b32 v{XT+2*j+1}, s{sC0}, v{XR+j}")
        E("L_sum:")
        for ps in range(2):
            A_ = SA + 8*ps
            for p in range(1, 8):
                E(W("vm", ("sl", ps, p)))
                for j in range(4): E(f"v_lshlrev_b32 v{ST_+2*j}, 16, v{SLr(ps,p)+j}", f"v_and_b32 v{ST_+2*j+1}, s{sC0}, v{SLr(ps,p)+j}")
                for j in range(4): E(f"v_pk_add_f32 {vr(A_+2*j,2)}, {vr((sacc(ps,0) if p == 1 else A_)+2*j,2)}, {vr(ST_+2*j,2)}")
            E(f"v_pk_add_f32 {vr(ST_,2)}, {vr(A_,2)}, {vr(A_+2,2)}", f"v_pk_add_f32 {vr(ST_+2,2)}, {vr(A_+4,2)}, {vr(A_+6,2)}",
              f"v_pk_add_f32 {vr(ST_,2)}, {vr(ST_,2)}, {vr(ST_+2,2)}", f"v_cmp_u_f32 vcc, v{ST_}, v{ST_+1}")
            for j in range(4): E(f"v_pk_fma_f32 {vr(A_+2*j,2)}, {vr(A_+2*j,2)}, {vr(GV+8*ps+2*j,2)}, {vr(XT+8*ps+2*j,2)}")
            E(f"s_and_b64 vcc, vcc, s[{sT2}:{sT3}]", f"s_cbranch_scc1 L_miss{ps}")
            for j in range(4): E(f"v_cvt_pk_bf16_f32 v{OP+4*ps+j}, v{A_+2*j}, v{A_+2*j+1}")
            if OPT["o16"]:
                E("s_nop 0", f"v_permlane16_swap_b32 v{OP+4*ps}, v{OP+4*ps+2}", f"v_permlane16_swap_b32 v{OP+4*ps+1}, v{OP+4*ps+3}",
                  f"buffer_store_dwordx4 {vr(OP+4*ps,4)}, v{XO+2}, {sr(sOUT,4)}, s{sVOFF} offen offset:{ps*128} {OPT['outsc']}")
            else:
                for k in range(2): E(f"buffer_store_dwordx2 {vr(OP+4*ps+2*k,2)}, v{XO}, {sr(sOUT,4)}, s{sVOFF} offen offset:{ps*128+k*32} {OPT['outsc']}")
            if ps == 0: stamp(); E(f"s_mov_b32 s{sT4}, 0xffff", f"s_cmp_lg_u32 s{sT1}, 0", "s_cbranch_scc1 L_missl", "L_sum1:")
    assert not any(ismem(x) for x in REST)
    REST = REST + [W("vm", "xb")] + (fmath(True, 1) if OPT["fs0"] < 30 else fmath(True))
    cut = min(len(REST), OPT["bdel"])
    if OPT["lda"] >= 30:
        E(REST[:cut//2], sloads(0)); stamp(7); E(REST[cut//2:cut], sloads(1)); stamp(7); E(REST[cut:]); stamp(7)
        if OPT["stamps"] == 7:
            E(W("vm", ("sst", 1))); stamp(7); E(W("vm", ("sl", 0, 1))); stamp(7); E(W("vm", ("sl", 0, 7))); stamp(7); E(W("vm", ("sl", 1, 7))); stamp(7)
    else: E(REST[:cut], sloads(1), REST[cut:])
    fin()
    stamp()
    if OPT["stamps"]:
        E("s_waitcnt vmcnt(0)")
        if OPT["stamps"] != 7: stamp(0)
        E(f"s_lshl_b32 s{sT0}, s2, 2", f"s_add_u32 s{sT0}, s{sT0}, s{sW}", f"s_lshl_b32 s{sT0}, s{sT0}, 6", f"s_add_u32 s{sT0}, s{sT0}, {64<<20}")
        srd(sX, 58, sT0, ("imm", 64))
        E(f"v_mov_b32 v{vT}, 0", "s_memrealtime s[70:71]", "s_waitcnt lgkmcnt(0)", f"s_mov_b32 s87, s70")
        for i in list(range(nstamp[0])) + [14, 15]:
            E(f"v_mov_b32 v{vT+1}, s{sST+i}", f"buffer_store_dword v{vT+1}, v{vT}, {sr(sX,4)}, 0 offen offset:{4*i}")
    if OPT["hold"] >= 0:
        E(f"s_cmp_lg_u32 s2, {OPT['hwg']}", "s_cbranch_scc1 L_main_end", "s_mov_b32 s73, 3000", "L_hold:", "s_memrealtime s[70:71]", "s_waitcnt lgkmcnt(0)",
          "s_sub_u32 s70, s70, s72", "s_sub_u32 s73, s73, 1", "s_cbranch_scc1 L_main_end", "s_cmp_lt_u32 s70, 10000", "s_cbranch_scc1 L_hold")
    E("L_main_end:", "s_endpgm")
    for name, vreg, load, val in SPINS:
        E(f"L_spin_{name}:", f"s_mov_b32 s{sCNT}, {OPT['spin']}", f"L_spinl_{name}:", load, "s_waitcnt vmcnt(0)",
          f"v_cmp_le_u32 vcc, {val}, v{vreg}", f"s_sub_u32 s{sCNT}, s{sCNT}, 1", f"s_cbranch_scc1 L_ok_{name}",
          "s_cmp_eq_u64 vcc, -1", f"s_cbranch_scc0 L_spinl_{name}", f"s_branch L_ok_{name}")
    E("L_miss0:", f"s_mov_b32 s{sT1}, 0xfefe", f"s_mov_b32 s{sT4}, 0xff", "s_branch L_miss", "L_miss1:", f"s_mov_b32 s{sT1}, 0xfe00",
      "L_miss:", f"s_mov_b32 s{sT0}, {SENT:#x}", f"s_mov_b32 s{sCNT}, {OPT['spin']}", "L_missl:", "s_waitcnt vmcnt(0)")
    if OPT["slp"]: E(f"s_sleep {OPT['slp']}")
    for ps in range(2):
        for g in range(1, 8):
            r = SLr(ps, g); bit = 8*ps + g
            E(f"s_bitcmp1_b32 s{sT1}, {bit}", f"s_cbranch_scc0 L_have{bit}",
              f"v_cmp_eq_u32 vcc, s{sT0}, v{r}", f"v_cmp_eq_u32 s[{sT2}:{sT3}], s{sT0}, v{r+1}", f"v_cmp_eq_u32 s[70:71], s{sT0}, v{r+2}", f"s_or_b64 s[{sT2}:{sT3}], vcc, s[{sT2}:{sT3}]",
              f"v_cmp_eq_u32 vcc, s{sT0}, v{r+3}", f"s_or_b64 s[70:71], s[70:71], s[{sT2}:{sT3}]", f"s_bitset0_b32 s{sT1}, {bit}",
              f"s_or_b64 s[70:71], s[70:71], vcc", f"s_cbranch_scc0 L_have{bit}", f"s_bitset1_b32 s{sT1}, {bit}", sloads(ps)[g-1], f"L_have{bit}:")
    E(f"s_sub_u32 s{sCNT}, s{sCNT}, 1", "s_cbranch_scc0 L_missc", "s_waitcnt vmcnt(0)", f"s_mov_b32 s{sT1}, 0", "L_missc:",
      f"s_and_b32 s70, s{sT1}, s{sT4}", "s_cbranch_scc1 L_missl",
      f"s_mov_b64 s[{sT2}:{sT3}], 0", f"s_cmp_eq_u32 s{sT4}, 0xff", "s_cbranch_scc1 L_sum", "s_branch L_sum1")
    E("L_slow:")
    E("s_waitcnt vmcnt(0) lgkmcnt(0)", "s_barrier", f"s_mov_b32 s{sFLAG}, 1", "s_branch L_restart")
    E("L_maxpass:")
    E(f"s_mov_b32 s{sKOFF}, 0", f"s_mov_b32 s{sCNT}, 16", [f"v_mov_b32 v{vM+j}, 0xff800000" for j in range(4)])
    E("L_slow_loop:")
    dk = dma_k(2); E(dk[0], "s_nop 0", dk[2:])
    E("s_waitcnt vmcnt(0)", "s_barrier")
    E(kreads(2))
    E("s_waitcnt lgkmcnt(0)", "s_barrier")
    E(qk(0, B5, True), qk(1, B5 + 16, True))
    E("s_nop 7", "s_nop 7", f"s_add_u32 s{sKOFF}, s{sKOFF}, 8192")
    for rg in range(4):
        s = B5 + 8*rg
        for j in range(0, 8, 2): E(f"v_max3_f32 v{vM+rg}, v{vM+rg}, v{s+j}, v{s+j+1}")
    E(f"s_sub_u32 s{sCNT}, s{sCNT}, 1", f"s_cmp_lg_u32 s{sCNT}, 0", "s_cbranch_scc1 L_slow_loop")
    for rg in range(4): E(xred("v_max_f32", vM+rg, vT))
    E("s_branch L_maxret", "L_code_end:")


DOC = """; ---------------------------------------------------------------------------------------------------------------
; Workgroup (rb, g): 64 rows x KV head g (4 q heads, one per wave) + 224 FFN columns.  4 waves x 512 registers.
;   All products are computed transposed (weights = A operand through LDS-DMA + transposing LDS reads, rows on lanes).
;   (l <= 2^40, NaN included); a workgroup that fails restarts and first computes the true row max over all keys.
;   stores, coherent loads); unit p of every wave belongs to workgroup g^p of the same row block, which finishes
; ---------------------------------------------------------------------------------------------------------------"""
K = NAME + "_kernel"
hdr = open("cdna_kernels/" + NAME + ".s.ref").read().split("; Override launch")[0]
out = [hdr.rstrip()]
out.append("; @launch grid=(256,1,1) block=(256,1,1) lds=163840")
out.append('.amdgcn_target "amdgcn-amd-amdhsa--gfx950"')
out.append(".text")
out.append(DOC)
main_kernel(K)
if OPT["stubs"]:
    import subprocess, tempfile, os, re
    tmp = tempfile.mkdtemp()
    open(tmp + "/a.s", "w").write("\n".join(out + L + [f"L_pg{i}:" for i in range(4)] + ["s_endpgm"]) + "\n")
    subprocess.run(["clang", "-x", "assembler", "-target", "amdgcn-amd-amdhsa", "-mcpu=gfx950", "-c", tmp + "/a.s", "-o", tmp + "/a.o"], check=True)
    dis = subprocess.run(["llvm-objdump", "-d", "--mcpu=gfx950", tmp + "/a.o"], capture_output=True, text=True).stdout
    addrs = [int(m.group(1), 16) for m in re.finditer(r"// ([0-9A-F]{12}):", dis)]
    idx = [i for i, x in enumerate(L) if x.startswith("    ")]
    assert len(addrs) == len(idx) + 1, (len(addrs), len(idx))
    end = L.index("L_main_end:")
    pos = []; page = OPT["pg0"]
    for a_, i in zip(addrs, idx):
        if i >= end: break
        if a_ + 4*len(pos) >= page * 4096 + OPT["pgo"]: pos.append(i); page += 1
    n = len(pos)
    for k in reversed(range(n)):
        L[pos[k]:pos[k]] = [f"L_pg{k}:", f"    s_cbranch_execz {'L_pg%d' % (k+4) if k + 4 < n else 'L_pgret'}"]
out += L
out.append('.section .rodata,"a"')
out.append(f""".p2align 6
.amdhsa_kernel {K}
  .amdhsa_next_free_vgpr 512
  .amdhsa_next_free_sgpr 102
  .amdhsa_accum_offset 256
  .amdhsa_group_segment_fixed_size 0
  .amdhsa_kernarg_size 104
  .amdhsa_user_sgpr_count 2
  .amdhsa_user_sgpr_kernarg_segment_ptr 1
  .amdhsa_system_sgpr_workgroup_id_x 1
.end_amdhsa_kernel""")
print("\n".join(out))
```

```python
import sys, math, struct
from collections import deque
NAME = "recurrent_scan__sliding_block_cached__dense_activation_squared_relu__prompt"
OPT = dict(stamps=0, rt=0, codepf=1, budget=8, thr=40, memc=4, dmac=8, hg=2, rot=8, outsc="", skip="", spin=200000, pfpos=9, pfs="", pf2=28,
           sst="19_20_21_22_23_24_25", dropoob=1, lda=99, npre=12, sp0=4, hw0=12, gb=8, pf1=12, stubs=1, fbg=0, bdel=60, xbl=27, kvrot=0, pg0=2, pgo=0, f2b=12, hold=-1, hwg=100, hold2="24", wol="7_8_9_11_12_13", wopf=5, fldo=1, wo4=0, slp=0, fs0=5, pad=4352, spn=1, pfk=12, fchk=13, mo=2, ao=0, ini=6, wb=0, wop2=11, o16=1, lean=0, qsw=1, eq0=4, pre0=0, mid0=0, bearly=2, lwo=0)
for a in sys.argv[1:]:
    k, v = a.split("="); OPT[k] = int(v) if v.lstrip("-").isdigit() else v

def vr(b, n=1): return f"v{b}" if n == 1 else f"v[{b}:{b+n-1}]"
def ar(b, n=1): return f"a{b}" if n == 1 else f"a[{b}:{b+n-1}]"
def R(kind, b, n=1): return vr(b, n) if kind == "v" else ar(b, n)
def sr(b, n=1): return f"s{b}" if n == 1 else f"s[{b}:{b+n-1}]"
def f32(x): return "0x%08x" % struct.unpack("<I", struct.pack("<f", x))[0]

class W:
    def __init__(s, cnt, tag): s.cnt, s.tag = cnt, tag
class W2:
    def __init__(s, *ws): s.ws = ws
class T:
    def __init__(s, text, tag): s.text, s.tag = text, tag
L = []; VM = []; LG = []
def E(*xs):
    for x in xs:
        if isinstance(x, (list, tuple)): E(*x); continue
        if isinstance(x, W2):
            n0 = len(L)
            for w_ in x.ws: E(w_)
            parts = {}
            for ln in L[n0:]:
                p_ = ln.split()[1]; parts[p_[:2]] = p_
            del L[n0:]
            if parts: L.append("    s_waitcnt " + " ".join(parts[k] for k in ("vm", "lg") if k in parts))
            continue
        if isinstance(x, W):
            q = VM if x.cnt == "vm" else LG
            idx = [i for i, t in enumerate(q) if t == x.tag]
            if not idx: continue
            n = len(q) - 1 - idx[-1]
            n = min(n, 63 if x.cnt == "vm" else 15)
            del q[:len(q) - n]
            L.append(f"    s_waitcnt {'vmcnt' if x.cnt == 'vm' else 'lgkmcnt'}({n})"); continue
        tag = None
        if isinstance(x, T): x, tag = x.text, x.tag
        op = x.split()[0]
        if op.startswith("buffer_") or op.startswith("global_"): VM.append(tag)
        if op.startswith("ds_"): LG.append(tag)
        if op == "s_waitcnt":
            for w in x.split()[1:]:
                n = int(w[w.index("(")+1:-1]); q = VM if w.startswith("vm") else LG
                if len(q) > n: del q[:len(q) - n]
        L.append("    " + x if not x.endswith(":") and not x.startswith(".") else x)
def opof(x):
    if isinstance(x, (list, tuple)): return opof(x[0])
    if isinstance(x, (W, W2)): return "s_waitcnt"
    return (x.text if isinstance(x, T) else x).split()[0]
def ismem(x):
    if isinstance(x, (list, tuple)): return any(ismem(y) for y in x)
    return opof(x).split("_")[0] in ("ds", "buffer", "global")
def isvalu(x): return opof(x).startswith("v_")
def cost(x):
    if isinstance(x, (list, tuple)): return sum(cost(y) for y in x)
    if isinstance(x, (W, W2)): return 4
    t = x.text if isinstance(x, T) else x
    op = t.split()[0]
    assert not op.startswith("v_pk_"), t
    if t.endswith(":"): return 0
    if op in ("v_exp_f32", "v_rcp_f32", "v_sqrt_f32"): return 8
    if op.startswith("buffer_store_dwordx4"): return 24
    if op.startswith("buffer_") or op.startswith("global_"): return OPT["dmac"]
    if op == "s_nop": return 4 * (int(t.split()[1]) + 1)
    if op == "ds_write_b128": return 20
    return 4
BG = deque()
def gaps(mf, plan, budget=None, wr_from=0):
    budget = OPT["budget"] if budget is None else budget
    for g, m in enumerate(mf):
        E(m)
        items = plan[g] if g < len(plan) else []
        endi = [x[1:] for x in items if isinstance(x, tuple) and x[0] == "end"]
        items = [x for x in items if not (isinstance(x, tuple) and x[0] == "end")]
        c = sum(cost(x) for x in items) + sum(cost(x) for x in endi)
        E([x for x in items if not isvalu(x)])
        while True:
            while BG and ismem(BG[0]) and len(PM) < 3: PM.append(BG.popleft())
            if PM and opof(PM[0]).startswith("ds_write") and g < wr_from: break
            if PM and (c + cost(PM[0]) <= budget or c <= OPT["memc"]):
                x = PM.popleft(); E(x); c += cost(x)
            else: break
        E([x for x in items if isvalu(x)])
        while BG:
            if ismem(BG[0]):
                if len(PM) < 3: PM.append(BG.popleft()); continue
                break
            if opof(BG[0]) in ("s_waitcnt", "s_barrier") and PM: break
            if c + cost(BG[0]) > budget: break
            x = BG.popleft(); E(x); c += cost(x)
        E(endi)
PM = deque()
def flush():
    print("flush", len(PM), len(BG), "at line", len(L), file=sys.stderr)
    while PM: E(PM.popleft())
    while BG: E(BG.popleft())
def spread(items, n, per):
    return [items[g*per:(g+1)*per] for g in range(n)]


CS = 128**-0.5 * math.log2(math.e)
X_BASE, R_BASE, NS = 0, 65536, 6
KR_BASE = 32768
FLAG_OFF = 48 << 20
OOB = 0x40000000
PSTR = 131072 + OPT['pad']
SENT = 0xff81ff81
sX, sK, sV, sWQ, sWO, sW1, sW2, sB1, sP = 4, 8, 12, 16, 20, 24, 28, 32, 36
sW, sG, sRB, sRING, sOFF, sCNT, sT0, sT1, sKOFF, sVOFF, sVL, sC0, sT2, sT3, sFLAG, sT4, sROT, sJJ = range(40, 58)
sFL, sDBG, sPR, sB2, sOUT = 60, 64, 88, 92, 96
sST = 72
sLT = 3
sTAB = 16
def stab(p): return sTAB + p if p < 4 else 24 + (p - 4)
vLANE, vTF, vB, vBC, vPUB, vPOLL, vTQ, vDO, vKR, vTV, vDK, vDV, vST, vRD, vM, vL = 1, 2, 6, 8, 10, 11, 12, 14, 18, 22, 26, 28, 30, 31, 32, 36
vDQ, vD1, PFD = 40, 44, 49
vT = 50
B0, B1, B2, B3, B4, B5 = 64, 96, 128, 160, 192, 224
S0, S1, P0, P1, NEGM = B3, (B3+16, B4), (56, B4+16), B4+24, B5
LR = B5 + 16
aO, aVF, aKF, aFL = 0, 128, 160, 192
ONES = vL
LQ = (44, B5+24, B5+28, vM)
def QFr(rg, s_): return B0 + 16*s_ + 4*rg
BIAS = B2 + 16

nstamp = [0]
hcnt = [0]
def stamp(lvl=1):
    if OPT["hold"] >= 0 and lvl in (0, 1):
        if hcnt[0] == OPT["hold"]: E("s_memrealtime s[70:71]", "s_waitcnt lgkmcnt(0)", "s_mov_b32 s72, s70")
        hcnt[0] += 1
    if not OPT["stamps"]: return
    if OPT["stamps"] != lvl and lvl != 0: return
    i = nstamp[0]; nstamp[0] += 1
    assert i < 14
    E("s_memrealtime s[70:71]" if OPT["rt"] else "s_memtime s[70:71]", "s_waitcnt lgkmcnt(0)", f"s_mov_b32 s{sST+i}, s70")

def mfma(dk, d, ak, a, bk, b, c=None, ck=None):
    cs = R(dk, d, 4) if c is None else (str(c) if ck is None else R(ck, c, 4))
    return f"v_mfma_f32_16x16x32_bf16 {R(dk,d,4)}, {R(ak,a,4)}, {R(bk,b,4)}, {cs}"
def kvoff(t):
    return f"s_xor_b32 s{sKOFF}, s{sJJ}, {t*8192}" if OPT["kvrot"] else f"s_mov_b32 s{sKOFF}, {t*8192}"
def dma_k(t):
    return [f"s_add_u32 m0, s{sVL}, {KR_BASE+(t&3)*8192}", kvoff(t),
            T(f"buffer_load_dwordx4 v{vDK}, {sr(sK,4)}, s{sKOFF} offen lds", ("K", t)),
            T(f"buffer_load_dwordx4 v{vDK+1}, {sr(sK,4)}, s{sKOFF} offen offset:1024 lds", ("K", t))]
def dma_v(t):
    return [f"s_add_u32 m0, s{sVL}, {X_BASE+(t&3)*8192}", kvoff(t),
            T(f"buffer_load_dwordx4 v{vDV}, {sr(sV,4)}, s{sKOFF} offen lds", ("V", t)),
            T(f"buffer_load_dwordx4 v{vDV+1}, {sr(sV,4)}, s{sKOFF} offen offset:1024 lds", ("V", t))]

class Stage:
    def __init__(s, idx, mat, j, ps, acc, areg, readb, vb):
        s.idx, s.mat, s.j, s.ps, s.acc, s.areg, s.readb, s.vb = idx, mat, j, ps, acc, areg, readb, vb
        s.slot = idx % NS; s.tag = (mat, ps, j); s.breg = ("a", 16*j)
    def dma(s):
        srd_, vd, stride = {"w1": (sW1, vD1, 3584), "wq": (sWQ, vDQ, 8192), "w2": (sW2, vDO, 1024), "wo": (sWO, vDO, 1024)}[s.mat]
        o = [f"s_add_u32 m0, s{sRING}, {s.slot*4096}", f"s_mov_b32 s{sOFF}, {s.j*32*stride + s.ps*128}"]
        if OPT["rot"] and s.mat == "wq":
            o[1] = [f"s_add_u32 s{sOFF}, s{sROT}, {s.j*32*8192 + s.ps*128}", f"s_and_b32 s{sOFF}, s{sOFF}, {(512*8192-1) & ~256}"]
        if OPT["rot"] and s.mat == "w1":
            o[1] = [f"s_add_u32 s{sOFF}, s{sROT}, {s.j*32*8192}", f"s_bfe_u32 s{sOFF}, s{sOFF}, {(9<<16)|13}", f"s_mul_i32 s{sOFF}, s{sOFF}, 3584"]
        return o + [T(f"buffer_load_dwordx4 v{vd+p}, {sr(srd_,4)}, s{sOFF} offen offset:{p*1024} lds", s.tag) for p in range(4)]
    def areads(s):
        ak, a = s.areg; o = [W("vm", s.tag)]
        for Tt in range(4):
            for t in range(2):
                va, off = (vTQ + (Tt >> 1), 8*(Tt & 1)) if s.mat == "wq" else (vTF + Tt, 0)
                o.append(T(f"ds_read_b64_tr_b16 {R(ak, a+4*Tt+2*t, 2)}, v{va} offset:{s.slot*4096+t*2048+off}", s.tag))
        return o
    def breads(s):
        if not s.readb: return []
        bk, b = s.breg
        return [T(f"ds_read_b128 {R(bk, b+4*rg, 4)}, v{s.vb+(s.j&1)} offset:{s.j*4096+rg*1024}", s.tag) for rg in range(4)]
    def reads(s): return s.breads() + s.areads()
    def one(s, Tt, rg):
        ak, a = s.areg; dk, d = s.acc(Tt, rg)
        c = () if s.j else ((BIAS + 4*Tt, "v") if s.mat == "w1" else (0,))
        return mfma(dk, d, ak, a+4*Tt, s.breg[0], s.breg[1]+4*rg, *c)
    def mf(s):
        if OPT["mo"] == 1: return [s.one(Tt, rg) for rg in range(4) for Tt in range(4)]
        if OPT["mo"] == 2: return [s.one(Tt, rg if Tt % 2 == 0 else 3 - rg) for Tt in range(4) for rg in range(4)]
        return [s.one(Tt, rg) for Tt in range(4) for rg in range(4)]
def step_light(st, nxt_reads, dma, post=()):
    E(W("lg", st.tag))
    plan = [[] for _ in range(8)]
    plan[0] += dma[:2]
    for g, x in zip((1, 3, 5, 7), dma[2:]): plan[g].append(x)
    for k, x in enumerate(nxt_reads): plan[(0, 2, 2, 4, 4, 6, 6, 6, 6)[k]].append(x)
    plan[7] += list(post)
    gaps(st.mf()[:8], plan, budget=16)
def step(st, nxt_reads, dma, post=(), gb=None):
    E(W("lg", st.tag))
    plan = [[] for _ in range(16)]
    q = list(nxt_reads)
    dg = {}
    if dma:
        dg = {0: dma[:2], 3: dma[2:3], 7: dma[3:4]}
        if len(dma) == 6: dg.update({11: dma[4:5], 15: dma[5:6]})
        elif len(dma) == 8: dg.update({9: dma[4:6], 11: dma[6:7], 15: dma[7:8]})
    per = 1 if len(q) <= (16 - len(dg) - 2) else 2
    for g in range(16):
        if g in dg: plan[g] += dg[g]
        else: plan[g] += q[:per]; q = q[per:]
    assert not q
    plan[15] += list(post)
    gaps(st.mf(), plan, budget=gb or OPT["gb"])

def srd(d, ptr, off, size):
    E(f"s_add_u32 s{d}, s{ptr}, s{off}", f"s_addc_u32 s{d+1}, s{ptr+1}, 0")
    if size[0] == "rest": E(f"s_sub_u32 s{d+2}, {size[1]}, s{off}")
    else: E(f"s_mov_b32 s{d+2}, {size[1]}")
    E(f"s_mov_b32 s{d+3}, 0x00020000")

SPINS = []
def check_ready(name, vreg, load, val):
    SPINS.append((name, vreg, load, val))
    return [f"v_cmp_le_u32 vcc, {val}, v{vreg}", ["s_cmp_eq_u64 vcc, -1", f"s_cbranch_scc0 L_spin_{name}", f"L_ok_{name}:"]]
def blk(kind, lo, hi): return lambda Tt, rg: (kind, (lo, hi)[Tt >> 1] + 8*rg + 4*(Tt & 1))
def xred(op, a, b):
    return [f"v_mov_b32 v{b}, v{a}", "s_nop 1", f"v_permlane32_swap_b32 v{a}, v{b}", "s_nop 0", f"{op} v{a}, v{a}, v{b}",
            f"v_mov_b32 v{b}, v{a}", "s_nop 1", f"v_permlane16_swap_b32 v{a}, v{b}", "s_nop 0", f"{op} v{a}, v{a}, v{b}"]

def main_kernel(K):
    PRE = []
    def add(lst, mat, n, ps, acc, aregs, readb, vb):
        for j in range(n): lst.append(Stage(len(lst), mat, j, ps, acc, aregs(len(lst)), readb, vb))
    av = lambda i: ("v", B3 + 16*(i & 1)); aa = lambda i: ("a", 112 + 16*(i & 1))
    add(PRE, "wq", 16, 0, blk("v", B0, B1), av, True, vB)
    add(PRE, "w1", 16, 0, blk("v", B4, B5), av, False, vB)
    add(PRE, "wq", 16, 1, blk("v", B1, B2), av, False, vB)
    add(PRE, "w2", 7, 0, blk("v", B2, B4), aa, True, vBC)
    add(PRE, "w2", 7, 1, blk("a", 192, 224), aa, False, vBC)
    POST = []
    SETS = [("a", aKF), ("a", aKF+16), ("v", B0), ("v", B0+16), ("v", B0+32), ("a", aVF), ("a", aVF+16)]
    ao = lambda i: SETS[i % 7]
    add(POST, "wo", 16, 0, blk("v", B4, B3), ao, True, vB)
    add(POST, "wo", 16, 1, blk("v", B2, B5), ao, False, vB)
    for st in POST:
        if st.idx >= 7: st.slot = (2, 3, 4, 5, 1, 0)[(st.idx - 7) % 6]
    prev = lambda s_: {7: 2, 8: 3, 9: 4, 10: 5, 11: -1}.get(s_, s_ - 6)
    for st in POST:
        if st.j >= 8:
            st.readb = True
            st.breg = ("v", B2 + 16*(st.j & 1)) if st.ps == 0 else ("a", 16*(st.j - 8))

    E(".p2align 12", ".p2align 8", f".globl {K}", f".type {K},@function", f"{K}:")
    E("s_cmp_ge_u32 s2, 256", "s_cbranch_scc1 L_main_end")
    E(f"s_mov_b32 s{sFLAG}, 0", [f"v_mov_b32 v{vM+j}, 0" for j in range(4)])
    E("L_restart:")
    if OPT["stamps"]: E("s_memrealtime s[86:87]")
    stamp(0)
    E("s_load_dwordx8 s[60:67], s[0:1], 0", "s_load_dwordx2 s[68:69], s[0:1], 32", "s_load_dwordx4 s[88:91], s[0:1], 48",
      "s_load_dwordx8 s[92:99], s[0:1], 64", "s_load_dwordx2 s[58:59], s[0:1], 96")
    if OPT["codepf"]:
        E("s_getpc_b64 s[100:101]", "L_pc:", f"s_sub_u32 s100, s100, L_pc-{K}", "s_subb_u32 s101, s101, 0")
        E(f"s_bfe_u32 s{sT0}, s2, 0x30003", f"s_lshl_b32 s{sT0}, s{sT0}, 14", f"v_lshlrev_b32 v{vT}, 6, v0", f"v_add_u32 v{vT}, s{sT0}, v{vT}",
          f"v_min_u32 v{vT}, L_code_end-{K}-4, v{vT}")
        E(f"v_mov_b32 v{vT+1}, s101", f"v_add_co_u32 v{vT}, vcc, s100, v{vT}", "s_nop 1", f"v_addc_co_u32 v{vT+1}, vcc, 0, v{vT+1}, vcc",
          f"global_load_dword v{PFD}, {vr(vT,2)}, off")
    l = vLANE
    pt = 128
    row, c7, t0, t1, t2, t3, t4, cl, zr, bo = range(pt, pt + 10)
    xo = pt + 12
    wa, pw = 58, 60
    def cap(fn):
        global L
        keep = L; L = []; fn(); got = [x.strip() for x in L]; L = keep
        return got
    def srdl(d, ptr, off, size):
        c = cap(lambda: srd(d, ptr, off, size)); return [c[:2], c[2], c[3]]
    E(f"v_lshrrev_b32 v{t0}, 6, v0", f"v_and_b32 v{l}, 63, v0")
    HG = OPT["hg"]; lh = HG.bit_length() - 1
    E(f"s_and_b32 s{sG}, s2, {8//HG-1}", f"s_lshl_b32 s{sG}, s{sG}, {lh}", f"s_bfe_u32 s{sT0}, s2, {(lh<<16)|3}", f"s_or_b32 s{sG}, s{sG}, s{sT0}",
      f"s_lshr_b32 s{sJJ}, s2, {3+lh}", f"s_bfe_u32 s{sRB}, s2, {(lh<<16)|(3-lh)}", f"s_lshl_b32 s{sRB}, s{sRB}, {5-lh}", f"s_or_b32 s{sRB}, s{sRB}, s{sJJ}")
    E(f"v_readfirstlane_b32 s{sW}, v{t0}")
    E(f"v_bfe_u32 v{row}, v0, 3, 3", f"v_lshl_add_u32 v{t1}, v{t0}, 4, v{row}",
      f"v_and_b32 v{c7}, 7, v0", f"v_lshlrev_b32 v{xo}, 4, v{c7}", f"v_lshl_add_u32 v{xo}, v{t1}, 10, v{xo}", f"v_add_u32 v{xo+1}, 8192, v{xo}")
    XS = 8
    if OPT["rot"]:
        if OPT["rot"] == 16: E(f"s_and_b32 s{sROT}, s{sJJ}, 15", f"s_lshr_b32 s{XS}, s{sROT}, 1", f"s_lshl_b32 s{XS}, s{XS}, 7", f"s_and_b32 s{sCNT}, s{sROT}, 1")
        else: E(f"s_and_b32 s{sROT}, s{sJJ}, {OPT['rot']-1}", f"s_mul_i32 s{sROT}, s{sROT}, {8//OPT['rot']}", f"s_lshl_b32 s{XS}, s{sROT}, 7")
        for i in range(1, 8): E(f"s_add_u32 s{XS+i}, s{XS}, {128*i}", f"s_and_b32 s{XS+i}, s{XS+i}, 1023")
        E(f"s_lshl_b32 s{sROT}, s{sROT}, {18 if OPT['rot'] == 16 else 19}")
    if OPT["qsw"]:
        E(f"s_bfe_u32 s{sT0}, s{sRB}, 0x10004", f"s_lshl_b32 s{sT0}, s{sT0}, 7", f"s_add_u32 s{sROT}, s{sROT}, s{sT0}")
    E(f"s_and_b32 s{sJJ}, s{sJJ}, {OPT['kvrot']}", f"s_lshl_b32 s{sJJ}, s{sJJ}, 13")
    natp = lambda p, stride: (16*(p & 1) + 4*(p >> 1)) * stride - p*1024
    def early():
        E(f"s_or_b32 s{sT0}, s{sG}, s{sW}", f"s_or_b32 s{sT0}, s{sT0}, s{sFLAG}", f"s_cmp_eq_u32 s{sT0}, 0", f"s_cselect_b32 s{sT2}, 0, {OOB}",
          f"v_lshlrev_b32 v{cl}, 8, v{row}", f"v_lshl_add_u32 v{cl}, v{c7}, 2, v{cl}", f"v_add_u32 v{cl}, s{sT2}, v{cl}",
          f"v_mov_b32 v{zr}, 0", f"v_mov_b32 v{vL}, s{sT2}", f"v_mov_b32 v{vL+1}, 1")
        E(f"s_mul_i32 s{sRING}, s{sW}, {NS*4096}", f"s_add_u32 s{sRING}, s{sRING}, {R_BASE}", f"s_lshl_b32 s{sVL}, s{sW}, 11", f"s_mov_b32 s{sC0}, 0xffff0000")
        E(f"v_lshrrev_b32 v{t2}, 4, v{l}", f"v_lshlrev_b32 v{t2}, 1, v{t2}", f"v_xor_b32 v{t3}, v{c7}, v{t2}", f"v_lshlrev_b32 v{t1}, 4, v{t3}",
          f"v_lshrrev_b32 v{t0}, 5, v{l}", f"v_and_b32 v{t2}, 3, v{row}", f"v_lshl_add_u32 v{t0}, v{t0}, 3, v{t2}",
          f"s_and_b32 s{sT0}, s{sG}, 1", f"s_mul_i32 s{sT3}, s{sT0}, 65", f"s_or_b32 s{sT3}, s{sT3}, 1", f"s_xor_b32 s{sT0}, s{sT0}, 1", f"s_mul_i32 s{sT0}, s{sT0}, 3",
          f"s_cmp_eq_u32 s{sT0}, s{sW}", f"s_cselect_b32 s{sLT}, s{sT3}, 0", f"s_and_b32 s{sT0}, s{sLT}, 64", f"v_xor_b32 v{t4}, s{sT0}, v{t1}",
          f"v_mul_u32_u24 v{t2}, 3584, v{t0}", f"s_lshl_b32 s{sT4}, s{sW}, 7", f"v_add3_u32 v{vD1}, v{t2}, v{t4}, s{sT4}",
          f"v_lshl_add_u32 v{vDV}, v{row}, 8, v{t1}",
          f"s_lshl_b32 s{sT0}, s{sW}, 8", f"v_add_u32 v{t1}, s{sT0}, v{t1}",
          f"v_lshl_add_u32 v{vDQ}, v{t0}, 13, v{t1}", f"v_lshl_add_u32 v{vDO}, v{row}, 10, v{t1}")
        E(f"v_lshrrev_b32 v{t3}, 2, v{t3}", f"v_and_b32 v{t3}, s{sLT}, v{t3}", f"v_lshl_add_u32 v{vD1}, v{t3}, 30, v{vD1}")
        for p in range(1, 4): E(f"v_add_u32 v{vDQ+p}, {natp(p, 8192)}, v{vDQ}")
        E(f"v_xor_b32 v{t0}, v{row}, v{c7}", f"v_and_b32 v{t1}, 3, v{c7}", f"v_lshl_add_u32 v{t0}, v{t1}, 4, v{t0}", f"v_lshlrev_b32 v{t0}, 4, v{t0}",
          f"v_lshrrev_b32 v{t1}, 2, v{c7}", f"v_lshl_add_u32 v{t0}, v{t1}, 12, v{t0}", f"s_lshl_b32 s{sT0}, s{sW}, 10", f"v_add_u32 v{wa}, s{sT0}, v{t0}")
        if OPT["rot"] == 16:
            E(f"s_lshl_b32 s{sT0}, s{sCNT}, 6", f"v_xor_b32 v{wa}, s{sT0}, v{wa}", f"s_lshl_b32 s{sT0}, s{sCNT}, 12", f"s_sub_u32 s{sT0}, 8192, s{sT0}",
              f"v_add_u32 v{wa}, s{sT0}, v{wa}", f"v_add_u32 v{wa+1}, {65536-8192}, v{wa}", f"v_and_b32 v{wa+1}, 0xffff, v{wa+1}")
        E(f"s_lshl_b32 s{sT0}, s{sRB}, 16", f"s_lshl_b32 s{sT1}, s{sRB}, 12", f"s_add_u32 s{sT1}, s{sT1}, {FLAG_OFF}")
        E(f"s_lshr_b32 s{sT3}, s{sG}, 1", f"s_mul_i32 s{sT3}, s{sT3}, 896", f"s_and_b32 s{sT2}, s{sG}, 1", f"s_mul_i32 s{sT2}, s{sT2}, 384",
          f"s_add_u32 s{sT3}, s{sT3}, s{sT2}")
    EARLY = []
    if OPT["lean"]:
        EARLY = cap(early); E(f"s_lshl_b32 s{sT0}, s{sRB}, 16")
    else: early()
    E("s_waitcnt lgkmcnt(0)")
    srd(sX, 60, sT0, ("imm", 65536))
    RAW = 64; ACCH = B4
    BRW1 = B4
    BLD = [f"v_lshrrev_b32 v{bo}, 4, v{l}", f"v_lshlrev_b32 v{bo}, 3, v{bo}", f"s_lshl_b32 s{sCNT}, s{sW}, 7", f"s_and_b32 s{sKOFF}, s{sLT}, 64", f"s_add_u32 s{sCNT}, s{sCNT}, s{sKOFF}",
           f"s_xor_b32 s{sKOFF}, s{sCNT}, 64"] + \
          [T(f"buffer_load_dwordx2 {vr(BRW1+2*q,2)}, v{bo}, {sr(sB1,4)}, s{sCNT if q < 2 else sKOFF} offen offset:{(q&1)*32}", "bias") for q in range(4)]
    U1 = EARLY + srdl(sB1, 90, sT3, ("rest", 3584)) + (BLD if OPT["bearly"] == 1 else []) + srdl(sP, 58, sT1, ("imm", 1024)) + \
         [T(f"buffer_store_dword v{zr}, v{cl}, {sr(sP,4)}, 0 offen sc1", "clr")] + srdl(sW1, 88, sT3, ("rest", 1835008))
    def trs():
        E(f"v_lshrrev_b32 v{t0}, 2, v{l}", f"v_lshlrev_b32 v{t0}, 7, v{t0}", f"v_bfe_u32 v{t1}, v{l}, 3, 2", f"v_and_b32 v{t2}, 3, v{l}",
          f"v_lshl_add_u32 v{t3}, v{t2}, 3, v{t0}")
        for Tt in range(4):
            E(f"v_xor_b32 v{t4}, {Tt}, v{t1}", f"v_lshl_add_u32 v{vTV+Tt}, v{t4}, 5, v{t3}", f"v_add_u32 v{vTF+Tt}, s{sRING}, v{vTV+Tt}")
        E(f"v_and_b32 v{t3}, 1, v{l}", f"v_lshl_add_u32 v{t3}, v{t3}, 4, v{t0}", f"v_add_u32 v{t3}, s{sRING}, v{t3}", f"v_lshrrev_b32 v{t2}, 1, v{t2}",
          f"v_xor_b32 v{t2}, v{t2}, v{t1}")
        for t32 in range(2): E(f"v_xor_b32 v{t4}, {2*t32}, v{t2}", f"v_lshl_add_u32 v{vTQ+t32}, v{t4}, 5, v{t3}")
        E(f"v_lshrrev_b32 v{t1}, 4, v{l}", f"v_xor_b32 v{t1}, v{t1}, v{l}", f"v_lshlrev_b32 v{vB}, 4, v{t1}", f"v_xor_b32 v{vB+1}, 64, v{vB}")
    U1 += cap(trs)
    U1 += [f"v_lshrrev_b32 v{t3}, 4, v0", f"v_and_b32 v{t4}, 15, v0", f"v_lshlrev_b32 v{pw}, 6, v{t4}", f"v_lshl_add_u32 v{pw}, v{t3}, 13, v{pw}",
           f"v_lshlrev_b32 v{pw+2}, 4, v0", f"v_lshlrev_b32 v{pw+3}, 5, v0", f"v_mul_u32_u24 v{t3}, 3584, v{t3}", f"v_lshl_add_u32 v{pw+1}, v{t4}, 5, v{t3}"]
    WQS = [f"s_lshl_b32 s{sT0}, s{sG}, 10"] + srdl(sWQ, 66, sT0, ("rest", 4194304))
    SP = deque()
    for s_ in range(OPT["ini"]):
        d = PRE[s_].dma(); SP.append(d[:3]); SP.extend(d[3:])
    if OPT["pre0"] or OPT["mid0"]:
        E(WQS)
        for _ in range(OPT["pre0"]): E(SP.popleft())
    else: U1 += WQS
    U1 += [f"s_lshl_b32 s{sT0}, s{sG}, 19"] + srdl(sWO, 68, sT0, ("rest", 4194304))
    U1 += [f"s_mul_i32 s{sT2}, s{sG}, {224*1024}"] + srdl(sW2, 92, sT2, ("rest", 1835008))
    U1 += [x for p in range(1, 4) for x in (f"v_add_u32 v{vD1+p}, {natp(p, 3584)}, v{vD1}", f"v_add_u32 v{vDO+p}, {p*(8*1024-1024)}, v{vDO}")]
    U1 = deque(U1); per = (len(U1) + 15) // 16
    for i in range(8):
        for p in range(2):
            if OPT["rot"]: E(T(f"buffer_load_dwordx4 {vr(RAW+32*p+4*i,4)}, v{xo+p}, {sr(sX,4)}, s{XS+i} offen", ("x", p, i)))
            else: E(T(f"buffer_load_dwordx4 {vr(RAW+32*p+4*i,4)}, v{xo+p}, {sr(sX,4)}, 0 offen offset:{i*128}", ("x", p, i)))
            for _ in range(per):
                if U1: E(U1.popleft())
            if 2*i + p >= 16 - OPT["mid0"]: E(SP.popleft())
    if OPT["bearly"] == 2: E(BLD)
    stamp(2)
    E(f"s_add_u32 s{sT0}, s{sT0}, {1536*256}"); srd(sK, 62, sT0, ("imm", 131072)); srd(sV, 64, sT0, ("imm", 131072))
    srd(sFL, 58, sT1, ("imm", 1024))
    E(f"s_lshl_b32 s{sT0}, s{sRB}, 2"); srd(sDBG, 98, sT0, ("imm", 4))
    if OPT["stubs"]:
        E("s_mov_b64 exec, 0")
        for w_ in range(3): E(f"s_cmp_eq_u32 s{sW}, {w_}", f"s_cbranch_scc1 L_pg{w_}")
        E("s_branch L_pg3", "L_pgret:", "s_mov_b64 exec, -1")
    def later():
        E(f"s_and_b32 s{sT0}, s{sW}, 1", f"s_lshl_b32 s{sT0}, s{sT0}, 12", f"s_lshr_b32 s{sT1}, s{sW}, 1", f"s_lshl_b32 s{sT1}, s{sT1}, 7",
          f"s_add_u32 s{sT0}, s{sT0}, s{sT1}", f"v_add_u32 v{vDV}, s{sT0}, v{vDV}", f"v_add_u32 v{vDV+1}, 1024, v{vDV}")
        E(f"v_lshrrev_b32 v{t0}, 4, v{l}")
        for p in range(2):
            E(f"s_lshl_b32 s{sT0}, s{sW}, 3", f"s_add_u32 s{sT0}, s{sT0}, {4*p}", f"v_add_u32 v{t2}, s{sT0}, v{t0}",
              f"v_xor_b32 v{t3}, v{t2}, v{l}", f"v_and_b32 v{t3}, 15, v{t3}", f"v_lshlrev_b32 v{t3}, 4, v{t3}",
              f"v_lshl_add_u32 v{vDK+p}, v{t2}, 8, v{t3}")
            if p: E(f"v_subrev_u32 v{vDK+p}, 1024, v{vDK+p}")
        E(f"v_and_b32 v{t1}, 15, v{l}", f"v_lshlrev_b32 v{t2}, 8, v{t1}", f"v_add_u32 v{t2}, {KR_BASE}, v{t2}", f"v_xor_b32 v{t1}, v{t1}, v{t0}")
        E(f"s_bfe_u32 s{sT0}, s{sROT}, 0x10007", f"s_lshl_b32 s{sT0}, s{sT0}, 3", f"v_xor_b32 v{t1}, s{sT0}, v{t1}")
        for s_ in range(4): E(f"v_xor_b32 v{t3}, {4*s_}, v{t1}", f"v_lshl_add_u32 v{vKR+s_}, v{t3}, 4, v{t2}")
        E(f"s_lshl_b32 s{sT0}, s{sW}, 14", f"v_lshlrev_b32 v{vST}, 4, v{l}", f"v_add_u32 v{vST}, s{sT0}, v{vST}")
    LATER = cap(later)
    LATER += [f"s_mul_i32 s{sT0}, s{sRB}, {8*PSTR}"] + srdl(sP, 58, sT0, ("imm", 8*PSTR))
    LATER += [f"s_mul_i32 s{sT1}, s{sG}, {PSTR}", f"s_add_u32 s{sT0}, s{sT0}, s{sT1}"] + srdl(sPR, 58, sT0, ("imm", 131072))
    LATER += [f"s_lshr_b32 s{sT1}, s{sG}, 2", f"s_lshl_b32 s{sT1}, s{sT1}, 6", f"s_lshl_b32 s{sT0}, s{sW}, 8", f"s_add_u32 s{sT1}, s{sT1}, s{sT0}"] + srdl(sB2, 94, sT1, ("rest", 1024))
    LATER += [f"s_and_b32 s{sT0}, s{sG}, 3", f"s_lshl_b32 s{sT0}, s{sT0}, 14", f"s_add_u32 s{sVOFF}, s{sT0}, s{sT1}"]
    LATER += [f"s_lshl_b32 s{sT0}, s{sRB}, 16"] + srdl(sOUT, 96, sT0, ("imm", 65536))
    LATER2 = LATER[41:]
    LATER = ([] if OPT["bearly"] else BLD) + LATER[:41]
    LATER.append(W("vm", "bias"))
    for r in range(16):
        LATER.append((f"v_lshlrev_b32 v%d, 16, v{BRW1+r//2}" if r % 2 == 0 else f"v_and_b32 v%d, s{sC0}, v{BRW1+r//2}") % (BIAS+r))
        LATER.append(f"v_mul_f32 v{BIAS+r}, {f32(CS)}, v{BIAS+r}")
    PFS = [[f"s_lshl_b32 s{sT3}, s{sRB}, 17", f"buffer_load_dword v{PFD}, v{pw}, {sr(sWQ,4)}, s{sT3} offen"],
           [f"s_mul_i32 s{sT3}, s{sRB}, 7168", f"buffer_load_dword v{PFD}, v{pw+3}, {sr(sW2,4)}, s{sT3} offen"],
           [f"s_lshl_b32 s{sT3}, s{sRB}, 12", f"buffer_load_dword v{PFD}, v{pw+2}, {sr(sK,4)}, s{sT3} offen"],
           [f"buffer_load_dword v{PFD}, v{pw+2}, {sr(sV,4)}, s{sT3} offen"]]
    if OPT["pfpos"] == 1: SP.extend(PFS)
    if OPT["pfpos"] == 2: SP.append([f"s_mul_i32 s{sT3}, s{sRB}, {16*3584}", f"buffer_load_dword v{PFD}, v{pw+1}, {sr(sW1,4)}, s{sT3} offen"])
    if OPT["pfpos"] == 3: SP.append([f"s_mul_i32 s{sT3}, s{sRB}, {16*3584}", f"buffer_load_dword v{PFD}, v{pw+1}, {sr(sW1,4)}, s{sT3} offen"]); SP.append(PFS[1])
    if OPT["pfpos"] == 4: SP.append(PFS[1])
    PFN = {"q": PFS[0], "w2": PFS[1], "k": PFS[2], "v": [f"s_lshl_b32 s{sT3}, s{sRB}, 12"] + PFS[3],
           "w1": [f"s_mul_i32 s{sT3}, s{sRB}, {16*3584}", f"buffer_load_dword v{PFD}, v{pw+1}, {sr(sW1,4)}, s{sT3} offen"]}
    PFAT = {}
    for it_ in str(OPT["pfs"]).split("_"):
        if it_:
            nm, at = it_.split("@"); PFAT.setdefault(int(at), []).extend(PFN[nm])
    if -1 in PFAT: SP.append(PFAT[-1])
    if -3 in PFAT:
        l_ = list(SP); x_ = PFAT[-3]; SP.clear(); SP.extend(l_[:OPT["pfk"]] + [x_[k:k+2] for k in range(0, len(x_), 2)] + l_[OPT["pfk"]:])
    if -2 in PFAT: SP.appendleft(PFAT[-2])
    nsp = [0]
    def sp(n=1, force=False):
        for _ in range(n):
            if SP and (force or nsp[0] < OPT["npre"]): E(SP.popleft()); nsp[0] += 1
    SUM, SQ = 50, 54
    for i in range(8):
        for p in range(2):
            E(W("vm", ("x", p, i)))
            r = RAW + 32*p + 4*i; u = B2 + 32*p + 4*i; m = SUM + 2*p; q = SQ + 2*p
            for j in range(4): E(f"v_lshlrev_b32 v{u+j}, 16, v{r+j}", f"v_and_b32 v{r+j}, s{sC0}, v{r+j}")
            for k, b_ in enumerate((u, r, u+2, r+2)):
                if i == 0 and k == 0: E(f"v_pk_add_f32 {vr(m,2)}, {vr(u,2)}, {vr(r,2)}", f"v_pk_mul_f32 {vr(q,2)}, {vr(u,2)}, {vr(u,2)}")
                elif i == 0 and k == 1: E(f"v_pk_fma_f32 {vr(q,2)}, {vr(b_,2)}, {vr(b_,2)}, {vr(q,2)}")
                else: E(f"v_pk_add_f32 {vr(m,2)}, {vr(m,2)}, {vr(b_,2)}", f"v_pk_fma_f32 {vr(q,2)}, {vr(b_,2)}, {vr(b_,2)}, {vr(q,2)}")
            if 2*i + p >= OPT["sp0"]: sp(OPT["spn"])
    stamp(2)
    E(W("vm", "clr"), f"buffer_store_dword v{vL+1}, v{vL}, {sr(sDBG,4)}, 0 offen sc1")
    R4 = [SUM, SUM+2, SQ, SQ+2]
    for v in R4: E(f"v_add_f32 v{v}, v{v}, v{v+1}")
    for md in ("quad_perm:[1,0,3,2]", "quad_perm:[2,3,0,1]", "row_half_mirror"):
        for v in R4: E(f"v_add_f32_dpp v{v}, v{v}, v{v} {md} row_mask:0xf bank_mask:0xf")
    def both(fmt): E([fmt.format(m=SUM+2*p, q=SQ+2*p) for p in range(2)])
    both(f"v_mul_f32 v{{m}}, {f32(1/512)}, v{{m}}"); both(f"v_mul_f32 v{{q}}, {f32(1/512)}, v{{q}}")
    both("v_fma_f32 v{q}, -v{m}, v{m}, v{q}"); both("v_max_f32 v{q}, 0, v{q}")
    both("v_cvt_pk_bf16_f32 v{q}, v{q}, v{m}")
    both(f"v_and_b32 v{{m}}, s{sC0}, v{{q}}"); both("v_lshlrev_b32 v{q}, 16, v{q}")
    both(f"v_add_f32 v{{q}}, {f32(1e-5)}, v{{q}}"); both("v_cvt_pk_bf16_f32 v{q}, v{q}, v{q}"); both("v_lshlrev_b32 v{q}, 16, v{q}")
    both("v_sqrt_f32 v{q}, v{q}"); E("s_nop 0"); both("v_cvt_pk_bf16_f32 v{q}, v{q}, v{q}"); both("v_lshlrev_b32 v{q}, 16, v{q}")
    both("v_rcp_f32 v{q}, v{q}"); E("s_nop 0"); both(f"v_mul_f32 v{{q}}, {f32(CS)}, v{{q}}"); both("v_mul_f32 v{m}, v{m}, v{q}")
    stamp(2)
    for i in range(8):
        for p in range(2):
            r = RAW + 32*p + 4*i; u = B2 + 32*p + 4*i
            for b_ in (u, r, u+2, r+2):
                E(f"v_pk_fma_f32 {vr(b_,2)}, {vr(b_,2)}, {vr(SQ+2*p,2)}, {vr(SUM+2*p,2)} op_sel_hi:[1,0,0] neg_lo:[0,0,1] neg_hi:[0,0,1]")
            for j in range(4): E(f"v_cvt_pk_bf16_f32 v{r+j}, v{u+j}, v{r+j}")
            if OPT["rot"] == 16: E(f"ds_write_b128 v{wa+1 if i == 0 else wa}, {vr(r,4)} offset:{max(0, i-1)*8192+p*128}")
            else: E(f"ds_write_b128 v{wa}, {vr(r,4)} offset:{i*8192+p*128}")
    stamp(2)
    sp(99, force=True)
    E(PRE[0].areads())
    E("s_waitcnt lgkmcnt(8)", "s_barrier")
    if OPT["stamps"] < 4: stamp(0)
    E(PRE[0].breads())
    BG.extend(LATER)
    def kreads(t): return [T(f"ds_read_b128 {ar(aKF+8*s_+4*hk,4)}, v{vKR+s_} offset:{(t&3)*8192+hk*4096}", ("kf", t)) for s_ in range(4) for hk in range(2)]
    def vreads(t): return [T(f"ds_read_b64_tr_b16 {ar(aVF+4*T8+2*t_,2)}, v{vTV+(T8&3)} offset:{(t&3)*8192+(T8>>2)*4096+t_*2048}", ("vf", t))
                           for T8 in range(8) for t_ in range(2)]
    def qk(x, dst, zero=False):
        return [mfma("v", dst+8*rl+4*hk, "a", aKF+8*s_+4*hk, "v", QFr(2*x+rl, s_), *(((0,) if zero else (NEGM+4*(2*x+rl), "v")) if s_ == 0 else ()))
                for s_ in range(4) for hk in range(2) for rl in ((0, 1) if (hk == 0 or not OPT["ao"]) else (1, 0))]
    def pv(x, p, zero=False):
        return [mfma("v", LQ[2*x+rl], "v", ONES, "v", p+4*rl, 0 if zero else None) for rl in range(2)] + \
               [mfma("a", aO+64*x+16*(T8>>1)+8*rl+4*(T8&1), "a", aVF+4*T8, "v", p+4*rl, 0 if zero else None) for T8 in range(8) for rl in ((0, 1) if (T8 % 2 == 1 or not OPT["ao"]) else (1, 0))]
    def sm_plan(x, s, p, n=32):
        pl = [[] for _ in range(n)]
        for j in range(16): pl[max(0, 2*j-1) if n == 32 else 2*j+1].append(f"v_exp_f32 v{s+j}, v{s+j}")
        for k in range(8): pl[min(31, 4*k+4) if n == 32 else 4*k+6].append(f"v_cvt_pk_bf16_f32 v{p+k}, v{s+2*k}, v{s+2*k+1}")
        return pl
    vSTX = (vST, vRD, vTQ, vTQ + 1)
    def pst(reg, typ, ps, p, tag=None): return T(f"buffer_store_dwordx4 {vr(reg,4)}, v{vSTX[2*typ+ps]}, {sr(sP,4)}, s{stab(p)} offen{'' if (OPT['wb'] and tag == ('sst', 0)) else ' sc1'}", tag)
    def pld(dst, typ, ps, p, tag): return T(f"buffer_load_dwordx4 {dst}, v{vSTX[2*typ+ps]}, {sr(sPR,4)}, {'0' if p < 4 else 's%d' % sROT} offen offset:{(p&3)*1024} sc1", tag)
    def pack(kind, src, tmp):
        o = []; b = tmp if kind == "a" else src
        if kind == "a":
            for r in range(8): o.append(f"v_accvgpr_read_b32 v{b+r}, a{src+r}")
        return o + [f"v_cvt_pk_bf16_f32 v{b+j}, v{b+2*j}, v{b+2*j+1}" for j in range(4)]
    NP = len(PRE)
    KV = deque([dma_v(0) + dma_k(2), dma_v(1) + dma_k(3), dma_v(2)])
    vHW = vD1
    PZ = vDQ
    POI = [pst(PZ, 0, q // 7, 1 + q % 7) for q in range(14)]
    FTB = lambda n: B5 + 16
    STQ = deque(POI[:5])
    for n in range(8): STQ.extend([pst(B2 + 4*n, 1, 0, n), POI[5 + n]])
    STQ.extend(POI[13:])
    FSQ = deque(pst(FTB(n), 1, 1, n) for n in range(8))
    WA8 = vDQ
    def wa8(sh):
        o = [f"s_and_b32 s{sT0}, s{sG}, 3", f"s_lshl_b32 s{sT0}, s{sT0}, 10", f"s_lshl_b32 s{sT1}, s{sW}, {sh}", f"s_add_u32 s{sT0}, s{sT0}, s{sT1}"]
        for j in range(2):
            o.append(f"v_add_u32 v{WA8+4*j}, s{sT0}, v{vB+j}")
            for rg in range(1, 4): o.append(f"v_xor_b32 v{WA8+4*j+rg}, {rg*1024}, v{WA8+4*j}")
        return o
    nq = [OPT["ini"]]
    HP = lambda n: B4 + 4*n
    LPF = {17: [f"v_lshlrev_b32 v{pw}, 6, v{l}"],
           18: [f"s_lshl_b32 s{sT3}, s{sRB}, 12", f"buffer_load_dword v{PFD}, v{pw}, {sr(sK,4)}, s{sT3} offen", f"buffer_load_dword v{PFD}, v{pw}, {sr(sV,4)}, s{sT3} offen",
                f"s_mul_i32 s{sT3}, s{sRB}, 7168", f"buffer_load_dword v{PFD}, v{pw}, {sr(sW2,4)}, s{sT3} offen", f"s_add_u32 s{sT3}, s{sT3}, 4096",
                f"buffer_load_dword v{PFD}, v{pw}, {sr(sW2,4)}, s{sT3} offen"]}
    if OPT["lwo"]:
        LPF[OPT["lwo"]] = [f"s_lshl_b32 s{sT3}, s{sRB}, 14"] + [y for k in range(4) for y in (f"buffer_load_dword v{PFD}, v{pw}, {sr(sWO,4)}, s{sT3} offen", f"s_add_u32 s{sT3}, s{sT3}, 4096")]
    seq = [(i, False) for i in range(32)] + [(i, True) for i in range(16, 32)] + [(i, False) for i in range(32, NP)]
    snap = {}
    for i, light in seq:
        st = PRE[i]
        if i == 16 and not light:
            flush(); E("s_nop 1", f"s_bitcmp1_b32 s{sLT}, 0", "s_cbranch_scc1 L_light")
            snap["in"] = (list(VM), list(LG), nq[0])
        if i == 16 and light:
            flush(); snap["out"] = (list(VM), list(LG), nq[0])
            E("s_branch L_join", "L_light:")
            VM[:], LG[:], nq[0] = snap["in"][0], snap["in"][1], snap["in"][2]
        if i == 32:
            flush(); E("L_join:")
            assert snap["out"] == (list(VM), list(LG), nq[0]), (snap["out"], VM, LG)
        post = []
        if nq[0] < NP: d = PRE[nq[0]].dma(); nq[0] += 1
        else: d = KV.popleft() if KV else []
        if nq[0] <= i + NS and nq[0] < NP: post = PRE[nq[0]].dma(); nq[0] += 1
        if OPT["pfpos"] == 2 and i == OPT["pf2"]: post = PFS[1] + PFS[2] + PFS[3]
        if OPT["pfpos"] == 2 and i == OPT["pf1"]: post = PFS[0]
        post = post + PFAT.get(i, [])
        if light: post = post + LPF.get(i, [])
        if i == 16:
            post = post + ["s_barrier"]
        if i == 17:
            for j in range(32): BG.append(f"v_cvt_pk_bf16_f32 v{B0+j}, v{B0+2*j}, v{B0+2*j+1}")
            BG.extend([f"s_and_b32 s{sT0}, s{sG}, 1", f"s_lshl_b32 s{sT1}, s{sT0}, 12", f"s_lshl_b32 s{sT0}, s{sT0}, 6"])
            for j in range(2): BG.extend([f"v_xor_b32 v{vBC+j}, s{sT0}, v{vB+j}", f"v_add_u32 v{vBC+j}, s{sT1}, v{vBC+j}"])
            BG.extend([f"s_lshl_b32 s{sT0}, s{sW}, 8", f"s_lshl_b32 s{sT1}, s{sG}, 2", f"s_add_u32 s{sT0}, s{sT0}, s{sT1}",
                       f"v_min_u32 v{vPUB}, 1, v{l}", f"v_lshlrev_b32 v{vPUB}, 30, v{vPUB}", f"v_add_u32 v{vPUB}, s{sT0}, v{vPUB}",
                       f"s_lshl_b32 s{sT0}, s{sW}, 8",
                       f"v_and_b32 v{vPOLL}, 7, v{l}", f"v_lshlrev_b32 v{vPOLL}, 2, v{vPOLL}", f"v_add_u32 v{vPOLL}, s{sT0}, v{vPOLL}",
                       f"v_add_u32 v{vRD}, 8192, v{vST}"])
            for j in range(4): BG.append(f"v_mov_b32 v{ONES+j}, 0x3f803f80")
            BG.extend(LATER2)
        if i == 32: flush()
        if i == 33:
            BG.extend([f"s_lshr_b32 s{sT0}, s{sG}, 2", f"s_lshl_b32 s{sT0}, s{sT0}, 6"])
            for j in range(4): BG.append(f"v_xor_b32 v{vTF+j}, s{sT0}, v{vTF+j}")
            for n in range(8):
                b = ACCH + 8*n
                for r in range(8): BG.append(f"v_max_f32 v{b+r}, 0, v{b+r}")
                for r in range(8): BG.append(f"v_mul_f32 v{b+r}, v{b+r}, v{b+r}")
                for j in range(4): BG.append(f"v_cvt_pk_bf16_f32 v{HP(n)+j}, v{b+2*j}, v{b+2*j+1}")
        if i == 36: post = dma_k(0)
        if i == 38: post = dma_k(1)
        if i == 44: post = [W("vm", ("K", 1)), "s_barrier"]
        if i == 45:
            for x in reversed(kreads(0)): BG.appendleft(x)
        if i == 54: post = ["s_barrier"]
        if i == 56:
            for n in range(8):
                b_ = (B2, B4)[n >> 2] + 8*(n & 3)
                for j in range(4): BG.append(f"v_cvt_pk_bf16_f32 v{B2+4*n+j}, v{b_+2*j}, v{b_+2*j+1}")
        if i == 43:
            BG.extend(wa8(13))
            BG.extend([f"s_and_b32 s{sT0}, s{sLT}, 64", f"s_mul_i32 s{sT0}, s{sT0}, 65"])
            for rg in range(4): BG.extend([f"v_add_u32 v{WA8+4+rg}, 4096, v{WA8+4+rg}", f"v_xor_b32 v{WA8+rg}, s{sT0}, v{WA8+rg}", f"v_xor_b32 v{WA8+4+rg}, s{sT0}, v{WA8+4+rg}"])
        if i == 49:
            for x in reversed([f"v_mov_b32 v{PZ+j}, {SENT:#x}" for j in range(4)] + [f"v_add_u32 v{vTQ}, 65536, v{vST}", f"v_add_u32 v{vTQ+1}, 65536, v{vRD}", f"s_mov_b32 s{sROT}, 4096"] +
                              [y for p in range(8) for y in (f"s_xor_b32 s{stab(p)}, s{sG}, {p}", f"s_mul_i32 s{stab(p)}, s{stab(p)}, {PSTR}", f"s_add_u32 s{stab(p)}, s{stab(p)}, {p*1024}")]):
                BG.appendleft(x)
        if i >= 57: post = post + [STQ.popleft()]
        if light:
            step_light(st, PRE[i + 1].reads()[:(5 if i < 31 else 9)], d, post=post); continue
        step(st, PRE[48].areads() if i == 47 else PRE[i + 1].reads() if i + 1 < NP else [], d, post=post, gb=(OPT["f2b"] if 48 <= i < 54 else None))
        if i in (15, 47): stamp()
        if i in (3, 7, 11, 15, 19, 23, 27, 31, 35, 39, 43): stamp(3)
        if i == 47:
            flush()
            E(W("lg", ("kf", 0)))
            q0, q1 = qk(0, S0, True), qk(1, S1[0], True)
            cv = [f"v_cvt_pk_bf16_f32 v{B1+j}, v{B1+2*j}, v{B1+2*j+1}" for j in range(32)]
            hw = [T(f"ds_write_b128 v{WA8+n}, {vr(HP(n),4)}", "hw") for n in range(8)]
            pl = [[] for _ in range(32)]
            for g in range(2, 13): pl[g] = cv[3*(g-2):3*(g-1)]
            h0 = OPT["hw0"]
            for n in range(8): pl[h0 + 2*n].append(hw[n])
            pl[min(31, h0 + 18)] += [W("lg", "hw"), "s_barrier"] + PRE[48].breads()
            gaps(q0[:8] + q1[:8] + q0[8:] + q1[8:], pl)
            E(f"s_cmp_lg_u32 s{sFLAG}, 0", "s_cbranch_scc1 L_maxpass", "L_maxret:")
            BG.extend(kreads(1))
            for rg in range(4):
                s = (S0, S1[0])[rg >> 1] + 8*(rg & 1); m = vT
                BG.extend([f"v_max3_f32 v{m}, v{s}, v{s+1}, v{s+2}", f"v_max3_f32 v{m}, v{m}, v{s+3}, v{s+4}", f"v_max3_f32 v{m}, v{m}, v{s+5}, v{s+6}",
                           f"v_max_f32 v{m}, v{m}, v{s+7}"] + xred("v_max_f32", m, vT+1))
                BG.extend([[f"s_cmp_lg_u32 s{sFLAG}, 0", "s_cselect_b64 vcc, -1, 0"], "s_nop 0", f"v_cndmask_b32 v{m}, v{m}, v{vM+rg}, vcc"])
                for r in range(4): BG.append(f"v_sub_f32 v{NEGM+4*rg+r}, 0, v{m}")
                for r in range(8): BG.append(f"v_sub_f32 v{s+r}, v{s+r}, v{m}")
            sp0_ = [y for g in sm_plan(0, S0, P0[0]) for y in g]
            BG.extend(sp0_[:-1] + ["s_nop 0"] + sp0_[-1:])
    flush()
    stamp()
    E(W("vm", ("K", 2)), "s_waitcnt lgkmcnt(0)")
    def att_iter(i, x1=(), x2=()):
        if i == 0: E("s_barrier")
        pl = sm_plan(1, S1[i&1], P1)
        x1 = list(x1)
        for g, x in zip((2, 2, 4, 6, 6, 8, 10, 10, 12, 14, 14, 16, 18, 18, 20, 22), vreads(i)): pl[g].append(x)
        if x1:
            pl[22] += x1[:1]; pl[24] += x1[1:2]
            for g, x in zip((26, 28, 30, 31), x1[2:]): pl[g].append(x)
        elif STQ: pl[26].append(STQ.popleft())
        gaps(qk(0, S0) + qk(1, S1[(i+1)&1]), pl)
        pl = sm_plan(0, S0, P0[(i+1)&1], 36)
        pl[1] = [W("lg", ("vf", i))] + pl[1]
        if i + 2 < 16:
            for g, x in zip((2, 2, 4, 4, 6, 8, 8, 10), kreads(i + 2)): pl[g].append(x)
        if i == 14:
            for g, x in zip((2, 2, 4, 4, 6, 8, 8, 10, 12, 12, 14, 16, 16, 18, 20, 20, 22, 24, 24, 24, 26, 28, 28, 30, 32, 34, 35),
                            POST[0].areads() + POST[1].areads() + POST[2].areads()): pl[g].append(x)
        dv = dma_v(i + 3) if i + 3 < 16 else []
        dk = dma_k(i + 5) if i + 5 < 16 else []
        pl[0] += list(x2)
        if STQ: pl[12].append(STQ.popleft())
        if dv: pl[14] += dv[:1]; pl[14] += dv[1:2]; pl[16] += dv[2:3]; pl[20] += dv[3:]
        if dk: pl[22] += dk[:2]; pl[24] += dk[2:3]; pl[28] += dk[3:]
        pl[32] += [W2(W("vm", ("K", i+3)), W("vm", ("V", i+1)), W("lg", ("kf", i+2)))]
        pl[33] = ["s_barrier"] + pl[33]
        mf = pv(0, P0[i&1], zero=(i == 0)) + pv(1, P1, zero=(i == 0))
        gaps(mf[:35], pl[:35])
        flush()
        if FSQ: pl[35].append(FSQ.popleft())
        elif STQ: pl[35].append(STQ.popleft())
        gaps(mf[35:], pl[35:])
    VAL = vT + 3; GATE = vT + 4; POL = vT + 5
    poll = f"buffer_load_dword v{POL}, v{vPOLL}, {sr(sFL,4)}, 0 offen sc1"
    pub = f"buffer_store_dword v{VAL}, v{vPUB}, {sr(sFL,4)}, 0 offen sc1"
    for i in range(15):
        x1 = []; x2 = []
        if i == 0:
            x1 = dma_k(4)
            BG.extend([f"v_lshlrev_b32 v{vT}, 6, v0", f"v_mov_b32 v{vT+1}, 0", f"v_mov_b32 v{VAL}, 1"])
        if i == OPT["wopf"] and not OPT["wo4"]: BG.append([f"s_lshl_b32 s{sT1}, s{sRB}, 14", f"buffer_load_dword v{PFD}, v{vT}, {sr(sWO,4)}, s{sT1} offen"])
        if i == OPT["wop2"]: BG.extend([f"s_xor_b32 s{sT1}, s{sRB}, 16", [f"s_lshl_b32 s{sT1}, s{sT1}, 14", f"buffer_load_dword v{PFD}, v{vT}, {sr(sWO,4)}, s{sT1} offen"]])
        if i < 8: BG.extend(pack("a", 192 + 8*i, FTB(i)))
        gl = f"buffer_load_dword v{GATE}, v{vT+1}, {sr(sDBG,4)}, 0 offen sc1"
        if i == 2: BG.append(T(gl, "gate"))
        if i == 9: BG.extend([W("vm", "gate")] + check_ready("gate", GATE, gl, 1))
        if i == 10: x2 = ["s_waitcnt vmcnt(0)", pub]
        if i == 12: x2 = [T(poll, "fpoll")]
        FLD = [pld(ar(aFL+4*n,4), 1, n >> 3, n & 7, ("fl", n)) for n in range(16)]
        nf1 = 6
        if OPT["fchk"] == 14:
            if i == 14: BG.extend([W("vm", "fpoll")] + check_ready("f", POL, poll, 1) + FLD[:6])
        else:
            nf1 = 16
            if i == 13: BG.extend([W("vm", "fpoll")] + check_ready("f", POL, poll, 1) + FLD[:9])
            if i == 14: BG.extend(FLD[9:])
        wol = [int(x) for x in OPT["wol"].split("_")]
        if i in wol: x1 = POST[wol.index(i)].dma()
        if i >= 3: stamp(4)
        if i < 12: stamp(6)
        if i == 10: assert not STQ and not FSQ, (len(STQ), len(FSQ))
        att_iter(i, x1=x1, x2=x2)
    i = 15
    E(vreads(i))
    WA8 = NEGM
    E(wa8(14))
    pl32 = sm_plan(1, S1[i&1], P1)
    E(pl32[:2])
    mf = pv(0, P0[i&1])
    gaps(mf[:2], [pl32[2] + pl32[3], pl32[4] + pl32[5]])
    E("s_waitcnt lgkmcnt(0)")
    pl = [pl32[6+2*g] + pl32[7+2*g] if g < 13 else [] for g in range(16)]
    pl[0] = ["s_barrier"] + pl[0]
    d6 = POST[6].dma(); d7 = POST[7].dma()
    pl[12] = d6[:2] + pl[12]; pl[13] = d6[2:3]; pl[14] = d6[3:4]; pl[15] = d6[4:5]
    gaps(mf[2:], pl)
    OT = B2
    assert nf1 == 16
    r34 = POST[3].areads()[1:] + POST[4].areads()[1:]
    pl = [d6[5:], [W("vm", POST[4].tag)] + r34[:1]] + [r34[1+2*g:3+2*g] for g in range(8)] + [d7[:2]] + [[x] for x in d7[2:]]
    pl += [[f"v_rcp_f32 v{LR+2*rg}, v{LQ[rg]}"] for rg in range(3)]
    gaps(pv(1, P1), pl)
    E(f"v_rcp_f32 v{LR+6}, v{LQ[3]}")
    E(f"v_add_f32 v{vT+1}, v{LQ[0]}, v{LQ[1]}", f"v_add_f32 v{vT+2}, v{LQ[2]}, v{LQ[3]}", f"s_mov_b32 s{sT1}, {f32(2.0**OPT['thr'])}", f"v_add_f32 v{vT+1}, v{vT+1}, v{vT+2}",
      f"v_cmp_nge_f32 vcc, s{sT1}, v{vT+1}", f"v_and_b32 v{vT+2}, 3, v{l}", f"v_mul_u32_u24 v{vT+2}, {NS*4096}, v{vT+2}",
      "s_cmp_lg_u64 vcc, 0", f"s_cselect_b32 s{sT1}, 1, 0", f"v_mov_b32 v{vT}, s{sT1}",
      f"s_lshl_b32 s{sT1}, s{sW}, 2", f"s_add_u32 s{sT1}, s{sT1}, {R_BASE}", f"v_add_u32 v{vT+2}, s{sT1}, v{vT+2}", f"v_mov_b32 v{vT+1}, s{sRING}",
      f"ds_write_b32 v{vT+2}, v{vT} offset:{1*4096}")
    E(POST[5].areads())
    stamp()
    EQ = deque()
    for st_, w_ in ((8, 4), (9, 4), (10, 5)):
        d_ = POST[st_].dma(); EQ.append([W("lg", POST[w_].tag)] + d_[:3]); EQ.extend(d_[3:])
    for n in range(16):
        x, T32, rl = n >> 3, (n >> 1) & 3, n & 1
        b = OT + 8*(n & 7); rg = 2*x + rl
        for r in range(8): E(f"v_accvgpr_read_b32 v{b+r}, a{aO+8*n+r}")
        for j in range(4): E(f"v_pk_mul_f32 {vr(b+2*j,2)}, {vr(b+2*j,2)}, {vr(LR+2*rg,2)} op_sel_hi:[1,0]")
        for j in range(4): E(f"v_cvt_pk_bf16_f32 v{b+j}, v{b+2*j}, v{b+2*j+1}")
        E(f"ds_write_b128 v{WA8+4*(T32&1)+rg}, {vr(b,4)} offset:{T32*4096}")
        if n >= OPT["eq0"] and EQ: E(EQ.popleft())
    while EQ: E(EQ.popleft())
    E(POST[6].areads())
    E("s_waitcnt lgkmcnt(0)", "s_barrier")
    E(T(f"ds_read_b128 {vr(56,4)}, v{vT+1} offset:{1*4096}", "flg"), POST[0].breads())
    E(W("lg", "flg"))
    E(f"v_or3_b32 v{vT}, v56, v57, v58", f"v_or_b32 v{vT}, v{vT}, v59", "s_nop 0", f"v_readfirstlane_b32 s{sT0}, v{vT}",
      "s_nop 0", f"s_andn2_b32 s{sT0}, s{sT0}, s{sFLAG}", "s_cbranch_scc1 L_slow")
    E(POST[11].dma())
    stamp(); stamp(5)
    GV, XO, XR, BRW, TM = 112, vT, 56, 40, 8
    sacc = lambda ps, n: ((B4, B3), (B2, B5))[ps][n >> 2] + 8*(n & 3)
    sepi = lambda ps, n: pack("v", sacc(ps, n), None) + [pst(sacc(ps, n), 0, ps, n, ("sst", ps))] if n else []
    def SLr(ps, p): return B3 + 4*(p - 1) if ps == 0 else (B4 + 4 + 4*p if p < 7 else B3 + 28)
    def sloads(ps): return [pld(vr(SLr(ps, p), 4), 0, ps, p, ("sl", ps, p)) for p in range(1, 8)]
    sst = [int(x) for x in str(OPT["sst"]).split("_")]
    def fmath(pk, part=2):
        o = []; TQ = 18
        for ps in range(2):
            G_ = GV + 8*ps
            for g in range(8):
                n = 8*ps + g
                for j in range(4): o.append(f"v_accvgpr_read_b32 v{TQ+8+j}, a{aFL+4*n+j}")
                d0 = G_ if g == 0 else TQ
                for j in range(4): o += [f"v_lshlrev_b32 v{d0+2*j}, 16, v{TQ+8+j}", f"v_and_b32 v{d0+2*j+1}, s{sC0}, v{TQ+8+j}"]
                if g and pk: o += [f"v_pk_add_f32 {vr(G_+2*j,2)}, {vr(G_+2*j,2)}, {vr(TQ+2*j,2)}" for j in range(4)]
                elif g: o += [f"v_add_f32 v{G_+j}, v{G_+j}, v{TQ+j}" for j in range(8)]
        if part == 0: return o
        if part == 1: o = []
        for ps in range(2):
            G_ = GV + 8*ps
            for j in range(4): o += [f"v_lshlrev_b32 v{TQ+2*j}, 16, v{BRW+4*ps+j}", f"v_and_b32 v{TQ+2*j+1}, s{sC0}, v{BRW+4*ps+j}"]
            for j in range(8): o.append(f"v_fma_f32 v{G_+j}, v{G_+j}, s{sT0}, v{TQ+j}")
            for j in range(8): o.append(f"v_mul_f32 v{TQ+j}, {f32(-math.log2(math.e))}, v{G_+j}")
            for j in range(8): o.append(f"v_exp_f32 v{TQ+j}, v{TQ+j}")
            for j in range(8): o.append(f"v_add_f32 v{TQ+j}, 1.0, v{TQ+j}")
            for j in range(8): o.append(f"v_rcp_f32 v{TQ+j}, v{TQ+j}")
            for j in range(8): o.append(f"v_mul_f32 v{G_+j}, v{G_+j}, v{TQ+j}")
        return o
    nd = [12]; nr = [7]; hold = [int(x) for x in str(OPT['hold2']).split('_') if x]
    for i, st in enumerate(POST[:30]):
        if i == 0:
            BG.extend([f"v_bfe_u32 v{XO+1}, v0, 4, 2", f"v_lshlrev_b32 v{XO+1}, 3, v{XO+1}", f"v_and_b32 v{TM}, 15, v0",
                       f"v_lshl_add_u32 v{XO}, v{TM}, 10, v{XO+1}", f"s_mov_b32 s{sT0}, {f32(1/CS**2)}",
                       f"v_bfe_u32 v{TM}, v0, 4, 1", f"v_mul_u32_u24 v{TM}, 24, v{TM}", f"v_add_u32 v{XO+2}, v{XO}, v{TM}"])
        if i == OPT["fldo"] and i > 1: BG.extend(FLD[6:])
        if i == (0 if OPT["fbg"] else OPT["xbl"]):
            for k in range(4):
                BG.appendleft(T(f"buffer_load_dwordx2 {vr(XR+2*k,2)}, v{XO}, {sr(sX,4)}, s{sVOFF} offen offset:{(k>>1)*128+(k&1)*32}", "xb"))
                BG.appendleft(T(f"buffer_load_dwordx2 {vr(BRW+2*k,2)}, v{XO+1}, {sr(sB2,4)}, 0 offen offset:{(k>>1)*128+(k&1)*32}", "xb"))
        if i == OPT["fs0"]: BG.extend([W("vm", ("fl", 15))] + fmath(False, 0))
        e = [x for n in range(8) if sst[n * len(sst) // 8] == i for x in sepi(0, n)]
        for x in reversed(e): BG.appendleft(x)
        if i == OPT["lda"]:
            for x in reversed(sloads(0)): BG.appendleft(x)
        d = []
        if nd[0] < 32 and prev(nd[0]) < nr[0]: d = POST[nd[0]].dma(); nd[0] += 1
        nxt = POST[i + 1].breads() + (POST[31].breads() if i == 29 else [])
        want = 32 if i == 29 else min(i + 7, max(i + 2, nr[0] + (0 if i in hold else 1)))
        while nr[0] < min(32, want):
            assert nr[0] < nd[0] - (1 if d else 0) and nr[0] <= i + 6
            nxt = nxt + POST[nr[0]].areads(); nr[0] += 1
        for x in nxt:
            if isinstance(x, T): x.tag = POST[i + 1].tag
        step(st, nxt, d, post=([W("vm", ("sst", 0)), "buffer_wbl2 sc1"] if i == OPT["wb"] and i else []))
        if i == 15: stamp()
        if i % 3 == 2: stamp(5)
    REST = list(BG); BG.clear()
    print("f math left for the tail:", len(REST), file=sys.stderr)
    flush()
    stamp()
    stamp(7)
    E(W("lg", POST[30].tag))
    order = [1, 2, 3, 4, 5, 6, 7, 0]
    for k, n in enumerate(order):
        if k == 1: BG.append("s_nop 1")
        if k >= 2: BG.extend(sepi(1, order[k - 2]))
        gaps([POST[j].one(2*(n >> 2) + h, n & 3) for j in (30, 31) for h in range(2)], [], budget=12)
    flush()
    E(sepi(1, 7))
    stamp(); stamp(7)
    SA, ST_, XT, OP = B0, B0+16, B0+24, B0+40
    def fin():
        E(f"s_mov_b64 s[{sT2}:{sT3}], -1", f"s_mov_b32 s{sT1}, 0")
        for j in range(8): E(f"v_lshlrev_b32 v{XT+2*j}, 16, v{XR+j}", f"v_and_b32 v{XT+2*j+1}, s{sC0}, v{XR+j}")
        E("L_sum:")
        for ps in range(2):
            A_ = SA + 8*ps
            for p in range(1, 8):
                E(W("vm", ("sl", ps, p)))
                for j in range(4): E(f"v_lshlrev_b32 v{ST_+2*j}, 16, v{SLr(ps,p)+j}", f"v_and_b32 v{ST_+2*j+1}, s{sC0}, v{SLr(ps,p)+j}")
                for j in range(4): E(f"v_pk_add_f32 {vr(A_+2*j,2)}, {vr((sacc(ps,0) if p == 1 else A_)+2*j,2)}, {vr(ST_+2*j,2)}")
            E(f"v_pk_add_f32 {vr(ST_,2)}, {vr(A_,2)}, {vr(A_+2,2)}", f"v_pk_add_f32 {vr(ST_+2,2)}, {vr(A_+4,2)}, {vr(A_+6,2)}",
              f"v_pk_add_f32 {vr(ST_,2)}, {vr(ST_,2)}, {vr(ST_+2,2)}", f"v_cmp_u_f32 vcc, v{ST_}, v{ST_+1}")
            for j in range(4): E(f"v_pk_fma_f32 {vr(A_+2*j,2)}, {vr(A_+2*j,2)}, {vr(GV+8*ps+2*j,2)}, {vr(XT+8*ps+2*j,2)}")
            E(f"s_and_b64 vcc, vcc, s[{sT2}:{sT3}]", f"s_cbranch_scc1 L_miss{ps}")
            for j in range(4): E(f"v_cvt_pk_bf16_f32 v{OP+4*ps+j}, v{A_+2*j}, v{A_+2*j+1}")
            if OPT["o16"]:
                E("s_nop 0", f"v_permlane16_swap_b32 v{OP+4*ps}, v{OP+4*ps+2}", f"v_permlane16_swap_b32 v{OP+4*ps+1}, v{OP+4*ps+3}",
                  f"buffer_store_dwordx4 {vr(OP+4*ps,4)}, v{XO+2}, {sr(sOUT,4)}, s{sVOFF} offen offset:{ps*128} {OPT['outsc']}")
            else:
                for k in range(2): E(f"buffer_store_dwordx2 {vr(OP+4*ps+2*k,2)}, v{XO}, {sr(sOUT,4)}, s{sVOFF} offen offset:{ps*128+k*32} {OPT['outsc']}")
            if ps == 0: stamp(); E(f"s_mov_b32 s{sT4}, 0xffff", f"s_cmp_lg_u32 s{sT1}, 0", "s_cbranch_scc1 L_missl", "L_sum1:")
    assert not any(ismem(x) for x in REST)
    REST = REST + [W("vm", "xb")] + (fmath(True, 1) if OPT["fs0"] < 30 else fmath(True))
    cut = min(len(REST), OPT["bdel"])
    if OPT["lda"] >= 30:
        E(REST[:cut//2], sloads(0)); stamp(7); E(REST[cut//2:cut], sloads(1)); stamp(7); E(REST[cut:]); stamp(7)
        if OPT["stamps"] == 7:
            E(W("vm", ("sst", 1))); stamp(7); E(W("vm", ("sl", 0, 1))); stamp(7); E(W("vm", ("sl", 0, 7))); stamp(7); E(W("vm", ("sl", 1, 7))); stamp(7)
    else: E(REST[:cut], sloads(1), REST[cut:])
    fin()
    stamp()
    if OPT["stamps"]:
        E("s_waitcnt vmcnt(0)")
        if OPT["stamps"] != 7: stamp(0)
        E(f"s_lshl_b32 s{sT0}, s2, 2", f"s_add_u32 s{sT0}, s{sT0}, s{sW}", f"s_lshl_b32 s{sT0}, s{sT0}, 6", f"s_add_u32 s{sT0}, s{sT0}, {64<<20}")
        srd(sX, 58, sT0, ("imm", 64))
        E(f"v_mov_b32 v{vT}, 0", "s_memrealtime s[70:71]", "s_waitcnt lgkmcnt(0)", f"s_mov_b32 s87, s70")
        for i in list(range(nstamp[0])) + [14, 15]:
            E(f"v_mov_b32 v{vT+1}, s{sST+i}", f"buffer_store_dword v{vT+1}, v{vT}, {sr(sX,4)}, 0 offen offset:{4*i}")
    if OPT["hold"] >= 0:
        E(f"s_cmp_lg_u32 s2, {OPT['hwg']}", "s_cbranch_scc1 L_main_end", "s_mov_b32 s73, 3000", "L_hold:", "s_memrealtime s[70:71]", "s_waitcnt lgkmcnt(0)",
          "s_sub_u32 s70, s70, s72", "s_sub_u32 s73, s73, 1", "s_cbranch_scc1 L_main_end", "s_cmp_lt_u32 s70, 10000", "s_cbranch_scc1 L_hold")
    E("L_main_end:", "s_endpgm")
    for name, vreg, load, val in SPINS:
        E(f"L_spin_{name}:", f"s_mov_b32 s{sCNT}, {OPT['spin']}", f"L_spinl_{name}:", load, "s_waitcnt vmcnt(0)",
          f"v_cmp_le_u32 vcc, {val}, v{vreg}", f"s_sub_u32 s{sCNT}, s{sCNT}, 1", f"s_cbranch_scc1 L_ok_{name}",
          "s_cmp_eq_u64 vcc, -1", f"s_cbranch_scc0 L_spinl_{name}", f"s_branch L_ok_{name}")
    E("L_miss0:", f"s_mov_b32 s{sT1}, 0xfefe", f"s_mov_b32 s{sT4}, 0xff", "s_branch L_miss", "L_miss1:", f"s_mov_b32 s{sT1}, 0xfe00",
      "L_miss:", f"s_mov_b32 s{sT0}, {SENT:#x}", f"s_mov_b32 s{sCNT}, {OPT['spin']}", "L_missl:", "s_waitcnt vmcnt(0)")
    if OPT["slp"]: E(f"s_sleep {OPT['slp']}")
    for ps in range(2):
        for g in range(1, 8):
            r = SLr(ps, g); bit = 8*ps + g
            E(f"s_bitcmp1_b32 s{sT1}, {bit}", f"s_cbranch_scc0 L_have{bit}",
              f"v_cmp_eq_u32 vcc, s{sT0}, v{r}", f"v_cmp_eq_u32 s[{sT2}:{sT3}], s{sT0}, v{r+1}", f"v_cmp_eq_u32 s[70:71], s{sT0}, v{r+2}", f"s_or_b64 s[{sT2}:{sT3}], vcc, s[{sT2}:{sT3}]",
              f"v_cmp_eq_u32 vcc, s{sT0}, v{r+3}", f"s_or_b64 s[70:71], s[70:71], s[{sT2}:{sT3}]", f"s_bitset0_b32 s{sT1}, {bit}",
              f"s_or_b64 s[70:71], s[70:71], vcc", f"s_cbranch_scc0 L_have{bit}", f"s_bitset1_b32 s{sT1}, {bit}", sloads(ps)[g-1], f"L_have{bit}:")
    E(f"s_sub_u32 s{sCNT}, s{sCNT}, 1", "s_cbranch_scc0 L_missc", "s_waitcnt vmcnt(0)", f"s_mov_b32 s{sT1}, 0", "L_missc:",
      f"s_and_b32 s70, s{sT1}, s{sT4}", "s_cbranch_scc1 L_missl",
      f"s_mov_b64 s[{sT2}:{sT3}], 0", f"s_cmp_eq_u32 s{sT4}, 0xff", "s_cbranch_scc1 L_sum", "s_branch L_sum1")
    E("L_slow:")
    E("s_waitcnt vmcnt(0) lgkmcnt(0)", "s_barrier", f"s_mov_b32 s{sFLAG}, 1", "s_branch L_restart")
    E("L_maxpass:")
    E(f"s_mov_b32 s{sKOFF}, 0", f"s_mov_b32 s{sCNT}, 16", [f"v_mov_b32 v{vM+j}, 0xff800000" for j in range(4)])
    E("L_slow_loop:")
    dk = dma_k(2); E(dk[0], "s_nop 0", dk[2:])
    E("s_waitcnt vmcnt(0)", "s_barrier")
    E(kreads(2))
    E("s_waitcnt lgkmcnt(0)", "s_barrier")
    E(qk(0, B5, True), qk(1, B5 + 16, True))
    E("s_nop 7", "s_nop 7", f"s_add_u32 s{sKOFF}, s{sKOFF}, 8192")
    for rg in range(4):
        s = B5 + 8*rg
        for j in range(0, 8, 2): E(f"v_max3_f32 v{vM+rg}, v{vM+rg}, v{s+j}, v{s+j+1}")
    E(f"s_sub_u32 s{sCNT}, s{sCNT}, 1", f"s_cmp_lg_u32 s{sCNT}, 0", "s_cbranch_scc1 L_slow_loop")
    for rg in range(4): E(xred("v_max_f32", vM+rg, vT))
    E("s_branch L_maxret", "L_code_end:")


DOC = """; ---------------------------------------------------------------------------------------------------------------
; Workgroup (rb, g): 64 rows x KV head g (4 q heads, one per wave) + 224 FFN columns.  4 waves x 512 registers.
;   LayerNorm -> Q (2 column passes) / FFN1 / FFN2 -> attention over the 512-key window -> output projection.
;   All products are computed transposed (weights = A operand through LDS-DMA + transposing LDS reads, rows on lanes).
;   (l <= 2^40, NaN included); a workgroup that fails restarts and first computes the true row max over all keys.
; Split-K over the 8 head groups: bf16 partials of the FFN and attention outputs go through d_ws (write-through
;   stores, coherent loads); unit p of every wave belongs to workgroup g^p of the same row block, which finishes
;   out = x + s * silu(f + b2).  FFN partials: per-wave flags (cleared by workgroup g=0, gate word in d_debug).
; ---------------------------------------------------------------------------------------------------------------"""
K = NAME + "_kernel"
hdr = open("cdna_kernels/" + NAME + ".s.ref").read().split("; Override launch")[0]
out = [hdr.rstrip()]
out.append("; @launch grid=(256,1,1) block=(256,1,1) lds=163840")
out.append('.amdgcn_target "amdgcn-amd-amdhsa--gfx950"')
out.append(".text")
out.append(DOC)
main_kernel(K)
if OPT["stubs"]:
    import subprocess, tempfile, os, re
    tmp = tempfile.mkdtemp()
    open(tmp + "/a.s", "w").write("\n".join(out + L + [f"L_pg{i}:" for i in range(4)] + ["s_endpgm"]) + "\n")
    subprocess.run(["clang", "-x", "assembler", "-target", "amdgcn-amd-amdhsa", "-mcpu=gfx950", "-c", tmp + "/a.s", "-o", tmp + "/a.o"], check=True)
    dis = subprocess.run(["llvm-objdump", "-d", "--mcpu=gfx950", tmp + "/a.o"], capture_output=True, text=True).stdout
    addrs = [int(m.group(1), 16) for m in re.finditer(r"// ([0-9A-F]{12}):", dis)]
    idx = [i for i, x in enumerate(L) if x.startswith("    ")]
    assert len(addrs) == len(idx) + 1, (len(addrs), len(idx))
    end = L.index("L_main_end:")
    pos = []; page = OPT["pg0"]
    for a_, i in zip(addrs, idx):
        if i >= end: break
        if a_ + 4*len(pos) >= page * 4096 + OPT["pgo"]: pos.append(i); page += 1
    n = len(pos)
    for k in reversed(range(n)):
        L[pos[k]:pos[k]] = [f"L_pg{k}:", f"    s_cbranch_execz {'L_pg%d' % (k+4) if k + 4 < n else 'L_pgret'}"]
out += L
out.append('.section .rodata,"a"')
out.append(f""".p2align 6
.amdhsa_kernel {K}
  .amdhsa_next_free_vgpr 512
  .amdhsa_next_free_sgpr 102
  .amdhsa_accum_offset 256
  .amdhsa_group_segment_fixed_size 0
  .amdhsa_kernarg_size 104
  .amdhsa_user_sgpr_count 2
  .amdhsa_user_sgpr_kernarg_segment_ptr 1
  .amdhsa_system_sgpr_workgroup_id_x 1
.end_amdhsa_kernel""")
print("\n".join(out))
```
